```python
import torch

def _softmax(x, axis=-1):
    return torch.softmax(x, dim=axis)
def _gelu(x):
    return torch.nn.functional.gelu(x, approximate="tanh")
def _silu(x):
    return torch.nn.functional.silu(x)
def _sigmoid(x):
    return torch.sigmoid(x)
def _layernorm(x, axis=-1, eps=1e-5):
    m = x.mean(dim=axis, keepdim=True)
    v = x.var(dim=axis, keepdim=True, unbiased=False)
    return (x - m) / torch.sqrt(v + eps)
def _scatter_add(tgt, idx, src, axis=0):
    return tgt.clone().index_add_(axis, idx, src)
def _segment_sum(src, seg, n):
    out = torch.zeros((n,) + src.shape[1:], dtype=src.dtype)
    return out.index_add_(0, seg, src)
def _pad(x, pw):
    flat = tuple(v for pair in reversed(pw) for v in pair)
    return torch.nn.functional.pad(x, flat)

kernel_name = 'concat_heads__mha_block_cached__gqa_block_cached__near_ridge'

def setup_inputs():

    _w = (lambda a: (lambda t: t.to(torch.bfloat16) if t.is_floating_point() else t)(torch.as_tensor(a)))
    def _A_setup():
        B, Sq, D = 16, 96, 1024
        H, Sk, Dh = 32, 512, 128
        return {
            "x": _w((lambda *s: torch.randn(*s, dtype=torch.bfloat16) * 0.8)(B, Sq, D)),
            "k_cache": _w((lambda *s: torch.randn(*s, dtype=torch.bfloat16) * 0.8)(B, H, Sk, Dh)),
            "v_cache": _w((lambda *s: torch.randn(*s, dtype=torch.bfloat16) * 0.05)(B, H, Sk, Dh)),
            "wq": _w((lambda *s: torch.randn(*s, dtype=torch.bfloat16) * 0.8)(D, H * Dh) * (D ** -0.5)),
            "wo": _w((lambda *s: torch.randn(*s, dtype=torch.bfloat16) * 0.05)(H * Dh, D) * ((H * Dh) ** -0.5)),
        }
    _A_in = _A_setup()

    def _B_setup():
        B, Sq, D = 16, 96, 1024
        Hq, Hkv, Sk, Dh = 32, 32, 512, 128
        assert Hq % Hkv == 0, (Hq, Hkv)
        return {
            "x": _w((lambda *s: torch.randn(*s, dtype=torch.bfloat16) * 0.8)(B, Sq, D)),
            "k_cache": _w((lambda *s: torch.randn(*s, dtype=torch.bfloat16) * 0.8)(B, Hkv, Sk, Dh)),
            "v_cache": _w((lambda *s: torch.randn(*s, dtype=torch.bfloat16) * 0.05)(B, Hkv, Sk, Dh)),
            "wq": _w((lambda *s: torch.randn(*s, dtype=torch.bfloat16) * 0.8)(D, Hq * Dh) * (D ** -0.5)),
            "wo": _w((lambda *s: torch.randn(*s, dtype=torch.bfloat16) * 0.05)(Hq * Dh, D) * ((Hq * Dh) ** -0.5)),
        }
    _B_in = _B_setup()

    return {
        "A_x": _A_in["x"],
        "A_k_cache": _A_in["k_cache"],
        "A_v_cache": _A_in["v_cache"],
        "A_wq": _A_in["wq"],
        "A_wo": _A_in["wo"],
        "B_x": _B_in["x"],
        "B_k_cache": _B_in["k_cache"],
        "B_v_cache": _B_in["v_cache"],
        "B_wq": _B_in["wq"],
        "B_wo": _B_in["wo"],
    }

def reference(A_x, A_k_cache, A_v_cache, A_wq, A_wo, B_x, B_k_cache, B_v_cache, B_wq, B_wo):
    def _A_ref(x, k_cache, v_cache, wq, wo):
        B, Sq, D = x.shape
        H, Dh = 32, 128
        q = (lambda x, *d: x.permute(*d))((x @ wq).reshape(B, Sq, H, Dh), 0, 2, 1, 3)
        scores = torch.einsum("bhqd,bhkd->bhqk", q, k_cache) * (Dh ** -0.5)
        p = _softmax(scores, axis=-1)
        o = torch.einsum("bhqk,bhkd->bhqd", p, v_cache)
        return (lambda x, *d: x.permute(*d))(o, 0, 2, 1, 3).reshape(B, Sq, H * Dh) @ wo

    def _B_ref(x, k_cache, v_cache, wq, wo):
        B, Sq, D = x.shape
        Hq, Dh = 32, 128
        Hkv = k_cache.shape[1]
        rep = Hq // Hkv
        q = (lambda x, *d: x.permute(*d))((x @ wq).reshape(B, Sq, Hq, Dh), 0, 2, 1, 3)
        k = (lambda x, n, axis: torch.repeat_interleave(x, n, dim=axis))(k_cache, rep, axis=1)
        v = (lambda x, n, axis: torch.repeat_interleave(x, n, dim=axis))(v_cache, rep, axis=1)
        scores = torch.einsum("bhqd,bhkd->bhqk", q, k) * (Dh ** -0.5)
        p = _softmax(scores, axis=-1)
        o = torch.einsum("bhqk,bhkd->bhqd", p, v)
        return (lambda x, *d: x.permute(*d))(o, 0, 2, 1, 3).reshape(B, Sq, Hq * Dh) @ wo

    a = _A_ref(A_x, A_k_cache, A_v_cache, A_wq, A_wo)
    b = _B_ref(B_x, B_k_cache, B_v_cache, B_wq, B_wo)
    return torch.concatenate([a, b], axis=-1)
```

```python
import re

def vr(a, n=1):
    return f'v{a}' if n == 1 else f'v[{a}:{a+n-1}]'
def sr(a, n=1):
    return f's{a}' if n == 1 else f's[{a}:{a+n-1}]'
def R(a, n=1):
    return set(range(a, a + n))

class B:
    def __init__(self):
        self.lines = []
        self.reset()
        self.nnop = 0
    def reset(self):
        self.pos = 1000
        self.lastw = {}
        self.lastcread = {}
        self.lds = []
        self.storedata = {}
        self.sgw = {}
        self.m0w = -100
    def raw(self, s):
        self.lines.append(s)
    def label(self, l):
        self.lines.append(f'{l}:')
    def comment(self, s):
        self.lines.append(f'; {s}')
    def _nop(self, n):
        while n > 0:
            k = min(n, 16)
            self.lines.append(f's_nop {k-1}'); self.pos += k; n -= k; self.nnop += 1
    def nop(self, n): self._nop(n)
    def wait_lgkm(self, n):
        if len(self.lds) > n:
            self.lines.append(f's_waitcnt lgkmcnt({n})'); self.pos += 1
            self.lds = self.lds[len(self.lds) - n:] if n else []
    def _need_lds(self, regs):
        last = -1
        for i, d in enumerate(self.lds):
            if d & regs: last = i
        if last >= 0:
            n = len(self.lds) - 1 - last
            self.wait_lgkm(min(n, 15))
    def emit(self, text, kind, w=(), r=(), c=None, passes=0, sread=(), swrite=()):
        w = set(w); r = set(r); c = set(c) if c else set()
        allr = r | c
        self._need_lds(allr | w)
        if kind in ('dsr', 'dsw') and len(self.lds) >= 15: self.wait_lgkm(11)
        need = 0
        def req(p, n):
            nonlocal need
            need = max(need, p + n + 1 - self.pos)
        isvalu = kind in ('valu', 'trans', 'perm')
        for x in allr | w:
            if x in self.lastw:
                p, k, info = self.lastw[x]
                if k == 'mfma':
                    ps, dset = info
                    big = {4: 8, 8: 12}[ps]
                    if kind == 'mfma':
                        if x in r: req(p, big)
                        elif x in c:
                            if not (c == dset and ps == passes): req(p, {4: 6, 8: 10}[ps])
                        elif x in w and not (c == dset): req(p, {4: 6, 8: 10}[ps])
                    else:
                        req(p, big)
                elif k in ('valu', 'trans', 'perm'):
                    if x in allr:
                        if kind == 'mfma': req(p, 2)
                        if kind == 'perm': req(p, 2)
                        if kind == 'rfl': req(p, 1)
                        if k == 'trans' and kind in ('valu', 'perm', 'mfma', 'vmem', 'dsw'): req(p, 1)
        if isvalu or kind == 'dsr':
            for x in w:
                if x in self.lastcread:
                    p, ps = self.lastcread[x]; req(p, {4: 3, 8: 7}[ps])
                if x in self.storedata: req(self.storedata[x], 2)
        for s in sread:
            if s in self.sgw:
                req(self.sgw[s], 5 if kind in ('vmem', 'dma') else 2)
        if kind == 'dma': req(self.m0w, 1)
        if need > 0: self._nop(need)
        self.lines.append(text)
        for x in w:
            if kind == 'mfma': self.lastw[x] = (self.pos, 'mfma', (passes, frozenset(w)))
            elif kind in ('dsr', 'vmem'): self.lastw.pop(x, None)
            else: self.lastw[x] = (self.pos, kind, None)
        if kind == 'mfma':
            for x in c: self.lastcread[x] = (self.pos, passes)
        if kind == 'dsr': self.lds.append(set(w))
        if kind == 'dsw': self.lds.append(set())
        for s in swrite: self.sgw[s] = self.pos
        self.pos += 1
    def s(self, text):
        if re.match(r's_\w+ m0', text):
            self.lines.append(text); self.m0w = self.pos; self.pos += 1
        else:
            self.lines.append(text); self.pos += 1
    def v(self, op, d, *srcs, dn=1, sn=None, kind='valu', mods='', extra_r=(), sread=()):
        rs = set(extra_r); parts = []
        sr_ = list(sread)
        for i, x in enumerate(srcs):
            n = sn[i] if sn else 1
            if isinstance(x, int): parts.append(vr(x, n)); rs |= R(x, n)
            elif isinstance(x, tuple): parts.append(x[0] + vr(x[1], n)); rs |= R(x[1], n)
            else:
                parts.append(x)
                if re.fullmatch(r's\d+', x): sr_.append(x)
        self.emit(f'{op} {vr(d, dn)}, ' + ', '.join(parts) + (' ' + mods if mods else ''), kind, R(d, dn), rs, sread=sr_)
    def exp(self, d, s): self.v('v_exp_f32', d, s, kind='trans')
    def mfma16(self, d, a, b, c):
        cs = '0' if c is None else vr(c, 4)
        self.emit(f'v_mfma_f32_16x16x32_bf16 {vr(d,4)}, {vr(a,4)}, {vr(b,4)}, {cs}', 'mfma', R(d,4), R(a,4)|R(b,4), None if c is None else R(c,4), 4)
    def mfma32(self, d, a, b, c):
        cs = '0' if c is None else vr(c, 16)
        self.emit(f'v_mfma_f32_32x32x16_bf16 {vr(d,16)}, {vr(a,4)}, {vr(b,4)}, {cs}', 'mfma', R(d,16), R(a,4)|R(b,4), None if c is None else R(c,16), 8)
    def dsr(self, op, d, n, addr, off=0):
        assert 0 <= off < 65536
        self.emit(f'{op} {vr(d,n)}, {vr(addr)} offset:{off}', 'dsr', R(d,n), {addr})
    def dsw(self, op, addr, d, n, off=0):
        assert 0 <= off < 65536
        self.emit(f'{op} {vr(addr)}, {vr(d,n)} offset:{off}', 'dsw', (), {addr} | R(d,n))
    def dma(self, voff, srd, soff, off=0, pol=''):
        assert 0 <= off < 4096
        o = f' offset:{off}' if off else ''
        self.emit(f'buffer_load_dwordx4 {vr(voff)}, {sr(srd,4)}, {soff} offen{o}{pol} lds', 'dma', (), {voff})
    def load1(self, d, voff, srd, soff, pol=''):
        self.emit(f'buffer_load_dword {vr(d)}, {vr(voff)}, {sr(srd,4)}, {soff} offen{pol}', 'vmem', {d}, {voff})
    def store(self, n, d, voff, srd, soff, off=0, pol=''):
        op = {1: 'buffer_store_dword', 2: 'buffer_store_dwordx2', 4: 'buffer_store_dwordx4'}[n]
        o = f' offset:{off}' if off else ''
        assert 0 <= off < 4096
        self.emit(f'{op} {vr(d,n)}, {vr(voff)}, {sr(srd,4)}, {soff} offen{o}{pol}', 'vmem', (), {voff} | R(d,n))
        if n == 4:
            for x in R(d, n): self.storedata[x] = self.pos - 1
    def swap32(self, a, b): self.emit(f'v_permlane32_swap_b32 {vr(a)}, {vr(b)}', 'perm', {a, b}, {a, b})
    def swap16(self, a, b): self.emit(f'v_permlane16_swap_b32 {vr(a)}, {vr(b)}', 'perm', {a, b}, {a, b})
    def rfl(self, s, v): self.emit(f'v_readfirstlane_b32 s{s}, {vr(v)}', 'rfl', (), {v}, swrite=[f's{s}'])
    def barrier(self):
        self.s('s_barrier')
    def vm(self, n): self.s(f's_waitcnt vmcnt({n})')
    def fence(self, nops=0):
        self.wait_lgkm(0)
        need = 0
        for x, (p, k, info) in self.lastw.items():
            if k == 'mfma': need = max(need, p + {4: 8, 8: 12}[info[0]] + 1 - self.pos)
            else: need = max(need, p + 2 + 1 - self.pos)
        for x, p in self.sgw.items(): need = max(need, p + 5 + 1 - self.pos)
        for x, p in self.storedata.items(): need = max(need, p + 3 - self.pos)
        if need > 0: self._nop(need)
        self.reset()
    def text(self): return '\n'.join(self.lines) + '\n'
```

```python
import math, struct, sys
from asmb import *
NAME = 'concat_heads__mha_block_cached__gqa_block_cached__near_ridge'
SLOT = 33792; NSLOT = 4; XB = SLOT * NSLOT
VOFS = 16896; XCH = 17408
QROW = 272; STAT = XB + 24576
def f2u(x): return struct.unpack('<I', struct.pack('<f', x))[0]
CEXP = math.log2(math.e) / math.sqrt(128.0)

class Cfg:
    kvpol = ' nt'; opol = ''; pf = True; stamps = False; stagger = True; k2map = 0; wopf = True

def srd(b, d, lo, size):
    b.s(f's_mov_b32 s{d}, s{lo}'); b.s(f's_mov_b32 s{d+1}, s{lo+1}'); b.s(f's_mov_b32 s{d+2}, {size}'); b.s(f's_mov_b32 s{d+3}, 0x20000')

def lane_id(b, d):
    b.v('v_mbcnt_lo_u32_b32', d, '-1', '0'); b.v('v_mbcnt_hi_u32_b32', d, '-1', d)

def loader_offsets(b, L, lane, base, xstride, wstride, operm, t):
    vKV, vX, vW, vPF = base, base+1, base+2, base+3
    t0, t1 = t, t+1
    b.v('v_and_b32', t0, '15', lane); b.v('v_lshlrev_b32', t0, '4', t0)
    b.v('v_lshrrev_b32', t1, '4', lane)
    if L == 'k1':
        b.v('v_lshlrev_b32', vKV, '3', t1); b.v('v_add_u32', vKV, 's34', vKV); b.v('v_lshlrev_b32', vKV, '8', vKV); b.v('v_add_u32', vKV, vKV, t0)
    if not operm:
        b.v('v_lshlrev_b32', vW, '2', t1)
    else:
        b.v('v_and_b32', vW, '1', t1); b.v('v_lshlrev_b32', vW, '4', vW)
        b.v('v_lshrrev_b32', t1, '1', t1); b.v('v_lshlrev_b32', t1, '2', t1); b.v('v_add_u32', vW, vW, t1)
    b.v('v_add_u32', vW, 's34', vW); b.v('v_lshlrev_b32', vW, str(int(math.log2(wstride))), vW); b.v('v_add_u32', vW, vW, t0)
    b.s('s_lshl_b32 s39, s34, 3')
    b.v('v_lshrrev_b32', t0, '3', lane); b.v('v_add_u32', t0, 's39', t0)
    b.v('v_lshrrev_b32', t1, '1', t0); b.v('v_xor_b32', t1, t1, lane); b.v('v_and_b32', t1, '7', t1); b.v('v_lshlrev_b32', t1, '4', t1)
    b.v('v_lshlrev_b32', vX, str(int(math.log2(xstride))), t0); b.v('v_add_u32', vX, vX, t1)
    b.v('v_lshlrev_b32', vPF, '7', lane)

def issue_g(b, base, xsrd, wsrd, xstride, xchunk, wstride, operm, dummy=True):
    vX, vW, vD = base+1, base+2, 254
    b.s('s_add_u32 m0, s43, s53'); b.s(f's_add_u32 s39, s36, {32*xstride}')
    b.dma(vX, xsrd, 's36')
    b.s('s_add_u32 m0, m0, 4096'); b.s(f's_add_u32 s50, s36, {64*xstride}')
    b.dma(vX, xsrd, 's39')
    b.s('s_add_u32 m0, m0, 4096'); b.s(f's_add_u32 s36, s36, {xchunk}')
    b.dma(vX, xsrd, 's50')
    rows = [0, 8, 32, 40] if operm else [0, 16, 32, 48]
    b.s('s_add_u32 m0, s43, s54'); b.s(f's_add_u32 s39, s37, {rows[1]*wstride}')
    b.dma(vW, wsrd, 's37')
    b.s('s_add_u32 m0, m0, 4352'); b.s(f's_add_u32 s50, s37, {rows[2]*wstride}')
    b.dma(vW, wsrd, 's39')
    b.s('s_add_u32 m0, m0, 4352'); b.s(f's_add_u32 s39, s37, {rows[3]*wstride}')
    b.dma(vW, wsrd, 's50')
    b.s('s_add_u32 m0, m0, 4352'); b.s(f's_add_u32 s37, s37, {64*wstride}')
    b.dma(vW, wsrd, 's39')
    if dummy: b.load1(vD, base+3, 28, '0')

def issue_tile(b, cfg, base, srd_, soff, ldsoff):
    vKV = base
    b.s(f's_add_u32 s50, s43, s52')
    b.s(f's_add_u32 m0, s50, {ldsoff}'); b.s(f's_add_u32 s51, {soff}, 8192')
    b.dma(vKV, srd_, soff, 0, cfg.kvpol)
    b.s('s_add_u32 m0, m0, 3200'); b.nop(1)
    b.dma(vKV, srd_, soff, 1024, cfg.kvpol)
    b.s('s_add_u32 m0, m0, 5248'); b.nop(1)
    b.dma(vKV, srd_, 's51', 0, cfg.kvpol)
    b.s('s_add_u32 m0, m0, 3200'); b.nop(1)
    b.dma(vKV, srd_, 's51', 1024, cfg.kvpol)

def dummies(b, base, n):
    for _ in range(n): b.load1(254, base+3, 28, '0')

def issue_a(b, cfg, base, j):
    if j <= 7: issue_tile(b, cfg, base, 8, 's38', 0)
    if j >= 1:
        b.s('s_sub_u32 s39, s38, 16384')
        issue_tile(b, cfg, base, 12, 's39', VOFS)
    if j == 0:
        if cfg.pf:
            b.s('s_mul_i32 s39, s59, 786432'); b.s('s_add_u32 s39, s39, s57')
            b.load1(254, base+3, 4, 's39'); dummies(b, base, 3)
        else: dummies(b, base, 4)
    if j == 8:
        if cfg.wopf:
            b.s('s_lshl_b32 s39, s41, 14'); b.s('s_add_u32 s39, s39, s58')
            b.load1(254, base+3, 24, 's39'); dummies(b, base, 3)
        else: dummies(b, base, 4)
    b.s('s_add_u32 s38, s38, 16384')

def adv_slot(b, slot=SLOT, n=NSLOT):
    b.s('s_mov_b32 s43, s42'); b.s(f's_add_u32 s42, s42, {slot}'); b.s(f's_cmp_eq_u32 s42, {slot*n}'); b.s('s_cselect_b32 s42, 0, s42')

def set_g_offsets(b, unit_sgpr, item):
    b.s(f's_mul_i32 s36, {unit_sgpr}, 786432'); b.s('s_add_u32 s36, s36, s44')
    if item: b.s(f's_add_u32 s36, s36, {item*128}')
    b.s(f's_add_u32 s37, s45, {item*64*8192}')
def set_a_offsets(b, unit_sgpr, item):
    b.s(f's_lshl_b32 s38, {unit_sgpr}, 24'); b.s('s_add_u32 s38, s38, s46')
    if item: b.s(f's_add_u32 s38, s38, {item*16384}')

K1G = dict(xsrd=4, wsrd=16, xstride=2048, xchunk=128, wstride=8192, operm=False)

def loader_tail(b, cfg, base, tag, cur):
    def four(fn):
        for i in range(4):
            adv_slot(b); fn(i)
            if i < 2: b.vm(16)
            if i == 3: b.vm(24)
            b.barrier()
    if cur == 'A':
        b.s('s_cmp_eq_u32 s33, 1'); b.s(f's_cbranch_scc1 L_{tag}_tn')
    b.s('s_bitcmp1_b32 s32, 1'); b.s(f's_cbranch_scc1 L_{tag}_ta')
    if cur == 'G': b.s('s_add_u32 s49, s40, 1')
    else: b.s('s_mov_b32 s49, s40')
    set_g_offsets(b, 's49', 0)
    four(lambda i: issue_g(b, base, **K1G))
    b.s(f's_branch L_{tag}_te')
    b.label(f'L_{tag}_ta')
    if cur == 'A': b.s('s_add_u32 s49, s41, 1')
    else: b.s('s_mov_b32 s49, s41')
    set_a_offsets(b, 's49', 0)
    b.s('s_add_u32 s59, s49, s48'); b.s('s_add_u32 s59, s59, 1')
    four(lambda i: issue_a(b, cfg, base, i))
    if cur == 'A':
        b.s(f's_branch L_{tag}_te')
        b.label(f'L_{tag}_tn')
        four(lambda i: dummies(b, base, 8))
    b.label(f'L_{tag}_te')

ACC = 0; AF = [48, 64]; BF = [80, 128]; VW = 176; VX = 177; VWB = 181; VXB = 182; VQW = 186
def gemm_setup(b, lane, nt_sgpr):
    t0, t1, t2 = 190, 191, 192
    b.v('v_bfe_u32', t0, lane, '2', '2'); b.v('v_mul_u32_u24', VWB, '1088', t0)
    b.v('v_lshrrev_b32', t1, '5', lane); b.v('v_lshlrev_b32', t0, '9', t1); b.v('v_add_u32', VWB, VWB, t0)
    b.v('v_bfe_u32', t0, lane, '4', '1'); b.v('v_lshlrev_b32', t0, '5', t0); b.v('v_add_u32', VWB, VWB, t0)
    b.v('v_and_b32', t0, '3', lane); b.v('v_lshlrev_b32', t0, '3', t0); b.v('v_add_u32', VWB, VWB, t0)
    b.s(f's_lshl_b32 s39, {nt_sgpr}, 6'); b.v('v_add_u32', VWB, 's39', VWB)
    b.v('v_and_b32', t0, '31', lane); b.v('v_bfe_u32', t2, lane, '1', '3'); b.v('v_xor_b32', t2, t2, t1)
    b.v('v_lshlrev_b32', t0, '7', t0); b.v('v_add_u32', t0, str(XCH), t0)
    for s in range(4):
        b.v('v_xor_b32', VXB+s, str(2*s), t2); b.v('v_lshlrev_b32', VXB+s, '4', VXB+s); b.v('v_add_u32', VXB+s, VXB+s, t0)

def gemm_interval(b, rbuf, do_read, do_mfma, zero=False):
    reads = []
    if do_read:
        b.v('v_add_u32', VW, 's42', VWB)
        for s in range(4): b.v('v_add_u32', VX+s, 's42', VXB+s)
        for s in range(4):
            for e in range(2): reads.append(('ds_read_b64_tr_b16', AF[rbuf]+4*s+2*e, 2, VW, s*4352+e*256))
            for qb in range(3): reads.append(('ds_read_b128', BF[rbuf]+12*s+4*qb, 4, VX+s, qb*4096))
    if do_mfma:
        mb = rbuf ^ 1
        k = 0
        for s in range(4):
            for qb in range(3):
                b.mfma32(ACC+16*qb, AF[mb]+4*s, BF[mb]+12*s+4*qb, None if (zero and s == 0) else ACC+16*qb)
                for _ in range(2):
                    if reads: b.dsr(*reads.pop(0))
    while reads: b.dsr(*reads.pop(0))
    b.wait_lgkm(0)

O_ = 0; Q_ = 96; KF = 144; VF = 176; S_ = 208; P_ = 224; NM = 232; L_ = 244
VKA = 247; VVA = 248; VKB = 249; VVB = 250; T0 = 251; LANE = 255
def Oreg(c, dt): return O_ + 32*c + 4*dt

def att_setup(b):
    lane = LANE; t0, t1 = T0, T0+1
    b.s('s_mul_i32 s39, s55, 8448')
    b.v('v_and_b32', t0, '7', lane); b.v('v_mul_u32_u24', VKB, '1056', t0)
    b.v('v_bfe_u32', t0, lane, '3', '1'); b.v('v_lshlrev_b32', t0, '8', t0); b.v('v_add_u32', VKB, VKB, t0)
    b.v('v_lshrrev_b32', t0, '4', lane); b.v('v_lshlrev_b32', t0, '4', t0); b.v('v_add_u32', VKB, VKB, t0)
    b.v('v_add_u32', VKB, 's39', VKB)
    b.v('v_bfe_u32', t0, lane, '2', '3'); b.v('v_mul_u32_u24', VVB, '1056', t0)
    b.v('v_lshrrev_b32', t0, '5', lane); b.v('v_lshlrev_b32', t0, '8', t0); b.v('v_add_u32', VVB, VVB, t0)
    b.v('v_and_b32', t0, '3', lane); b.v('v_lshlrev_b32', t0, '3', t0); b.v('v_add_u32', VVB, VVB, t0)
    b.s(f's_add_u32 s39, s39, {VOFS}'); b.v('v_add_u32', VVB, 's39', VVB)

def read_q(b, tracked=True):
    t0, t1 = T0, T0+1
    b.s('s_and_b32 s39, s34, 1'); b.s(f's_mul_i32 s39, s39, {48*QROW}'); b.s(f's_add_u32 s39, s39, {XB}')
    b.v('v_and_b32', t0, '15', LANE); b.v('v_mul_u32_u24', t0, str(QROW), t0)
    b.v('v_lshrrev_b32', t1, '4', LANE); b.v('v_lshlrev_b32', t1, '4', t1); b.v('v_add3_u32', t0, t0, t1, 's39')
    for c in range(3):
        for m in range(4):
            b.dsr('ds_read_b128', Q_+16*c+4*m, 4, t0, c*16*QROW + m*64)

def crossmax(b, t, u, op='v_max_f32'):
    b.v('v_mov_b32', u, t); b.swap32(t, u); b.v(op, t, t, u)
    b.v('v_mov_b32', u, t); b.swap16(t, u); b.v(op, t, t, u)

def att_phase(b, cfg, rare):
    def qk_list(task):
        i, c = divmod(task, 3); buf = task & 1
        out = []
        for m in range(4):
            for t in range(2):
                d = S_ + 8*buf + 4*t
                cc = d if m else (None if i == 0 else NM + 4*c)
                out.append(lambda d=d, t=t, m=m, cc=cc, c=c: b.mfma16(d, KF+16*t+4*m, Q_+16*c+4*m, cc))
        return out
    def pv_list(task):
        i, c = divmod(task, 3); buf = task & 1
        return [lambda dt=dt: b.mfma16(Oreg(c, dt), VF+4*dt, P_+4*buf, None if i == 0 else Oreg(c, dt)) for dt in range(8)]
    def kread(t, m): return lambda: b.dsr('ds_read_b128', KF+16*t+4*m, 4, VKA, t*512+m*64)
    def vread(dt, t): return lambda: b.dsr('ds_read_b64_tr_b16', VF+4*dt+2*t, 2, VVA, t*512+dt*32)
    def softmax_list(task):
        i, c = divmod(task, 3); buf = task & 1
        S = S_ + 8*buf; P = P_ + 4*buf; t, u = T0, T0+1
        o = []
        o.append((4, lambda: b.v('v_max3_f32', t, S, S+1, S+2)))
        o.append((4, lambda: b.v('v_max3_f32', u, S+3, S+4, S+5)))
        o.append((4, lambda: b.v('v_max3_f32', t, S+6, S+7, t)))
        o.append((4, lambda: b.v('v_max_f32', t, t, u)))
        if i == 0:
            o.append((4, lambda: b.v('v_mov_b32', u, t)))
            o.append((8, lambda: b.swap32(t, u)))
            o.append((4, lambda: b.v('v_max_f32', t, t, u)))
            o.append((4, lambda: b.v('v_mov_b32', u, t)))
            o.append((8, lambda: b.swap16(t, u)))
            o.append((4, lambda: b.v('v_max_f32', t, t, u)))
            for k in range(8): o.append((4, lambda k=k: b.v('v_sub_f32', S+k, S+k, t)))
            for k in range(4): o.append((4, lambda k=k: b.v('v_sub_f32', NM+4*c+k, '0', t)))
        else:
            def chk():
                b.emit(f'v_cmp_lt_f32 vcc, 4.0, {vr(t)}', 'valu', (), {t})
            def br():
                b.s(f's_cbranch_vccnz L_rare{task}'); b.label(f'L_back{task}')
                rare.append(task)
            o.append((4, chk)); o.append((4, br))
        seq = []
        for k in range(8):
            seq.append((8, lambda k=k: b.exp(S+k, S+k)))
            if k >= 1:
                kk = k - 1
                if i == 0 and kk == 0: seq.append((4, lambda: b.v('v_mov_b32', L_+c, S)))
                else: seq.append((4, lambda kk=kk: b.v('v_add_f32', L_+c, L_+c, S+kk)))
            if k >= 2 and k % 2 == 0:
                h = k//2 - 1
                seq.append((4, lambda h=h: b.v('v_cvt_pk_bf16_f32', P+h, S+2*h, S+2*h+1)))
        seq.append((4, lambda: b.v('v_add_f32', L_+c, L_+c, S+7)))
        seq.append((4, lambda: b.v('v_cvt_pk_bf16_f32', P+3, S+6, S+7)))
        return o + seq
    def step(s):
        mf = []; post = []
        i, c = divmod(s, 3)
        if s + 1 <= 23:
            q = qk_list(s + 1)
            for k, f in enumerate(q):
                mf.append(f)
                m, t = divmod(k, 2)
                post.append([kread(t, m)] if (c == 1 and i + 1 <= 7) else [])
        if s - 1 >= 0:
            for dt, f in enumerate(pv_list(s - 1)):
                mf.append(f)
                post.append([vread(dt, 0), vread(dt, 1)] if (c == 0 and s <= 21) else [])
        elif s == 0:
            for dt in range(8): post[dt] += [vread(dt, 0), vread(dt, 1)]
        sm = softmax_list(s) if s <= 23 else []
        tot = sum(x for x, _ in sm) + 4*sum(len(p) for p in post)
        n = len(mf); acc = 0; k = 0
        for j in range(n):
            mf[j]()
            for f in post[j]: f(); acc += 4
            tgt = tot * (j + 1) / n
            while k < len(sm) and (acc + sm[k][0]/2 <= tgt or j == n - 1):
                sm[k][1](); acc += sm[k][0]; k += 1
    def addrs():
        b.v('v_add_u32', VKA, 's42', VKB); b.v('v_add_u32', VVA, 's42', VVB)
    addrs()
    for m in range(4):
        for t in range(2): kread(t, m)()
    b.s('s_cmp_eq_u32 s48, 0'); b.s('s_cbranch_scc0 L_a_noq0')
    b.fence(); read_q(b); b.fence()
    b.label('L_a_noq0')
    b.raw('s_waitcnt lgkmcnt(0)')
    for f in qk_list(0): f()
    b.vm(16); b.barrier()
    for j in range(1, 9):
        adv_slot(b); addrs()
        for s in range(3*(j-1), 3*j):
            if s == 23:
                b.wait_lgkm(0)
                b.s('s_cmp_eq_u32 s48, 0'); b.s('s_cbranch_scc1 L_a_noq1')
                b.s('s_cmp_ge_u32 s41, 3'); b.s('s_cbranch_scc1 L_a_noq1')
                sv = (dict(b.lastw), dict(b.lastcread), b.pos)
                read_q(b); b.lds = []
                b.lastw, b.lastcread, b.pos = sv
                b.label('L_a_noq1')
            step(s)
        b.wait_lgkm(0)
        if j == 8: b.raw('s_waitcnt lgkmcnt(0)')
        if j == 1: b.vm(8)
        if j == 2: b.vm(0)
        b.barrier()
    adv_slot(b)
    for f in pv_list(23): f()
    t, u = T0, T0+1
    for c in range(3): crossmax(b, L_+c, u, 'v_add_f32')
    XA = KF; SA = KF+1; PK = VF
    b.s('s_mul_i32 s39, s34, 6144'); b.s(f's_add_u32 s39, s39, {XB}')
    b.v('v_lshlrev_b32', XA, '4', LANE); b.v('v_add_u32', XA, 's39', XA)
    b.s('s_mul_i32 s39, s34, 384'); b.s(f's_add_u32 s39, s39, {STAT}')
    b.v('v_and_b32', SA, '15', LANE); b.v('v_mul_u32_u24', SA, '24', SA); b.v('v_add_u32', SA, 's39', SA)
    for c in range(3):
        b.v('v_mov_b32', NM+4*c+1, L_+c)
        b.dsw('ds_write_b64', SA, NM+4*c, 2, 8*c)
    b.s('s_cmp_eq_u32 s55, 0'); b.s('s_cbranch_scc0 L_m_kh1')
    sv = (dict(b.lastw), dict(b.lastcread), b.pos, list(b.lds))
    for kh in range(2):
        if kh == 1:
            b.label('L_m_kh1')
            b.lastw, b.lastcread, b.pos, b.lds = dict(sv[0]), dict(sv[1]), sv[2], list(sv[3]); b.storedata = {}
        send = 4*(1-kh); keep = 4*kh
        for c in range(3):
            for mp in range(2):
                pk = S_ + 4*((2*c+mp) % 4)
                for h in range(2):
                    o = Oreg(c, send + 2*mp + h)
                    b.v('v_cvt_pk_bf16_f32', pk+2*h, o, o+1); b.v('v_cvt_pk_bf16_f32', pk+2*h+1, o+2, o+3)
                b.dsw('ds_write_b128', XA, pk, 4, (2*c+mp)*1024)
        b.wait_lgkm(0)
        b.barrier()
        dx = 2*6144 if kh == 0 else -2*6144
        ds_ = 2*384 if kh == 0 else -2*384
        b.v('v_add_u32', XA, str(dx & 0xffffffff), XA); b.v('v_add_u32', SA, str(ds_ & 0xffffffff), SA)
        OS = KF + 4
        for c in range(3): b.dsr('ds_read_b64', OS+2*c, 2, SA, 8*c)
        for k in range(6): b.dsr('ds_read_b128', PK+4*k, 4, XA, k*1024)
        VO = KF + 2
        b.s('s_mul_i32 s39, s41, 3145728'); b.s('s_add_u32 s39, s39, s47')
        b.v('v_and_b32', VO, '15', LANE); b.v('v_lshlrev_b32', VO, '7', VO)
        b.v('v_lshrrev_b32', t, '4', LANE); b.v('v_lshlrev_b32', t, '4', t); b.v('v_add_u32', VO, VO, t)
        FO = KF + 10; FT = KF + 16
        for c in range(3):
            nm, lo = NM+4*c, L_+c
            on, ol = OS+2*c, OS+2*c+1
            fo, ft = FO+2*c, FT+2*c
            b.v('v_min_f32', t, nm, on)
            b.v('v_sub_f32', fo, t, nm); b.v('v_sub_f32', ft, t, on)
            b.exp(fo, fo); b.exp(ft, ft)
            b.v('v_mul_f32', u, fo, lo); b.v('v_fma_f32', u, ft, ol, u)
            b.v('v_rcp_f32', u, u, kind='trans')
            b.v('v_mul_f32', fo, fo, u); b.v('v_mul_f32', ft, ft, u)
        UP = KF + 24
        for c in range(3):
            fo, ft = FO+2*c, FT+2*c
            for mp in range(2):
                pk = PK + 4*(2*c+mp)
                for h in range(2):
                    o = Oreg(c, keep + 2*mp + h)
                    up = UP + 4*h
                    b.v('v_lshlrev_b32', up, '16', pk+2*h); b.v('v_and_b32', up+1, '0xffff0000', pk+2*h)
                    b.v('v_lshlrev_b32', up+2, '16', pk+2*h+1); b.v('v_and_b32', up+3, '0xffff0000', pk+2*h+1)
                    for z in range(2):
                        b.v('v_pk_mul_f32', o+2*z, o+2*z, fo, dn=2, sn=[2, 2], mods='op_sel_hi:[1,0]')
                    for z in range(2):
                        b.v('v_pk_fma_f32', o+2*z, up+2*z, ft, o+2*z, dn=2, sn=[2, 2, 2], mods='op_sel_hi:[1,0,1]')
                    b.v('v_cvt_pk_bf16_f32', pk+2*h, o, o+1); b.v('v_cvt_pk_bf16_f32', pk+2*h+1, o+2, o+3)
                if c < 2: b.store(4, pk, VO, 20, 's39', c*2048 + mp*64, cfg.opol)
                else:
                    if mp == 0: b.s('s_add_u32 s39, s39, 4096')
                    b.store(4, pk, VO, 20, 's39', mp*64, cfg.opol)
        b.fence()
        if kh == 0: b.s('s_branch L_m_end')
    b.label('L_m_end')

def rare_block(b, task):
    i, c = divmod(task, 3); buf = task & 1
    S = S_ + 8*buf; t, u = T0, T0+1
    b.reset()
    b.label(f'L_rare{task}')
    b.nop(2)
    crossmax(b, t, u)
    b.v('v_max_f32', t, '0', t)
    b.v('v_sub_f32', u, '0', t); b.exp(u, u)
    for k in range(8): b.v('v_sub_f32', S+k, S+k, t)
    for k in range(4): b.v('v_sub_f32', NM+4*c+k, NM+4*c+k, t)
    b.v('v_mul_f32', L_+c, L_+c, u)
    for k in range(32): b.v('v_mul_f32', O_+32*c+k, O_+32*c+k, u)
    b.nop(2)
    b.s(f's_branch L_back{task}')

def stamp(b, cfg, k):
    if cfg.stamps:
        b.raw('s_memrealtime s[90:91]'); b.raw('s_waitcnt lgkmcnt(0)')
        b.raw(f's_sub_u32 s{k}, s90, s88')

def k1(cfg):
    b = B()
    b.raw('.globl k1_kernel'); b.raw('.p2align 8'); b.raw('.type k1_kernel,@function'); b.label('k1_kernel')
    b.s('s_cmp_ge_u32 s2, 256'); b.s('s_cbranch_scc1 L_k1_end')
    if cfg.stamps: b.raw('s_memrealtime s[88:89]')
    b.s('s_and_b32 s60, s2, 7'); b.s('s_lshr_b32 s61, s2, 3'); b.s('s_lshr_b32 s62, s60, 2')
    b.s('s_mul_i32 s63, s62, 40'); b.s('s_add_u32 s64, s0, s63'); b.s('s_addc_u32 s65, s1, 0')
    b.s('s_load_dwordx4 s[68:71], s[64:65], 0'); b.s('s_load_dwordx4 s[72:75], s[64:65], 16')
    b.s('s_load_dwordx2 s[76:77], s[64:65], 32'); b.s('s_load_dwordx2 s[78:79], s[0:1], 96')
    b.v('v_lshrrev_b32', 1, '6', 0); b.rfl(35, 1)
    lane_id(b, LANE)
    b.s('s_and_b32 s34, s35, 3'); b.s('s_lshr_b32 s55, s34, 1')
    b.s('s_and_b32 s66, s60, 3'); b.s('s_lshl_b32 s66, s66, 3'); b.s('s_and_b32 s67, s61, 7'); b.s('s_add_u32 s66, s66, s67')
    b.s('s_lshr_b32 s63, s61, 3')
    if cfg.stagger: b.s('s_and_b32 s48, s63, 1')
    else: b.s('s_mov_b32 s48, 0')
    b.s('s_mov_b32 s32, 0xaa'); b.s('s_cmp_eq_u32 s48, 0'); b.s('s_cselect_b32 s32, s32, 0xd4'); b.s('s_mov_b32 s33, 8')
    b.s('s_mov_b32 s40, 0'); b.s('s_mov_b32 s41, 0'); b.s('s_mov_b32 s42, 0')
    b.s('s_mul_i32 s44, s63, 196608'); b.s('s_lshl_b32 s45, s66, 8')
    b.s('s_lshl_b32 s46, s63, 5'); b.s('s_add_u32 s46, s46, s66'); b.s('s_lshl_b32 s46, s46, 17')
    b.s('s_lshl_b32 s47, s62, 4'); b.s('s_add_u32 s47, s47, s63'); b.s('s_lshl_b32 s47, s47, 6')
    b.s('s_lshl_b32 s39, s66, 1'); b.s('s_add_u32 s47, s47, s39'); b.s('s_add_u32 s47, s47, s55'); b.s('s_mul_i32 s47, s47, 12288')
    b.s('s_and_b32 s39, s34, 1'); b.s('s_mul_i32 s39, s39, 6144'); b.s('s_add_u32 s47, s47, s39')
    b.s('s_mul_i32 s52, s34, 1056'); b.s('s_lshl_b32 s53, s34, 10'); b.s(f's_add_u32 s53, s53, {XCH}'); b.s('s_mul_i32 s54, s34, 1088')
    b.s(f's_mov_b32 s56, {f2u(CEXP):#x}')
    b.s('s_mul_i32 s57, s67, 24576'); b.s('s_lshl_b32 s39, s34, 13'); b.s('s_add_u32 s57, s57, s39'); b.s('s_add_u32 s57, s57, s44')
    b.s('s_cmp_eq_u32 s34, 3'); b.s('s_cselect_b32 s57, 0x40000000, s57')
    b.s('s_and_b32 s58, s60, 3'); b.s('s_lshl_b32 s58, s58, 5'); b.s('s_add_u32 s58, s58, s61'); b.s('s_lshl_b32 s58, s58, 16')
    b.s('s_add_u32 s58, s58, s39'); b.s('s_cmp_ge_u32 s34, 2'); b.s('s_cselect_b32 s58, 0x40000000, s58')
    b.raw('s_waitcnt lgkmcnt(0)')
    srd(b, 4, 68, 16*96*1024*2); srd(b, 8, 70, 1 << 26); srd(b, 12, 72, 1 << 26); srd(b, 16, 74, 1 << 23)
    srd(b, 20, 78, 2*16*64*12288); srd(b, 24, 76, 1 << 23); srd(b, 28, 68, 0)
    if cfg.pf:
        b.v('v_lshrrev_b32', 2, '1', LANE); b.v('v_lshlrev_b32', 2, '13', 2); b.v('v_and_b32', 3, '1', LANE); b.v('v_lshlrev_b32', 3, '7', 3); b.v('v_add_u32', 2, 2, 3)
        b.s('s_lshl_b32 s39, s35, 2'); b.s('s_add_u32 s39, s39, s63'); b.s('s_lshl_b32 s39, s39, 18'); b.s('s_add_u32 s39, s39, s45')
        b.load1(254, 2, 16, 's39')
        b.v('v_lshlrev_b32', 3, '7', LANE)
        b.s('s_lshr_b32 s39, s35, 2'); b.s('s_cmp_gt_u32 s39, s48'); b.s('s_cselect_b32 s50, 0x40000000, 0')
        b.s('s_mul_i32 s39, s39, 786432'); b.s('s_add_u32 s39, s39, s57'); b.s('s_or_b32 s39, s39, s50')
        b.load1(254, 3, 4, 's39')
    b.s('s_cmp_ge_u32 s35, 4'); b.s('s_cbranch_scc1 L_gem')
    rare = []
    b.fence()
    att_setup(b)
    LB = KF
    loader_offsets(b, 'k1', LANE, LB, 2048, 8192, False, T0)
    set_g_offsets(b, 's40', 0)
    for i in range(4):
        b.s(f's_mov_b32 s43, {i*SLOT}'); issue_g(b, LB, **K1G)
    b.vm(24); b.barrier()
    b.fence()
    b.label('L_att_loop')
    b.s('s_bitcmp1_b32 s32, 0'); b.s('s_cbranch_scc1 L_att_a')
    loader_offsets(b, 'k1', LANE, LB, 2048, 8192, False, T0)
    b.s('s_cmp_eq_u32 s48, 0'); b.s('s_cbranch_scc1 L_att_noq'); b.s('s_cmp_eq_u32 s40, 1'); b.s('s_cbranch_scc0 L_att_noq')
    b.fence(); read_q(b); b.fence()
    b.label('L_att_noq')
    set_g_offsets(b, 's40', 4)
    b.vm(16); b.barrier()
    b.s('s_mov_b32 s49, 12')
    b.fence()
    b.label('L_att_gl')
    adv_slot(b); issue_g(b, LB, **K1G); b.vm(16); b.barrier()
    b.s('s_sub_u32 s49, s49, 1'); b.s('s_cmp_lg_u32 s49, 0'); b.s('s_cbranch_scc1 L_att_gl')
    loader_tail(b, cfg, LB, 'att', 'G')
    b.s('s_add_u32 s40, s40, 1')
    b.s('s_branch L_att_next')
    b.fence()
    b.label('L_att_a')
    att_phase(b, cfg, rare)
    b.s('s_add_u32 s41, s41, 1')
    b.label('L_att_next')
    if cfg.stamps:
        b.raw('s_memrealtime s[90:91]'); b.raw('s_waitcnt lgkmcnt(0)'); b.raw('s_sub_u32 s90, s90, s88')
        b.raw('s_cmp_lg_u32 s35, 0'); b.raw('s_cbranch_scc1 L_nostamp')
        b.raw('s_sub_u32 s91, 8, s33'); b.raw('s_lshl_b32 s91, s91, 2'); b.raw('s_lshl_b32 s92, s2, 5'); b.raw('s_add_u32 s91, s91, s92')
        b.raw(f's_add_u32 s80, s78, {64 << 20}'); b.raw('s_addc_u32 s81, s79, 0')
        b.raw(f'v_mov_b32 v{T0}, s90'); b.raw(f'v_mov_b32 v{T0+1}, s91')
        b.raw(f'global_store_dword v{T0+1}, v{T0}, s[80:81]')
        b.raw('s_waitcnt vmcnt(0)') if False else None
        b.label('L_nostamp')
    b.s('s_lshr_b32 s32, s32, 1'); b.s('s_sub_u32 s33, s33, 1'); b.s('s_cmp_lg_u32 s33, 0'); b.s('s_cbranch_scc1 L_att_loop')
    b.s('s_endpgm')
    b.reset()
    b.label('L_gem')
    GB = 200
    gemm_setup(b, LANE, 's34')
    loader_offsets(b, 'k1', LANE, GB, 2048, 8192, False, 190)
    b.v('v_and_b32', 190, '31', LANE); b.v('v_mul_u32_u24', VQW, str(QROW), 190)
    b.v('v_lshrrev_b32', 190, '5', LANE); b.v('v_lshlrev_b32', 190, '3', 190)
    b.s('s_lshl_b32 s39, s34, 6'); b.s(f's_add_u32 s39, s39, {XB}'); b.v('v_add3_u32', VQW, VQW, 190, 's39')
    b.barrier()
    b.fence()
    b.label('L_gem_loop')
    b.s('s_bitcmp1_b32 s32, 0'); b.s('s_cbranch_scc1 L_gem_a')
    for c in range(17):
        if c: adv_slot(b)
        gemm_interval(b, c & 1, c < 16, c >= 1, zero=(c == 1))
        if c < 3: b.vm(16 - 8*c)
        if c == 16:
            for qb in range(3):
                for rq in range(4):
                    a = ACC + 16*qb + 4*rq; pk = 48 + 2*((4*qb+rq) % 8)
                    for z in range(4): b.v('v_mul_f32', a+z, 's56', a+z)
                    b.v('v_cvt_pk_bf16_f32', pk, a, a+1); b.v('v_cvt_pk_bf16_f32', pk+1, a+2, a+3)
                    b.dsw('ds_write_b64', VQW, pk, 2, qb*32*QROW + rq*16)
            b.wait_lgkm(0)
        b.barrier()
    b.s('s_add_u32 s40, s40, 1')
    b.s('s_branch L_gem_next')
    b.fence()
    b.label('L_gem_a')
    set_a_offsets(b, 's41', 4)
    b.vm(16); b.barrier()
    for j in range(4, 9):
        adv_slot(b); issue_a(b, cfg, GB, j); b.vm(16); b.barrier()
    loader_tail(b, cfg, GB, 'gem', 'A')
    b.s('s_add_u32 s41, s41, 1')
    b.label('L_gem_next')
    b.fence()
    b.s('s_lshr_b32 s32, s32, 1'); b.s('s_sub_u32 s33, s33, 1'); b.s('s_cmp_lg_u32 s33, 0'); b.s('s_cbranch_scc1 L_gem_loop')
    b.label('L_k1_end')
    b.s('s_endpgm')
    for task in rare: rare_block(b, task)
    return b

SLOT2 = 29696; NSLOT2 = 5
K2G = dict(xsrd=4, wsrd=16, xstride=128, xchunk=12288, wstride=2048, operm=True, dummy=False)
def k2(cfg):
    b = B()
    b.raw('.globl k2_kernel'); b.raw('.p2align 8'); b.raw('.type k2_kernel,@function'); b.label('k2_kernel')
    b.s('s_cmp_ge_u32 s2, 256'); b.s('s_cbranch_scc1 L_k2_end')
    b.s('s_and_b32 s60, s2, 7'); b.s('s_lshr_b32 s61, s2, 3'); b.s('s_lshr_b32 s62, s60, 2')
    b.s('s_mul_i32 s63, s62, 40'); b.s('s_add_u32 s64, s0, s63'); b.s('s_addc_u32 s65, s1, 0')
    b.s('s_load_dwordx2 s[76:77], s[64:65], 32'); b.s('s_load_dwordx2 s[78:79], s[0:1], 96'); b.s('s_load_dwordx2 s[70:71], s[0:1], 80')
    b.v('v_lshrrev_b32', 1, '6', 0); b.rfl(35, 1)
    lane_id(b, LANE)
    b.s('s_and_b32 s34, s35, 3')
    if cfg.k2map == 0:
        b.s('s_and_b32 s66, s60, 3'); b.s('s_lshl_b32 s66, s66, 2'); b.s('s_lshr_b32 s39, s61, 3'); b.s('s_add_u32 s66, s66, s39')
        b.s('s_and_b32 s67, s61, 7')
    else:
        b.s('s_and_b32 s66, s60, 1'); b.s('s_lshl_b32 s66, s66, 3'); b.s('s_lshr_b32 s39, s61, 2'); b.s('s_add_u32 s66, s66, s39')
        b.s('s_bfe_u32 s67, s60, 0x10001'); b.s('s_lshl_b32 s67, s67, 2'); b.s('s_and_b32 s39, s61, 3'); b.s('s_add_u32 s67, s67, s39')
    b.s('s_lshl_b32 s36, s62, 4'); b.s('s_add_u32 s36, s36, s66'); b.s(f's_mul_i32 s36, s36, {64*12288}')
    b.s('s_lshl_b32 s37, s67, 8')
    b.s('s_lshl_b32 s53, s34, 10'); b.s(f's_add_u32 s53, s53, {XCH}'); b.s('s_mul_i32 s54, s34, 1088')
    b.s('s_mov_b32 s42, 0')
    b.raw('s_waitcnt lgkmcnt(0)')
    srd(b, 4, 78, 2*16*64*12288); srd(b, 16, 76, 1 << 23); srd(b, 20, 70, 16*96*2048*2)
    b.s('s_cmp_ge_u32 s35, 4'); b.s('s_cbranch_scc1 L_k2_gem')
    b.fence()
    LB = 8
    loader_offsets(b, 'k2', LANE, LB, 128, 2048, True, 2)
    for i in range(NSLOT2):
        b.s(f's_mov_b32 s43, {i*SLOT2}'); issue_g(b, LB, **K2G)
    b.vm(7*(NSLOT2-1)); b.barrier()
    b.vm(7*(NSLOT2-2)); b.barrier()
    b.s(f's_mov_b32 s49, {64-NSLOT2}')
    b.fence()
    b.label('L_k2_ld')
    adv_slot(b, SLOT2, NSLOT2); issue_g(b, LB, **K2G); b.vm(7*(NSLOT2-2)); b.barrier()
    b.s('s_sub_u32 s49, s49, 1'); b.s('s_cmp_lg_u32 s49, 0'); b.s('s_cbranch_scc1 L_k2_ld')
    for i in range(NSLOT2-1):
        b.vm(max(0, 7*(NSLOT2-3-i))); b.barrier()
    b.s('s_endpgm')
    b.reset()
    b.label('L_k2_gem')
    gemm_setup(b, LANE, 's34')
    b.barrier()
    gemm_interval(b, 0, True, False); b.barrier()
    adv_slot(b, SLOT2, NSLOT2); gemm_interval(b, 1, True, True, zero=True); b.barrier()
    b.s('s_mov_b32 s49, 31')
    b.label('L_k2_cl')
    for c in (0, 1):
        adv_slot(b, SLOT2, NSLOT2); gemm_interval(b, c, True, True); b.barrier()
    b.s('s_sub_u32 s49, s49, 1'); b.s('s_cmp_lg_u32 s49, 0'); b.s('s_cbranch_scc1 L_k2_cl')
    gemm_interval(b, 0, False, True)
    b.v('v_and_b32', 190, '31', LANE); b.v('v_lshlrev_b32', 190, '12', 190)
    b.v('v_lshrrev_b32', 191, '5', LANE); b.v('v_lshlrev_b32', 191, '4', 191); b.v('v_add_u32', 190, 190, 191)
    b.s(f's_mul_i32 s39, s66, {96*4096}'); b.s('s_lshl_b32 s50, s62, 11'); b.s('s_add_u32 s39, s39, s50')
    b.s('s_lshl_b32 s50, s67, 8'); b.s('s_add_u32 s39, s39, s50'); b.s('s_lshl_b32 s50, s34, 6'); b.s('s_add_u32 s39, s39, s50')
    for qb in range(3):
        for rp in range(2):
            pk = 48 + 4*(2*qb+rp)
            for h in range(2):
                a = ACC + 16*qb + 4*(2*rp+h)
                b.v('v_cvt_pk_bf16_f32', pk+2*h, a, a+1); b.v('v_cvt_pk_bf16_f32', pk+2*h+1, a+2, a+3)
            b.swap32(pk, pk+2); b.swap32(pk+1, pk+3)
            b.store(4, pk, 190, 20, 's39', rp*32)
        if qb < 2: b.s(f's_add_u32 s39, s39, {32*4096}')
    b.label('L_k2_end')
    b.s('s_endpgm')
    return b

def desc(name, nv):
    return f'''.p2align 6
.amdhsa_kernel {name}
  .amdhsa_next_free_vgpr {nv}
  .amdhsa_next_free_sgpr 102
  .amdhsa_accum_offset {nv}
  .amdhsa_group_segment_fixed_size 0
  .amdhsa_kernarg_size 104
  .amdhsa_user_sgpr_count 2
  .amdhsa_user_sgpr_kernarg_segment_ptr 1
  .amdhsa_system_sgpr_workgroup_id_x 1
.end_amdhsa_kernel
'''
def build(path, cfg, which=('k1', 'k2')):
    hdr = ''
    for k in which: hdr += f'; @launch kernel={k}_kernel grid=(256,1,1) block=(512,1,1) lds=163840\n'
    a, c = k1(cfg), k2(cfg)
    s = hdr + '.amdgcn_target "amdgcn-amd-amdhsa--gfx950"\n.text\n' + a.text() + c.text()
    s += '.section .rodata,"a"\n' + desc('k1_kernel', 256) + desc('k2_kernel', 256)
    open(path, 'w').write(s)
    return a, c

if __name__ == '__main__':
    cfg = Cfg()
    a, c = build('v1.s', cfg)
    print('k1 lines', len(a.lines), 'nops', a.nnop, 'k2 lines', len(c.lines), 'nops', c.nnop)
```

```python
import sys
from gen import *
def mk(path, which=('k1','k2'), **kw):
    cfg = Cfg()
    for k, v in kw.items(): setattr(cfg, k, v)
    build(path, cfg, which)
if __name__ == '__main__':
    mk('v1.s')
    mk('v1_k1.s', which=('k1',), stamps=True)
    mk('v1_k2.s', which=('k2',))
    mk('v1_kvdef.s', kvpol='')
    mk('v1_nopf.s', pf=False)
    mk('v1_nowopf.s', wopf=False)
    mk('v1_nostag.s', stagger=False)
    mk('v1_k2m1.s', k2map=1)
```

```python
import re

def vr(a, n=1):
    return f'v{a}' if n == 1 else f'v[{a}:{a+n-1}]'
def sr(a, n=1):
    return f's{a}' if n == 1 else f's[{a}:{a+n-1}]'
def R(a, n=1):
    return set(range(a, a + n))

class B:
    def __init__(self):
        self.lines = []
        self.reset()
        self.nnop = 0
    def reset(self):
        self.pos = 1000
        self.lastw = {}
        self.lastcread = {}
        self.lds = []
        self.storedata = {}
        self.sgw = {}
        self.m0w = -100
    def raw(self, s):
        self.lines.append(s)
    def label(self, l):
        self.lines.append(f'{l}:')
    def comment(self, s):
        self.lines.append(f'; {s}')
    def _nop(self, n):
        while n > 0:
            k = min(n, 16)
            self.lines.append(f's_nop {k-1}'); self.pos += k; n -= k; self.nnop += 1
    def nop(self, n): self._nop(n)
    def wait_lgkm(self, n):
        if len(self.lds) > n:
            self.lines.append(f's_waitcnt lgkmcnt({n})'); self.pos += 1
            self.lds = self.lds[len(self.lds) - n:] if n else []
    def _need_lds(self, regs):
        last = -1
        for i, d in enumerate(self.lds):
            if d & regs: last = i
        if last >= 0:
            n = len(self.lds) - 1 - last
            self.wait_lgkm(min(n, 15))
    def emit(self, text, kind, w=(), r=(), c=None, passes=0, sread=(), swrite=()):
        w = set(w); r = set(r); c = set(c) if c else set()
        allr = r | c
        self._need_lds(allr | w)
        if B.guard and kind in ('dsr', 'dsw') and len(self.lds) >= 15: self.wait_lgkm(11)
        need = 0
        def req(p, n):
            nonlocal need
            need = max(need, p + n + 1 - self.pos)
        isvalu = kind in ('valu', 'trans', 'perm')
        for x in allr | w:
            if x in self.lastw:
                p, k, info = self.lastw[x]
                if k == 'mfma':
                    ps, dset = info
                    big = {4: 8, 8: 12}[ps]
                    if kind == 'mfma':
                        if x in r: req(p, big)
                        elif x in c:
                            if not (c == dset and ps == passes): req(p, {4: 6, 8: 10}[ps])
                        elif x in w and not (c == dset): req(p, {4: 6, 8: 10}[ps])
                    else:
                        req(p, big)
                elif k in ('valu', 'trans', 'perm'):
                    if x in allr:
                        if kind == 'mfma': req(p, 2)
                        if kind == 'perm': req(p, 2)
                        if kind == 'rfl': req(p, 1)
                        if k == 'trans' and kind in ('valu', 'perm', 'mfma', 'vmem', 'dsw'): req(p, 1)
        if isvalu or kind == 'dsr':
            for x in w:
                if x in self.lastcread:
                    p, ps = self.lastcread[x]; req(p, {4: 3, 8: 7}[ps])
                if x in self.storedata: req(self.storedata[x], 2)
        for s in sread:
            if s in self.sgw:
                req(self.sgw[s], 5 if kind in ('vmem', 'dma') else 2)
        if kind == 'dma': req(self.m0w, 1)
        if need > 0: self._nop(need)
        self.lines.append(text)
        for x in w:
            if kind == 'mfma': self.lastw[x] = (self.pos, 'mfma', (passes, frozenset(w)))
            elif kind in ('dsr', 'vmem'): self.lastw.pop(x, None)
            else: self.lastw[x] = (self.pos, kind, None)
        if kind == 'mfma':
            for x in c: self.lastcread[x] = (self.pos, passes)
        if kind == 'dsr': self.lds.append(set(w))
        if kind == 'dsw': self.lds.append(set())
        for s in swrite: self.sgw[s] = self.pos
        self.pos += 1
    def s(self, text):
        if re.match(r's_\w+ m0', text):
            self.lines.append(text); self.m0w = self.pos; self.pos += 1
        else:
            self.lines.append(text); self.pos += 1
    def v(self, op, d, *srcs, dn=1, sn=None, kind='valu', mods='', extra_r=(), sread=()):
        rs = set(extra_r); parts = []
        sr_ = list(sread)
        for i, x in enumerate(srcs):
            n = sn[i] if sn else 1
            if isinstance(x, int): parts.append(vr(x, n)); rs |= R(x, n)
            elif isinstance(x, tuple): parts.append(x[0] + vr(x[1], n)); rs |= R(x[1], n)
            else:
                parts.append(x)
                if re.fullmatch(r's\d+', x): sr_.append(x)
        self.emit(f'{op} {vr(d, dn)}, ' + ', '.join(parts) + (' ' + mods if mods else ''), kind, R(d, dn), rs, sread=sr_)
    def exp(self, d, s): self.v('v_exp_f32', d, s, kind='trans')
    skel = False
    def mfma16(self, d, a, b, c):
        if B.skel: return
        cs = '0' if c is None else vr(c, 4)
        self.emit(f'v_mfma_f32_16x16x32_bf16 {vr(d,4)}, {vr(a,4)}, {vr(b,4)}, {cs}', 'mfma', R(d,4), R(a,4)|R(b,4), None if c is None else R(c,4), 4)
    def mfma32(self, d, a, b, c):
        cs = '0' if c is None else vr(c, 16)
        self.emit(f'v_mfma_f32_32x32x16_bf16 {vr(d,16)}, {vr(a,4)}, {vr(b,4)}, {cs}', 'mfma', R(d,16), R(a,4)|R(b,4), None if c is None else R(c,16), 8)
    def dsr(self, op, d, n, addr, off=0):
        if B.skel: return
        assert 0 <= off < 65536
        self.emit(f'{op} {vr(d,n)}, {vr(addr)} offset:{off}', 'dsr', R(d,n), {addr})
    def dsw(self, op, addr, d, n, off=0):
        assert 0 <= off < 65536
        self.emit(f'{op} {vr(addr)}, {vr(d,n)} offset:{off}', 'dsw', (), {addr} | R(d,n))
    nodma = False
    guard = True
    def dma(self, voff, srd, soff, off=0, pol=''):
        if B.nodma: return
        assert 0 <= off < 4096
        o = f' offset:{off}' if off else ''
        self.emit(f'buffer_load_dwordx4 {vr(voff)}, {sr(srd,4)}, {soff} offen{o}{pol} lds', 'dma', (), {voff})
    def load1(self, d, voff, srd, soff, pol=''):
        self.emit(f'buffer_load_dword {vr(d)}, {vr(voff)}, {sr(srd,4)}, {soff} offen{pol}', 'vmem', {d}, {voff})
    def store(self, n, d, voff, srd, soff, off=0, pol=''):
        op = {1: 'buffer_store_dword', 2: 'buffer_store_dwordx2', 4: 'buffer_store_dwordx4'}[n]
        o = f' offset:{off}' if off else ''
        assert 0 <= off < 4096
        self.emit(f'{op} {vr(d,n)}, {vr(voff)}, {sr(srd,4)}, {soff} offen{o}{pol}', 'vmem', (), {voff} | R(d,n))
        if n == 4:
            for x in R(d, n): self.storedata[x] = self.pos - 1
    def swap32(self, a, b): self.emit(f'v_permlane32_swap_b32 {vr(a)}, {vr(b)}', 'perm', {a, b}, {a, b})
    def swap16(self, a, b): self.emit(f'v_permlane16_swap_b32 {vr(a)}, {vr(b)}', 'perm', {a, b}, {a, b})
    def rfl(self, s, v): self.emit(f'v_readfirstlane_b32 s{s}, {vr(v)}', 'rfl', (), {v}, swrite=[f's{s}'])
    def barrier(self):
        self.s('s_barrier')
    def vm(self, n): self.s(f's_waitcnt vmcnt({n})')
    def fence(self, nops=0):
        self.wait_lgkm(0)
        need = 0
        for x, (p, k, info) in self.lastw.items():
            if k == 'mfma': need = max(need, p + {4: 8, 8: 12}[info[0]] + 1 - self.pos)
            else: need = max(need, p + 2 + 1 - self.pos)
        for x, p in self.sgw.items(): need = max(need, p + 5 + 1 - self.pos)
        for x, p in self.storedata.items(): need = max(need, p + 3 - self.pos)
        if need > 0: self._nop(need)
        self.reset()
    def save(self): return (dict(self.lastw), dict(self.lastcread), self.pos, [set(x) for x in self.lds], dict(self.storedata), dict(self.sgw), self.m0w)
    def restore(self, sv): self.lastw, self.lastcread, self.pos, self.lds, self.storedata, self.sgw, self.m0w = dict(sv[0]), dict(sv[1]), sv[2], [set(x) for x in sv[3]], dict(sv[4]), dict(sv[5]), sv[6]
    def text(self): return '\n'.join(self.lines) + '\n'
```

```python
import math, struct, sys
from asmb import *
NAME = 'concat_heads__mha_block_cached__gqa_block_cached__near_ridge'
RING = 135168; XB = RING
HS = 16896; AS = 33792; GS = 22528; WG = 8448
QROW = 272; STAT = XB + 24576
def f2u(x): return struct.unpack('<I', struct.pack('<f', x))[0]
CEXP = math.log2(math.e) / math.sqrt(128.0)
LANE = 255; DUM = 254
OOB = 0x40000000

class Cfg:
    kvpol = ' nt'; opol = ''; pf = True; pf0 = 2; stamps = False; stagger = True; k2map = 1; wopf = True
    nodma = False; astamp = False; gstamp = False; skel = False; osize = 2*16*64*12288; codepf = True; k2defer = True; stest = ''; stspread = 2

G = {}
def srd(b, d, lo, size):
    b.s(f's_mov_b32 s{d}, s{lo}'); b.s(f's_mov_b32 s{d+1}, s{lo+1}'); b.s(f's_mov_b32 s{d+2}, {size}'); b.s(f's_mov_b32 s{d+3}, 0x20000')
def lane_id(b, d):
    b.v('v_mbcnt_lo_u32_b32', d, '-1', '0'); b.v('v_mbcnt_hi_u32_b32', d, '-1', d)

XO = 0; WO1 = 12288; WO0 = 12288 + WG
GMAP = [0,1,2,3,4,5,0,1,2,3,0,1,2,3,4,5]
def g_base(i, full): return (i % 4)*AS if full else GMAP[i]*GS
TILES = [('K',0)] + sum([[('K',j+1), ('V',j)] for j in range(7)], []) + [('V',7)]
def t_base(p): return (p % 8)*HS
KPOS = {j: TILES.index(('K', j)) for j in range(8)}
VPOS = {j: TILES.index(('V', j)) for j in range(8)}
def t_cons(p): k, j = TILES[p]; return j if k == 'K' else j + 1

def loader_offsets(b, kv, base, xstride, wstride, operm, t):
    lane = LANE
    vKV, vX, vW, vPF = base, base+1, base+2, base+3
    t0, t1 = t, t+1
    b.v('v_and_b32', t0, '15', lane); b.v('v_lshlrev_b32', t0, '4', t0)
    b.v('v_lshrrev_b32', t1, '4', lane)
    if kv:
        b.v('v_lshlrev_b32', vKV, '3', t1); b.v('v_add_u32', vKV, 's34', vKV); b.v('v_lshlrev_b32', vKV, '8', vKV); b.v('v_add_u32', vKV, vKV, t0)
    sa, sb = (4, 3) if operm else (2, 4)
    b.v('v_and_b32', vW, '1', t1); b.v('v_lshlrev_b32', vW, str(sa), vW)
    b.v('v_lshrrev_b32', t1, '1', t1); b.v('v_lshlrev_b32', t1, str(sb), t1); b.v('v_add3_u32', vW, vW, t1, 's34')
    b.v('v_lshlrev_b32', vW, str(int(math.log2(wstride))), vW); b.v('v_add_u32', vW, vW, t0)
    b.s('s_lshl_b32 s39, s34, 3')
    b.v('v_lshrrev_b32', t0, '3', lane); b.v('v_add_u32', t0, 's39', t0)
    b.v('v_lshrrev_b32', t1, '1', t0); b.v('v_xor_b32', t1, t1, lane); b.v('v_and_b32', t1, '7', t1); b.v('v_lshlrev_b32', t1, '4', t1)
    b.v('v_lshlrev_b32', vX, str(int(math.log2(xstride))), t0); b.v('v_add_u32', vX, vX, t1)
    if kv: b.v('v_lshlrev_b32', vPF, '7', lane)

K1G = dict(xsrd=4, wsrd=16, xstride=2048, xchunk=128, wstride=8192, operm=False)
K2G = dict(xsrd=4, wsrd=16, xstride=128, xchunk=12288, wstride=2048, operm=True)

class Loader:
    def __init__(self, b, cfg, base): self.b, self.cfg, self.base, self.q = b, cfg, base, []
    def g(self, i, full, tag, lds=None, dyn=False, P=K1G):
        b = self.b; vX, vW = self.base+1, self.base+2
        xs, ws = P['xstride'], P['wstride']
        if dyn:
            b.s('s_add_u32 s51, s43, s53'); xb, wb, xo, wo, lds = 's36', 's37', 0, 0, 0
            lx, lw = 's51', 's50'
        else:
            if lds is None: lds = g_base(i, full)
            xb, wb, xo, wo = 's36', 's45', i*P['xchunk'], i*64*ws
            lx, lw = 's53', 's52'
        for z in range(3):
            b.s(f's_add_u32 m0, {lx}, {lds + XO + z*4096}'); b.s(f's_add_u32 s39, {xb}, {xo + 32*z*xs}')
            b.dma(vX, P['xsrd'], 's39')
        if dyn: b.s('s_add_u32 s50, s43, s52')
        d4 = 4 if P['operm'] else 8
        ops = [(h, z) for h in ((0, 1) if full else (1,)) for z in (0, 1)]
        for h, z in ops:
            b.s(f's_add_u32 m0, {lw}, {lds + (WO1 if h else WO0) + z*4224}'); b.s(f's_add_u32 s39, {wb}, {wo + (32*h + d4*z)*ws}')
            b.dma(vW, P['wsrd'], 's39')
        if dyn: b.s(f's_add_u32 s36, s36, {P["xchunk"]}'); b.s(f's_add_u32 s37, s37, {64*ws}')
        self.q.append((tag, 3 + len(ops)))
    def t(self, p, tag):
        b = self.b; k, j = TILES[p]; srd_ = 8 if k == 'K' else 12; lds = t_base(p); pol = self.cfg.kvpol
        for kh in range(2):
            b.s(f's_add_u32 m0, s52, {lds + kh*8448}'); b.s(f's_add_u32 s39, s38, {j*16384 + kh*8192}')
            b.dma(self.base, srd_, 's39', 0, pol)
            b.s('s_add_u32 m0, m0, 3200')
            b.dma(self.base, srd_, 's39', 1024, pol)
        self.q.append((tag, 4))
    def other(self, n): self.q.append((None, n))
    def need(self, tags):
        last = -1
        for i, (t, n) in enumerate(self.q):
            if t in tags: last = i
        if last >= 0:
            self.q = self.q[last+1:]
            self.b.vm(min(63, sum(n for _, n in self.q)))
    def set_g(self, unit_sgpr):
        self.b.s(f's_mul_i32 s36, {unit_sgpr}, 786432'); self.b.s('s_add_u32 s36, s36, s44')
    def set_a(self, unit_sgpr):
        self.b.s(f's_lshl_b32 s38, {unit_sgpr}, 24'); self.b.s('s_add_u32 s38, s38, s46')

def cons_tags(ph, kind, t):
    if kind == 'g': return {(ph, t)}
    return {(ph, p) for p in range(16) if t_cons(p) == t}
G_OWN = {1: [6], 2: [7], 3: [8], 4: [9], 5: [14], 6: [15], 7: [10], 8: [11], 9: [12], 10: [13]}
G_TO_A = {11: [0], 12: [1], 13: [2, 3], 14: [4], 15: [5]}
G0_TO_A = {13: [0, 1], 14: [2, 3], 15: [4, 5]}
G0_TO_G = {13: [0], 14: [1, 2], 15: [3]}
A_OWN = {1: [8], 2: [9, 10], 3: [11, 12], 4: [13, 14], 5: [15]}
A_TO_G = {6: [0, 1], 7: [2], 8: [3, 4]}
A_TO_A = {5: [0], 6: [1, 2], 7: [3, 4], 8: [5]}

def verify_ring():
    for prog in (['G0','A','G','A','G','A','G','A'], ['G0','G','A','G','A','G','A','A']):
        live = {}
        issued = set()
        def rng(ph, i):
            k = prog[ph]
            if k == 'G0': return (g_base(i, True), g_base(i, True) + 29184)
            if k == 'G': return (g_base(i, False), g_base(i, False) + 20736)
            return (t_base(i), t_base(i) + HS)
        def iss(ph, i):
            lo, hi = rng(ph, i)
            for t, (a, c) in live.items(): assert hi <= a or c <= lo, (prog, ph, i, t)
            assert (ph, i) not in issued, (prog, ph, i)
            live[(ph, i)] = (lo, hi); issued.add((ph, i))
        for i in range(3): iss(0, i)
        for ph, k in enumerate(prog):
            nx = prog[ph+1] if ph + 1 < len(prog) else None
            pv = prog[ph-1] if ph else None
            for t in range(9 if k == 'A' else 16):
                own, nxt = [], []
                if k == 'G0':
                    own = [t+3] if t <= 12 else []
                    nxt = (G0_TO_A if nx == 'A' else G0_TO_G).get(t, [])
                elif k == 'G':
                    own = G_OWN.get(t, []) if t else ([4, 5] if pv == 'G0' else [5])
                    nxt = G_TO_A.get(t, [])
                else:
                    own = A_OWN.get(t, []) if t else [6, 7]
                    nxt = {'G': A_TO_G, 'A': A_TO_A, None: {}}[nx].get(t, [])
                for i in own: iss(ph, i)
                for i in nxt: iss(ph+1, i)
                for tg in cons_tags(ph, 'a' if k == 'A' else 'g', t):
                    assert tg in live, (prog, tg); del live[tg]
        assert not live and len(issued) == 128
verify_ring()

def cst(b, on, k):
    if on:
        b.raw('s_memtime s[90:91]'); b.raw('s_waitcnt lgkmcnt(0)'); b.raw(f's_mov_b32 s{60+k}, s90')
def cdump(b, on, n, wave, cnt, tag, t):
    if not on: return
    b.raw(f's_cmp_lg_u32 s35, {wave}'); b.raw(f's_cbranch_scc1 L_nd{tag}')
    b.raw(f's_cmp_lg_u32 {cnt}, 2'); b.raw(f's_cbranch_scc1 L_nd{tag}')
    b.raw(f's_add_u32 s80, s20, {65 << 20}'); b.raw('s_addc_u32 s81, s21, 0')
    b.raw('s_lshl_b32 s91, s2, 7'); b.raw(f'v_mov_b32 v{t+1}, s91')
    for k in range(1, n):
        b.raw(f's_sub_u32 s90, s{60+k}, s{60+k-1}'); b.raw(f'v_mov_b32 v{t}, s90'); b.raw(f'global_store_dword v{t+1}, v{t}, s[80:81] offset:{4*(k-1)}')
    b.label(f'L_nd{tag}')

ACC = 0; RES = 48; BF = [176, 200]; A1 = 224; VW = 232; VX = 233; VWB = 235; VXB = 236; VQW = 238; GB = 240; GT = 244
def acc(nt, qb): return ACC + 8*qb + 4*nt
def gemm_setup(b):
    lane = LANE; t0, t1, t2 = GT, GT+1, GT+2
    b.v('v_bfe_u32', t0, lane, '2', '3'); b.v('v_mul_u32_u24', VWB, '1056', t0)
    b.v('v_lshrrev_b32', t0, '5', lane); b.v('v_lshlrev_b32', t0, '9', t0); b.v('v_add_u32', VWB, VWB, t0)
    b.v('v_and_b32', t0, '3', lane); b.v('v_lshlrev_b32', t0, '3', t0)
    b.s('s_lshl_b32 s39, s34, 6'); b.v('v_add3_u32', VWB, VWB, t0, 's39')
    b.v('v_and_b32', t0, '15', lane); b.v('v_lshrrev_b32', t2, '1', t0); b.v('v_lshrrev_b32', t1, '4', lane); b.v('v_xor_b32', t2, t2, t1)
    b.v('v_lshlrev_b32', t0, '7', t0)
    for h in range(2):
        b.v('v_xor_b32', VXB+h, str(4*h), t2); b.v('v_lshlrev_b32', VXB+h, '4', VXB+h); b.v('v_add_u32', VXB+h, VXB+h, t0)
def gemm_addr_ops(b, base):
    base = str(base)
    return [lambda: b.v('v_add_u32', VX, base, VXB), lambda: b.v('v_add_u32', VX+1, base, VXB+1), lambda: b.v('v_add_u32', VW, base, VWB)]
def rdA(b, h, areg):
    return [lambda nt=nt, e=e: b.dsr('ds_read_b64_tr_b16', areg+4*nt+2*e, 2, VW, (WO1 if h else WO0) + e*256 + nt*32) for nt in range(2) for e in range(2)]
def rdB(b, h):
    return [lambda qb=qb: b.dsr('ds_read_b128', BF[h]+4*qb, 4, VX+h, XO + qb*2048) for qb in range(6)]
def g_block(b, h, areg, gaps, zero=False, prewait=None):
    k = 0
    for qb in range(6):
        for nt in range(2):
            if prewait and k in prewait: b.wait_lgkm(prewait[k])
            b.mfma16(acc(nt, qb), areg+4*nt, BF[h]+4*qb, None if zero else acc(nt, qb))
            for f in gaps.get(k, []): f()
            k += 1
def g_interval(b, a0, load_a0, first, nxt_ops, endfn, defer=False):
    B0, B1, Aa = rdB(b, 0), rdB(b, 1), rdA(b, 1, A1)
    A0 = rdA(b, 0, a0) if load_a0 else []
    if first:
        for f in A0 + B0: f()
        rest = B1 + Aa
        pw = None
    else:
        seq = A0 + B0 + B1
        g1 = {k: [seq[k]] for k in range(12)}
        rest = seq[12:] + Aa
        g_block(b, 1, A1, g1, prewait=({0: 0} if defer else None))
        ny = 12 - len(A0) - 6
        pw = {0: ny} if not load_a0 else {0: ny + 3, 6: 6 + ny}
    g0 = {k: [f] for k, f in enumerate(rest)}
    k = len(rest)
    for f in nxt_ops:
        g0.setdefault(min(k, 10), []).append(f); k += 1
    def tail():
        if not defer: b.wait_lgkm(0)
        endfn(); b.barrier()
    g0.setdefault(10, []).append(tail)
    g_block(b, 0, a0, g0, zero=first, prewait=pw)
def g_tail_q(b):
    def cv(qb, nt):
        a = acc(nt, qb); pk = BF[0] + 2*((2*qb+nt) % 8)
        return [lambda z=z: b.v('v_mul_f32', a+z, 's56', a+z) for z in range(4)] + \
               [lambda: b.v('v_cvt_pk_bf16_f32', pk, a, a+1), lambda: b.v('v_cvt_pk_bf16_f32', pk+1, a+2, a+3),
                lambda: b.dsw('ds_write_b64', VQW, pk, 2, qb*16*QROW + nt*32)]
    ops = sum([cv(qb, nt) for qb in range(6) for nt in range(2)], [])
    gaps = {}
    for k in range(5, 12): gaps[k] = [ops.pop(0), ops.pop(0)]
    g_block(b, 1, A1, gaps)
    for f in ops: f()
    b.wait_lgkm(0)
def g_main(b, cfg, g0, L=None):
    for f in gemm_addr_ops(b, g_base(0, g0)): f()
    if not g0:
        b.s('s_cmp_eq_u32 s41, 0'); b.s('s_cbranch_scc1 L_g_noiss')
        L.g(5, False, ('g', 5))
        b.label('L_g_noiss')
    for c in range(16):
        cst(b, cfg.gstamp and not g0, c)
        endfn = (lambda c=c: L.need({('g', c+1)})) if not g0 else (lambda: None)
        g_interval(b, RES + 8*c, g0, c == 0, gemm_addr_ops(b, g_base(c+1, g0)) if c < 15 else [], endfn)
    cst(b, cfg.gstamp and not g0, 16)
    cdump(b, cfg.gstamp and not g0, 17, 4, 's40', 'g', GT)

O_ = 0; Q_ = 96; KF = 144; VF = 176; S_ = 208; P_ = 224; NM = 232; L_ = 244
VKA = 247; VVA = 248; VKB = 249; VVB = 250; T0 = 251
LB = S_ + 8
def Oreg(c, dt): return O_ + 32*c + 4*dt
def att_setup(b):
    lane = LANE; t0 = T0
    b.s('s_mul_i32 s39, s55, 8448')
    b.v('v_and_b32', t0, '7', lane); b.v('v_mul_u32_u24', VKB, '1056', t0)
    b.v('v_bfe_u32', t0, lane, '3', '1'); b.v('v_lshlrev_b32', t0, '8', t0); b.v('v_add_u32', VKB, VKB, t0)
    b.v('v_lshrrev_b32', t0, '4', lane); b.v('v_lshlrev_b32', t0, '4', t0); b.v('v_add3_u32', VKB, VKB, t0, 's39')
    b.v('v_bfe_u32', t0, lane, '2', '3'); b.v('v_mul_u32_u24', VVB, '1056', t0)
    b.v('v_lshrrev_b32', t0, '5', lane); b.v('v_lshlrev_b32', t0, '8', t0); b.v('v_add_u32', VVB, VVB, t0)
    b.v('v_and_b32', t0, '3', lane); b.v('v_lshlrev_b32', t0, '3', t0); b.v('v_add3_u32', VVB, VVB, t0, 's39')
def q_addr(b, t0, t1):
    b.s('s_and_b32 s39, s34, 1'); b.s(f's_mul_i32 s39, s39, {48*QROW}'); b.s(f's_add_u32 s39, s39, {XB}')
    b.v('v_and_b32', t0, '15', LANE); b.v('v_mul_u32_u24', t0, str(QROW), t0)
    b.v('v_lshrrev_b32', t1, '4', LANE); b.v('v_lshlrev_b32', t1, '4', t1); b.v('v_add3_u32', t0, t0, t1, 's39')
def q_reads(b, t0):
    for c in range(3):
        for m in range(4): b.dsr('ds_read_b128', Q_+16*c+4*m, 4, t0, c*16*QROW + m*64)
def crossred(b, t, u, op='v_max_f32'):
    b.v('v_mov_b32', u, t); b.swap32(t, u); b.v(op, t, t, u)
    b.v('v_mov_b32', u, t); b.swap16(t, u); b.v(op, t, t, u)

class Att:
    def __init__(self, b, cfg): self.b, self.cfg, self.rare = b, cfg, []
    def qk_list(self, task):
        b = self.b; i, c = divmod(task, 3); buf = task & 1; out = []
        for m in range(4):
            for t in range(2):
                d = S_ + 8*buf + 4*t
                cc = d if m else (None if i == 0 else NM + 4*c)
                out.append(lambda d=d, t=t, m=m, cc=cc: b.mfma16(d, KF+16*t+4*m, Q_+16*c+4*m, cc))
        return out
    def pv_list(self, task):
        b = self.b; i, c = divmod(task, 3); buf = task & 1
        return [lambda dt=dt: b.mfma16(Oreg(c, dt), VF+4*dt, P_+4*buf, None if i == 0 else Oreg(c, dt)) for dt in range(8)]
    def kread(self, k):
        m, t = divmod(k, 2)
        return lambda: self.b.dsr('ds_read_b128', KF+16*t+4*m, 4, VKA, t*512+m*64)
    def vread(self, k):
        dt, t = divmod(k, 2)
        return lambda: self.b.dsr('ds_read_b64_tr_b16', VF+4*dt+2*t, 2, VVA, t*512+dt*32)
    def pre(self, task):
        b = self.b; i, c = divmod(task, 3); S = S_ + 8*(task & 1); t, u = T0, T0+1
        o = [(4, lambda: b.v('v_max3_f32', t, S, S+1, S+2)), (4, lambda: b.v('v_max3_f32', u, S+3, S+4, S+5)),
             (4, lambda: b.v('v_max3_f32', t, S+6, S+7, t)), (4, lambda: b.v('v_max_f32', t, t, u))]
        if i > 0: o.append((4, lambda: b.emit(f'v_cmp_lt_f32 vcc, 4.0, {vr(t)}', 'valu', (), {t})))
        return o
    def main(self, task):
        b = self.b; i, c = divmod(task, 3); buf = task & 1
        S = S_ + 8*buf; P = P_ + 4*buf; t, u = T0, T0+1
        o = []
        if i == 0:
            o += [(4, lambda: b.v('v_mov_b32', u, t)), (8, lambda: b.swap32(t, u)), (4, lambda: b.v('v_max_f32', t, t, u)),
                  (4, lambda: b.v('v_mov_b32', u, t)), (8, lambda: b.swap16(t, u)), (4, lambda: b.v('v_max_f32', t, t, u))]
            for k in range(8): o.append((4, lambda k=k: b.v('v_sub_f32', S+k, S+k, t)))
            for k in range(4): o.append((4, lambda k=k: b.v('v_sub_f32', NM+4*c+k, '0', t)))
        else:
            def br():
                b.s(f's_cbranch_vccnz L_rare{task}'); b.label(f'L_back{task}'); self.rare.append(task)
            o.append((6, br))
        for k in range(8):
            o.append((8, lambda k=k: b.exp(S+k, S+k)))
            if k >= 1:
                kk = k - 1
                if i == 0 and kk == 0: o.append((4, lambda: b.v('v_mov_b32', L_+c, S)))
                else: o.append((4, lambda kk=kk: b.v('v_add_f32', L_+c, L_+c, S+kk)))
            if k >= 2 and k % 2 == 0:
                h = k//2 - 1
                o.append((4, lambda h=h: b.v('v_cvt_pk_bf16_f32', P+h, S+2*h, S+2*h+1)))
        o.append((4, lambda: b.v('v_add_f32', L_+c, L_+c, S+7)))
        o.append((4, lambda: b.v('v_cvt_pk_bf16_f32', P+3, S+6, S+7)))
        return o
    def addr_k(self, j): self.b.v('v_add_u32', VKA, str(t_base(KPOS[j])), VKB)
    def addr_v(self, j): self.b.v('v_add_u32', VVA, str(t_base(VPOS[j])), VVB)
    def step(self, s, endfn=None):
        b = self.b; mf = []; prew = {}
        i, c = divmod(s, 3)
        if s + 1 <= 23: mf += self.qk_list(s + 1)
        if s - 1 >= 0: mf += self.pv_list(s - 1)
        n = len(mf)
        post = [[] for _ in range(n)]
        hasK = i + 1 <= 7
        if c == 0:
            off = 8 if s else 0
            for k in range(8): post[off + k].append(self.vread(k))
        elif c == 1:
            for k in range(8): post[k].append(self.vread(8 + k))
            if hasK:
                for k in range(8): post[8 + k].append(self.kread(k))
            prew[8] = 8; prew[12] = 4 if hasK else 0
        elif hasK:
            prew[0] = 4; prew[4] = 0
        sm = self.main(s) + (self.pre(s + 1) if s + 1 <= 23 else [])
        if B.skel: sm = []
        ecost = 20
        tot = sum(x for x, _ in sm) + 4*sum(len(p) for p in post) + 4*len(prew) + (ecost if endfn else 0)
        acc_ = 0; k = 0
        for j in range(n):
            if j in prew: b.wait_lgkm(prew[j]); acc_ += 4
            mf[j]()
            for f in post[j]: f(); acc_ += 4
            if endfn and j == n - 4:
                endfn(); acc_ += ecost
                continue
            tgt = tot * (j + 1) / n
            while k < len(sm) and (acc_ + sm[k][0]/2 <= tgt or j == n - 1):
                sm[k][1](); acc_ += sm[k][0]; k += 1
    def start(self):
        for f in self.qk_list(0): f()
        for _, f in self.pre(0): f()
    def intervals(self, L):
        b, cfg = self.b, self.cfg
        for j in range(1, 9):
            cst(b, cfg.astamp, j)
            for s in range(3*(j-1), 3*j):
                if s == 23:
                    b.wait_lgkm(0)
                    b.s('s_cmp_eq_u32 s48, 0'); b.s('s_cbranch_scc1 L_a_noq1')
                    b.s('s_cmp_ge_u32 s41, 3'); b.s('s_cbranch_scc1 L_a_noq1')
                    sv = b.save(); q_addr(b, KF, KF+1); q_reads(b, KF); b.restore(sv)
                    b.label('L_a_noq1')
                def endfn(j=j):
                    b.wait_lgkm(0)
                    if j == 8: b.raw('s_waitcnt lgkmcnt(0)')
                    else:
                        self.addr_v(j)
                        if j + 1 <= 7: self.addr_k(j + 1)
                    L.need(cons_tags('a', 'a', j + 1))
                    b.barrier()
                self.step(s, endfn if s == 3*j - 1 else None)
        cst(b, cfg.astamp, 9)
        cdump(b, cfg.astamp, 10, 0, 's41', 'a', 252)
    XA = KF; SA = KF+1; OS = KF+4; FO = KF+10; FT = KF+13; PK = VF; UP = S_; VO = P_+2
    def tail1(self, tag):
        b = self.b; XA, SA = self.XA, self.SA; u = T0+1
        b.s('s_mul_i32 s39, s34, 6144'); b.s(f's_add_u32 s39, s39, {XB}')
        b.s('s_mul_i32 s50, s34, 384'); b.s(f's_add_u32 s50, s50, {STAT}')
        b.s('s_cmp_eq_u32 s55, 0'); b.s(f's_cbranch_scc0 L_{tag}_s1')
        sv = b.save()
        for kh in range(2):
            if kh == 1: b.label(f'L_{tag}_s1'); b.restore(sv)
            send = 4*(1-kh)
            fill = [lambda: b.v('v_lshlrev_b32', XA, '4', LANE), lambda: b.v('v_add_u32', XA, 's39', XA)]
            def pack(c, mp):
                pk = KF + 16 + 4*((2*c+mp) % 4); r = []
                for h in range(2):
                    o = Oreg(c, send + 2*mp + h)
                    r += [lambda o=o, h=h: b.v('v_cvt_pk_bf16_f32', pk+2*h, o, o+1), lambda o=o, h=h: b.v('v_cvt_pk_bf16_f32', pk+2*h+1, o+2, o+3)]
                return r + [lambda: b.dsw('ds_write_b128', XA, pk, 4, (2*c+mp)*1024)]
            red = []
            for c in range(3):
                Lr = L_ + c; uu = S_ + c
                red.append([lambda Lr=Lr, uu=uu: b.v('v_mov_b32', uu, Lr), lambda Lr=Lr, uu=uu: b.swap32(Lr, uu), lambda Lr=Lr, uu=uu: b.v('v_add_f32', Lr, Lr, uu),
                            lambda Lr=Lr, uu=uu: b.v('v_mov_b32', uu, Lr), lambda Lr=Lr, uu=uu: b.swap16(Lr, uu), lambda Lr=Lr, uu=uu, c=c: b.v('v_add_f32', NM+4*c+1, Lr, uu)])
            redi = [red[c][k] for k in range(6) for c in range(3)]
            fill += pack(0, 0) + pack(0, 1) + redi + [lambda: b.v('v_and_b32', SA, '15', LANE), lambda: b.v('v_mul_u32_u24', SA, '24', SA), lambda: b.v('v_add_u32', SA, 's50', SA)]
            fill += [lambda c=c: b.dsw('ds_write_b64', SA, NM+4*c, 2, 8*c) for c in range(3)]
            fill += pack(1, 0) + pack(1, 1) + pack(2, 0) + pack(2, 1)
            pv = self.pv_list(23)
            order = list(range(send, send+4)) + list(range(4-send, 8-send))
            for dt in order:
                pv[dt]()
                for _ in range(2): fill.pop(0)()
            for f in fill: f()
            b.v('v_add_u32', XA, str((2*6144 if kh == 0 else -2*6144) & 0xffffffff), XA)
            b.v('v_add_u32', SA, str((2*384 if kh == 0 else -2*384) & 0xffffffff), SA)
            b.fence()
            if kh == 0: b.s(f's_branch L_{tag}_s2')
        b.label(f'L_{tag}_s2')
    def m2_head(self):
        b = self.b; t, u = T0, T0+1
        for c in range(3): b.dsr('ds_read_b64', self.OS+2*c, 2, self.SA, 8*c)
        for k in range(6): b.dsr('ds_read_b128', self.PK+4*k, 4, self.XA, k*1024)
        for c in range(3):
            nm, lo = NM+4*c, NM+4*c+1; on, ol = self.OS+2*c, self.OS+2*c+1; fo, ft = self.FO+c, self.FT+c
            b.v('v_min_f32', t, nm, on)
            b.v('v_sub_f32', fo, t, nm); b.v('v_sub_f32', ft, t, on)
            b.exp(fo, fo); b.exp(ft, ft)
            b.v('v_mul_f32', u, fo, lo); b.v('v_fma_f32', u, ft, ol, u)
            b.v('v_rcp_f32', u, u, kind='trans')
            b.v('v_mul_f32', fo, fo, u); b.v('v_mul_f32', ft, ft, u)
        b.fence()
    def m2_part(self, parts, tag):
        b = self.b
        b.s('s_cmp_eq_u32 s55, 0'); b.s(f's_cbranch_scc0 L_{tag}_p1')
        b.fence()
        for kh in range(2):
            if kh == 1: b.label(f'L_{tag}_p1')
            keep = 4*kh
            for pi in parts:
                c, mp = divmod(pi, 2); fo, ft = self.FO+c, self.FT+c
                pk = self.PK + 4*pi
                for h in range(2):
                    o = Oreg(c, keep + 2*mp + h); up = self.UP + 4*h
                    b.v('v_lshlrev_b32', up, '16', pk+2*h); b.v('v_and_b32', up+1, '0xffff0000', pk+2*h)
                    b.v('v_lshlrev_b32', up+2, '16', pk+2*h+1); b.v('v_and_b32', up+3, '0xffff0000', pk+2*h+1)
                    for z in range(4): b.v('v_mul_f32', o+z, o+z, fo)
                    for z in range(4): b.v('v_fmac_f32', o+z, up+z, ft, extra_r={o+z})
                    b.v('v_cvt_pk_bf16_f32', pk+2*h, o, o+1); b.v('v_cvt_pk_bf16_f32', pk+2*h+1, o+2, o+3)
            b.fence()
            if kh == 0: b.s(f's_branch L_{tag}_p2')
        b.label(f'L_{tag}_p2')
    def stores(self, soff, parts=range(6)):
        b = self.b; VO = self.VO
        if 0 in parts:
            b.v('v_and_b32', VO, '15', LANE); b.v('v_lshlrev_b32', VO, '7', VO)
            b.v('v_lshrrev_b32', VO+1, '4', LANE); b.v('v_lshlrev_b32', VO+1, '4', VO+1); b.v('v_add_u32', VO, VO, VO+1)
        b.s(f's_add_u32 s39, {soff}, 4096')
        if 'lin' in self.cfg.stest:
            b.v('v_lshlrev_b32', VO, '4', LANE)
            for pi in range(6): b.store(4, self.PK + 4*pi, VO, 20, soff if pi < 4 else 's39', (pi % 4)*1024, self.cfg.opol)
            return
        for pi in parts:
            c, mp = divmod(pi, 2)
            b.store(4, self.PK + 4*pi, VO, 20, soff if c < 2 else 's39', (c % 2)*2048 + mp*64, self.cfg.opol)
    def rare_block(self, task):
        b = self.b; i, c = divmod(task, 3); S = S_ + 8*(task & 1); t, u = T0, T0+1
        b.reset(); b.label(f'L_rare{task}'); b.nop(2)
        crossred(b, t, u)
        b.v('v_max_f32', t, '0', t)
        b.v('v_sub_f32', u, '0', t); b.exp(u, u)
        for k in range(8): b.v('v_sub_f32', S+k, S+k, t)
        for k in range(4): b.v('v_sub_f32', NM+4*c+k, NM+4*c+k, t)
        b.v('v_mul_f32', L_+c, L_+c, u)
        for k in range(32): b.v('v_mul_f32', O_+32*c+k, O_+32*c+k, u)
        b.nop(2); b.s(f's_branch L_back{task}')

def phase_stamp(b, cfg, tag):
    if cfg.stamps:
        b.raw('s_memrealtime s[90:91]'); b.raw('s_waitcnt lgkmcnt(0)'); b.raw('s_sub_u32 s90, s90, s88')
        b.raw('s_add_u32 s91, s40, s41'); b.raw(f's_mov_b32 m0, s91'); b.raw('s_nop 0'); b.raw('s_movreld_b32 s92, s90')
def stamp_dump(b, cfg):
    if cfg.stamps:
        b.raw('s_cmp_lg_u32 s35, 4'); b.raw(f's_cbranch_scc1 L_nostamp')
        b.raw('s_lshl_b32 s91, s2, 5'); b.raw(f's_add_u32 s80, s78, {64 << 20}'); b.raw('s_addc_u32 s81, s79, 0')
        b.raw(f'v_mov_b32 v{GT+1}, s91')
        for k in range(8):
            b.raw(f'v_mov_b32 v{GT}, s{92+k}'); b.raw(f'global_store_dword v{GT+1}, v{GT}, s[80:81] offset:{4*k}')
        b.label(f'L_nostamp')

def code_prefetch(b, start, nbytes_label_end, wave_lo):
    pass

def k1(cfg):
    b = B()
    b.raw('.globl k1_kernel'); b.raw('.p2align 8'); b.raw('.type k1_kernel,@function'); b.label('k1_kernel')
    b.s('s_cmp_ge_u32 s2, 256'); b.s('s_cbranch_scc1 L_k1_end')
    if cfg.stamps: b.raw('s_memrealtime s[88:89]')
    b.s('s_and_b32 s60, s2, 7'); b.s('s_lshr_b32 s61, s2, 3'); b.s('s_lshr_b32 s62, s60, 2')
    b.s('s_mul_i32 s63, s62, 40'); b.s('s_add_u32 s64, s0, s63'); b.s('s_addc_u32 s65, s1, 0')
    b.s('s_load_dwordx4 s[68:71], s[64:65], 0'); b.s('s_load_dwordx4 s[72:75], s[64:65], 16')
    b.s('s_load_dwordx2 s[76:77], s[64:65], 32'); b.s('s_load_dwordx2 s[78:79], s[0:1], 96')
    if cfg.codepf:
        b.s('s_and_b32 s39, s61, 15'); b.s('s_cmp_lg_u32 s39, 0'); b.s('s_cbranch_scc1 L_nocpf')
        b.raw('s_getpc_b64 s[82:83]')
        b.label('L_pc')
        b.v('v_lshlrev_b32', 2, '7', 0)
        b.v('v_min_u32', 2, 'L_code_end-L_pc-4', 2)
        b.v('v_mov_b32', 3, 's83')
        b.emit('v_add_co_u32 v2, vcc, s82, v2', 'valu', {2}, {2}); b.nop(2)
        b.emit('v_addc_co_u32 v3, vcc, 0, v3, vcc', 'valu', {3}, {3})
        b.emit(f'global_load_dword v{DUM}, v[2:3], off', 'vmem', {DUM}, {2, 3})
        b.label('L_nocpf')
    b.v('v_lshrrev_b32', 1, '6', 0); b.rfl(35, 1)
    lane_id(b, LANE)
    b.s('s_and_b32 s34, s35, 3'); b.s('s_lshr_b32 s55, s34, 1')
    b.s('s_and_b32 s66, s60, 3'); b.s('s_lshl_b32 s66, s66, 3'); b.s('s_and_b32 s67, s61, 7'); b.s('s_add_u32 s66, s66, s67')
    b.s('s_lshr_b32 s63, s61, 3')
    if cfg.stagger: b.s('s_and_b32 s48, s63, 1')
    else: b.s('s_mov_b32 s48, 0')
    b.s('s_mov_b32 s40, 0'); b.s('s_mov_b32 s41, 0')
    b.s('s_mul_i32 s44, s63, 196608'); b.s('s_lshl_b32 s45, s66, 8')
    b.s('s_lshl_b32 s46, s63, 5'); b.s('s_add_u32 s46, s46, s66'); b.s('s_lshl_b32 s46, s46, 17')
    b.s('s_lshl_b32 s47, s62, 4'); b.s('s_add_u32 s47, s47, s63'); b.s('s_lshl_b32 s47, s47, 6')
    b.s('s_lshl_b32 s39, s66, 1'); b.s('s_add_u32 s47, s47, s39'); b.s('s_add_u32 s47, s47, s55'); b.s('s_mul_i32 s47, s47, 12288')
    b.s('s_and_b32 s39, s34, 1'); b.s('s_mul_i32 s39, s39, 6144'); b.s('s_add_u32 s47, s47, s39')
    b.s('s_mul_i32 s52, s34, 1056'); b.s('s_lshl_b32 s53, s34, 10')
    b.s(f's_mov_b32 s56, {f2u(CEXP):#x}'); b.s(f's_mov_b32 s54, {OOB}')
    b.s('s_mul_i32 s57, s67, 24576'); b.s('s_lshl_b32 s39, s34, 13'); b.s('s_add_u32 s57, s57, s39'); b.s('s_add_u32 s57, s57, s44')
    b.s('s_cmp_eq_u32 s34, 3'); b.s(f's_cselect_b32 s57, {OOB}, s57')
    b.s('s_and_b32 s58, s60, 3'); b.s('s_lshl_b32 s58, s58, 5'); b.s('s_add_u32 s58, s58, s61'); b.s('s_lshl_b32 s58, s58, 13')
    b.s('s_lshl_b32 s39, s34, 20'); b.s('s_add_u32 s58, s58, s39')
    b.raw('s_waitcnt lgkmcnt(0)')
    srd(b, 4, 68, 16*96*1024*2); srd(b, 8, 70, 1 << 26); srd(b, 12, 72, 1 << 26); srd(b, 16, 74, 1 << 23)
    srd(b, 20, 78, cfg.osize); srd(b, 24, 76, 1 << 23)
    if cfg.pf0 == 1:
        b.v('v_lshrrev_b32', 2, '1', LANE); b.v('v_lshlrev_b32', 2, '13', 2); b.v('v_and_b32', 3, '1', LANE); b.v('v_lshlrev_b32', 3, '7', 3); b.v('v_add_u32', 2, 2, 3)
        b.s('s_lshl_b32 s39, s35, 2'); b.s('s_add_u32 s39, s39, s63'); b.s('s_lshl_b32 s39, s39, 18'); b.s('s_add_u32 s39, s39, s45')
        b.load1(DUM, 2, 16, 's39')
        b.v('v_lshlrev_b32', 3, '7', LANE)
        b.s('s_lshr_b32 s39, s35, 2'); b.s('s_cmp_gt_u32 s39, s48'); b.s(f's_cselect_b32 s50, {OOB}, 0')
        b.s('s_mul_i32 s39, s39, 786432'); b.s('s_add_u32 s39, s39, s57'); b.s('s_or_b32 s39, s39, s50')
        b.load1(DUM, 3, 4, 's39')
    if cfg.pf0 == 2:
        b.s('s_cmp_eq_u32 s48, 0'); b.s('s_cbranch_scc1 L_nopf0')
        b.v('v_lshlrev_b32', 3, '7', LANE)
        b.s('s_sub_u32 s39, s57, 196608'); b.s('s_cmp_ge_u32 s35, 3'); b.s(f's_cselect_b32 s39, {OOB}, s39')
        b.load1(DUM, 3, 4, 's39')
        b.v('v_lshrrev_b32', 2, '1', LANE); b.v('v_lshlrev_b32', 2, '13', 2); b.v('v_and_b32', 4, '1', LANE); b.v('v_lshlrev_b32', 4, '7', 4); b.v('v_add_u32', 2, 2, 4)
        b.s('s_lshl_b32 s39, s35, 1'); b.s('s_lshr_b32 s50, s63, 1'); b.s('s_add_u32 s39, s39, s50'); b.s('s_lshl_b32 s39, s39, 18'); b.s('s_add_u32 s39, s39, s45')
        b.load1(DUM, 2, 16, 's39')
        b.s(f's_add_u32 s39, s39, {16 << 18}')
        b.load1(DUM, 2, 16, 's39')
        b.s('s_lshr_b32 s39, s35, 2'); b.s('s_mul_i32 s39, s39, 786432'); b.s('s_add_u32 s39, s39, s57')
        b.load1(DUM, 3, 4, 's39')
        b.label('L_nopf0')
    b.s('s_cmp_ge_u32 s35, 4'); b.s('s_cbranch_scc1 L_gem')
    A = Att(b, cfg)
    L = Loader(b, cfg, LB)
    b.fence()
    loader_offsets(b, True, LB, 2048, 8192, False, T0)
    L.set_g('s40')
    for i in range(3): L.g(i, True, ('g0', i))
    att_setup(b)
    L.need({('g0', 0)}); b.barrier()
    for t in range(13):
        L.g(t+3, True, ('g0', t+3)); L.need({('g0', t+1)}); b.barrier()
    b.s('s_cmp_eq_u32 s48, 0'); b.s('s_cbranch_scc0 L_att_g0g')
    q0 = list(L.q)
    L.set_a('s41')
    for t in range(13, 16):
        for p in G0_TO_A[t]: L.t(p, ('a', p))
        L.need({('g0', t+1)} if t < 15 else {('a', 0)}); b.barrier()
    qa = list(L.q)
    b.s('s_mov_b32 s40, 1')
    b.s('s_branch L_att_a')
    b.label('L_att_g0g'); L.q = q0
    b.s('s_mov_b32 s40, 1'); L.set_g('s40')
    for t in range(13, 16):
        for i in G0_TO_G[t]: L.g(i, False, ('g', i))
        L.need({('g0', t+1)} if t < 15 else {('g', 0)}); b.barrier()
    def g_loader(t0, t1, extra={}):
        for t in range(t0, t1):
            for i in G_OWN.get(t, []): L.g(i, False, ('g', i))
            if t == 11: L.set_a('s41')
            for p in G_TO_A.get(t, []): L.t(p, ('a', p))
            if t in extra: extra[t]()
            L.need({('g', t+1)} if t < 15 else {('a', 0)}); b.barrier()
    L.g(4, False, ('g', 4)); L.g(5, False, ('g', 5)); L.need({('g', 1)}); b.barrier()
    def rq(): q_addr(b, T0, T0+1); q_reads(b, T0); b.wait_lgkm(0)
    g_loader(1, 8, {1: rq})
    qj = list(L.q)
    b.fence()
    b.label('L_att_gj')
    def st(ps): A.stores('s54', ps); L.other(len(ps))
    g_loader(8, 16, {8: lambda: st([0, 1]), 9: lambda: st([2, 3]), 10: lambda: st([4, 5])} if cfg.stspread == 2 else {8+i: (lambda i=i: st([i])) for i in range(6)})
    assert [x for x in L.q if x[0]] == qa, (L.q, qa)
    L.q = list(qa)
    b.s('s_add_u32 s40, s40, 1')
    b.fence()
    b.label('L_att_a')
    cst(b, cfg.astamp, 0)
    A.addr_k(0)
    for k in range(8): A.kread(k)()
    b.s('s_cmp_eq_u32 s48, 0'); b.s('s_cbranch_scc1 L_a_c0a')
    sv = b.save()
    A.start(); b.fence()
    b.label('L_a_c0a'); b.restore(sv)
    L.t(6, ('a', 6)); L.t(7, ('a', 7))
    b.label('L_att_a2')
    q_addr(b, P_+4, P_+5)
    b.raw('s_waitcnt lgkmcnt(0)'); b.lds = []
    A.addr_v(0); A.addr_k(1)
    L.need(cons_tags('a', 'a', 1)); b.barrier()
    b.s('s_cmp_eq_u32 s48, 0'); b.s('s_cbranch_scc0 L_a_i1')
    q_reads(b, P_+4)
    A.start()
    b.fence()
    b.label('L_a_i1')
    A.intervals(L)
    b.s('s_add_u32 s41, s41, 1')
    b.s('s_cmp_eq_u32 s40, 4'); b.s('s_cbranch_scc1 L_att_nog')
    sv = b.save()
    A.tail1('ga')
    b.barrier()
    loader_offsets(b, True, LB, 2048, 8192, False, T0)
    L.set_g('s40'); L.q = []
    b.s('s_mov_b32 s54, s47'); b.s(f's_add_u32 s47, s47, {0 if "same" in cfg.stest else 3145728}')
    ex = {1: A.m2_head}
    for pi in range(6): ex[2+pi] = (lambda pi=pi: A.m2_part([pi], f'ga{pi}'))
    g_loader(1, 8, ex)
    assert L.q == qj, (L.q, qj)
    b.s('s_branch L_att_gj')
    b.label('L_att_nog'); b.restore(sv)
    A.tail1('aa')
    b.barrier()
    A.m2_head()
    A.m2_part(list(range(6)), 'aa')
    A.stores('s47'); b.s('s_add_u32 s47, s47, 3145728')
    b.s('s_cmp_eq_u32 s41, 4'); b.s('s_cbranch_scc1 L_k1_end')
    A.addr_k(0)
    for k in range(8): A.kread(k)()
    A.start(); b.fence()
    b.s('s_branch L_att_a2')
    b.reset()
    b.label('L_gem')
    M = Loader(b, cfg, GB)
    gemm_setup(b)
    loader_offsets(b, True, GB, 2048, 8192, False, GT)
    b.v('v_and_b32', GT, '15', LANE); b.v('v_mul_u32_u24', VQW, str(QROW), GT)
    b.v('v_lshrrev_b32', GT, '4', LANE); b.v('v_lshlrev_b32', GT, '3', GT)
    b.s('s_lshl_b32 s39, s34, 6'); b.s(f's_add_u32 s39, s39, {XB}'); b.v('v_add3_u32', VQW, VQW, GT, 's39')
    b.barrier()
    g_main(b, cfg, True)
    b.s('s_branch L_gem_gdone')
    b.fence()
    b.label('L_gem_g')
    qg = [(('g', i), 5) for i in range(1, 5)]
    M.q = list(qg)
    g_main(b, cfg, False, M)
    b.label('L_gem_gdone')
    phase_stamp(b, cfg, 'g')
    b.s('s_add_u32 s40, s40, 1')
    g_tail_q(b)
    b.fence()
    b.s('s_cmp_eq_u32 s40, s48'); b.s('s_cbranch_scc1 L_gem_g')
    M.q = []
    M.set_a('s41')
    b.barrier()
    def a_loader(t0, t1, nxt, tag='a'):
        for t in range(t0, t1):
            for p in A_OWN.get(t, []): M.t(p, (tag, p))
            if t == 1 and cfg.pf:
                b.s('s_mul_i32 s39, s40, 786432'); b.s('s_add_u32 s39, s39, s57')
                b.load1(DUM, GB+3, 4, 's39'); M.other(1)
            if nxt == 'G':
                if t == 6: M.set_g('s40')
                for i in A_TO_G.get(t, []): M.g(i, False, ('g', i))
                M.need(cons_tags(tag, 'a', t+1) if t < 8 else {('g', 0)})
            elif nxt == 'A':
                if t == 5: b.s('s_add_u32 s38, s38, 16777216')
                for p in A_TO_A.get(t, []): M.t(p, ('a2', p))
                M.need(cons_tags(tag, 'a', t+1) if t < 8 else {('a2', 0)})
            else:
                if t == 5 and nxt == 'E' and cfg.wopf:
                    b.load1(DUM, GB+3, 24, 's58'); b.s(f's_add_u32 s39, s58, {4 << 20}'); b.load1(DUM, GB+3, 24, 's39'); M.other(2)
                M.need(cons_tags(tag, 'a', t+1))
            b.barrier()
    a_loader(1, 5, None)
    q5 = list(M.q)
    b.s('s_cmp_eq_u32 s40, 4'); b.s('s_cbranch_scc1 L_gem_nog')
    a_loader(5, 9, 'G')
    assert M.q == qg, (M.q, qg)
    phase_stamp(b, cfg, 'a')
    b.s('s_add_u32 s41, s41, 1')
    b.s('s_branch L_gem_g')
    b.label('L_gem_nog'); M.q = list(q5)
    b.s('s_cmp_eq_u32 s41, 3'); b.s('s_cbranch_scc1 L_gem_last')
    a_loader(5, 9, 'A')
    phase_stamp(b, cfg, 'b')
    b.s('s_add_u32 s41, s41, 1')
    M.t(6, ('a2', 6)); M.t(7, ('a2', 7))
    b.barrier()
    M.need(cons_tags('a2', 'a', 1)); b.barrier()
    a_loader(1, 5, None, 'a2')
    assert [n for _, n in M.q] == [n for _, n in q5], (M.q, q5)
    M.q = list(q5)
    b.label('L_gem_last')
    a_loader(5, 9, 'E')
    phase_stamp(b, cfg, 'c')
    b.barrier()
    stamp_dump(b, cfg)
    b.label('L_k1_end')
    b.s('s_endpgm')
    b.label('L_code_end')
    for task in A.rare: A.rare_block(task)
    return b

SLOT2 = 29184; NSLOT2 = 5
def adv_slot(b, reg):
    return [lambda: b.s(f's_add_u32 {reg}, {reg}, {SLOT2}'), lambda: (b.s(f's_cmp_eq_u32 {reg}, {SLOT2*NSLOT2}'), b.s(f's_cselect_b32 {reg}, 0, {reg}'))]
def k2(cfg):
    b = B()
    b.raw('.globl k2_kernel'); b.raw('.p2align 8'); b.raw('.type k2_kernel,@function'); b.label('k2_kernel')
    b.s('s_cmp_ge_u32 s2, 256'); b.s('s_cbranch_scc1 L_k2_end')
    if cfg.stamps: b.raw('s_memrealtime s[88:89]'); b.raw('s_memtime s[86:87]')
    b.s('s_and_b32 s60, s2, 7'); b.s('s_lshr_b32 s61, s2, 3'); b.s('s_lshr_b32 s62, s60, 2')
    b.s('s_mul_i32 s63, s62, 40'); b.s('s_add_u32 s64, s0, s63'); b.s('s_addc_u32 s65, s1, 0')
    b.s('s_load_dwordx2 s[76:77], s[64:65], 32'); b.s('s_load_dwordx2 s[78:79], s[0:1], 96'); b.s('s_load_dwordx2 s[70:71], s[0:1], 80')
    b.v('v_lshrrev_b32', 1, '6', 0); b.rfl(35, 1)
    lane_id(b, LANE)
    b.s('s_and_b32 s34, s35, 3')
    if cfg.k2map == 0:
        b.s('s_and_b32 s66, s60, 3'); b.s('s_lshl_b32 s66, s66, 2'); b.s('s_lshr_b32 s39, s61, 3'); b.s('s_add_u32 s66, s66, s39')
        b.s('s_and_b32 s67, s61, 7')
    else:
        b.s('s_and_b32 s66, s60, 1'); b.s('s_lshl_b32 s66, s66, 3'); b.s('s_lshr_b32 s39, s61, 2'); b.s('s_add_u32 s66, s66, s39')
        b.s('s_bfe_u32 s67, s60, 0x10001'); b.s('s_lshl_b32 s67, s67, 2'); b.s('s_and_b32 s39, s61, 3'); b.s('s_add_u32 s67, s67, s39')
    b.s('s_lshl_b32 s36, s62, 4'); b.s('s_add_u32 s36, s36, s66'); b.s(f's_mul_i32 s36, s36, {64*12288}')
    b.s('s_lshl_b32 s37, s67, 8')
    b.s('s_lshl_b32 s53, s34, 10'); b.s('s_mul_i32 s52, s34, 1056')
    b.s('s_mov_b32 s42, 0'); b.s('s_mov_b32 s43, 0')
    b.raw('s_waitcnt lgkmcnt(0)')
    srd(b, 4, 78, 2*16*64*12288); srd(b, 16, 76, 1 << 23); srd(b, 20, 70, 16*96*2048*2)
    b.s('s_cmp_ge_u32 s35, 4'); b.s('s_cbranch_scc1 L_k2_gem')
    b.fence()
    D = NSLOT2 - (2 if cfg.k2defer else 1)
    L = Loader(b, cfg, 8)
    loader_offsets(b, False, 8, 128, 2048, True, 2)
    def iss():
        L.g(0, True, None, dyn=True, P=K2G)
        for f in adv_slot(b, 's43'): f()
    for i in range(D): iss()
    b.vm(7*(D-1)); b.barrier()
    b.s(f's_mov_b32 s49, {64-D}')
    b.fence()
    b.label('L_k2_ld')
    iss(); b.vm(7*(D-1)); b.barrier()
    b.s('s_sub_u32 s49, s49, 1'); b.s('s_cmp_lg_u32 s49, 0'); b.s('s_cbranch_scc1 L_k2_ld')
    for i in range(D):
        b.vm(max(0, 7*(D-2-i))); b.barrier()
    b.s('s_endpgm')
    b.reset()
    b.label('L_k2_gem')
    gemm_setup(b)
    for f in gemm_addr_ops(b, 's42') + adv_slot(b, 's42'): f()
    b.barrier()
    nx = lambda: gemm_addr_ops(b, 's42')
    def endf():
        for f in adv_slot(b, 's42'): f()
    g_interval(b, RES, True, True, nx(), endf, cfg.k2defer)
    b.s('s_mov_b32 s49, 63')
    b.label('L_k2_cl')
    g_interval(b, RES, True, False, nx(), endf, cfg.k2defer)
    b.s('s_sub_u32 s49, s49, 1'); b.s('s_cmp_lg_u32 s49, 0'); b.s('s_cbranch_scc1 L_k2_cl')
    g_block(b, 1, A1, {})
    t = GT
    b.v('v_and_b32', t, '15', LANE); b.v('v_lshlrev_b32', t, '12', t)
    b.v('v_bfe_u32', t+1, LANE, '4', '1'); b.v('v_lshlrev_b32', t+1, '5', t+1); b.v('v_add_u32', t, t, t+1)
    b.v('v_lshrrev_b32', t+1, '5', LANE); b.v('v_lshlrev_b32', t+1, '4', t+1); b.v('v_add_u32', t, t, t+1)
    b.s(f's_mul_i32 s39, s66, {96*4096}'); b.s('s_lshl_b32 s50, s62, 11'); b.s('s_add_u32 s39, s39, s50')
    b.s('s_lshl_b32 s50, s67, 8'); b.s('s_add_u32 s39, s39, s50'); b.s('s_lshl_b32 s50, s34, 6'); b.s('s_add_u32 s39, s39, s50')
    for qb in range(6):
        pk = 64 + 4*qb
        for nt in range(2):
            a = acc(nt, qb)
            b.v('v_cvt_pk_bf16_f32', pk+2*nt, a, a+1); b.v('v_cvt_pk_bf16_f32', pk+2*nt+1, a+2, a+3)
        b.swap16(pk, pk+2); b.swap16(pk+1, pk+3)
        b.store(4, pk, t, 20, 's39', 0)
        if qb < 5: b.s(f's_add_u32 s39, s39, {16*4096}')
    if cfg.stamps:
        b.raw('s_memrealtime s[90:91]'); b.raw('s_memtime s[92:93]'); b.raw('s_waitcnt lgkmcnt(0)'); b.raw('s_sub_u32 s90, s90, s88'); b.raw('s_sub_u32 s92, s92, s86')
        b.raw('s_lshl_b32 s91, s2, 5')
        b.raw(f's_add_u32 s80, s78, {64 << 20}'); b.raw('s_addc_u32 s81, s79, 0')
        b.raw(f'v_mov_b32 v200, s90'); b.raw(f'v_mov_b32 v201, s92'); b.raw(f'v_mov_b32 v202, s91')
        b.raw(f'global_store_dwordx2 v202, v[200:201], s[80:81]')
    b.label('L_k2_end')
    b.s('s_endpgm')
    return b

def desc(name, nv):
    return f'''.p2align 6
.amdhsa_kernel {name}
  .amdhsa_next_free_vgpr {nv}
  .amdhsa_next_free_sgpr 102
  .amdhsa_accum_offset {nv}
  .amdhsa_group_segment_fixed_size 0
  .amdhsa_kernarg_size 104
  .amdhsa_user_sgpr_count 2
  .amdhsa_user_sgpr_kernarg_segment_ptr 1
  .amdhsa_system_sgpr_workgroup_id_x 1
.end_amdhsa_kernel
'''
def build(path, cfg, which=('k1', 'k2')):
    B.nodma = cfg.nodma; B.skel = cfg.skel; G['cfg'] = cfg; B.guard = False
    hdr = ''
    for k in which: hdr += f'; @launch kernel={k}_kernel grid=(256,1,1) block=(512,1,1) lds=163840\n'
    a, c = k1(cfg), k2(cfg)
    s = hdr + '.amdgcn_target "amdgcn-amd-amdhsa--gfx950"\n.text\n' + a.text() + c.text()
    s += '.section .rodata,"a"\n' + desc('k1_kernel', 256) + desc('k2_kernel', 256)
    open(path, 'w').write(s)
    return a, c
def mk(path, which=('k1', 'k2'), **kw):
    cfg = Cfg()
    for k, v in kw.items():
        assert hasattr(cfg, k), k
        setattr(cfg, k, v)
    return build(path, cfg, which)

if __name__ == '__main__':
    a, c = mk('v3.s')
    print('k1 lines', len(a.lines), 'nops', a.nnop, 'k2 lines', len(c.lines), 'nops', c.nnop)
```

```python
from gen3 import *
mk('v3.s')
k = dict(which=('k1',), stamps=True)
mk('x_p1.s', pf0=1, **k)
mk('x_p2.s', **k)
mk('x_p2s1.s', stspread=1, **k)
mk('x_p0.s', pf0=0, **k)
mk('x_nocpf.s', codepf=False, **k)
mk('x_p2_sk.s', skel=True, **k)
mk('x_nowo.s', wopf=False, **k)
```

```python
import math, struct, sys
from asmb import *
NAME = 'concat_heads__mha_block_cached__gqa_block_cached__near_ridge'
RING = 135168; XB = RING
HS = 16896; AS = 33792; GS = 22528; WG = 8448
QROW = 272; STAT = XB + 24576
def f2u(x): return struct.unpack('<I', struct.pack('<f', x))[0]
CEXP = math.log2(math.e) / math.sqrt(128.0)
LANE = 255; DUM = 254
OOB = 0x40000000

class Cfg:
    kvpol = ' nt'; opol = ' sc1'; pf = True; pf0 = 2; stamps = False; stagger = True; k2map = 1; wopf = 1
    nodma = False; astamp = False; gstamp = False; skel = False; osize = 2*16*64*12288; codepf = True; k2defer = True; stest = ''; stspread = 2; outpol = ''; nosig = False; norot = False; xpol = ' sc1'; atpol = ' sc1'

G = {}
def srd(b, d, lo, size):
    b.s(f's_mov_b32 s{d}, s{lo}'); b.s(f's_mov_b32 s{d+1}, s{lo+1}'); b.s(f's_mov_b32 s{d+2}, {size}'); b.s(f's_mov_b32 s{d+3}, 0x20000')
def lane_id(b, d):
    b.v('v_mbcnt_lo_u32_b32', d, '-1', '0'); b.v('v_mbcnt_hi_u32_b32', d, '-1', d)

XO = 0; WO1 = 12288; WO0 = 12288 + WG
G0MAP = [[2,3,1,0], [0,1,3,2]]
HMAP = [4,5,6,7,2,3,0,1, 4,5,6,7,0,1,2,3]
def g_base(i, full, cls=0): return G0MAP[cls][i % 4]*AS if full else (i % 3)*GS
TILES = [('K',0)] + sum([[('K',j+1), ('V',j)] for j in range(7)], []) + [('V',7)]
def t_base(p): return HMAP[p]*HS
KPOS = {j: TILES.index(('K', j)) for j in range(8)}
VPOS = {j: TILES.index(('V', j)) for j in range(8)}
def t_cons(p): k, j = TILES[p]; return j if k == 'K' else j + 1

def loader_offsets(b, kv, base, xstride, wstride, operm, t):
    lane = LANE
    vKV, vX, vW, vPF = base, base+1, base+2, base+3
    t0, t1 = t, t+1
    b.v('v_and_b32', t0, '15', lane); b.v('v_lshlrev_b32', t0, '4', t0)
    b.v('v_lshrrev_b32', t1, '4', lane)
    if kv:
        b.v('v_lshlrev_b32', vKV, '3', t1); b.v('v_add_u32', vKV, 's34', vKV); b.v('v_lshlrev_b32', vKV, '8', vKV); b.v('v_add_u32', vKV, vKV, t0)
    sa, sb = (4, 3) if operm else (2, 4)
    b.v('v_and_b32', vW, '1', t1); b.v('v_lshlrev_b32', vW, str(sa), vW)
    b.v('v_lshrrev_b32', t1, '1', t1); b.v('v_lshlrev_b32', t1, str(sb), t1); b.v('v_add3_u32', vW, vW, t1, 's34')
    b.v('v_lshlrev_b32', vW, str(int(math.log2(wstride))), vW); b.v('v_add_u32', vW, vW, t0)
    b.s('s_lshl_b32 s39, s34, 3')
    b.v('v_lshrrev_b32', t0, '3', lane); b.v('v_add_u32', t0, 's39', t0)
    b.v('v_lshrrev_b32', t1, '1', t0); b.v('v_xor_b32', t1, t1, lane); b.v('v_and_b32', t1, '7', t1); b.v('v_lshlrev_b32', t1, '4', t1)
    b.v('v_lshlrev_b32', vX, str(int(math.log2(xstride))), t0); b.v('v_add_u32', vX, vX, t1)
    if kv: b.v('v_lshlrev_b32', vPF, '7', lane)

K1G = dict(xsrd=4, wsrd=16, xstride=2048, xchunk=128, wstride=8192, operm=False)
OG = dict(xsrd=20, wsrd=24, xstride=128, xchunk=12288, wstride=2048, operm=True, xpol=' sc1')
OSL = [67584, 101376, 0, 33792, 130560]
K2G = dict(xsrd=4, wsrd=16, xstride=128, xchunk=12288, wstride=2048, operm=True)

class Loader:
    def __init__(self, b, cfg, base): self.b, self.cfg, self.base, self.q = b, cfg, base, []
    def g(self, i, full, tag, lds=None, dyn=False, P=K1G):
        b = self.b; vX, vW = self.base+1, self.base+2
        xs, ws = P['xstride'], P['wstride']
        if dyn:
            b.s('s_add_u32 s51, s43, s53'); xb, wb, xo, wo, lds = 's36', 's37', 0, 0, 0
            lx, lw = 's51', 's50'
        else:
            if lds is None: lds = g_base(i, full)
            xb, wb, xo, wo = 's36', 's45', i*P['xchunk'], i*64*ws
            lx, lw = 's53', 's52'
        for z in range(3):
            b.s(f's_add_u32 m0, {lx}, {lds + XO + z*4096}'); b.s(f's_add_u32 s39, {xb}, {xo + 32*z*xs}')
            b.dma(vX, P['xsrd'], 's39', 0, P.get('xpol', ''))
        if dyn: b.s('s_add_u32 s50, s43, s52')
        d4 = 4 if P['operm'] else 8
        ops = [(h, z) for h in ((0, 1) if full else (1,)) for z in (0, 1)]
        for h, z in ops:
            b.s(f's_add_u32 m0, {lw}, {lds + (WO1 if h else WO0) + z*4224}'); b.s(f's_add_u32 s39, {wb}, {wo + (32*h + d4*z)*ws}')
            b.dma(vW, P['wsrd'], 's39')
        if dyn: b.s(f's_add_u32 s36, s36, {P["xchunk"]}'); b.s(f's_add_u32 s37, s37, {64*ws}')
        self.q.append((tag, 3 + len(ops)))
    def t(self, p, tag):
        b = self.b; k, j = TILES[p]; srd_ = 8 if k == 'K' else 12; lds = t_base(p); pol = self.cfg.kvpol
        for kh in range(2):
            b.s(f's_add_u32 m0, s52, {lds + kh*8448}'); b.s(f's_add_u32 s39, s38, {j*16384 + kh*8192}')
            b.dma(self.base, srd_, 's39', 0, pol)
            b.s('s_add_u32 m0, m0, 3200')
            b.dma(self.base, srd_, 's39', 1024, pol)
        self.q.append((tag, 4))
    def other(self, n): self.q.append((None, n))
    def need(self, tags):
        last = -1
        for i, (t, n) in enumerate(self.q):
            if t in tags: last = i
        if last >= 0:
            self.q = self.q[last+1:]
            self.b.vm(min(63, sum(n for _, n in self.q)))
    def ub(self, d, unit_sgpr, plus=0):
        self.b.s(f's_add_u32 {d}, {unit_sgpr}, s33')
        if plus: self.b.s(f's_add_u32 {d}, {d}, {plus & 3}')
        self.b.s(f's_and_b32 {d}, {d}, 3')
    def set_g(self, unit_sgpr):
        self.ub('s36', unit_sgpr); self.b.s('s_mul_i32 s36, s36, 786432'); self.b.s('s_add_u32 s36, s36, s44')
    def set_a(self, unit_sgpr, plus=0):
        self.ub('s38', unit_sgpr, plus); self.b.s('s_lshl_b32 s38, s38, 24'); self.b.s('s_add_u32 s38, s38, s46')
    def set_ost(self):
        self.ub('s54', 's41', 3); self.b.s('s_mul_i32 s54, s54, 3145728'); self.b.s('s_add_u32 s54, s54, s47')
    def set_o(self, k):
        b = self.b
        b.s(f's_add_u32 s50, s33, {(3 - k) & 3}'); b.s('s_and_b32 s50, s50, 3')
        b.s(f's_mul_i32 s36, s50, {16*12288}'); b.s('s_add_u32 s36, s36, s74')
        b.s(f's_lshl_b32 s45, s50, 21'); b.s('s_add_u32 s45, s45, s75')
    def o(self, n): self.g(n % 16, True, ('o', n), lds=OSL[n % 5], P=OG)
    def flag_setup(self, v):
        self.b.v('v_and_b32', v+4, '7', LANE); self.b.v('v_lshlrev_b32', v+4, '3', v+4)
    def nonce_load(self, v, tag):
        self.b.emit(f'buffer_load_dwordx2 {vr(v,2)}, off, s[64:67], 0 sc1', 'vmem', R(v, 2)); self.q.append((tag, 1))
    def nonce_check(self, v, tag):
        b = self.b
        b.s('s_mov_b32 s49, 0x40000')
        b.label(f'L_nc{tag}')
        b.rfl(39, v); b.nop(1)
        b.s('s_cmp_lg_u32 s39, 0'); b.s(f's_cbranch_scc1 L_nok{tag}')
        b.s('s_sleep 4')
        b.emit(f'buffer_load_dwordx2 {vr(v,2)}, off, s[64:67], 0 sc1', 'vmem', R(v, 2)); b.vm(0)
        b.s('s_sub_u32 s49, s49, 1'); b.s('s_cmp_lg_u32 s49, 0'); b.s(f's_cbranch_scc1 L_nc{tag}')
        b.label(f'L_nok{tag}')
    def poll_off(self, k):
        b = self.b
        b.s(f's_add_u32 s32, s33, {(3 - k) & 3}'); b.s('s_and_b32 s32, s32, 3'); b.s('s_lshl_b32 s32, s32, 7'); b.s('s_add_u32 s32, s32, s73')
    def poll(self, v, tag, k):
        self.poll_off(k)
        self.b.emit(f'buffer_load_dwordx2 {vr(v+2,2)}, {vr(v+4)}, s[68:71], s32 offen sc1', 'vmem', R(v+2, 2), {v+4}); self.q.append((tag, 1))
    def check(self, v, tag):
        b = self.b
        if self.cfg.nosig: return
        b.s('s_mov_b32 s49, 0x40000')
        b.label(f'L_chk{tag}')
        b.emit(f'v_cmp_ne_u64 vcc, {vr(v,2)}, {vr(v+2,2)}', 'valu', (), R(v, 4))
        b.s(f's_cbranch_vccz L_ok{tag}')
        b.s('s_sleep 4')
        b.emit(f'buffer_load_dwordx2 {vr(v+2,2)}, {vr(v+4)}, s[68:71], s32 offen sc1', 'vmem', R(v+2, 2), {v+4}); b.vm(0)
        b.s('s_sub_u32 s49, s49, 1'); b.s('s_cmp_lg_u32 s49, 0'); b.s(f's_cbranch_scc1 L_chk{tag}')
        b.label(f'L_ok{tag}')
    def signal(self, v, wave, cond0):
        b = self.b
        if self.cfg.nosig: return
        self.ub('s39', 's41', 3); b.s('s_lshl_b32 s39, s39, 11'); b.s('s_add_u32 s39, s39, s72')
        b.s(f's_cmp_eq_u32 s35, {wave}'); b.s(f's_cselect_b32 s39, s39, {OOB}')
        if cond0: b.s('s_cmp_eq_u32 s41, 0'); b.s(f's_cselect_b32 s39, {OOB}, s39')
        b.s('s_mov_b64 exec, 1')
        b.emit(f'buffer_store_dwordx2 {vr(v,2)}, off, s[68:71], s39 sc1', 'vmem', (), R(v, 2))
        b.s('s_mov_b64 exec, -1')
        self.other(1)

def cons_tags(ph, kind, t):
    if kind == 'g': return {(ph, t)}
    return {(ph, p) for p in range(16) if t_cons(p) == t}
G_OWN = {t: [t+2] for t in range(1, 14)}
G_TO_A = {15: [4, 5]}
G0_TO_A = {13: [0, 1], 14: [2, 3], 15: [4, 5]}
G0_TO_G = {13: [0], 14: [1, 2]}
A_OWN = {1: [8], 2: [9, 10], 3: [11, 14], 4: [12, 15], 5: [13]}
A_PRE = {5: [0], 6: [1, 2], 7: [3]}
A_TO_G = {8: [0, 1]}
A_TO_A = {8: [4, 6, 7]}

def verify_ring():
    for cls, prog in enumerate((['G0','A','G','A','G','A','G','A'], ['G0','G','A','G','A','G','A','A'])):
        live = {}; issued = set()
        def rng(ph, i):
            k = prog[ph]
            if k == 'G0': return (g_base(i, True, cls), g_base(i, True, cls) + 29184)
            if k == 'G': return (g_base(i, False), g_base(i, False) + 20736)
            return (t_base(i), t_base(i) + HS)
        def iss(ph, i):
            lo, hi = rng(ph, i)
            for t, (a, c) in live.items(): assert hi <= a or c <= lo, (prog, ph, i, t)
            assert (ph, i) not in issued, (prog, ph, i)
            live[(ph, i)] = (lo, hi); issued.add((ph, i))
        for i in range(3): iss(0, i)
        for ph, k in enumerate(prog):
            nx = prog[ph+1] if ph + 1 < len(prog) else None
            pv = prog[ph-1] if ph else None
            na = next((j for j in range(ph+1, len(prog)) if prog[j] == 'A'), None)
            for t in range(9 if k == 'A' else 16):
                own, nxt, pre = [], [], []
                if k == 'G0':
                    own = [t+3] if t <= 12 else []
                    nxt = (G0_TO_A if nx == 'A' else G0_TO_G).get(t, [])
                elif k == 'G':
                    own = G_OWN.get(t, []) if t else ([] if pv == 'G0' else [2])
                    nxt = G_TO_A.get(t, [])
                    if pv == 'G0' and t == 0: nxt = [0, 1, 2, 3]
                else:
                    own = A_OWN.get(t, []) if t else ([5] if pv == 'A' else [6, 7])
                    nxt = {'G': A_TO_G, 'A': A_TO_A, None: {}}[nx].get(t, [])
                    if na: pre = A_PRE.get(t, [])
                for i in own: iss(ph, i)
                for i in pre: iss(na, i)
                for i in nxt: iss(ph+1, i)
                for tg in cons_tags(ph, 'a' if k == 'A' else 'g', t):
                    assert tg in live, (prog, tg); del live[tg]
        assert not live and len(issued) == 128
verify_ring()

def cst(b, on, k):
    if on:
        b.raw('s_memtime s[90:91]'); b.raw('s_waitcnt lgkmcnt(0)'); b.raw(f's_mov_b32 s{60+k}, s90')
def cdump(b, on, n, wave, cnt, tag, t):
    if not on: return
    b.raw(f's_cmp_lg_u32 s35, {wave}'); b.raw(f's_cbranch_scc1 L_nd{tag}')
    b.raw(f's_cmp_lg_u32 {cnt}, 2'); b.raw(f's_cbranch_scc1 L_nd{tag}')
    b.raw(f's_add_u32 s80, s20, {65 << 20}'); b.raw('s_addc_u32 s81, s21, 0')
    b.raw('s_lshl_b32 s91, s2, 7'); b.raw(f'v_mov_b32 v{t+1}, s91')
    for k in range(1, n):
        b.raw(f's_sub_u32 s90, s{60+k}, s{60+k-1}'); b.raw(f'v_mov_b32 v{t}, s90'); b.raw(f'global_store_dword v{t+1}, v{t}, s[80:81] offset:{4*(k-1)}')
    b.label(f'L_nd{tag}')

ACC = 0; RES = 48; BF = [176, 200]; A1 = 224; VW = 232; VX = 233; VWB = 235; VXB = 236; VQW = 238; GB = 240; GT = 244
def acc(nt, qb): return ACC + 8*qb + 4*nt
def gemm_setup(b):
    lane = LANE; t0, t1, t2 = GT, GT+1, GT+2
    b.v('v_bfe_u32', t0, lane, '2', '3'); b.v('v_mul_u32_u24', VWB, '1056', t0)
    b.v('v_lshrrev_b32', t0, '5', lane); b.v('v_lshlrev_b32', t0, '9', t0); b.v('v_add_u32', VWB, VWB, t0)
    b.v('v_and_b32', t0, '3', lane); b.v('v_lshlrev_b32', t0, '3', t0)
    b.s('s_lshl_b32 s39, s34, 6'); b.v('v_add3_u32', VWB, VWB, t0, 's39')
    b.v('v_and_b32', t0, '15', lane); b.v('v_lshrrev_b32', t2, '1', t0); b.v('v_lshrrev_b32', t1, '4', lane); b.v('v_xor_b32', t2, t2, t1)
    b.v('v_lshlrev_b32', t0, '7', t0)
    for h in range(2):
        b.v('v_xor_b32', VXB+h, str(4*h), t2); b.v('v_lshlrev_b32', VXB+h, '4', VXB+h); b.v('v_add_u32', VXB+h, VXB+h, t0)
def gemm_addr_ops(b, base):
    base = str(base)
    return [lambda: b.v('v_add_u32', VX, base, VXB), lambda: b.v('v_add_u32', VX+1, base, VXB+1), lambda: b.v('v_add_u32', VW, base, VWB)]
def rdA(b, h, areg):
    return [lambda nt=nt, e=e: b.dsr('ds_read_b64_tr_b16', areg+4*nt+2*e, 2, VW, (WO1 if h else WO0) + e*256 + nt*32) for nt in range(2) for e in range(2)]
def rdB(b, h):
    return [lambda qb=qb: b.dsr('ds_read_b128', BF[h]+4*qb, 4, VX+h, XO + qb*2048) for qb in range(6)]
def g_block(b, h, areg, gaps, zero=False, prewait=None):
    k = 0
    for qb in range(6):
        for nt in range(2):
            if prewait and k in prewait: b.wait_lgkm(prewait[k])
            b.mfma16(acc(nt, qb), areg+4*nt, BF[h]+4*qb, None if zero else acc(nt, qb))
            for f in gaps.get(k, []): f()
            k += 1
def g_interval(b, a0, load_a0, first, nxt_ops, endfn, defer=False):
    B0, B1, Aa = rdB(b, 0), rdB(b, 1), rdA(b, 1, A1)
    A0 = rdA(b, 0, a0) if load_a0 else []
    if first:
        for f in A0 + B0: f()
        rest = B1 + Aa
        pw = None
    else:
        seq = A0 + B0 + B1
        g1 = {k: [seq[k]] for k in range(12)}
        rest = seq[12:] + Aa
        g_block(b, 1, A1, g1, prewait=({0: 0} if defer else None))
        ny = 12 - len(A0) - 6
        pw = {0: ny} if not load_a0 else {0: ny + 3, 6: 6 + ny}
    g0 = {k: [f] for k, f in enumerate(rest)}
    k = len(rest)
    for f in nxt_ops:
        g0.setdefault(min(k, 10), []).append(f); k += 1
    def tail():
        if not defer: b.wait_lgkm(0)
        endfn(); b.barrier()
    g0.setdefault(10, []).append(tail)
    g_block(b, 0, a0, g0, zero=first, prewait=pw)
def g_tail_q(b):
    def cv(qb, nt):
        a = acc(nt, qb); pk = BF[0] + 2*((2*qb+nt) % 8)
        return [lambda z=z: b.v('v_mul_f32', a+z, 's56', a+z) for z in range(4)] + \
               [lambda: b.v('v_cvt_pk_bf16_f32', pk, a, a+1), lambda: b.v('v_cvt_pk_bf16_f32', pk+1, a+2, a+3),
                lambda: b.dsw('ds_write_b64', VQW, pk, 2, qb*16*QROW + nt*32)]
    ops = sum([cv(qb, nt) for qb in range(6) for nt in range(2)], [])
    gaps = {}
    for k in range(5, 12): gaps[k] = [ops.pop(0), ops.pop(0)]
    g_block(b, 1, A1, gaps)
    for f in ops: f()
    b.wait_lgkm(0)
def g_main(b, cfg, g0, L=None):
    gb = (lambda i: f's{84 + i % 4}') if g0 else (lambda i: g_base(i, False))
    for f in gemm_addr_ops(b, gb(0)): f()
    if not g0:
        b.s('s_cmp_eq_u32 s41, 0'); b.s('s_cbranch_scc1 L_g_noiss')
        L.g(2, False, ('g', 2))
        b.label('L_g_noiss')
    for c in range(16):
        cst(b, cfg.gstamp and not g0, c)
        endfn = (lambda c=c: L.need({('g', c+1)})) if not g0 else (lambda: None)
        g_interval(b, RES + 8*c, g0, c == 0, gemm_addr_ops(b, gb(c+1)) if c < 15 else [], endfn)
    cst(b, cfg.gstamp and not g0, 16)
    cdump(b, cfg.gstamp and not g0, 17, 4, 's40', 'g', GT)

O_ = 0; Q_ = 96; KF = 144; VF = 176; S_ = 208; P_ = 224; NM = 232; L_ = 244
VKA = 247; VVA = 248; VKB = 249; VVB = 250; T0 = 251
LB = S_ + 8
def Oreg(c, dt): return O_ + 32*c + 4*dt
def att_setup(b):
    lane = LANE; t0 = T0
    b.s('s_mul_i32 s39, s55, 8448')
    b.v('v_and_b32', t0, '7', lane); b.v('v_mul_u32_u24', VKB, '1056', t0)
    b.v('v_bfe_u32', t0, lane, '3', '1'); b.v('v_lshlrev_b32', t0, '8', t0); b.v('v_add_u32', VKB, VKB, t0)
    b.v('v_lshrrev_b32', t0, '4', lane); b.v('v_lshlrev_b32', t0, '4', t0); b.v('v_add3_u32', VKB, VKB, t0, 's39')
    b.v('v_bfe_u32', t0, lane, '2', '3'); b.v('v_mul_u32_u24', VVB, '1056', t0)
    b.v('v_lshrrev_b32', t0, '5', lane); b.v('v_lshlrev_b32', t0, '8', t0); b.v('v_add_u32', VVB, VVB, t0)
    b.v('v_and_b32', t0, '3', lane); b.v('v_lshlrev_b32', t0, '3', t0); b.v('v_add3_u32', VVB, VVB, t0, 's39')
def q_addr(b, t0, t1):
    b.s('s_and_b32 s39, s34, 1'); b.s(f's_mul_i32 s39, s39, {48*QROW}'); b.s(f's_add_u32 s39, s39, {XB}')
    b.v('v_and_b32', t0, '15', LANE); b.v('v_mul_u32_u24', t0, str(QROW), t0)
    b.v('v_lshrrev_b32', t1, '4', LANE); b.v('v_lshlrev_b32', t1, '4', t1); b.v('v_add3_u32', t0, t0, t1, 's39')
def q_reads(b, t0):
    for c in range(3):
        for m in range(4): b.dsr('ds_read_b128', Q_+16*c+4*m, 4, t0, c*16*QROW + m*64)
def crossred(b, t, u, op='v_max_f32'):
    b.v('v_mov_b32', u, t); b.swap32(t, u); b.v(op, t, t, u)
    b.v('v_mov_b32', u, t); b.swap16(t, u); b.v(op, t, t, u)

class Att:
    def __init__(self, b, cfg): self.b, self.cfg, self.rare = b, cfg, []
    def qk_list(self, task):
        b = self.b; i, c = divmod(task, 3); buf = task & 1; out = []
        for m in range(4):
            for t in range(2):
                d = S_ + 8*buf + 4*t
                cc = d if m else (None if i == 0 else NM + 4*c)
                out.append(lambda d=d, t=t, m=m, cc=cc: b.mfma16(d, KF+16*t+4*m, Q_+16*c+4*m, cc))
        return out
    def pv_list(self, task):
        b = self.b; i, c = divmod(task, 3); buf = task & 1
        return [lambda dt=dt: b.mfma16(Oreg(c, dt), VF+4*dt, P_+4*buf, None if i == 0 else Oreg(c, dt)) for dt in range(8)]
    def kread(self, k):
        m, t = divmod(k, 2)
        return lambda: self.b.dsr('ds_read_b128', KF+16*t+4*m, 4, VKA, t*512+m*64)
    def vread(self, k):
        dt, t = divmod(k, 2)
        return lambda: self.b.dsr('ds_read_b64_tr_b16', VF+4*dt+2*t, 2, VVA, t*512+dt*32)
    def pre(self, task):
        b = self.b; i, c = divmod(task, 3); S = S_ + 8*(task & 1); t, u = T0, T0+1
        o = [(4, lambda: b.v('v_max3_f32', t, S, S+1, S+2)), (4, lambda: b.v('v_max3_f32', u, S+3, S+4, S+5)),
             (4, lambda: b.v('v_max3_f32', t, S+6, S+7, t)), (4, lambda: b.v('v_max_f32', t, t, u))]
        if i > 0: o.append((4, lambda: b.emit(f'v_cmp_lt_f32 vcc, 4.0, {vr(t)}', 'valu', (), {t})))
        return o
    def main(self, task):
        b = self.b; i, c = divmod(task, 3); buf = task & 1
        S = S_ + 8*buf; P = P_ + 4*buf; t, u = T0, T0+1
        o = []
        if i == 0:
            o += [(4, lambda: b.v('v_mov_b32', u, t)), (8, lambda: b.swap32(t, u)), (4, lambda: b.v('v_max_f32', t, t, u)),
                  (4, lambda: b.v('v_mov_b32', u, t)), (8, lambda: b.swap16(t, u)), (4, lambda: b.v('v_max_f32', t, t, u))]
            for k in range(8): o.append((4, lambda k=k: b.v('v_sub_f32', S+k, S+k, t)))
            for k in range(4): o.append((4, lambda k=k: b.v('v_sub_f32', NM+4*c+k, '0', t)))
        else:
            def br():
                b.s(f's_cbranch_vccnz L_rare{task}'); b.label(f'L_back{task}'); self.rare.append(task)
            o.append((6, br))
        for k in range(8):
            o.append((8, lambda k=k: b.exp(S+k, S+k)))
            if k >= 1:
                kk = k - 1
                if i == 0 and kk == 0: o.append((4, lambda: b.v('v_mov_b32', L_+c, S)))
                else: o.append((4, lambda kk=kk: b.v('v_add_f32', L_+c, L_+c, S+kk)))
            if k >= 2 and k % 2 == 0:
                h = k//2 - 1
                o.append((4, lambda h=h: b.v('v_cvt_pk_bf16_f32', P+h, S+2*h, S+2*h+1)))
        o.append((4, lambda: b.v('v_add_f32', L_+c, L_+c, S+7)))
        o.append((4, lambda: b.v('v_cvt_pk_bf16_f32', P+3, S+6, S+7)))
        return o
    def addr_k(self, j): self.b.v('v_add_u32', VKA, str(t_base(KPOS[j])), VKB)
    def addr_v(self, j): self.b.v('v_add_u32', VVA, str(t_base(VPOS[j])), VVB)
    def step(self, s, endfn=None):
        b = self.b; mf = []; prew = {}
        i, c = divmod(s, 3)
        if s + 1 <= 23: mf += self.qk_list(s + 1)
        if s - 1 >= 0: mf += self.pv_list(s - 1)
        n = len(mf)
        post = [[] for _ in range(n)]
        hasK = i + 1 <= 7
        if c == 0:
            off = 8 if s else 0
            for k in range(8): post[off + k].append(self.vread(k))
        elif c == 1:
            for k in range(8): post[k].append(self.vread(8 + k))
            if hasK:
                for k in range(8): post[8 + k].append(self.kread(k))
            prew[8] = 8; prew[12] = 4 if hasK else 0
        elif hasK:
            prew[0] = 4; prew[4] = 0
        sm = self.main(s) + (self.pre(s + 1) if s + 1 <= 23 else [])
        if B.skel: sm = []
        ecost = 20
        tot = sum(x for x, _ in sm) + 4*sum(len(p) for p in post) + 4*len(prew) + (ecost if endfn else 0)
        acc_ = 0; k = 0
        for j in range(n):
            if j in prew: b.wait_lgkm(prew[j]); acc_ += 4
            mf[j]()
            for f in post[j]: f(); acc_ += 4
            if endfn and j == n - 4:
                endfn(); acc_ += ecost
                continue
            tgt = tot * (j + 1) / n
            while k < len(sm) and (acc_ + sm[k][0]/2 <= tgt or j == n - 1):
                sm[k][1](); acc_ += sm[k][0]; k += 1
    def start(self):
        for f in self.qk_list(0): f()
        for _, f in self.pre(0): f()
    def intervals(self, L):
        b, cfg = self.b, self.cfg
        for j in range(1, 9):
            cst(b, cfg.astamp, j)
            for s in range(3*(j-1), 3*j):
                if s == 23:
                    b.wait_lgkm(0)
                    b.s('s_cmp_eq_u32 s48, 0'); b.s('s_cbranch_scc1 L_a_noq1')
                    b.s('s_cmp_ge_u32 s41, 3'); b.s('s_cbranch_scc1 L_a_noq1')
                    sv = b.save(); q_addr(b, KF, KF+1); q_reads(b, KF); b.restore(sv)
                    b.label('L_a_noq1')
                def endfn(j=j):
                    b.wait_lgkm(0)
                    if j == 8: b.raw('s_waitcnt lgkmcnt(0)')
                    else:
                        self.addr_v(j)
                        if j + 1 <= 7: self.addr_k(j + 1)
                    L.need(cons_tags('a', 'a', j + 1))
                    b.barrier()
                self.step(s, endfn if s == 3*j - 1 else None)
        cst(b, cfg.astamp, 9)
        cdump(b, cfg.astamp, 10, 0, 's41', 'a', 252)
    XA = KF; SA = KF+1; OS = KF+4; FO = KF+10; FT = KF+13; PK = VF; UP = S_; VO = P_+2
    def tail1(self, tag):
        b = self.b; XA, SA = self.XA, self.SA; u = T0+1
        b.s('s_mul_i32 s39, s34, 6144'); b.s(f's_add_u32 s39, s39, {XB}')
        b.s('s_mul_i32 s50, s34, 384'); b.s(f's_add_u32 s50, s50, {STAT}')
        b.s('s_cmp_eq_u32 s55, 0'); b.s(f's_cbranch_scc0 L_{tag}_s1')
        sv = b.save()
        for kh in range(2):
            if kh == 1: b.label(f'L_{tag}_s1'); b.restore(sv)
            send = 4*(1-kh)
            fill = [lambda: b.v('v_lshlrev_b32', XA, '4', LANE), lambda: b.v('v_add_u32', XA, 's39', XA)]
            def pack(c, mp):
                pk = KF + 16 + 4*((2*c+mp) % 4); r = []
                for h in range(2):
                    o = Oreg(c, send + 2*mp + h)
                    r += [lambda o=o, h=h: b.v('v_cvt_pk_bf16_f32', pk+2*h, o, o+1), lambda o=o, h=h: b.v('v_cvt_pk_bf16_f32', pk+2*h+1, o+2, o+3)]
                return r + [lambda: b.dsw('ds_write_b128', XA, pk, 4, (2*c+mp)*1024)]
            red = []
            for c in range(3):
                Lr = L_ + c; uu = S_ + c
                red.append([lambda Lr=Lr, uu=uu: b.v('v_mov_b32', uu, Lr), lambda Lr=Lr, uu=uu: b.swap32(Lr, uu), lambda Lr=Lr, uu=uu: b.v('v_add_f32', Lr, Lr, uu),
                            lambda Lr=Lr, uu=uu: b.v('v_mov_b32', uu, Lr), lambda Lr=Lr, uu=uu: b.swap16(Lr, uu), lambda Lr=Lr, uu=uu, c=c: b.v('v_add_f32', NM+4*c+1, Lr, uu)])
            redi = [red[c][k] for k in range(6) for c in range(3)]
            fill += pack(0, 0) + pack(0, 1) + redi + [lambda: b.v('v_and_b32', SA, '15', LANE), lambda: b.v('v_mul_u32_u24', SA, '24', SA), lambda: b.v('v_add_u32', SA, 's50', SA)]
            fill += [lambda c=c: b.dsw('ds_write_b64', SA, NM+4*c, 2, 8*c) for c in range(3)]
            fill += pack(1, 0) + pack(1, 1) + pack(2, 0) + pack(2, 1)
            pv = self.pv_list(23)
            order = list(range(send, send+4)) + list(range(4-send, 8-send))
            for dt in order:
                pv[dt]()
                for _ in range(2): fill.pop(0)()
            for f in fill: f()
            b.v('v_add_u32', XA, str((2*6144 if kh == 0 else -2*6144) & 0xffffffff), XA)
            b.v('v_add_u32', SA, str((2*384 if kh == 0 else -2*384) & 0xffffffff), SA)
            b.fence()
            if kh == 0: b.s(f's_branch L_{tag}_s2')
        b.label(f'L_{tag}_s2')
    def m2_head(self):
        b = self.b; t, u = T0, T0+1
        for c in range(3): b.dsr('ds_read_b64', self.OS+2*c, 2, self.SA, 8*c)
        for k in range(6): b.dsr('ds_read_b128', self.PK+4*k, 4, self.XA, k*1024)
        for c in range(3):
            nm, lo = NM+4*c, NM+4*c+1; on, ol = self.OS+2*c, self.OS+2*c+1; fo, ft = self.FO+c, self.FT+c
            b.v('v_min_f32', t, nm, on)
            b.v('v_sub_f32', fo, t, nm); b.v('v_sub_f32', ft, t, on)
            b.exp(fo, fo); b.exp(ft, ft)
            b.v('v_mul_f32', u, fo, lo); b.v('v_fma_f32', u, ft, ol, u)
            b.v('v_rcp_f32', u, u, kind='trans')
            b.v('v_mul_f32', fo, fo, u); b.v('v_mul_f32', ft, ft, u)
        b.fence()
    def m2_part(self, parts, tag):
        b = self.b
        b.s('s_cmp_eq_u32 s55, 0'); b.s(f's_cbranch_scc0 L_{tag}_p1')
        b.fence()
        for kh in range(2):
            if kh == 1: b.label(f'L_{tag}_p1')
            keep = 4*kh
            for pi in parts:
                c, mp = divmod(pi, 2); fo, ft = self.FO+c, self.FT+c
                pk = self.PK + 4*pi
                for h in range(2):
                    o = Oreg(c, keep + 2*mp + h); up = self.UP + 4*h
                    b.v('v_lshlrev_b32', up, '16', pk+2*h); b.v('v_and_b32', up+1, '0xffff0000', pk+2*h)
                    b.v('v_lshlrev_b32', up+2, '16', pk+2*h+1); b.v('v_and_b32', up+3, '0xffff0000', pk+2*h+1)
                    for z in range(4): b.v('v_mul_f32', o+z, o+z, fo)
                    for z in range(4): b.v('v_fmac_f32', o+z, up+z, ft, extra_r={o+z})
                    b.v('v_cvt_pk_bf16_f32', pk+2*h, o, o+1); b.v('v_cvt_pk_bf16_f32', pk+2*h+1, o+2, o+3)
            b.fence()
            if kh == 0: b.s(f's_branch L_{tag}_p2')
        b.label(f'L_{tag}_p2')
    def stores(self, soff, parts=range(6)):
        b = self.b; VO = self.VO
        if 0 in parts:
            b.v('v_and_b32', VO, '15', LANE); b.v('v_lshlrev_b32', VO, '7', VO)
            b.v('v_lshrrev_b32', VO+1, '4', LANE); b.v('v_lshlrev_b32', VO+1, '4', VO+1); b.v('v_add_u32', VO, VO, VO+1)
        b.s(f's_add_u32 s39, {soff}, 4096')
        if 'lin' in self.cfg.stest:
            b.v('v_lshlrev_b32', VO, '4', LANE)
            for pi in range(6): b.store(4, self.PK + 4*pi, VO, 20, soff if pi < 4 else 's39', (pi % 4)*1024, self.cfg.opol)
            return
        for pi in parts:
            c, mp = divmod(pi, 2)
            b.store(4, self.PK + 4*pi, VO, 20, soff if c < 2 else 's39', (c % 2)*2048 + mp*64, self.cfg.opol)
    def rare_block(self, task):
        b = self.b; i, c = divmod(task, 3); S = S_ + 8*(task & 1); t, u = T0, T0+1
        b.reset(); b.label(f'L_rare{task}'); b.nop(2)
        crossred(b, t, u)
        b.v('v_max_f32', t, '0', t)
        b.v('v_sub_f32', u, '0', t); b.exp(u, u)
        for k in range(8): b.v('v_sub_f32', S+k, S+k, t)
        for k in range(4): b.v('v_sub_f32', NM+4*c+k, NM+4*c+k, t)
        b.v('v_mul_f32', L_+c, L_+c, u)
        for k in range(32): b.v('v_mul_f32', O_+32*c+k, O_+32*c+k, u)
        b.nop(2); b.s(f's_branch L_back{task}')

def phase_stamp(b, cfg, tag):
    if cfg.stamps:
        b.raw('s_memrealtime s[90:91]'); b.raw('s_waitcnt lgkmcnt(0)'); b.raw('s_sub_u32 s90, s90, s88')
        b.raw('s_add_u32 s91, s40, s41'); b.raw(f's_mov_b32 m0, s91'); b.raw('s_nop 0'); b.raw('s_movreld_b32 s91, s90')
def stamp_dump(b, cfg):
    if cfg.stamps:
        b.raw('s_cmp_lg_u32 s35, 4'); b.raw(f's_cbranch_scc1 L_nostamp')
        b.raw('s_lshl_b32 s91, s2, 5'); b.raw(f's_add_u32 s80, s78, {64 << 20}'); b.raw('s_addc_u32 s81, s79, 0')
        b.raw(f'v_mov_b32 v{GT+1}, s91')
        for k in range(8):
            b.raw(f'v_mov_b32 v{GT}, s{92+k}'); b.raw(f'global_store_dword v{GT+1}, v{GT}, s[80:81] offset:{4*k}')
        b.label(f'L_nostamp')

def code_prefetch(b, start, nbytes_label_end, wave_lo):
    pass

def k1(cfg):
    b = B()
    KN = NAME + '_kernel'
    b.raw(f'.globl {KN}'); b.raw('.p2align 8'); b.raw(f'.type {KN},@function'); b.label(KN)
    b.s('s_cmp_ge_u32 s2, 256'); b.s('s_cbranch_scc1 L_k1_end')
    if cfg.stamps: b.raw('s_memrealtime s[88:89]')
    b.s('s_and_b32 s60, s2, 7'); b.s('s_lshr_b32 s61, s2, 3'); b.s('s_lshr_b32 s62, s60, 2')
    b.s('s_mul_i32 s63, s62, 40'); b.s('s_add_u32 s64, s0, s63'); b.s('s_addc_u32 s65, s1, 0')
    b.s('s_load_dwordx4 s[68:71], s[64:65], 0'); b.s('s_load_dwordx4 s[72:75], s[64:65], 16')
    b.s('s_load_dwordx2 s[76:77], s[64:65], 32'); b.s('s_load_dwordx2 s[78:79], s[0:1], 96'); b.s('s_load_dwordx4 s[28:31], s[0:1], 80')
    if cfg.codepf:
        b.s('s_and_b32 s39, s61, 15'); b.s('s_cmp_lg_u32 s39, 0'); b.s('s_cbranch_scc1 L_nocpf')
        b.raw('s_getpc_b64 s[82:83]')
        b.label('L_pc')
        b.v('v_lshlrev_b32', 2, '7', 0)
        b.v('v_min_u32', 2, 'L_code_end-L_pc-4', 2)
        b.v('v_mov_b32', 3, 's83')
        b.emit('v_add_co_u32 v2, vcc, s82, v2', 'valu', {2}, {2}); b.nop(2)
        b.emit('v_addc_co_u32 v3, vcc, 0, v3, vcc', 'valu', {3}, {3})
        b.emit(f'global_load_dword v{DUM}, v[2:3], off', 'vmem', {DUM}, {2, 3})
        b.label('L_nocpf')
    b.v('v_lshrrev_b32', 1, '6', 0); b.rfl(35, 1)
    lane_id(b, LANE)
    b.s('s_and_b32 s34, s35, 3'); b.s('s_lshr_b32 s55, s34, 1')
    b.s('s_and_b32 s66, s60, 3'); b.s('s_lshl_b32 s66, s66, 3'); b.s('s_and_b32 s67, s61, 7'); b.s('s_add_u32 s66, s66, s67')
    b.s('s_lshr_b32 s63, s61, 3'); b.s('s_and_b32 s33, s60, 0' if cfg.norot else 's_and_b32 s33, s60, 3')
    if cfg.stagger: b.s('s_and_b32 s48, s63, 1')
    else: b.s('s_mov_b32 s48, 0')
    b.s('s_mov_b32 s40, 0'); b.s('s_mov_b32 s41, 0')
    b.s('s_cmp_eq_u32 s48, 0')
    for k in range(4):
        b.s(f's_mov_b32 s{84+k}, {G0MAP[1][k]*AS}'); b.s(f's_cselect_b32 s{84+k}, {G0MAP[0][k]*AS}, s{84+k}')
    b.s('s_mul_i32 s44, s63, 196608'); b.s('s_lshl_b32 s45, s66, 8')
    b.s('s_lshl_b32 s46, s63, 5'); b.s('s_add_u32 s46, s46, s66'); b.s('s_lshl_b32 s46, s46, 17')
    b.s('s_lshl_b32 s47, s62, 4'); b.s('s_add_u32 s47, s47, s63'); b.s('s_lshl_b32 s47, s47, 6')
    b.s('s_lshl_b32 s39, s66, 1'); b.s('s_add_u32 s47, s47, s39'); b.s('s_add_u32 s47, s47, s55'); b.s('s_mul_i32 s47, s47, 12288')
    b.s('s_and_b32 s39, s34, 1'); b.s('s_mul_i32 s39, s39, 6144'); b.s('s_add_u32 s47, s47, s39')
    b.s('s_mul_i32 s52, s34, 1056'); b.s('s_lshl_b32 s53, s34, 10')
    b.s(f's_mov_b32 s56, {f2u(CEXP):#x}'); b.s(f's_mov_b32 s54, {OOB}')
    b.s('s_mul_i32 s57, s67, 24576'); b.s('s_lshl_b32 s39, s34, 13'); b.s('s_add_u32 s57, s57, s39'); b.s('s_add_u32 s57, s57, s44')
    b.s('s_cmp_eq_u32 s34, 3'); b.s(f's_cselect_b32 s57, {OOB}, s57')
    b.s('s_and_b32 s58, s60, 3'); b.s('s_lshl_b32 s58, s58, 5'); b.s('s_add_u32 s58, s58, s61'); b.s('s_lshl_b32 s58, s58, 13')
    b.s('s_lshl_b32 s39, s34, 20'); b.s('s_add_u32 s58, s58, s39')
    b.raw('s_waitcnt lgkmcnt(0)')
    srd(b, 4, 68, 16*96*1024*2); srd(b, 8, 70, 1 << 26); srd(b, 12, 72, 1 << 26); srd(b, 16, 74, 1 << 23)
    srd(b, 20, 78, cfg.osize); srd(b, 24, 76, 1 << 23)
    b.s(f's_add_u32 s68, s78, {32 << 20}'); b.s('s_addc_u32 s69, s79, 0'); b.s('s_mov_b32 s70, 16384'); b.s('s_mov_b32 s71, 0x20000')
    b.s('s_mov_b32 s64, s30'); b.s('s_mov_b32 s65, s31')
    b.s(f's_mov_b32 s30, {16*96*2048*2}'); b.s('s_mov_b32 s31, 0x20000')
    b.s('s_lshl_b32 s72, s62, 4'); b.s('s_add_u32 s72, s72, s63')
    b.s('s_add_u32 s39, s33, 3'); b.s('s_and_b32 s39, s39, 3'); b.s('s_lshl_b32 s50, s39, 2'); b.s('s_add_u32 s73, s72, s50')
    b.s(f's_mul_i32 s74, s73, {64*12288}')
    b.s('s_lshl_b32 s73, s73, 9')
    b.s('s_lshl_b32 s72, s72, 9'); b.s('s_lshl_b32 s50, s33, 7'); b.s('s_add_u32 s72, s72, s50'); b.s('s_lshl_b32 s50, s67, 3'); b.s('s_add_u32 s72, s72, s50')
    b.s('s_lshl_b32 s75, s67, 8')
    b.s('s_lshl_b32 s39, s39, 2'); b.s('s_add_u32 s39, s39, s63'); b.s(f's_mul_i32 s76, s39, {96*4096}')
    b.s('s_lshl_b32 s50, s62, 11'); b.s('s_add_u32 s76, s76, s50'); b.s('s_add_u32 s76, s76, s75'); b.s('s_lshl_b32 s50, s34, 6'); b.s('s_add_u32 s76, s76, s50')
    if cfg.pf0 == 1:
        b.v('v_lshrrev_b32', 2, '1', LANE); b.v('v_lshlrev_b32', 2, '13', 2); b.v('v_and_b32', 3, '1', LANE); b.v('v_lshlrev_b32', 3, '7', 3); b.v('v_add_u32', 2, 2, 3)
        b.s('s_lshl_b32 s39, s35, 2'); b.s('s_add_u32 s39, s39, s63'); b.s('s_lshl_b32 s39, s39, 18'); b.s('s_add_u32 s39, s39, s45')
        b.load1(DUM, 2, 16, 's39')
        b.v('v_lshlrev_b32', 3, '7', LANE)
        b.s('s_lshr_b32 s39, s35, 2'); b.s('s_cmp_gt_u32 s39, s48'); b.s(f's_cselect_b32 s50, {OOB}, 0')
        b.s('s_mul_i32 s39, s39, 786432'); b.s('s_add_u32 s39, s39, s57'); b.s('s_or_b32 s39, s39, s50')
        b.load1(DUM, 3, 4, 's39')
    if cfg.pf0 == 2:
        b.s('s_cmp_eq_u32 s48, 0'); b.s('s_cbranch_scc1 L_nopf0')
        b.v('v_lshlrev_b32', 3, '7', LANE)
        b.s('s_mul_i32 s39, s33, 786432'); b.s('s_add_u32 s39, s39, s57'); b.s('s_sub_u32 s39, s39, 196608'); b.s('s_cmp_ge_u32 s35, 3'); b.s(f's_cselect_b32 s39, {OOB}, s39')
        b.load1(DUM, 3, 4, 's39')
        b.v('v_lshrrev_b32', 2, '1', LANE); b.v('v_lshlrev_b32', 2, '13', 2); b.v('v_and_b32', 4, '1', LANE); b.v('v_lshlrev_b32', 4, '7', 4); b.v('v_add_u32', 2, 2, 4)
        b.s('s_lshl_b32 s39, s35, 1'); b.s('s_lshr_b32 s50, s63, 1'); b.s('s_add_u32 s39, s39, s50'); b.s('s_lshl_b32 s39, s39, 18'); b.s('s_add_u32 s39, s39, s45')
        b.load1(DUM, 2, 16, 's39')
        b.s(f's_add_u32 s39, s39, {16 << 18}')
        b.load1(DUM, 2, 16, 's39')
        b.s('s_lshr_b32 s39, s35, 2'); b.s('s_add_u32 s39, s39, s33'); b.s('s_and_b32 s39, s39, 3'); b.s('s_mul_i32 s39, s39, 786432'); b.s('s_add_u32 s39, s39, s57')
        b.load1(DUM, 3, 4, 's39')
        if cfg.wopf == 2:
            b.s('s_and_b32 s39, s60, 3'); b.s('s_lshl_b32 s39, s39, 4'); b.s('s_lshr_b32 s50, s63, 1'); b.s('s_lshl_b32 s50, s50, 3')
            b.s('s_add_u32 s39, s39, s50'); b.s('s_add_u32 s39, s39, s67'); b.s('s_lshl_b32 s39, s39, 14')
            b.s('s_lshl_b32 s50, s35, 20'); b.s('s_add_u32 s39, s39, s50')
            b.load1(DUM, 3, 24, 's39'); b.s('s_add_u32 s39, s39, 8192'); b.load1(DUM, 3, 24, 's39')
        b.label('L_nopf0')
    b.s('s_mov_b32 s66, 256'); b.s('s_mov_b32 s67, 0x20000')
    b.s('s_cmp_ge_u32 s35, 4'); b.s('s_cbranch_scc1 L_gem')
    A = Att(b, cfg)
    L = Loader(b, cfg, LB)
    b.fence()
    loader_offsets(b, True, LB, 2048, 8192, False, T0)
    L.set_g('s40')
    b.s('s_cmp_eq_u32 s48, 0'); b.s('s_cbranch_scc0 L_att_g0g')
    for cls in range(2):
        if cls == 1: b.label('L_att_g0g'); L.q = []; b.reset()
        for i in range(3): L.g(i, True, ('g0', i), lds=g_base(i, True, cls))
        att_setup(b)
        L.need({('g0', 0)}); b.barrier()
        for t in range(13):
            L.g(t+3, True, ('g0', t+3), lds=g_base(t+3, True, cls)); L.need({('g0', t+1)}); b.barrier()
        L.set_a('s41')
        b.s('s_mov_b32 s40, 1')
        if cls == 0:
            for t in range(13, 16):
                for p in G0_TO_A[t]: L.t(p, ('a', p))
                L.need({('g0', t+1)} if t < 15 else {('a', 0)}); b.barrier()
            qa = list(L.q)
            b.s('s_branch L_att_a')
        else:
            L.set_g('s40')
            for t in range(13, 16):
                for i in G0_TO_G.get(t, []): L.g(i, False, ('g', i))
                L.need({('g0', t+1)} if t < 15 else {('g', 0)}); b.barrier()
    def g_loader(t0, t1, extra={}):
        for t in range(t0, t1):
            for i in G_OWN.get(t, []): L.g(i, False, ('g', i))
            if t == 15: L.set_a('s41')
            for p in G_TO_A.get(t, []): L.t(p, ('a', p))
            if t in extra: extra[t]()
            L.need({('g', t+1)} if t < 15 else {('a', 0)}); b.barrier()
    for p in range(4): L.t(p, ('a', p))
    L.need({('g', 1)}); b.barrier()
    def rq(): q_addr(b, T0, T0+1); q_reads(b, T0); b.wait_lgkm(0)
    g_loader(1, 8, {1: rq})
    qj = list(L.q)
    b.fence()
    b.label('L_att_gj')
    def st(ps): A.stores('s54', ps); L.other(len(ps))
    g_loader(8, 16, {8: lambda: st([0, 1]), 9: lambda: st([2, 3]), 10: lambda: st([4, 5])} if cfg.stspread == 2 else {8+i: (lambda i=i: st([i])) for i in range(6)})
    assert [x for x in L.q if x[0]] == qa[-2:], (L.q, qa)
    L.q = list(qa)
    b.s('s_add_u32 s40, s40, 1')
    b.fence()
    b.label('L_att_a')
    cst(b, cfg.astamp, 0)
    A.addr_k(0)
    for k in range(8): A.kread(k)()
    b.s('s_cmp_eq_u32 s48, 0'); b.s('s_cbranch_scc1 L_a_c0a')
    sv = b.save()
    A.start(); b.fence()
    b.label('L_a_c0a'); b.restore(sv)
    L.t(6, ('a', 6)); L.t(7, ('a', 7))
    b.label('L_att_a2')
    q_addr(b, P_+4, P_+5)
    b.raw('s_waitcnt lgkmcnt(0)'); b.lds = []
    A.addr_v(0); A.addr_k(1)
    L.need(cons_tags('a', 'a', 1)); b.barrier()
    b.s('s_cmp_eq_u32 s48, 0'); b.s('s_cbranch_scc0 L_a_i1')
    q_reads(b, P_+4)
    A.start()
    b.fence()
    b.label('L_a_i1')
    A.intervals(L)
    b.s('s_add_u32 s41, s41, 1')
    b.s('s_cmp_eq_u32 s40, 4'); b.s('s_cbranch_scc1 L_att_nog')
    sv = b.save()
    A.tail1('ga')
    b.barrier()
    loader_offsets(b, True, LB, 2048, 8192, False, T0)
    L.set_g('s40'); L.q = []
    L.set_ost()
    ex = {1: A.m2_head}
    for pi in range(6): ex[2+pi] = (lambda pi=pi: A.m2_part([pi], f'ga{pi}'))
    g_loader(1, 8, ex)
    assert L.q == qj, (L.q, qj)
    b.s('s_branch L_att_gj')
    b.label('L_att_nog'); b.restore(sv)
    A.tail1('aa')
    b.barrier()
    L.set_ost()
    b.s('s_cmp_eq_u32 s41, 4'); b.s('s_cbranch_scc1 L_att_o')
    A.m2_head()
    A.m2_part(list(range(6)), 'aa')
    A.stores('s54')
    A.addr_k(0)
    for k in range(8): A.kread(k)()
    A.start(); b.fence()
    b.s('s_branch L_att_a2')
    b.label('L_att_o'); b.reset(); L.q = []
    loader_offsets(b, False, LB, 128, 2048, True, T0)
    L.set_o(0)
    VP = Q_
    L.flag_setup(VP); L.nonce_load(VP, 'n')
    A.m2_head(); b.barrier()
    for t in range(2, 64):
        n = t + 3
        if n % 16 == 0 and n < 64:
            L.set_o(n // 16); L.check(VP, f'a{n}')
        if t == 2: L.o(4)
        if n < 64: L.o(n)
        if (n + 3) % 16 == 0 and n + 3 < 64: L.poll(VP, ('p', n + 3), (n + 3) // 16)
        if 2 <= t < 8: A.m2_part([t - 2], f'oa{t}')
        if 8 <= t < 11: st([2*(t-8), 2*(t-8)+1])
        if t == 12:
            L.nonce_check(VP, 'a'); L.signal(VP, 0, False)
        if t == 11: b.vm(0); L.q = []
        else: L.need({('o', t+1), ('p', n+1)})
        b.barrier()
    b.s('s_endpgm')
    b.reset()
    b.label('L_gem')
    M = Loader(b, cfg, GB)
    gemm_setup(b)
    loader_offsets(b, True, GB, 2048, 8192, False, GT)
    b.v('v_and_b32', GT, '15', LANE); b.v('v_mul_u32_u24', VQW, str(QROW), GT)
    b.v('v_lshrrev_b32', GT, '4', LANE); b.v('v_lshlrev_b32', GT, '3', GT)
    b.s('s_lshl_b32 s39, s34, 6'); b.s(f's_add_u32 s39, s39, {XB}'); b.v('v_add3_u32', VQW, VQW, GT, 's39')
    M.flag_setup(248)
    b.s('s_add_u32 s39, s2, s34'); b.s('s_cmp_lg_u32 s39, 0'); b.s('s_cbranch_scc1 L_nononce')
    b.raw('s_memrealtime s[50:51]'); b.raw('s_waitcnt lgkmcnt(0)'); b.s('s_or_b32 s50, s50, 1')
    b.v('v_mov_b32', 248, 's50'); b.v('v_mov_b32', 249, 's51')
    b.s('s_mov_b64 exec, 1')
    b.emit('buffer_store_dwordx2 v[248:249], off, s[64:67], 0 sc1', 'vmem', (), {248, 249})
    b.s('s_mov_b64 exec, -1')
    b.label('L_nononce')
    b.barrier()
    g_main(b, cfg, True)
    b.s('s_branch L_gem_gdone')
    b.fence()
    b.label('L_gem_g')
    qg = [(('g', 1), 5)]
    M.q = list(qg)
    g_main(b, cfg, False, M)
    b.label('L_gem_gdone')
    phase_stamp(b, cfg, 'g')
    b.s('s_add_u32 s40, s40, 1')
    g_tail_q(b)
    b.fence()
    b.s('s_cmp_eq_u32 s40, s48'); b.s('s_cbranch_scc1 L_gem_g')
    M.q = []
    M.set_a('s41')
    b.barrier()
    def a_loader(t0, t1, nxt, tag='a'):
        for t in range(t0, t1):
            if t == 5 and nxt == 'E': M.poll(248, 'poll', 0)
            if t == 1: M.nonce_load(248, 'n')
            for p in A_OWN.get(t, []): M.t(p, (tag, p))
            if t == 4:
                assert all(x[0] != 'n' for x in M.q)
                M.nonce_check(248, f'g{tag}'); M.signal(248, 4, True)
                if cfg.wopf == 1:
                    b.s('s_cmp_eq_u32 s41, 2'); b.s(f's_cselect_b32 s39, s58, {OOB}')
                    b.load1(DUM, GB+3, 24, 's39'); b.s(f's_add_u32 s39, s39, {4 << 20}'); b.load1(DUM, GB+3, 24, 's39'); M.other(2)
            if t == 1 and cfg.pf:
                M.ub('s39', 's40'); b.s('s_mul_i32 s39, s39, 786432'); b.s('s_add_u32 s39, s39, s57')
                b.s('s_cmp_eq_u32 s40, 4'); b.s(f's_cselect_b32 s39, {OOB}, s39')
                b.load1(DUM, GB+3, 4, 's39'); M.other(1)
            if nxt in ('G', 'A'):
                if t == 5: M.set_a('s41', 1)
                for p in A_PRE.get(t, []): M.t(p, ('a2', p))
            if nxt == 'G':
                if t == 8: M.set_g('s40')
                for i in A_TO_G.get(t, []): M.g(i, False, ('g', i))
                M.need(cons_tags(tag, 'a', t+1) if t < 8 else {('g', 0)})
            elif nxt == 'A':
                for p in A_TO_A.get(t, []): M.t(p, ('a2', p))
                M.need(cons_tags(tag, 'a', t+1) if t < 8 else {('a2', 0)})
            elif nxt == 'E':
                if t == 6:
                    loader_offsets(b, False, GB, 128, 2048, True, GT); M.set_o(0)
                if t == 7:
                    assert all(x[0] != 'poll' for x in M.q)
                    M.check(248, 'g'); M.o(0); M.o(1)
                if t == 8: M.o(2)
                M.need(cons_tags(tag, 'a', t+1) if t < 8 else {('o', 0)})
            else:
                M.need(cons_tags(tag, 'a', t+1))
            b.barrier()
    a_loader(1, 5, None)
    q5 = list(M.q)
    b.s('s_cmp_eq_u32 s40, 4'); b.s('s_cbranch_scc1 L_gem_nog')
    a_loader(5, 9, 'G')
    assert M.q == qg, (M.q, qg)
    phase_stamp(b, cfg, 'a')
    b.s('s_add_u32 s41, s41, 1')
    b.s('s_branch L_gem_g')
    b.label('L_gem_nog'); M.q = list(q5)
    b.s('s_cmp_eq_u32 s41, 3'); b.s('s_cbranch_scc1 L_gem_last')
    a_loader(5, 9, 'A')
    phase_stamp(b, cfg, 'b')
    b.s('s_add_u32 s41, s41, 1')
    M.t(5, ('a2', 5))
    b.barrier()
    M.need(cons_tags('a2', 'a', 1)); b.barrier()
    a_loader(1, 5, None, 'a2')
    assert [n for _, n in M.q] == [n for _, n in q5], (M.q, q5)
    M.q = list(q5)
    b.label('L_gem_last')
    a_loader(5, 9, 'E')
    phase_stamp(b, cfg, 'c')
    b.fence()
    for f in gemm_addr_ops(b, OSL[0]): f()
    M.o(3)
    for c in range(3):
        g_interval(b, RES, True, c == 0, gemm_addr_ops(b, OSL[c+1]), (lambda c=c: M.need({('o', c+1)})), True)
    for k in range(5): b.s(f's_mov_b32 s{80+k}, {OSL[(4+k) % 5]}')
    b.s('s_mov_b32 s49, 61')
    b.label('L_o_cl')
    def rot():
        b.s('s_mov_b32 s85, s80')
        for k in range(5): b.s(f's_mov_b32 s{80+k}, s{81+k}')
    g_interval(b, RES, True, False, gemm_addr_ops(b, 's80'), rot, True)
    b.s('s_sub_u32 s49, s49, 1'); b.s('s_cmp_lg_u32 s49, 0'); b.s('s_cbranch_scc1 L_o_cl')
    g_block(b, 1, A1, {})
    t = GT
    b.v('v_and_b32', t, '15', LANE); b.v('v_lshlrev_b32', t, '12', t)
    b.v('v_bfe_u32', t+1, LANE, '4', '1'); b.v('v_lshlrev_b32', t+1, '5', t+1); b.v('v_add_u32', t, t, t+1)
    b.v('v_lshrrev_b32', t+1, '5', LANE); b.v('v_lshlrev_b32', t+1, '4', t+1); b.v('v_add_u32', t, t, t+1)
    for qb in range(6):
        pk = 64 + 4*qb
        for nt in range(2):
            a = acc(nt, qb)
            b.v('v_cvt_pk_bf16_f32', pk+2*nt, a, a+1); b.v('v_cvt_pk_bf16_f32', pk+2*nt+1, a+2, a+3)
        b.swap16(pk, pk+2); b.swap16(pk+1, pk+3)
        b.store(4, pk, t, 28, 's76', 0, cfg.outpol)
        if qb < 5: b.s(f's_add_u32 s76, s76, {16*4096}')
    if cfg.stamps:
        b.raw('s_memrealtime s[90:91]'); b.raw('s_waitcnt lgkmcnt(0)'); b.raw('s_sub_u32 s99, s90, s88')
    stamp_dump(b, cfg)
    b.label('L_k1_end')
    b.s('s_endpgm')
    b.label('L_code_end')
    for task in A.rare: A.rare_block(task)
    return b

SLOT2 = 29184; NSLOT2 = 5
def adv_slot(b, reg):
    return [lambda: b.s(f's_add_u32 {reg}, {reg}, {SLOT2}'), lambda: (b.s(f's_cmp_eq_u32 {reg}, {SLOT2*NSLOT2}'), b.s(f's_cselect_b32 {reg}, 0, {reg}'))]
def k2(cfg):
    b = B()
    b.raw('.globl k2_kernel'); b.raw('.p2align 8'); b.raw('.type k2_kernel,@function'); b.label('k2_kernel')
    b.s('s_cmp_ge_u32 s2, 256'); b.s('s_cbranch_scc1 L_k2_end')
    if cfg.stamps: b.raw('s_memrealtime s[88:89]'); b.raw('s_memtime s[86:87]')
    b.s('s_and_b32 s60, s2, 7'); b.s('s_lshr_b32 s61, s2, 3'); b.s('s_lshr_b32 s62, s60, 2')
    b.s('s_mul_i32 s63, s62, 40'); b.s('s_add_u32 s64, s0, s63'); b.s('s_addc_u32 s65, s1, 0')
    b.s('s_load_dwordx2 s[76:77], s[64:65], 32'); b.s('s_load_dwordx2 s[78:79], s[0:1], 96'); b.s('s_load_dwordx2 s[70:71], s[0:1], 80')
    b.v('v_lshrrev_b32', 1, '6', 0); b.rfl(35, 1)
    lane_id(b, LANE)
    b.s('s_and_b32 s34, s35, 3')
    if cfg.k2map == 0:
        b.s('s_and_b32 s66, s60, 3'); b.s('s_lshl_b32 s66, s66, 2'); b.s('s_lshr_b32 s39, s61, 3'); b.s('s_add_u32 s66, s66, s39')
        b.s('s_and_b32 s67, s61, 7')
    else:
        b.s('s_and_b32 s66, s60, 1'); b.s('s_lshl_b32 s66, s66, 3'); b.s('s_lshr_b32 s39, s61, 2'); b.s('s_add_u32 s66, s66, s39')
        b.s('s_bfe_u32 s67, s60, 0x10001'); b.s('s_lshl_b32 s67, s67, 2'); b.s('s_and_b32 s39, s61, 3'); b.s('s_add_u32 s67, s67, s39')
    b.s('s_lshl_b32 s36, s62, 4'); b.s('s_add_u32 s36, s36, s66'); b.s(f's_mul_i32 s36, s36, {64*12288}')
    b.s('s_lshl_b32 s37, s67, 8')
    b.s('s_lshl_b32 s53, s34, 10'); b.s('s_mul_i32 s52, s34, 1056')
    b.s('s_mov_b32 s42, 0'); b.s('s_mov_b32 s43, 0')
    b.raw('s_waitcnt lgkmcnt(0)')
    srd(b, 4, 78, 2*16*64*12288); srd(b, 16, 76, 1 << 23); srd(b, 20, 70, 16*96*2048*2)
    b.s('s_cmp_ge_u32 s35, 4'); b.s('s_cbranch_scc1 L_k2_gem')
    b.fence()
    D = NSLOT2 - (2 if cfg.k2defer else 1)
    L = Loader(b, cfg, 8)
    loader_offsets(b, False, 8, 128, 2048, True, 2)
    def iss():
        L.g(0, True, None, dyn=True, P=K2G)
        for f in adv_slot(b, 's43'): f()
    for i in range(D): iss()
    b.vm(7*(D-1)); b.barrier()
    b.s(f's_mov_b32 s49, {64-D}')
    b.fence()
    b.label('L_k2_ld')
    iss(); b.vm(7*(D-1)); b.barrier()
    b.s('s_sub_u32 s49, s49, 1'); b.s('s_cmp_lg_u32 s49, 0'); b.s('s_cbranch_scc1 L_k2_ld')
    for i in range(D):
        b.vm(max(0, 7*(D-2-i))); b.barrier()
    b.s('s_endpgm')
    b.reset()
    b.label('L_k2_gem')
    gemm_setup(b)
    for f in gemm_addr_ops(b, 's42') + adv_slot(b, 's42'): f()
    b.barrier()
    nx = lambda: gemm_addr_ops(b, 's42')
    def endf():
        for f in adv_slot(b, 's42'): f()
    g_interval(b, RES, True, True, nx(), endf, cfg.k2defer)
    b.s('s_mov_b32 s49, 63')
    b.label('L_k2_cl')
    g_interval(b, RES, True, False, nx(), endf, cfg.k2defer)
    b.s('s_sub_u32 s49, s49, 1'); b.s('s_cmp_lg_u32 s49, 0'); b.s('s_cbranch_scc1 L_k2_cl')
    g_block(b, 1, A1, {})
    t = GT
    b.v('v_and_b32', t, '15', LANE); b.v('v_lshlrev_b32', t, '12', t)
    b.v('v_bfe_u32', t+1, LANE, '4', '1'); b.v('v_lshlrev_b32', t+1, '5', t+1); b.v('v_add_u32', t, t, t+1)
    b.v('v_lshrrev_b32', t+1, '5', LANE); b.v('v_lshlrev_b32', t+1, '4', t+1); b.v('v_add_u32', t, t, t+1)
    b.s(f's_mul_i32 s39, s66, {96*4096}'); b.s('s_lshl_b32 s50, s62, 11'); b.s('s_add_u32 s39, s39, s50')
    b.s('s_lshl_b32 s50, s67, 8'); b.s('s_add_u32 s39, s39, s50'); b.s('s_lshl_b32 s50, s34, 6'); b.s('s_add_u32 s39, s39, s50')
    for qb in range(6):
        pk = 64 + 4*qb
        for nt in range(2):
            a = acc(nt, qb)
            b.v('v_cvt_pk_bf16_f32', pk+2*nt, a, a+1); b.v('v_cvt_pk_bf16_f32', pk+2*nt+1, a+2, a+3)
        b.swap16(pk, pk+2); b.swap16(pk+1, pk+3)
        b.store(4, pk, t, 20, 's39', 0)
        if qb < 5: b.s(f's_add_u32 s39, s39, {16*4096}')
    if cfg.stamps:
        b.raw('s_memrealtime s[90:91]'); b.raw('s_memtime s[92:93]'); b.raw('s_waitcnt lgkmcnt(0)'); b.raw('s_sub_u32 s90, s90, s88'); b.raw('s_sub_u32 s92, s92, s86')
        b.raw('s_lshl_b32 s91, s2, 5')
        b.raw(f's_add_u32 s80, s78, {64 << 20}'); b.raw('s_addc_u32 s81, s79, 0')
        b.raw(f'v_mov_b32 v200, s90'); b.raw(f'v_mov_b32 v201, s92'); b.raw(f'v_mov_b32 v202, s91')
        b.raw(f'global_store_dwordx2 v202, v[200:201], s[80:81]')
    b.label('L_k2_end')
    b.s('s_endpgm')
    return b

def desc(name, nv):
    return f'''.p2align 6
.amdhsa_kernel {name}
  .amdhsa_next_free_vgpr {nv}
  .amdhsa_next_free_sgpr 102
  .amdhsa_accum_offset {nv}
  .amdhsa_group_segment_fixed_size 0
  .amdhsa_kernarg_size 104
  .amdhsa_user_sgpr_count 2
  .amdhsa_user_sgpr_kernarg_segment_ptr 1
  .amdhsa_system_sgpr_workgroup_id_x 1
.end_amdhsa_kernel
'''
def build(path, cfg, which=None):
    OG['xpol'] = cfg.xpol
    B.nodma = cfg.nodma; B.skel = cfg.skel; G['cfg'] = cfg; B.guard = False
    a = k1(cfg)
    s = '; @launch grid=(256,1,1) block=(512,1,1) lds=163840\n.amdgcn_target "amdgcn-amd-amdhsa--gfx950"\n.text\n' + a.text()
    s += '.section .rodata,"a"\n' + desc(NAME + '_kernel', 256)
    open(path, 'w').write(s)
    return a, a
def mk(path, which=('k1', 'k2'), **kw):
    cfg = Cfg()
    for k, v in kw.items():
        assert hasattr(cfg, k), k
        setattr(cfg, k, v)
    return build(path, cfg, which)

if __name__ == '__main__':
    a, c = mk('v5.s')
    print('k1 lines', len(a.lines), 'nops', a.nnop, 'k2 lines', len(c.lines), 'nops', c.nnop)
```

```python
import math, struct, sys
from asmb import *
NAME = 'concat_heads__mha_block_cached__gqa_block_cached__near_ridge'
RING = 135168; XB = RING
HS = 16896; AS = 33792; GS = 22528; WG = 8448
QROW = 272; STAT = XB + 24576
def f2u(x): return struct.unpack('<I', struct.pack('<f', x))[0]
CEXP = math.log2(math.e) / math.sqrt(128.0)
LANE = 255; DUM = 254
OOB = 0x40000000

class Cfg:
    kvpol = ' nt'; opol = ' sc1'; pf = True; pf0 = 2; stamps = False; stagger = True; k2map = 1; wopf = 3
    nodma = False; astamp = False; gstamp = False; skel = False; osize = 2*16*64*12288; codepf = True; k2defer = True; stest = ''; stspread = 2; outpol = ''; nosig = False; truedrain = False; xtile = 0; ivw = None; pollat = 10; sigat = 7; won = (0, 2, 5, 7, 9, 11, 14, 16); dly = 0; dlymode = 0; ohack = 0; norot = False; xpol = ' sc1'; atpol = ' sc1'

G = {}
def srd(b, d, lo, size):
    b.s(f's_mov_b32 s{d}, s{lo}'); b.s(f's_mov_b32 s{d+1}, s{lo+1}'); b.s(f's_mov_b32 s{d+2}, {size}'); b.s(f's_mov_b32 s{d+3}, 0x20000')
def lane_id(b, d):
    b.v('v_mbcnt_lo_u32_b32', d, '-1', '0'); b.v('v_mbcnt_hi_u32_b32', d, '-1', d)

XO = 0; WO1 = 12288; WO0 = 12288 + WG
GMAP = [0,1,2,3,4,5,0,1,2,3,0,1,2,3,4,5]
HMAP = [p % 8 for p in range(16)]
def g_base(i, full, cls=0): return (i % 4)*AS if full else GMAP[i]*GS
TILES = [('K',0)] + sum([[('K',j+1), ('V',j)] for j in range(7)], []) + [('V',7)]
def t_base(p): return HMAP[p]*HS
KPOS = {j: TILES.index(('K', j)) for j in range(8)}
VPOS = {j: TILES.index(('V', j)) for j in range(8)}
def t_cons(p): k, j = TILES[p]; return j if k == 'K' else j + 1

def loader_offset_ops(b, kv, base, xstride, wstride, operm, t):
    lane = LANE
    vKV, vX, vW, vPF = base, base+1, base+2, base+3
    t0, t1 = t, t+1
    o = []
    def V(*a): o.append(lambda: b.v(*a))
    V('v_and_b32', t0, '15', lane); V('v_lshlrev_b32', t0, '4', t0)
    V('v_lshrrev_b32', t1, '4', lane)
    if kv:
        V('v_lshl_add_u32', vKV, t1, '3', 's34'); V('v_lshl_add_u32', vKV, vKV, '8', t0)
    sa, sb = (4, 3) if operm else (2, 4)
    V('v_and_b32', vW, '1', t1); V('v_lshl_add_u32', vW, vW, str(sa), 's34')
    V('v_lshrrev_b32', t1, '1', t1); V('v_lshl_add_u32', vW, t1, str(sb), vW)
    V('v_lshl_add_u32', vW, vW, str(int(math.log2(wstride))), t0)
    if operm:
        V('v_lshl_add_u32', vX, lane, '4', 's53')
    else:
        V('v_lshrrev_b32', t0, '3', lane); V('v_lshl_add_u32', t0, 's34', '3', t0)
        V('v_lshrrev_b32', t1, '1', t0); V('v_xor_b32', t1, t1, lane); V('v_and_b32', t1, '7', t1); V('v_lshlrev_b32', t1, '4', t1)
        V('v_lshl_add_u32', vX, t0, str(int(math.log2(xstride))), t1)
    if kv == 2: V('v_lshlrev_b32', vPF, '7', lane)
    return o
def loader_offsets(b, *a):
    for f in loader_offset_ops(b, *a): f()

K1G = dict(xsrd=4, wsrd=16, xstride=2048, xchunk=128, wstride=8192, operm=False)
OG = dict(xsrd=20, wsrd=24, xstride=128, xchunk=12288, wstride=2048, operm=True, xpol=' sc1', xb='s42', wb='s43')
OSL = [0, AS, 2*AS, 3*AS]
K2G = dict(xsrd=4, wsrd=16, xstride=128, xchunk=12288, wstride=2048, operm=True)

class Loader:
    def __init__(self, b, cfg, base): self.b, self.cfg, self.base, self.q, self.fill, self.per = b, cfg, base, [], [], 0
    def setfill(self, ops, ndma):
        self.fill = list(ops); self.per = -(-len(self.fill) // max(ndma, 1))
    def _f(self):
        for _ in range(self.per):
            if self.fill: self.fill.pop(0)()
    def flush(self):
        while self.fill: self.fill.pop(0)()
    def g(self, i, full, tag, lds=None, dyn=False, P=K1G):
        b = self.b; vX, vW = self.base+1, self.base+2
        xs, ws = P['xstride'], P['wstride']
        if dyn:
            b.s('s_add_u32 s51, s43, s53'); xb, wb, xo, wo, lds = 's36', 's37', 0, 0, 0
            lx, lw = 's51', 's50'
        else:
            if lds is None: lds = g_base(i, full)
            xb, wb, xo, wo = P.get('xb', 's36'), P.get('wb', 's45'), i*P['xchunk'], i*64*ws
            lx, lw = 's53', 's52'
        for z in range(3):
            b.s(f's_add_u32 m0, {lx}, {lds + XO + z*4096}'); b.s(f's_add_u32 s39, {xb}, {xo + 32*z*xs}')
            b.dma(vX, P['xsrd'], 's39', 0, P.get('xpol', '')); self.q.append((tag, 1)); self._f()
        if dyn: b.s('s_add_u32 s50, s43, s52')
        d4 = 4 if P['operm'] else 8
        ops = [(h, z) for h in ((0, 1) if full else (1,)) for z in (0, 1)]
        for h, z in ops:
            b.s(f's_add_u32 m0, {lw}, {lds + (WO1 if h else WO0) + z*4224}'); b.s(f's_add_u32 s39, {wb}, {wo + (32*h + d4*z)*ws}')
            b.dma(vW, P['wsrd'], 's39'); self.q.append((tag, 1)); self._f()
        if dyn: b.s(f's_add_u32 s36, s36, {P["xchunk"]}'); b.s(f's_add_u32 s37, s37, {64*ws}')
        self.norm()
    def t(self, p, tag):
        b = self.b; k, j = TILES[p]; srd_ = 8 if k == 'K' else 12; lds = t_base(p); pol = self.cfg.kvpol
        for kh in range(2):
            b.s(f's_add_u32 m0, s52, {lds + kh*8448}'); b.s(f's_add_u32 s39, s38, {j*16384 + kh*8192}')
            b.dma(self.base, srd_, 's39', 0, pol)
            b.s('s_add_u32 m0, m0, 3200')
            b.dma(self.base, srd_, 's39', 1024, pol)
        self.q.append((tag, 4))
    def norm(self):
        q = []
        for t, n in self.q:
            if q and q[-1][0] == t: q[-1] = (t, q[-1][1] + n)
            else: q.append((t, n))
        self.q = q
    def other(self, n): self.q.append((None, n))
    def need(self, tags):
        last = -1
        for i, (t, n) in enumerate(self.q):
            if t in tags: last = i
        if last >= 0:
            self.q = self.q[last+1:]
            self.b.vm(min(63, sum(n for _, n in self.q)))
    def ub(self, d, unit_sgpr, plus=0):
        self.b.s(f's_add_u32 {d}, {unit_sgpr}, s33')
        if plus: self.b.s(f's_add_u32 {d}, {d}, {plus & 3}')
        self.b.s(f's_and_b32 {d}, {d}, 3')
    def set_g(self, unit_sgpr):
        self.ub('s36', unit_sgpr); self.b.s('s_mul_i32 s36, s36, 786432'); self.b.s('s_add_u32 s36, s36, s44')
    def set_a(self, unit_sgpr, plus=0):
        self.ub('s38', unit_sgpr, plus); self.b.s('s_lshl_b32 s38, s38, 24'); self.b.s('s_add_u32 s38, s38, s46')
    def set_ost(self):
        self.ub('s54', 's41', 3); self.b.s('s_mul_i32 s54, s54, 3145728'); self.b.s('s_add_u32 s54, s54, s47')
    def qidx(self, d, plus):
        b = self.b
        b.s(f's_sub_u32 {d}, s33, s59'); b.s(f's_add_u32 {d}, {d}, {(3 - plus) & 3}'); b.s(f's_and_b32 {d}, {d}, 3')
    def set_o(self, plus):
        b = self.b
        self.qidx('s50', plus)
        b.s(f's_mul_i32 s42, s50, {16*12288}'); b.s('s_add_u32 s42, s42, s74')
        b.s(f's_lshl_b32 s43, s50, 21'); b.s('s_add_u32 s43, s43, s75')
    def o(self, n, tag='o'):
        sv = self.base; self.base = self.obase
        self.g(n, True, (tag, n), lds=OSL[n % 4], P=OG)
        self.base = sv
    def flag_setup(self, v):
        self.b.v('v_and_b32', v+4, '7', LANE); self.b.v('v_lshlrev_b32', v+4, '3', v+4)
    def nonce_load(self, v, tag):
        self.b.emit(f'buffer_load_dwordx2 {vr(v,2)}, off, s[64:67], 0 sc1', 'vmem', R(v, 2)); self.q.append((tag, 1))
    def nonce_check(self, v, tag):
        b = self.b
        b.s('s_mov_b32 s49, 0x40000')
        b.label(f'L_nc{tag}')
        b.rfl(39, v); b.nop(1)
        b.s('s_cmp_lg_u32 s39, 0'); b.s(f's_cbranch_scc1 L_nok{tag}')
        b.s('s_sleep 4')
        b.emit(f'buffer_load_dwordx2 {vr(v,2)}, off, s[64:67], 0 sc1', 'vmem', R(v, 2)); b.vm(0)
        b.s('s_sub_u32 s49, s49, 1'); b.s('s_cmp_lg_u32 s49, 0'); b.s(f's_cbranch_scc1 L_nc{tag}')
        b.label(f'L_nok{tag}')
    def poll_off(self, k):
        b = self.b
        self.qidx('s32', k); b.s('s_lshl_b32 s32, s32, 7'); b.s('s_add_u32 s32, s32, s73')
    def poll(self, v, tag, k):
        self.poll_off(k)
        self.b.emit(f'buffer_load_dwordx2 {vr(v+2,2)}, {vr(v+4)}, s[68:71], s32 offen sc1', 'vmem', R(v+2, 2), {v+4}); self.q.append((tag, 1))
    def check(self, v, tag):
        b = self.b
        if self.cfg.nosig: return
        b.s('s_mov_b32 s49, 0x40000')
        b.label(f'L_chk{tag}')
        b.emit(f'v_cmp_ne_u64 vcc, {vr(v,2)}, {vr(v+2,2)}', 'valu', (), R(v, 4))
        b.s(f's_cbranch_vccz L_ok{tag}')
        b.s('s_sleep 4')
        b.emit(f'buffer_load_dwordx2 {vr(v+2,2)}, {vr(v+4)}, s[68:71], s32 offen sc1', 'vmem', R(v+2, 2), {v+4}); b.vm(0)
        b.s('s_sub_u32 s49, s49, 1'); b.s('s_cmp_lg_u32 s49, 0'); b.s(f's_cbranch_scc1 L_chk{tag}')
        b.label(f'L_ok{tag}')
    def signal(self, v, wave, cond0):
        b = self.b
        if self.cfg.nosig: return
        self.ub('s39', 's41', 3); b.s('s_lshl_b32 s39, s39, 11'); b.s('s_add_u32 s39, s39, s72')
        b.s(f's_cmp_eq_u32 s35, {wave}'); b.s(f's_cselect_b32 s39, s39, {OOB}')
        if cond0: b.s('s_cmp_eq_u32 s37, 0'); b.s(f's_cselect_b32 s39, {OOB}, s39'); b.s('s_mov_b32 s37, 0')
        b.s('s_mov_b64 exec, 1')
        b.emit(f'buffer_store_dwordx2 {vr(v,2)}, off, s[68:71], s39 sc1', 'vmem', (), R(v, 2))
        b.s('s_mov_b64 exec, -1')
        self.other(1)

def cons_tags(ph, kind, t):
    if kind == 'g': return {(ph, t)}
    return {(ph, p) for p in range(16) if t_cons(p) == t}
G_OWN = {2: [5], 3: [6, 7], 4: [8], 5: [9], 6: [14], 7: [10], 8: [11], 9: [12], 10: [13], 11: [15]}
G_TO_A = {11: [0], 12: [1], 13: [2, 3], 14: [4], 15: [5]}
G_TO_O = {12: [0], 13: [1], 15: [2]}
F_TO_A = {13: [0, 1], 14: [2, 3], 15: [4, 5]}
G0_TO_G = {13: [0], 14: [1, 2], 15: [3]}
A_OWN = {1: [8], 2: [9, 10], 3: [11, 12], 4: [13, 14], 5: [15]}
A_TO_G = {6: [0, 1], 7: [2], 8: [3, 4]}
A_TO_O = {6: [0], 7: [1], 8: [2]}
O_TO_O = {13: [0], 14: [1], 15: [2]}
def verify_ring():
    for cls, prog in enumerate((['G0','A','G','A','G','A','G','O','A','O','O','O'], ['G0','G','A','G','A','G','O','A','O','A','O','O'])):
        live = {}; issued = set()
        def rng(ph, i):
            k = prog[ph]
            if k in ('G0', 'O'): return (g_base(i, True), g_base(i, True) + 29184)
            if k == 'G': return (g_base(i, False), g_base(i, False) + 20736)
            return (t_base(i), t_base(i) + HS)
        def iss(ph, i):
            lo, hi = rng(ph, i)
            for t, (a, c) in live.items(): assert hi <= a or c <= lo, (prog, ph, i, t)
            assert (ph, i) not in issued, (prog, ph, i)
            live[(ph, i)] = (lo, hi); issued.add((ph, i))
        for i in range(3): iss(0, i)
        for ph, k in enumerate(prog):
            nx = prog[ph+1] if ph + 1 < len(prog) else None
            pv = prog[ph-1] if ph else None
            for t in range(9 if k == 'A' else 16):
                if k in ('G0', 'O'):
                    own = [t+3] if t <= 12 else []
                    if pv == 'A' and t < 2: own = [[], [3, 4]][t]
                    nxt = {'A': F_TO_A, 'O': O_TO_O, 'G': G0_TO_G, None: {}}[nx].get(t, [])
                elif k == 'G':
                    own = G_OWN.get(t, []) if t else ([4] if pv == 'G0' else [])
                    nxt = (G_TO_A if nx == 'A' else G_TO_O).get(t, [])
                else:
                    own = A_OWN.get(t, []) if t else [6, 7]
                    nxt = {'G': A_TO_G, 'O': A_TO_O}[nx].get(t, [])
                for i in own: iss(ph, i)
                for i in nxt: iss(ph+1, i)
                for tg in cons_tags(ph, 'a' if k == 'A' else 'g', t):
                    assert tg in live, (prog, tg); del live[tg]
        assert not live and len(issued) == 192
verify_ring()

def cst(b, on, k):
    if on:
        b.raw('s_memtime s[90:91]'); b.raw('s_waitcnt lgkmcnt(0)'); b.raw(f's_mov_b32 s{60+k}, s90')
def cdump(b, on, n, wave, cnt, tag, t):
    if not on: return
    b.raw(f's_cmp_lg_u32 s35, {wave}'); b.raw(f's_cbranch_scc1 L_nd{tag}')
    b.raw(f's_cmp_lg_u32 {cnt}, 2'); b.raw(f's_cbranch_scc1 L_nd{tag}')
    b.raw(f's_add_u32 s80, s20, {65 << 20}'); b.raw('s_addc_u32 s81, s21, 0')
    b.raw('s_lshl_b32 s91, s2, 7'); b.raw(f'v_mov_b32 v{t+1}, s91')
    for k in range(1, n):
        b.raw(f's_sub_u32 s90, s{60+k}, s{60+k-1}'); b.raw(f'v_mov_b32 v{t}, s90'); b.raw(f'global_store_dword v{t+1}, v{t}, s[80:81] offset:{4*(k-1)}')
    b.label(f'L_nd{tag}')

ACC = 0; RES = 48; BF = [176, 200]; A1 = 224; VW = 232; VX = 233; VWB = 235; VXB = 236; VQW = 238; GB = 240; GT = 244
def acc(nt, qb): return ACC + 8*qb + 4*nt
def gemm_setup(b):
    lane = LANE; t0, t1, t2 = GT, GT+1, GT+2
    b.v('v_bfe_u32', t0, lane, '2', '3'); b.v('v_mul_u32_u24', VWB, '1056', t0)
    b.v('v_lshrrev_b32', t0, '5', lane); b.v('v_lshlrev_b32', t0, '9', t0); b.v('v_add_u32', VWB, VWB, t0)
    b.v('v_and_b32', t0, '3', lane); b.v('v_lshlrev_b32', t0, '3', t0)
    b.s('s_lshl_b32 s39, s34, 6'); b.v('v_add3_u32', VWB, VWB, t0, 's39')
    b.v('v_and_b32', t0, '15', lane); b.v('v_lshrrev_b32', t2, '1', t0); b.v('v_lshrrev_b32', t1, '4', lane); b.v('v_xor_b32', t2, t2, t1)
    b.v('v_lshlrev_b32', t0, '7', t0)
    for h in range(2):
        b.v('v_xor_b32', VXB+h, str(4*h), t2); b.v('v_lshlrev_b32', VXB+h, '4', VXB+h); b.v('v_add_u32', VXB+h, VXB+h, t0)
def gemm_addr_ops(b, base):
    base = str(base)
    return [lambda: b.v('v_add_u32', VX, base, VXB), lambda: b.v('v_add_u32', VX+1, base, VXB+1), lambda: b.v('v_add_u32', VW, base, VWB)]
def rdA(b, h, areg):
    return [lambda nt=nt, e=e: b.dsr('ds_read_b64_tr_b16', areg+4*nt+2*e, 2, VW, (WO1 if h else WO0) + e*256 + nt*32) for nt in range(2) for e in range(2)]
def rdB(b, h):
    return [lambda qb=qb: b.dsr('ds_read_b128', BF[h]+4*qb, 4, VX+h, XO + qb*2048) for qb in range(6)]
def g_block(b, h, areg, gaps, zero=False, prewait=None):
    k = 0
    for qb in range(6):
        for nt in range(2):
            if prewait and k in prewait: b.wait_lgkm(prewait[k])
            b.mfma16(acc(nt, qb), areg+4*nt, BF[h]+4*qb, None if zero else acc(nt, qb))
            for f in gaps.get(k, []): f()
            k += 1
def g_interval(b, a0, load_a0, first, nxt_ops, endfn, defer=False, zero=None, x1=None, x0=None, mid=None):
    B0, B1, Aa = rdB(b, 0), rdB(b, 1), rdA(b, 1, A1)
    A0 = rdA(b, 0, a0) if load_a0 else []
    if first:
        for f in A0 + B0: f()
        rest = B1 + Aa
        pw = None
    else:
        seq = A0 + B0 + B1
        g1 = {k: [seq[k]] for k in range(12)}
        for k, fs in (x1 or {}).items(): g1[k] = fs + g1[k]
        rest = seq[12:] + Aa
        g_block(b, 1, A1, g1, prewait=({0: 0} if defer else None))
        ny = 12 - len(A0) - 6
        pw = {0: ny} if not load_a0 else {0: ny + 3, 6: 6 + ny}
    g0 = {k: [f] for k, f in enumerate(rest)}
    for k, fs in (x0 or {}).items(): g0.setdefault(k, []).extend(fs)
    k = len(rest)
    for f in nxt_ops:
        g0.setdefault(min(k, 10), []).append(f); k += 1
    def tail():
        if not defer: b.wait_lgkm(0)
        endfn(); b.barrier()
    g0.setdefault(10, []).append(tail)
    g_block(b, 0, a0, g0, zero=(first if zero is None else zero), prewait=pw)
def g_tail_q(b):
    def cv(qb, nt):
        a = acc(nt, qb); pk = BF[0] + 2*((2*qb+nt) % 8)
        return [lambda z=z: b.v('v_mul_f32', a+z, 's56', a+z) for z in range(4)] + \
               [lambda: b.v('v_cvt_pk_bf16_f32', pk, a, a+1), lambda: b.v('v_cvt_pk_bf16_f32', pk+1, a+2, a+3),
                lambda: b.dsw('ds_write_b64', VQW, pk, 2, qb*16*QROW + nt*32)]
    ops = sum([cv(qb, nt) for qb in range(6) for nt in range(2)], [])
    gaps = {}
    for k in range(5, 12): gaps[k] = [ops.pop(0), ops.pop(0)]
    g_block(b, 1, A1, gaps)
    for f in ops: f()
    b.wait_lgkm(0)
def g_main(b, cfg, g0, L=None):
    gb = lambda i: g_base(i, g0)
    for f in gemm_addr_ops(b, gb(0)): f()
    def selfiss():
        b.s('s_cmp_eq_u32 s41, 0'); b.s('s_cbranch_scc1 L_g_noiss')
        sv = b.save(); L.g(5, False, ('g', 5)); b.restore(sv)
        b.label('L_g_noiss')
    for c in range(16):
        cst(b, cfg.gstamp and not g0, c)
        endfn = (lambda c=c: L.need({('g', c+1)})) if not g0 else (lambda: None)
        g_interval(b, RES + 8*c, g0, c == 0, gemm_addr_ops(b, gb(c+1)) if c < 15 else [], endfn)
    cst(b, cfg.gstamp and not g0, 16)
    cdump(b, cfg.gstamp and not g0, 17, 4, 's40', 'g', GT)

O_ = 0; Q_ = 96; KF = 144; VF = 176; S_ = 208; P_ = 224; NM = 232; L_ = 244
VKA = 247; VVA = 248; VKB = 249; VVB = 250; T0 = 251; VVH = 253
LB = S_ + 8
def Oreg(c, dt): return O_ + 32*c + 4*dt
def att_setup(b):
    lane = LANE; t0 = T0
    b.s('s_mul_i32 s39, s55, 8448')
    b.v('v_and_b32', t0, '7', lane); b.v('v_mul_u32_u24', VKB, '1056', t0)
    b.v('v_bfe_u32', t0, lane, '3', '1'); b.v('v_lshlrev_b32', t0, '8', t0); b.v('v_add_u32', VKB, VKB, t0)
    b.v('v_lshrrev_b32', t0, '4', lane); b.v('v_lshlrev_b32', t0, '4', t0); b.v('v_add3_u32', VKB, VKB, t0, 's39')
    b.v('v_bfe_u32', t0, lane, '2', '3'); b.v('v_mul_u32_u24', VVB, '1056', t0)
    b.v('v_lshrrev_b32', t0, '5', lane); b.v('v_lshlrev_b32', t0, '8', t0); b.v('v_add_u32', VVB, VVB, t0)
    b.s('s_lshl_b32 s50, s55, 7'); b.s('s_add_u32 s39, s39, s50')
    b.v('v_and_b32', t0, '3', lane); b.v('v_lshlrev_b32', t0, '3', t0); b.v('v_add3_u32', VVB, VVB, t0, 's39')
    b.s('s_lshl_b32 s77, s55, 8'); b.s('s_sub_u32 s77, 128, s77')
def q_addr(b, t0, t1):
    b.s('s_and_b32 s39, s34, 1'); b.s(f's_mul_i32 s39, s39, {48*QROW}'); b.s(f's_add_u32 s39, s39, {XB}')
    b.v('v_and_b32', t0, '15', LANE); b.v('v_mul_u32_u24', t0, str(QROW), t0)
    b.v('v_lshrrev_b32', t1, '4', LANE); b.v('v_lshlrev_b32', t1, '4', t1); b.v('v_add3_u32', t0, t0, t1, 's39')
def q_reads(b, t0):
    for c in range(3):
        for m in range(4): b.dsr('ds_read_b128', Q_+16*c+4*m, 4, t0, c*16*QROW + m*64)
def crossred(b, t, u, op='v_max_f32'):
    b.v('v_mov_b32', u, t); b.swap32(t, u); b.v(op, t, t, u)
    b.v('v_mov_b32', u, t); b.swap16(t, u); b.v(op, t, t, u)

class Att:
    def __init__(self, b, cfg): self.b, self.cfg, self.rare = b, cfg, []
    def qk_list(self, task):
        b = self.b; i, c = divmod(task, 3); buf = task & 1; out = []
        for m in range(4):
            for t in range(2):
                d = S_ + 8*buf + 4*t
                cc = d if m else (None if i == 0 else NM + 4*c)
                out.append(lambda d=d, t=t, m=m, cc=cc: b.mfma16(d, KF+16*t+4*m, Q_+16*c+4*m, cc))
        return out
    def pv_list(self, task):
        b = self.b; i, c = divmod(task, 3); buf = task & 1
        return [lambda dt=dt: b.mfma16(Oreg(c, dt), VF+4*dt, P_+4*buf, None if i == 0 else Oreg(c, dt)) for dt in range(8)]
    def kread(self, k):
        m, t = divmod(k, 2)
        return lambda: self.b.dsr('ds_read_b128', KF+16*t+4*m, 4, VKA, t*512+m*64)
    def vread(self, k):
        dt, t = divmod(k, 2)
        return lambda: self.b.dsr('ds_read_b64_tr_b16', VF+4*dt+2*t, 2, VVA if dt < 4 else VVH, t*512+(dt % 4)*32)
    def pre(self, task):
        b = self.b; i, c = divmod(task, 3); S = S_ + 8*(task & 1); t, u = T0, T0+1
        o = [(4, lambda: b.v('v_max3_f32', t, S, S+1, S+2)), (4, lambda: b.v('v_max3_f32', u, S+3, S+4, S+5)),
             (4, lambda: b.v('v_max3_f32', t, S+6, S+7, t)), (4, lambda: b.v('v_max_f32', t, t, u))]
        if i > 0: o.append((4, lambda: b.emit(f'v_cmp_lt_f32 vcc, 4.0, {vr(t)}', 'valu', (), {t})))
        return o
    def main(self, task):
        b = self.b; i, c = divmod(task, 3); buf = task & 1
        S = S_ + 8*buf; P = P_ + 4*buf; t, u = T0, T0+1
        o = []
        if i == 0:
            o += [(4, lambda: b.v('v_mov_b32', u, t)), (8, lambda: b.swap32(t, u)), (4, lambda: b.v('v_max_f32', t, t, u)),
                  (4, lambda: b.v('v_mov_b32', u, t)), (8, lambda: b.swap16(t, u)), (4, lambda: b.v('v_max_f32', t, t, u))]
            for k in range(8): o.append((4, lambda k=k: b.v('v_sub_f32', S+k, S+k, t)))
            for k in range(4): o.append((4, lambda k=k: b.v('v_sub_f32', NM+4*c+k, '0', t)))
        else:
            def br():
                b.s(f's_cbranch_vccnz L_rare{task}'); b.label(f'L_back{task}'); self.rare.append(task)
            o.append((6, br))
        for k in range(8):
            o.append((8, lambda k=k: b.exp(S+k, S+k)))
            if k >= 1:
                kk = k - 1
                if i == 0 and kk == 0: o.append((4, lambda: b.v('v_mov_b32', L_+c, S)))
                else: o.append((4, lambda kk=kk: b.v('v_add_f32', L_+c, L_+c, S+kk)))
            if k >= 2 and k % 2 == 0:
                h = k//2 - 1
                o.append((4, lambda h=h: b.v('v_cvt_pk_bf16_f32', P+h, S+2*h, S+2*h+1)))
        o.append((4, lambda: b.v('v_add_f32', L_+c, L_+c, S+7)))
        o.append((4, lambda: b.v('v_cvt_pk_bf16_f32', P+3, S+6, S+7)))
        return o
    def addr_k(self, j): self.b.v('v_add_u32', VKA, str(t_base(KPOS[j])), VKB)
    def addr_v(self, j): self.b.v('v_add_u32', VVA, str(t_base(VPOS[j])), VVB); self.b.v('v_add_u32', VVH, 's77', VVA)
    def step(self, s, endfn=None):
        b = self.b; mf = []; prew = {}
        i, c = divmod(s, 3)
        if s + 1 <= 23: mf += self.qk_list(s + 1)
        if s - 1 >= 0: mf += self.pv_list(s - 1)
        n = len(mf)
        post = [[] for _ in range(n)]
        hasK = i + 1 <= 7
        if c == 0:
            off = 8 if s else 0
            for k in range(8): post[off + k].append(self.vread(k))
        elif c == 1:
            for k in range(8): post[k].append(self.vread(8 + k))
            if hasK:
                for k in range(8): post[8 + k].append(self.kread(k))
            prew[8] = 8; prew[12] = 4 if hasK else 0
        elif hasK:
            prew[0] = 4; prew[4] = 0
        sm = self.main(s) + (self.pre(s + 1) if s + 1 <= 23 else [])
        if B.skel: sm = []
        ecost = 20
        tot = sum(x for x, _ in sm) + 4*sum(len(p) for p in post) + 4*len(prew) + (ecost if endfn else 0)
        acc_ = 0; k = 0
        for j in range(n):
            if j in prew: b.wait_lgkm(prew[j]); acc_ += 4
            mf[j]()
            for f in post[j]: f(); acc_ += 4
            if endfn and j == n - 4:
                endfn(); acc_ += ecost
                continue
            tgt = tot * (j + 1) / n
            while k < len(sm) and (acc_ + sm[k][0]/2 <= tgt or j == n - 1):
                sm[k][1](); acc_ += sm[k][0]; k += 1
    def start(self):
        for f in self.qk_list(0): f()
        for _, f in self.pre(0): f()
    def intervals(self, L):
        b, cfg = self.b, self.cfg
        for j in range(1, 9):
            cst(b, cfg.astamp, j)
            for s in range(3*(j-1), 3*j):
                if s == 23:
                    b.wait_lgkm(0)
                    b.s('s_cmp_eq_u32 s48, 0'); b.s('s_cbranch_scc1 L_a_noq1')
                    b.s('s_cmp_ge_u32 s41, 3'); b.s('s_cbranch_scc1 L_a_noq1')
                    sv = b.save(); q_addr(b, KF, KF+1); q_reads(b, KF); b.restore(sv)
                    b.label('L_a_noq1')
                def endfn(j=j):
                    b.wait_lgkm(0)
                    if j == 8: b.raw('s_waitcnt lgkmcnt(0)')
                    else:
                        self.addr_v(j)
                        if j + 1 <= 7: self.addr_k(j + 1)
                    L.need(cons_tags('a', 'a', j + 1))
                    b.barrier()
                self.step(s, endfn if s == 3*j - 1 else None)
        cst(b, cfg.astamp, 9)
        cdump(b, cfg.astamp, 10, 0, 's41', 'a', 252)
    XA = KF; SA = KF+1; XP = KF+2; OS = KF+4; FO = KF+10; FT = KF+13; PK = VF; UP = S_; VO = P_+2
    def pack(self, c, mp):
        b = self.b; pk = KF + 16 + 4*((2*c+mp) % 4); r = []
        for h in range(2):
            o = Oreg(c, 4 + 2*mp + h)
            r += [lambda o=o, h=h: b.v('v_cvt_pk_bf16_f32', pk+2*h, o, o+1), lambda o=o, h=h: b.v('v_cvt_pk_bf16_f32', pk+2*h+1, o+2, o+3)]
        return r + [lambda: b.dsw('ds_write_b128', self.XA, pk, 4, (2*c+mp)*1024)]
    def c0(self):
        b = self.b; XA = self.XA
        b.s('s_mul_i32 s50, s34, 6144'); b.s(f's_add_u32 s50, s50, {XB}')
        fill = [lambda: b.v('v_lshl_add_u32', XA, LANE, '4', 's50')]
        fill += self.pack(0, 0) + self.pack(0, 1) + self.pack(1, 0) + self.pack(1, 1)
        pv = self.pv_list(23)
        for dt in (4, 5, 6, 7, 0, 1, 2, 3):
            pv[dt]()
            for _ in range(2): fill.pop(0)()
        for f in fill: f()
    def c1(self):
        b = self.b; SA = self.SA
        red = []
        for c in range(3):
            Lr = L_ + c; uu = S_ + c
            red.append([lambda Lr=Lr, uu=uu: b.v('v_mov_b32', uu, Lr), lambda Lr=Lr, uu=uu: b.swap32(Lr, uu), lambda Lr=Lr, uu=uu: b.v('v_add_f32', Lr, Lr, uu),
                        lambda Lr=Lr, uu=uu: b.v('v_mov_b32', uu, Lr), lambda Lr=Lr, uu=uu: b.swap16(Lr, uu), lambda Lr=Lr, uu=uu, c=c: b.v('v_add_f32', NM+4*c+1, Lr, uu)])
        o = [lambda: (b.s('s_mul_i32 s50, s34, 384'), b.s(f's_add_u32 s50, s50, {STAT}'))]
        o += self.pack(2, 0) + self.pack(2, 1)
        o += [lambda: b.v('v_and_b32', SA, '15', LANE), lambda: b.v('v_mad_u32_u24', SA, SA, '24', 's50')]
        o += [red[c][k] for k in range(6) for c in range(3)]
        o += [lambda c=c: b.dsw('ds_write_b64', SA, NM+4*c, 2, 8*c) for c in range(3)]
        o += [lambda: (b.s('s_mul_i32 s51, s77, 96'), b.s('s_mul_i32 s50, s77, 6')), lambda: b.v('v_add_u32', self.XP, 's51', self.XA), lambda: b.v('v_add_u32', SA, 's50', SA)]
        return o
    def c2a(self):
        b = self.b
        return [lambda c=c: b.dsr('ds_read_b64', self.OS+2*c, 2, self.SA, 8*c) for c in range(3)] + \
               [lambda k=k: b.dsr('ds_read_b128', self.PK+4*k, 4, self.XP, k*1024) for k in range(6)]
    def c2b(self):
        b = self.b; ops = []
        for c in range(3):
            nm, lo = NM+4*c, NM+4*c+1; on, ol = self.OS+2*c, self.OS+2*c+1; fo, ft = self.FO+c, self.FT+c; t = NM+4*c+2
            ops.append([lambda t=t, nm=nm, on=on: b.v('v_min_f32', t, nm, on), lambda fo=fo, t=t, nm=nm: b.v('v_sub_f32', fo, t, nm), lambda ft=ft, t=t, on=on: b.v('v_sub_f32', ft, t, on),
                        lambda fo=fo: b.exp(fo, fo), lambda ft=ft: b.exp(ft, ft), lambda t=t, fo=fo, lo=lo: b.v('v_mul_f32', t, fo, lo), lambda t=t, ft=ft, ol=ol: b.v('v_fma_f32', t, ft, ol, t),
                        lambda t=t: b.v('v_rcp_f32', t, t, kind='trans'), lambda fo=fo, t=t: b.v('v_mul_f32', fo, fo, t), lambda ft=ft, t=t: b.v('v_mul_f32', ft, ft, t)])
        return [ops[c][k] for k in range(10) for c in range(3)] + [lambda: b.v('v_lshlrev_b32', self.VO, '4', LANE), lambda: b.s('s_add_u32 s51, s54, 4096')]
    def part(self, pi):
        b = self.b; o_ = []
        def V(*a, **k): o_.append(lambda: b.v(*a, **k))
        c, mp = divmod(pi, 2); fo, ft = self.FO+c, self.FT+c
        pk = self.PK + 4*pi
        for h in range(2):
            o = Oreg(c, 2*mp + h); up = self.UP + 4*h
            V('v_lshlrev_b32', up, '16', pk+2*h); V('v_and_b32', up+1, '0xffff0000', pk+2*h)
            V('v_lshlrev_b32', up+2, '16', pk+2*h+1); V('v_and_b32', up+3, '0xffff0000', pk+2*h+1)
            for z in range(4): V('v_mul_f32', o+z, o+z, fo)
            for z in range(4): V('v_fmac_f32', o+z, up+z, ft, extra_r={o+z})
            V('v_cvt_pk_bf16_f32', pk+2*h, o, o+1); V('v_cvt_pk_bf16_f32', pk+2*h+1, o+2, o+3)
        return o_
    def store(self, pi, L):
        def f():
            self.b.store(4, self.PK + 4*pi, self.VO, 20, 's54' if pi < 4 else 's51', (pi % 4)*1024, self.cfg.opol); L.q.append(('st', 1))
        return [f]
    def rare_block(self, task):
        b = self.b; i, c = divmod(task, 3); S = S_ + 8*(task & 1); t, u = T0, T0+1
        b.reset(); b.label(f'L_rare{task}'); b.nop(2)
        crossred(b, t, u)
        b.v('v_max_f32', t, '0', t)
        b.v('v_sub_f32', u, '0', t); b.exp(u, u)
        for k in range(8): b.v('v_sub_f32', S+k, S+k, t)
        for k in range(4): b.v('v_sub_f32', NM+4*c+k, NM+4*c+k, t)
        b.v('v_mul_f32', L_+c, L_+c, u)
        for k in range(32): b.v('v_mul_f32', O_+32*c+k, O_+32*c+k, u)
        b.nop(2); b.s(f's_branch L_back{task}')

def phase_stamp(b, cfg, tag):
    if cfg.stamps:
        b.raw('s_memrealtime s[90:91]'); b.raw('s_waitcnt lgkmcnt(0)'); b.raw('s_sub_u32 s90, s90, s88')
        b.raw('s_add_u32 s91, s40, s41'); b.raw('s_add_u32 s91, s91, s59'); b.raw('s_max_u32 s91, s91, 3'); b.raw('s_sub_u32 s91, s91, 3'); b.raw(f's_mov_b32 m0, s91'); b.raw('s_nop 0'); b.raw('s_movreld_b32 s91, s90')
def stamp_dump(b, cfg):
    if cfg.stamps:
        b.raw('s_cmp_lg_u32 s35, 4'); b.raw(f's_cbranch_scc1 L_nostamp')
        b.raw('s_lshl_b32 s91, s2, 5'); b.raw(f's_add_u32 s80, s78, {64 << 20}'); b.raw('s_addc_u32 s81, s79, 0')
        b.raw(f'v_mov_b32 v{GT+1}, s91')
        for k in range(8):
            b.raw(f'v_mov_b32 v{GT}, s{92+k}'); b.raw(f'global_store_dword v{GT+1}, v{GT}, s[80:81] offset:{4*k}')
        b.label(f'L_nostamp')

def code_prefetch(b, start, nbytes_label_end, wave_lo):
    pass

def k1(cfg):
    b = B()
    KN = NAME + '_kernel'
    b.raw(f'.globl {KN}'); b.raw('.p2align 8'); b.raw(f'.type {KN},@function'); b.label(KN)
    b.s('s_cmp_ge_u32 s2, 256'); b.s('s_cbranch_scc1 L_k1_end')
    if cfg.stamps: b.raw('s_memrealtime s[88:89]')
    b.s('s_and_b32 s60, s2, 7'); b.s('s_lshr_b32 s61, s2, 3'); b.s('s_lshr_b32 s62, s60, 2')
    b.s('s_mul_i32 s63, s62, 40'); b.s('s_add_u32 s64, s0, s63'); b.s('s_addc_u32 s65, s1, 0')
    b.s('s_load_dwordx4 s[68:71], s[64:65], 0'); b.s('s_load_dwordx4 s[72:75], s[64:65], 16')
    b.s('s_load_dwordx2 s[76:77], s[64:65], 32'); b.s('s_load_dwordx2 s[78:79], s[0:1], 96'); b.s('s_load_dwordx4 s[28:31], s[0:1], 80')
    if cfg.wopf == 3: b.s('s_load_dwordx2 s[92:93], s[0:1], 32'); b.s('s_load_dwordx2 s[96:97], s[0:1], 72')
    if cfg.codepf:
        b.s('s_and_b32 s39, s61, 15'); b.s('s_cmp_lg_u32 s39, 0'); b.s('s_cbranch_scc1 L_nocpf')
        b.raw('s_getpc_b64 s[82:83]')
        b.label('L_pc')
        b.v('v_lshlrev_b32', 2, '7', 0)
        b.v('v_min_u32', 2, 'L_code_end-L_pc-4', 2)
        b.v('v_mov_b32', 3, 's83')
        b.emit('v_add_co_u32 v2, vcc, s82, v2', 'valu', {2}, {2}); b.nop(2)
        b.emit('v_addc_co_u32 v3, vcc, 0, v3, vcc', 'valu', {3}, {3})
        b.emit(f'global_load_dword v{DUM}, v[2:3], off', 'vmem', {DUM}, {2, 3})
        b.label('L_nocpf')
    b.v('v_lshrrev_b32', 1, '6', 0); b.rfl(35, 1)
    lane_id(b, LANE)
    b.s('s_and_b32 s34, s35, 3'); b.s('s_lshr_b32 s55, s34, 1')
    b.s('s_and_b32 s66, s60, 3'); b.s('s_lshl_b32 s66, s66, 3'); b.s('s_and_b32 s67, s61, 7'); b.s('s_add_u32 s66, s66, s67')
    b.s('s_lshr_b32 s63, s61, 3'); b.s('s_and_b32 s33, s60, 0' if cfg.norot else 's_and_b32 s33, s60, 3')
    if cfg.stagger: b.s('s_and_b32 s48, s63, 1')
    else: b.s('s_mov_b32 s48, 0')
    b.s('s_mov_b32 s40, 0'); b.s('s_mov_b32 s41, 0'); b.s('s_mov_b32 s59, 0')
    b.s('s_mov_b32 s37, 0')
    b.s('s_mul_i32 s44, s63, 196608'); b.s('s_lshl_b32 s45, s66, 8')
    b.s('s_lshl_b32 s46, s63, 5'); b.s('s_add_u32 s46, s46, s66'); b.s('s_lshl_b32 s46, s46, 17')
    b.s('s_lshl_b32 s47, s62, 4'); b.s('s_add_u32 s47, s47, s63'); b.s('s_lshl_b32 s47, s47, 6')
    b.s('s_lshl_b32 s39, s66, 1'); b.s('s_add_u32 s47, s47, s39'); b.s('s_add_u32 s47, s47, s55'); b.s('s_mul_i32 s47, s47, 12288')
    b.s('s_and_b32 s39, s34, 1'); b.s('s_mul_i32 s39, s39, 6144'); b.s('s_add_u32 s47, s47, s39')
    b.s('s_mul_i32 s52, s34, 1056'); b.s('s_lshl_b32 s53, s34, 10')
    b.s(f's_mov_b32 s56, {f2u(CEXP):#x}'); b.s(f's_mov_b32 s54, {OOB}')
    b.s('s_mul_i32 s57, s67, 24576'); b.s('s_lshl_b32 s39, s34, 13'); b.s('s_add_u32 s57, s57, s39'); b.s('s_add_u32 s57, s57, s44')
    b.s('s_cmp_eq_u32 s34, 3'); b.s(f's_cselect_b32 s57, {OOB}, s57')
    b.s('s_and_b32 s58, s60, 3'); b.s('s_lshl_b32 s58, s58, 5'); b.s('s_add_u32 s58, s58, s61'); b.s('s_lshl_b32 s58, s58, 13')
    b.s('s_lshl_b32 s39, s34, 20'); b.s('s_add_u32 s58, s58, s39')
    b.raw('s_waitcnt lgkmcnt(0)')
    srd(b, 4, 68, 16*96*1024*2); srd(b, 8, 70, 1 << 26); srd(b, 12, 72, 1 << 26); srd(b, 16, 74, 1 << 23)
    srd(b, 20, 78, cfg.osize); srd(b, 24, 76, 1 << 23)
    b.s(f's_add_u32 s68, s78, {32 << 20}'); b.s('s_addc_u32 s69, s79, 0'); b.s('s_mov_b32 s70, 16384'); b.s('s_mov_b32 s71, 0x20000')
    b.s('s_mov_b32 s64, s30'); b.s('s_mov_b32 s65, s31')
    b.s(f's_mov_b32 s30, {16*96*2048*2}'); b.s('s_mov_b32 s31, 0x20000')
    b.s('s_lshl_b32 s72, s62, 4'); b.s('s_add_u32 s72, s72, s63')
    b.s('s_add_u32 s39, s33, 3'); b.s('s_and_b32 s39, s39, 3'); b.s('s_lshl_b32 s50, s39, 2'); b.s('s_add_u32 s73, s72, s50'); b.s(f's_xor_b32 s73, s73, {cfg.xtile}')
    b.s(f's_mul_i32 s74, s73, {64*12288}')
    b.s('s_lshl_b32 s73, s73, 9')
    b.s('s_lshl_b32 s72, s72, 9'); b.s('s_lshl_b32 s50, s33, 7'); b.s('s_add_u32 s72, s72, s50'); b.s('s_lshl_b32 s50, s67, 3'); b.s('s_add_u32 s72, s72, s50')
    b.s('s_lshl_b32 s75, s67, 8')
    b.s('s_lshl_b32 s39, s39, 2'); b.s('s_add_u32 s39, s39, s63'); b.s(f's_xor_b32 s39, s39, {cfg.xtile}'); b.s(f's_mul_i32 s76, s39, {96*4096}')
    b.s('s_lshl_b32 s50, s62, 11'); b.s('s_add_u32 s76, s76, s50'); b.s('s_add_u32 s76, s76, s75'); b.s('s_lshl_b32 s50, s34, 6'); b.s('s_add_u32 s76, s76, s50')
    if cfg.pf0 == 1:
        b.v('v_lshrrev_b32', 2, '1', LANE); b.v('v_lshlrev_b32', 2, '13', 2); b.v('v_and_b32', 3, '1', LANE); b.v('v_lshlrev_b32', 3, '7', 3); b.v('v_add_u32', 2, 2, 3)
        b.s('s_lshl_b32 s39, s35, 2'); b.s('s_add_u32 s39, s39, s63'); b.s('s_lshl_b32 s39, s39, 18'); b.s('s_add_u32 s39, s39, s45')
        b.load1(DUM, 2, 16, 's39')
        b.v('v_lshlrev_b32', 3, '7', LANE)
        b.s('s_lshr_b32 s39, s35, 2'); b.s('s_cmp_gt_u32 s39, s48'); b.s(f's_cselect_b32 s50, {OOB}, 0')
        b.s('s_mul_i32 s39, s39, 786432'); b.s('s_add_u32 s39, s39, s57'); b.s('s_or_b32 s39, s39, s50')
        b.load1(DUM, 3, 4, 's39')
    if cfg.pf0 == 2:
        b.s('s_cmp_eq_u32 s48, 0'); b.s('s_cbranch_scc1 L_nopf0')
        b.v('v_lshlrev_b32', 3, '7', LANE)
        b.s('s_mul_i32 s39, s33, 786432'); b.s('s_add_u32 s39, s39, s57'); b.s('s_sub_u32 s39, s39, 196608'); b.s('s_cmp_ge_u32 s35, 3'); b.s(f's_cselect_b32 s39, {OOB}, s39')
        b.load1(DUM, 3, 4, 's39')
        b.v('v_lshrrev_b32', 2, '1', LANE); b.v('v_lshlrev_b32', 2, '13', 2); b.v('v_and_b32', 4, '1', LANE); b.v('v_lshlrev_b32', 4, '7', 4); b.v('v_add_u32', 2, 2, 4)
        b.s('s_lshl_b32 s39, s35, 1'); b.s('s_lshr_b32 s50, s63, 1'); b.s('s_add_u32 s39, s39, s50'); b.s('s_lshl_b32 s39, s39, 18'); b.s('s_add_u32 s39, s39, s45')
        b.load1(DUM, 2, 16, 's39')
        b.s(f's_add_u32 s39, s39, {16 << 18}')
        b.load1(DUM, 2, 16, 's39')
        b.s('s_lshr_b32 s39, s35, 2'); b.s('s_add_u32 s39, s39, s33'); b.s('s_and_b32 s39, s39, 3'); b.s('s_mul_i32 s39, s39, 786432'); b.s('s_add_u32 s39, s39, s57')
        b.load1(DUM, 3, 4, 's39')
        if cfg.wopf == 2:
            b.s('s_and_b32 s39, s60, 3'); b.s('s_lshl_b32 s39, s39, 4'); b.s('s_lshr_b32 s50, s63, 1'); b.s('s_lshl_b32 s50, s50, 3')
            b.s('s_add_u32 s39, s39, s50'); b.s('s_add_u32 s39, s39, s67'); b.s('s_lshl_b32 s39, s39, 14')
            b.s('s_lshl_b32 s50, s35, 20'); b.s('s_add_u32 s39, s39, s50')
            b.load1(DUM, 3, 24, 's39'); b.s('s_add_u32 s39, s39, 8192'); b.load1(DUM, 3, 24, 's39')
        b.label('L_nopf0')
    if cfg.wopf == 3:
        n = cfg.won; assert sum(n) == 64 and max(n) <= 24
        base = [32*sum(n[:i]) for i in range(8)]
        b.s('s_mov_b32 s94, 0x800000'); b.s('s_mov_b32 s95, 0x20000'); b.s('s_mov_b32 s98, 0x800000'); b.s('s_mov_b32 s99, 0x20000')
        b.s('s_mov_b32 s50, 0'); b.s('s_mov_b32 s51, 0')
        for i in range(8):
            b.s(f's_cmp_eq_u32 s60, {i}'); b.s(f's_cselect_b32 s50, {n[i]}, s50'); b.s(f's_cselect_b32 s51, {base[i]}, s51')
        b.s('s_mul_i32 s39, s61, s50'); b.s('s_add_u32 s51, s51, s39'); b.s('s_add_u32 s51, s51, s35'); b.s('s_lshl_b32 s51, s51, 13')
        b.v('v_lshlrev_b32', 3, '7', LANE)
        for r in range((max(n) + 7) // 8):
            b.s(f's_add_u32 s39, s35, {8*r}'); b.s('s_cmp_lt_u32 s39, s50'); b.s(f's_cbranch_scc0 L_wo_done')
            b.s(f's_add_u32 s39, s51, {r << 16}')
            b.load1(DUM, 3, 92, 's39')
            b.s('s_sub_u32 s39, s39, 0x800000')
            b.load1(DUM, 3, 96, 's39')
        b.label('L_wo_done')
    if cfg.dly:
        if cfg.dlymode == 0:
            b.s('s_lshr_b32 s39, s63, 1'); b.s(f's_mul_i32 s39, s39, {cfg.dly}')
        else:
            b.s(f's_mul_i32 s39, s60, {cfg.dly}')
        b.label('L_dly'); b.s('s_cmp_eq_u32 s39, 0'); b.s('s_cbranch_scc1 L_dlye'); b.s('s_sleep 8'); b.s('s_sub_u32 s39, s39, 1'); b.s('s_branch L_dly'); b.label('L_dlye')
    b.s('s_mov_b32 s66, 256'); b.s('s_mov_b32 s67, 0x20000')
    b.s('s_cmp_ge_u32 s35, 4'); b.s('s_cbranch_scc1 L_gem')
    A = Att(b, cfg)
    L = Loader(b, cfg, LB)
    b.fence()
    loader_offsets(b, True, LB, 2048, 8192, False, T0)
    L.set_g('s40')
    for i in range(3): L.g(i, True, ('g0', i))
    att_setup(b)
    L.need({('g0', 0)}); b.barrier()
    for t in range(13):
        L.g(t+3, True, ('g0', t+3)); L.need({('g0', t+1)}); b.barrier()
    b.s('s_mov_b32 s40, 1')
    b.s('s_cmp_eq_u32 s48, 0'); b.s('s_cbranch_scc0 L_att_g0g')
    q0 = list(L.q)
    b.label('L_att_fa')
    L.set_a('s41')
    for t in range(13, 16):
        for p in F_TO_A[t]: L.t(p, ('a', p))
        L.need({('g0', t+1)} if t < 15 else {('a', 0)}); b.barrier()
    qa = list(L.q)
    b.s('s_branch L_att_a')
    b.label('L_att_g0g'); L.q = list(q0)
    L.set_g('s40')
    for t in range(13, 16):
        for i in G0_TO_G[t]: L.g(i, False, ('g', i))
        L.need({('g0', t+1)} if t < 15 else {('g', 0)}); b.barrier()
    VP = KF + 20; L.obase = S_ + 11
    def g_loader(t0, t1, extra={}, nxt=None, fills={}):
        for t in range(t0, t1):
            L.setfill(fills.get(t, []), 5*len(G_OWN.get(t, [])))
            for i in G_OWN.get(t, []): L.g(i, False, ('g', i))
            L.flush(); b.wait_lgkm(0)
            if nxt == 'A':
                if t == 11: L.set_a('s41')
                for p in G_TO_A.get(t, []): L.t(p, ('a', p))
            if nxt == 'O':
                if t == 11: loader_offsets(b, False, L.obase, 128, 2048, True, T0); L.set_o(0)
                if t == 12:
                    assert all(x[0] not in ('n', 'p') for x in L.q)
                    L.nonce_check(VP, 'go'); L.check(VP, 'go')
                for i in G_TO_O.get(t, []): L.o(i)
            for f in extra.get(t, []): f()
            L.need({('g', t+1)} if t < 15 else {('a', 0), ('o', 0)}); b.barrier()
    L.g(4, False, ('g', 4)); L.need({('g', 1)}); b.barrier()
    def rq(): q_addr(b, T0, T0+1); q_reads(b, T0); b.wait_lgkm(0)
    g_loader(1, 11, {1: [rq]})
    qj = list(L.q)
    b.fence()
    b.label('L_att_gj')
    g_loader(11, 16, nxt='A')
    assert L.q == qa, (L.q, qa)
    b.s('s_add_u32 s40, s40, 1')
    b.fence()
    b.label('L_att_a')
    cst(b, cfg.astamp, 0)
    A.addr_k(0)
    for k in range(8): A.kread(k)()
    b.s('s_cmp_eq_u32 s48, 0'); b.s('s_cbranch_scc1 L_a_c0a')
    sv = b.save()
    A.start(); b.fence()
    b.label('L_a_c0a'); b.restore(sv)
    L.t(6, ('a', 6)); L.t(7, ('a', 7))
    q_addr(b, P_+4, P_+5)
    b.raw('s_waitcnt lgkmcnt(0)'); b.lds = []
    A.addr_v(0); A.addr_k(1)
    L.need(cons_tags('a', 'a', 1)); b.barrier()
    b.s('s_cmp_eq_u32 s48, 0'); b.s('s_cbranch_scc0 L_a_i1')
    q_reads(b, P_+4)
    A.start()
    b.fence()
    b.label('L_a_i1')
    A.intervals(L)
    b.s('s_add_u32 s41, s41, 1')
    b.s('s_cmp_eq_u32 s40, 4'); b.s('s_cbranch_scc1 L_att_nog')
    sv = b.save()
    A.c0(); b.barrier()
    for f in A.c1() + loader_offset_ops(b, True, LB, 2048, 8192, False, T0): f()
    b.wait_lgkm(0); b.barrier()
    L.q = []
    L.set_g('s40'); L.set_ost()
    def fl(): L.flag_setup(VP); L.nonce_load(VP, 'n'); L.poll(VP, 'p', 0)
    fi = {2: A.c2a(), 3: A.c2b()}
    for pi in range(6): fi[4+pi] = A.part(pi) + (A.store(pi-1, L) if pi else [])
    fi[10] = A.store(5, L)
    g_loader(2, 11, {8: [fl]}, fills=fi)
    L.norm()
    tmp = Loader(b, cfg, 0); tmp.q = [x for x in L.q if isinstance(x[0], tuple)]; tmp.norm()
    assert tmp.q == qj, (L.q, qj)
    b.fence()
    b.s('s_cmp_eq_u32 s40, 3'); b.s('s_cbranch_scc0 L_att_gj')
    g_loader(11, 16, nxt='O')
    b.s('s_add_u32 s40, s40, 1')
    b.fence()
    def o_loader(t0, t1, extra={}, fills={}):
        for t in range(t0, t1):
            L.setfill(fills.get(t, []), 7)
            L.o(t + 3)
            L.flush(); b.wait_lgkm(0)
            if t == cfg.pollat: L.poll(VP, 'p', 1)
            for f in extra.get(t, []): f()
            L.need({('o', t+1)} | ({'p'} if t == 12 else set())); b.barrier()
    qo = [(('o', 1), 7), (('o', 2), 7)]
    assert L.q == qo, L.q
    def drain():
        if cfg.truedrain: b.vm(0); L.q = []
        else: L.need({'st'})
    J = cfg.sigat + 2
    assert all(x[0] != 'st' for x in L.q)
    o_loader(0, 4, {2: [drain], 3: [lambda: L.signal(VP, 0, False)]})
    b.s('s_branch L_att_o2')
    b.label('L_att_oq')
    L.q = list(qo)
    o_loader(0, 4)
    b.label('L_att_o2')
    o_loader(4, J)
    q6 = list(L.q)
    b.label('L_att_oj')
    o_loader(J, 13)
    q13 = list(L.q)
    assert [n for _, n in q13] == [n for _, n in q0]
    b.s('s_cmp_eq_u32 s59, 3'); b.s('s_cbranch_scc1 L_att_oe')
    b.s('s_cmp_eq_u32 s41, 4'); b.s('s_cbranch_scc1 L_att_oo')
    b.s('s_add_u32 s59, s59, 1')
    b.s('s_branch L_att_fa')
    b.label('L_att_oo'); L.q = list(q13)
    L.set_o(1); L.check(VP, 'oo')
    for t in range(13, 16):
        L.o(t - 13, 'o2')
        L.need({('o', t+1)} if t < 15 else {('o2', 0)}); b.barrier()
    assert [n for _, n in L.q] == [7, 7]
    b.s('s_add_u32 s59, s59, 1')
    b.s('s_branch L_att_oq')
    b.label('L_att_oe'); L.q = list(q13)
    for t in range(13, 16):
        L.need({('o', t+1)}); b.barrier()
    b.s('s_endpgm')
    b.label('L_att_nog'); b.restore(sv)
    A.c0()
    loader_offsets(b, False, L.obase, 128, 2048, True, T0)
    L.set_o(0); L.set_ost()
    b.barrier()
    L.q = []
    L.setfill(A.c1(), 14); L.o(3); L.o(4); L.flush()
    b.wait_lgkm(0); b.barrier()
    L.flag_setup(VP); L.nonce_load(VP, 'n')
    fi = {2: A.c2a() + loader_offset_ops(b, True, LB, 2048, 8192, False, T0)[:5] + A.c2b()}
    for k in range(3): fi[3+k] = A.part(2*k) + A.store(2*k, L) + A.part(2*k+1) + A.store(2*k+1, L)
    o_loader(2, J, {cfg.sigat: [drain], cfg.sigat+1: [lambda: L.nonce_check(VP, 'a'), lambda: L.signal(VP, 0, False)]}, fi)
    b.fence()
    b.s('s_branch L_att_oj')
    b.reset()
    b.label('L_gem')
    if cfg.ivw is not None:
        b.s(f's_mov_b32 s86, {(-cfg.ivw) & 0xffffffff}'); b.v('v_mov_b32', 247, '0')
        ob = b.barrier; cnt = [0]
        def nb():
            ob(); cnt[0] += 1
            b.raw('s_cmp_lt_u32 s86, 64'); b.raw(f's_cbranch_scc0 L_iv{cnt[0]}')
            b.raw('s_memtime s[84:85]'); b.raw('s_mov_b32 m0, s86'); b.raw('s_waitcnt lgkmcnt(0)'); b.raw('v_writelane_b32 v247, s84, m0')
            b.raw(f'L_iv{cnt[0]}:'); b.raw('s_add_u32 s86, s86, 1')
        b.barrier = nb
    M = Loader(b, cfg, GB)
    gemm_setup(b)
    loader_offsets(b, 2, GB, 2048, 8192, False, GT)
    b.v('v_and_b32', GT, '15', LANE); b.v('v_mul_u32_u24', VQW, str(QROW), GT)
    b.v('v_lshrrev_b32', GT, '4', LANE); b.v('v_lshlrev_b32', GT, '3', GT)
    b.s('s_lshl_b32 s39, s34, 6'); b.s(f's_add_u32 s39, s39, {XB}'); b.v('v_add3_u32', VQW, VQW, GT, 's39')
    M.flag_setup(248)
    b.s('s_add_u32 s39, s2, s34'); b.s('s_cmp_lg_u32 s39, 0'); b.s('s_cbranch_scc1 L_nononce')
    b.raw('s_memrealtime s[50:51]'); b.raw('s_waitcnt lgkmcnt(0)'); b.s('s_or_b32 s50, s50, 1')
    b.v('v_mov_b32', 248, 's50'); b.v('v_mov_b32', 249, 's51')
    b.s('s_mov_b64 exec, 1')
    b.emit('buffer_store_dwordx2 v[248:249], off, s[64:67], 0 sc1', 'vmem', (), {248, 249})
    b.s('s_mov_b64 exec, -1')
    b.label('L_nononce')
    b.barrier()
    g_main(b, cfg, True)
    b.s('s_branch L_gem_gdone')
    b.fence()
    b.label('L_gem_g')
    qg = [(('g', i), 5) for i in range(1, 5)]
    M.q = list(qg)
    g_main(b, cfg, False, M)
    b.label('L_gem_gdone')
    phase_stamp(b, cfg, 'g')
    b.s('s_add_u32 s40, s40, 1')
    g_tail_q(b)
    b.fence()
    b.s('s_cmp_eq_u32 s40, s48'); b.s('s_cbranch_scc1 L_gem_g')
    b.s('s_cmp_eq_u32 s40, 4'); b.s('s_cbranch_scc1 L_gem_o0')
    b.label('L_gem_a')
    M.q = []; M.obase = RES + 15
    M.set_a('s41')
    b.barrier()
    def a_loader(t0, t1, nxt):
        for t in range(t0, t1):
            if t == 1: M.nonce_load(248, 'n')
            if t == 3: M.poll(248, 'poll', 0)
            for p in A_OWN.get(t, []): M.t(p, ('a', p))
            if t == 1 and cfg.pf:
                M.ub('s39', 's40'); b.s('s_mul_i32 s39, s39, 786432'); b.s('s_add_u32 s39, s39, s57')
                b.s('s_cmp_eq_u32 s40, 4'); b.s(f's_cselect_b32 s39, {OOB}, s39')
                b.load1(DUM, GB+3, 4, 's39'); M.other(1)
            if t == 4:
                assert all(x[0] != 'n' for x in M.q)
                M.nonce_check(248, 'm'); M.signal(248, 4, True)
            if nxt == 'G':
                if t == 6: M.set_g('s40')
                for i in A_TO_G.get(t, []): M.g(i, False, ('g', i))
                M.need(cons_tags('a', 'a', t+1) if t < 8 else {('g', 0)})
            elif nxt == 'O':
                if t == 5:
                    loader_offsets(b, False, M.obase, 128, 2048, True, GT); M.set_o(0)
                if t == 6:
                    assert all(x[0] != 'poll' for x in M.q)
                    M.check(248, 'm')
                for i in A_TO_O.get(t, []): M.o(i)
                M.need(cons_tags('a', 'a', t+1) if t < 8 else {('o', 0)})
            else:
                M.need(cons_tags('a', 'a', t+1))
            b.barrier()
    a_loader(1, 5, None)
    q5 = list(M.q)
    b.s('s_cmp_eq_u32 s40, 4'); b.s('s_cbranch_scc1 L_gem_ao')
    a_loader(5, 9, 'G')
    assert M.q == qg, (M.q, qg)
    phase_stamp(b, cfg, 'a')
    b.s('s_add_u32 s41, s41, 1')
    b.s('s_cmp_lg_u32 s40, 3'); b.s('s_cselect_b32 s37, 1, 0')
    b.s('s_branch L_gem_g')
    b.label('L_gem_ao'); M.q = list(q5)
    a_loader(5, 9, 'O')
    phase_stamp(b, cfg, 'c')
    b.s('s_add_u32 s41, s41, 1')
    b.fence()
    for f in gemm_addr_ops(b, OSL[0]): f()
    g_interval(b, RES, True, True, gemm_addr_ops(b, OSL[1]), lambda: M.need({('o', 1)}), zero=False)
    b.s('s_branch L_gem_o2')
    b.label('L_gem_o0'); b.reset()
    for h in range(2): b.v('v_lshlrev_b32', VXB+h, '4', LANE)
    b.v('v_add_u32', VXB+1, '1024', VXB+1)
    for f in gemm_addr_ops(b, OSL[0]): f()
    g_interval(b, RES, True, True, gemm_addr_ops(b, OSL[1]), lambda: None)
    b.label('L_gem_o2')
    for c in range(1, 4):
        g_interval(b, RES, True, False, gemm_addr_ops(b, OSL[(c+1) % 4]), (lambda c=c: M.need({('o', c+1)})))
    b.s('s_mov_b32 s49, 3')
    b.label('L_o_cl')
    for c in range(4):
        g_interval(b, RES, True, False, gemm_addr_ops(b, OSL[(c+1) % 4]), (lambda: b.s('s_sub_u32 s49, s49, 1')) if c == 3 else (lambda: None))
    b.s('s_cmp_lg_u32 s49, 0'); b.s('s_cbranch_scc1 L_o_cl')
    phase_stamp(b, cfg, 'o')
    b.s('s_add_u32 s59, s59, 1'); b.s('s_mov_b32 s49, 4')
    b.s('s_cmp_eq_u32 s59, 4'); b.s('s_cbranch_scc1 L_gem_fin')
    b.s('s_cmp_eq_u32 s41, 4'); b.s('s_cbranch_scc1 L_o_cl')
    sv = b.save()
    g_block(b, 1, A1, {})
    b.fence()
    b.s('s_branch L_gem_a')
    b.label('L_gem_fin'); b.restore(sv)
    g_block(b, 1, A1, {})
    t = GT
    b.v('v_and_b32', t, '15', LANE); b.v('v_lshlrev_b32', t, '12', t)
    b.v('v_bfe_u32', t+1, LANE, '4', '1'); b.v('v_lshlrev_b32', t+1, '5', t+1); b.v('v_add_u32', t, t, t+1)
    b.v('v_lshrrev_b32', t+1, '5', LANE); b.v('v_lshlrev_b32', t+1, '4', t+1); b.v('v_add_u32', t, t, t+1)
    for qb in range(6):
        pk = 64 + 4*qb
        for nt in range(2):
            a = acc(nt, qb)
            b.v('v_cvt_pk_bf16_f32', pk+2*nt, a, a+1); b.v('v_cvt_pk_bf16_f32', pk+2*nt+1, a+2, a+3)
        b.swap16(pk, pk+2); b.swap16(pk+1, pk+3)
        b.store(4, pk, t, 28, 's76', 0, cfg.outpol)
        if qb < 5: b.s(f's_add_u32 s76, s76, {16*4096}')
    if cfg.stamps:
        b.raw('s_memrealtime s[90:91]'); b.raw('s_waitcnt lgkmcnt(0)'); b.raw('s_sub_u32 s99, s90, s88')
    stamp_dump(b, cfg)
    if cfg.ivw is not None:
        b.raw('s_cmp_lg_u32 s35, 4'); b.raw('s_cbranch_scc1 L_k1_end')
        b.raw(f's_add_u32 s80, s78, {66 << 20}'); b.raw('s_addc_u32 s81, s79, 0'); b.raw('s_lshl_b32 s91, s2, 8')
        b.raw(f'v_lshlrev_b32 v{GT}, 2, v{LANE}'); b.raw(f'v_add_u32 v{GT}, s91, v{GT}'); b.raw(f'global_store_dword v{GT}, v247, s[80:81]')
    b.label('L_k1_end')
    b.s('s_endpgm')
    b.label('L_code_end')
    for task in A.rare: A.rare_block(task)
    return b

SLOT2 = 29184; NSLOT2 = 5
def adv_slot(b, reg):
    return [lambda: b.s(f's_add_u32 {reg}, {reg}, {SLOT2}'), lambda: (b.s(f's_cmp_eq_u32 {reg}, {SLOT2*NSLOT2}'), b.s(f's_cselect_b32 {reg}, 0, {reg}'))]
def k2(cfg):
    b = B()
    b.raw('.globl k2_kernel'); b.raw('.p2align 8'); b.raw('.type k2_kernel,@function'); b.label('k2_kernel')
    b.s('s_cmp_ge_u32 s2, 256'); b.s('s_cbranch_scc1 L_k2_end')
    if cfg.stamps: b.raw('s_memrealtime s[88:89]'); b.raw('s_memtime s[86:87]')
    b.s('s_and_b32 s60, s2, 7'); b.s('s_lshr_b32 s61, s2, 3'); b.s('s_lshr_b32 s62, s60, 2')
    b.s('s_mul_i32 s63, s62, 40'); b.s('s_add_u32 s64, s0, s63'); b.s('s_addc_u32 s65, s1, 0')
    b.s('s_load_dwordx2 s[76:77], s[64:65], 32'); b.s('s_load_dwordx2 s[78:79], s[0:1], 96'); b.s('s_load_dwordx2 s[70:71], s[0:1], 80')
    b.v('v_lshrrev_b32', 1, '6', 0); b.rfl(35, 1)
    lane_id(b, LANE)
    b.s('s_and_b32 s34, s35, 3')
    if cfg.k2map == 0:
        b.s('s_and_b32 s66, s60, 3'); b.s('s_lshl_b32 s66, s66, 2'); b.s('s_lshr_b32 s39, s61, 3'); b.s('s_add_u32 s66, s66, s39')
        b.s('s_and_b32 s67, s61, 7')
    else:
        b.s('s_and_b32 s66, s60, 1'); b.s('s_lshl_b32 s66, s66, 3'); b.s('s_lshr_b32 s39, s61, 2'); b.s('s_add_u32 s66, s66, s39')
        b.s('s_bfe_u32 s67, s60, 0x10001'); b.s('s_lshl_b32 s67, s67, 2'); b.s('s_and_b32 s39, s61, 3'); b.s('s_add_u32 s67, s67, s39')
    b.s('s_lshl_b32 s36, s62, 4'); b.s('s_add_u32 s36, s36, s66'); b.s(f's_mul_i32 s36, s36, {64*12288}')
    b.s('s_lshl_b32 s37, s67, 8')
    b.s('s_lshl_b32 s53, s34, 10'); b.s('s_mul_i32 s52, s34, 1056')
    b.s('s_mov_b32 s42, 0'); b.s('s_mov_b32 s43, 0')
    b.raw('s_waitcnt lgkmcnt(0)')
    srd(b, 4, 78, 2*16*64*12288); srd(b, 16, 76, 1 << 23); srd(b, 20, 70, 16*96*2048*2)
    b.s('s_cmp_ge_u32 s35, 4'); b.s('s_cbranch_scc1 L_k2_gem')
    b.fence()
    D = NSLOT2 - (2 if cfg.k2defer else 1)
    L = Loader(b, cfg, 8)
    loader_offsets(b, False, 8, 128, 2048, True, 2)
    def iss():
        L.g(0, True, None, dyn=True, P=K2G)
        for f in adv_slot(b, 's43'): f()
    for i in range(D): iss()
    b.vm(7*(D-1)); b.barrier()
    b.s(f's_mov_b32 s49, {64-D}')
    b.fence()
    b.label('L_k2_ld')
    iss(); b.vm(7*(D-1)); b.barrier()
    b.s('s_sub_u32 s49, s49, 1'); b.s('s_cmp_lg_u32 s49, 0'); b.s('s_cbranch_scc1 L_k2_ld')
    for i in range(D):
        b.vm(max(0, 7*(D-2-i))); b.barrier()
    b.s('s_endpgm')
    b.reset()
    b.label('L_k2_gem')
    gemm_setup(b)
    for f in gemm_addr_ops(b, 's42') + adv_slot(b, 's42'): f()
    b.barrier()
    nx = lambda: gemm_addr_ops(b, 's42')
    def endf():
        for f in adv_slot(b, 's42'): f()
    g_interval(b, RES, True, True, nx(), endf, cfg.k2defer)
    b.s('s_mov_b32 s49, 63')
    b.label('L_k2_cl')
    g_interval(b, RES, True, False, nx(), endf, cfg.k2defer)
    b.s('s_sub_u32 s49, s49, 1'); b.s('s_cmp_lg_u32 s49, 0'); b.s('s_cbranch_scc1 L_k2_cl')
    g_block(b, 1, A1, {})
    t = GT
    b.v('v_and_b32', t, '15', LANE); b.v('v_lshlrev_b32', t, '12', t)
    b.v('v_bfe_u32', t+1, LANE, '4', '1'); b.v('v_lshlrev_b32', t+1, '5', t+1); b.v('v_add_u32', t, t, t+1)
    b.v('v_lshrrev_b32', t+1, '5', LANE); b.v('v_lshlrev_b32', t+1, '4', t+1); b.v('v_add_u32', t, t, t+1)
    b.s(f's_mul_i32 s39, s66, {96*4096}'); b.s('s_lshl_b32 s50, s62, 11'); b.s('s_add_u32 s39, s39, s50')
    b.s('s_lshl_b32 s50, s67, 8'); b.s('s_add_u32 s39, s39, s50'); b.s('s_lshl_b32 s50, s34, 6'); b.s('s_add_u32 s39, s39, s50')
    for qb in range(6):
        pk = 64 + 4*qb
        for nt in range(2):
            a = acc(nt, qb)
            b.v('v_cvt_pk_bf16_f32', pk+2*nt, a, a+1); b.v('v_cvt_pk_bf16_f32', pk+2*nt+1, a+2, a+3)
        b.swap16(pk, pk+2); b.swap16(pk+1, pk+3)
        b.store(4, pk, t, 20, 's39', 0)
        if qb < 5: b.s(f's_add_u32 s39, s39, {16*4096}')
    if cfg.stamps:
        b.raw('s_memrealtime s[90:91]'); b.raw('s_memtime s[92:93]'); b.raw('s_waitcnt lgkmcnt(0)'); b.raw('s_sub_u32 s90, s90, s88'); b.raw('s_sub_u32 s92, s92, s86')
        b.raw('s_lshl_b32 s91, s2, 5')
        b.raw(f's_add_u32 s80, s78, {64 << 20}'); b.raw('s_addc_u32 s81, s79, 0')
        b.raw(f'v_mov_b32 v200, s90'); b.raw(f'v_mov_b32 v201, s92'); b.raw(f'v_mov_b32 v202, s91')
        b.raw(f'global_store_dwordx2 v202, v[200:201], s[80:81]')
    b.label('L_k2_end')
    b.s('s_endpgm')
    return b

def desc(name, nv):
    return f'''.p2align 6
.amdhsa_kernel {name}
  .amdhsa_next_free_vgpr {nv}
  .amdhsa_next_free_sgpr 102
  .amdhsa_accum_offset {nv}
  .amdhsa_group_segment_fixed_size 0
  .amdhsa_kernarg_size 104
  .amdhsa_user_sgpr_count 2
  .amdhsa_user_sgpr_kernarg_segment_ptr 1
  .amdhsa_system_sgpr_workgroup_id_x 1
.end_amdhsa_kernel
'''
def build(path, cfg, which=None):
    OG['xpol'] = cfg.xpol
    B.nodma = cfg.nodma; B.skel = cfg.skel; G['cfg'] = cfg; B.guard = False
    a = k1(cfg)
    s = '; @launch grid=(256,1,1) block=(512,1,1) lds=163840\n.amdgcn_target "amdgcn-amd-amdhsa--gfx950"\n.text\n' + a.text()
    s += '.section .rodata,"a"\n' + desc(NAME + '_kernel', 256)
    open(path, 'w').write(s)
    return a, a
def mk(path, which=('k1', 'k2'), **kw):
    cfg = Cfg()
    for k, v in kw.items():
        assert hasattr(cfg, k), k
        setattr(cfg, k, v)
    return build(path, cfg, which)

if __name__ == '__main__':
    a, c = mk('v8.s')
    print('k1 lines', len(a.lines), 'nops', a.nnop, 'k2 lines', len(c.lines), 'nops', c.nnop)
```

```python
import math, struct, sys
from asmb import *
NAME = 'concat_heads__mha_block_cached__gqa_block_cached__near_ridge'
RING = 135168; XB = RING
HS = 16896; AS = 33792; GS = 22528; WG = 8448
QROW = 272; STAT = XB + 24576
def f2u(x): return struct.unpack('<I', struct.pack('<f', x))[0]
CEXP = math.log2(math.e) / math.sqrt(128.0)
LANE = 255; DUM = 254
OOB = 0x40000000

class Cfg:
    kvpol = ' nt'; opol = ' sc1'; xpol = ' sc1'; outpol = ''; pf = True; pf0 = 2; stamps = False; stagger = True
    wopf = 3; won = (0, 2, 5, 7, 9, 11, 14, 16); nodma = False; skel = False; codepf = True; nosig = False
    ivw = None; prio = 1; masks = (0x17, 0x36); dropst = 0; kvpf = 0; kvpfpol = ''; kvpfall = False; fast = False; pst = 8; sigat = 9; rrc = 12; wl2 = None

PB = 26 << 20; FB = 48 << 20; PT = 24576
G = {}
def srd(b, d, lo, size):
    b.s(f's_mov_b32 s{d}, s{lo}'); b.s(f's_mov_b32 s{d+1}, s{lo+1}'); b.s(f's_mov_b32 s{d+2}, {size}'); b.s(f's_mov_b32 s{d+3}, 0x20000')
def lane_id(b, d):
    b.v('v_mbcnt_lo_u32_b32', d, '-1', '0'); b.v('v_mbcnt_hi_u32_b32', d, '-1', d)

XO = 0; WO1 = 12288; WO0 = 12288 + WG
GMAP = [0,1,2,3,4,5,0,1,2,3,0,1,2,3,4,5]
HMAP = [p % 8 for p in range(16)]
def g_base(i, full, cls=0): return (i % 4)*AS if full else GMAP[i]*GS
TILES = [('K',0)] + sum([[('K',j+1), ('V',j)] for j in range(7)], []) + [('V',7)]
def t_base(p): return HMAP[p]*HS
KPOS = {j: TILES.index(('K', j)) for j in range(8)}
VPOS = {j: TILES.index(('V', j)) for j in range(8)}
def t_cons(p): k, j = TILES[p]; return j if k == 'K' else j + 1

def loader_offset_ops(b, kv, base, xstride, wstride, operm, t):
    lane = LANE
    vKV, vX, vW, vPF = base, base+1, base+2, base+3
    t0, t1 = t, t+1
    o = []
    def V(*a): o.append(lambda: b.v(*a))
    V('v_and_b32', t0, '15', lane); V('v_lshlrev_b32', t0, '4', t0)
    V('v_lshrrev_b32', t1, '4', lane)
    if kv:
        V('v_lshl_add_u32', vKV, t1, '3', 's34'); V('v_lshl_add_u32', vKV, vKV, '8', t0)
    sa, sb = (4, 3) if operm else (2, 4)
    V('v_and_b32', vW, '1', t1); V('v_lshl_add_u32', vW, vW, str(sa), 's34')
    V('v_lshrrev_b32', t1, '1', t1); V('v_lshl_add_u32', vW, t1, str(sb), vW)
    V('v_lshl_add_u32', vW, vW, str(int(math.log2(wstride))), t0)
    if operm:
        V('v_lshl_add_u32', vX, lane, '4', 's53')
    else:
        V('v_lshrrev_b32', t0, '3', lane); V('v_lshl_add_u32', t0, 's34', '3', t0)
        V('v_lshrrev_b32', t1, '1', t0); V('v_xor_b32', t1, t1, lane); V('v_and_b32', t1, '7', t1); V('v_lshlrev_b32', t1, '4', t1)
        V('v_lshl_add_u32', vX, t0, str(int(math.log2(xstride))), t1)
    if kv == 2: V('v_lshlrev_b32', vPF, '7', lane)
    return o
def loader_offsets(b, *a):
    for f in loader_offset_ops(b, *a): f()


class Loader:
    def __init__(self, b, cfg, base, t): self.b, self.cfg, self.base, self.tmp, self.q, self.fill, self.per, self.n = b, cfg, base, t, [], [], 0, 0
    def lab(self, s): self.n += 1; return f'L_{s}{self.base}_{self.n}'
    def setfill(self, ops, ndma):
        self.fill = list(ops); self.per = -(-len(self.fill) // max(ndma, 1))
    def _f(self):
        for _ in range(self.per):
            if self.fill: self.fill.pop(0)()
    def flush(self):
        while self.fill: self.fill.pop(0)()
    def g(self, i, full, tag):
        b = self.b; vX, vW = self.base+1, self.base+2; lds = g_base(i, full)
        b.s(f's_mul_i32 s58, s42, {i}'); b.s('s_add_u32 s58, s58, s36')
        b.s(f's_mul_i32 s59, s60, {i}'); b.s('s_add_u32 s59, s59, s45')
        for z in range(3):
            b.s(f's_add_u32 m0, s53, {lds + XO + z*4096}')
            if z: b.s('s_add_u32 s58, s58, s43')
            b.dma(vX, 4, 's58', 0, self.cfg.xpol); self.q.append((tag, 1)); self._f()
        for h in (0, 1):
            if h: b.s('s_add_u32 s59, s59, s61')
            if h == 0 and not full: continue
            for z in (0, 1):
                b.s(f's_add_u32 m0, s52, {lds + (WO1 if h else WO0) + z*4224}')
                if z: b.s('s_add_u32 s39, s59, s62')
                b.dma(vW, 16, 's39' if z else 's59'); self.q.append((tag, 1)); self._f()
        self.norm()
    def t(self, p, tag):
        b = self.b; k, j = TILES[p]; srd_ = 8 if k == 'K' else 12; lds = t_base(p); pol = self.cfg.kvpol
        for kh in range(2):
            b.s(f's_add_u32 m0, s52, {lds + kh*8448}'); b.s(f's_add_u32 s39, s38, {j*16384 + kh*8192}')
            b.dma(self.base, srd_, 's39', 0, pol)
            b.s('s_add_u32 m0, m0, 3200')
            b.dma(self.base, srd_, 's39', 1024, pol)
        self.q.append((tag, 4))
    def norm(self):
        q = []
        for t, n in self.q:
            if q and q[-1][0] == t: q[-1] = (t, q[-1][1] + n)
            else: q.append((t, n))
        self.q = q
    def items(self):
        t = Loader(self.b, self.cfg, 0, 0); t.q = [x for x in self.q if isinstance(x[0], tuple)]; t.norm(); return [n for _, n in t.q]
    def other(self, n): self.q.append((None, n))
    def need(self, tags):
        last = -1
        for i, (t, n) in enumerate(self.q):
            if t in tags: last = i
        if last >= 0:
            self.q = self.q[last+1:]
            self.b.vm(min(63, sum(n for _, n in self.q)))
    def ub(self, d, unit_sgpr, plus=0):
        self.b.s(f's_add_u32 {d}, {unit_sgpr}, s33')
        if plus: self.b.s(f's_add_u32 {d}, {d}, {plus & 3}')
        self.b.s(f's_and_b32 {d}, {d}, 3')
    def begin(self, plus, recompute):
        b = self.b; lo, le = self.lab('bo'), self.lab('be')
        b.fence()
        b.s(f's_cmp_ge_u32 s40, {4 - plus}'); b.s(f's_cbranch_scc1 {lo}')
        if recompute: loader_offsets(b, False, self.base, 2048, 8192, False, self.tmp)
        b.s(f's_branch {le}')
        b.label(lo)
        for k in range(3): b.s(f's_mov_b32 s{4+k}, s{20+k}')
        for k in range(2): b.s(f's_mov_b32 s{16+k}, s{24+k}')
        for r, v in ((42, 12288), (43, 4096), (60, 64*2048), (61, 32*2048), (62, 4*2048), (63, 3145728), (44, 's74'), (45, 's75')): b.s(f's_mov_b32 s{r}, {v}')
        loader_offsets(b, False, self.base, 128, 2048, True, self.tmp)
        b.label(le)
        self.ub('s36', 's40', plus); b.s('s_mul_i32 s36, s36, s63'); b.s('s_add_u32 s36, s36, s44')
        b.fence()
    def set_a(self):
        self.ub('s38', 's41'); self.b.s('s_lshl_b32 s38, s38, 24'); self.b.s('s_add_u32 s38, s38, s46')
    def set_ost(self):
        self.ub('s54', 's41', 3); self.b.s('s_mul_i32 s54, s54, 3145728'); self.b.s('s_add_u32 s54, s54, s47')
        if self.cfg.dropst: self.b.s(f's_cmp_le_u32 s41, {self.cfg.dropst}'); self.b.s(f's_cselect_b32 s54, {OOB}, s54')
    def nonce_load(self, v):
        self.b.emit(f'buffer_load_dwordx2 {vr(v+4,2)}, off, s[64:67], 0 sc1', 'vmem', R(v+4, 2)); self.q.append(('n', 1))
    def nonce_get(self, v):
        b = self.b; l0, l1 = self.lab('nc'), self.lab('nk')
        assert all(x[0] != 'n' for x in self.q)
        b.s('s_mov_b32 s49, 0x40000')
        b.label(l0)
        b.rfl(84, v+4); b.rfl(85, v+5); b.nop(1)
        b.s('s_cmp_lg_u32 s84, 0'); b.s(f's_cbranch_scc1 {l1}')
        b.s('s_sleep 4')
        b.emit(f'buffer_load_dwordx2 {vr(v+4,2)}, off, s[64:67], 0 sc1', 'vmem', R(v+4, 2)); b.vm(0)
        b.s('s_sub_u32 s49, s49, 1'); b.s('s_cmp_lg_u32 s49, 0'); b.s(f's_cbranch_scc1 {l0}')
        b.label(l1)
    def poll(self, v, plus):
        b = self.b
        self.ub('s82', 's40', plus); b.s('s_lshl_b32 s82, s82, 11'); b.s('s_add_u32 s82, s82, s72'); b.s('s_andn2_b32 s82, s82, 127')
        b.s(f's_cmp_lt_u32 s40, {4 - plus}'); b.s(f's_cselect_b32 s82, {OOB}, s82')
        if plus:
            b.s('s_bitcmp1_b32 s32, s40'); b.s(f's_cselect_b32 s82, {OOB}, s82')
            self.ub('s39', 's40'); b.s('s_lshl_b32 s39, s39, 12'); b.s('s_add_u32 s39, s39, s73')
            b.s('s_cmp_eq_u32 s40, 7'); b.s('s_cselect_b32 s82, s39, s82'); b.s('s_cselect_b32 s39, 2, 7')
            b.v('v_min_u32', v+2, 's39', LANE)
        else:
            b.v('v_min_u32', v+2, '7', LANE)
        b.v('v_lshlrev_b32', v+2, '3', v+2)
        b.emit(f'buffer_load_dwordx2 {vr(v,2)}, {vr(v+2)}, s[68:71], s82 offen sc1', 'vmem', R(v, 2), {v+2}); self.q.append(('p', 1))
    def check(self, v, plus):
        b = self.b; l0, l1 = self.lab('ck'), self.lab('ok')
        assert all(x[0] != 'p' for x in self.q)
        if self.cfg.nosig: return
        if plus is not None: b.s(f's_cmp_lt_u32 s40, {4 - plus}'); b.s(f's_cbranch_scc1 {l1}')
        b.s('s_mov_b32 s49, 0x40000')
        b.label(l0)
        b.emit(f'v_cmp_ne_u64 vcc, s[84:85], {vr(v,2)}', 'valu', (), R(v, 2))
        b.s(f's_cbranch_vccz {l1}')
        b.s('s_sleep 2')
        b.emit(f'buffer_load_dwordx2 {vr(v,2)}, {vr(v+2)}, s[68:71], s82 offen sc1', 'vmem', R(v, 2), {v+2}); b.vm(0)
        b.s('s_sub_u32 s49, s49, 1'); b.s('s_cmp_lg_u32 s49, 0'); b.s(f's_cbranch_scc1 {l0}')
        b.label(l1)
    def flag_store(self, v, soff):
        b = self.b
        b.v('v_mov_b32', v+4, 's84'); b.v('v_mov_b32', v+5, 's85')
        b.s('s_mov_b64 exec, 1')
        b.emit(f'buffer_store_dwordx2 {vr(v+4,2)}, off, s[68:71], {soff} sc1', 'vmem', (), R(v+4, 2))
        b.s('s_mov_b64 exec, -1')
    def signal(self, v):
        b = self.b
        assert all(x[0] != 'st' for x in self.q)
        self.ub('s39', 's41', 3); b.s('s_lshl_b32 s39, s39, 11'); b.s('s_add_u32 s39, s39, s72')
        b.s('s_cmp_eq_u32 s35, 0'); b.s(f's_cselect_b32 s39, s39, {OOB}')
        self.flag_store(v, 's39'); self.other(1)
    def psignal(self, v):
        b = self.b; l = self.lab('ps')
        b.s('s_cmp_eq_u32 s37, 0'); b.s(f's_cbranch_scc1 {l}')
        sv = b.save(); self.flag_store(v, 's83'); b.s('s_mov_b32 s37, 0'); b.restore(sv)
        b.label(l)

def cons_tags(ph, kind, t):
    if kind == 'g': return {(ph, t)}
    return {(ph, p) for p in range(16) if t_cons(p) == t}
R_OWN = {2: [5], 3: [6, 7], 4: [8], 5: [9], 6: [14], 7: [10], 8: [11], 9: [12], 10: [13], 11: [15]}
R_OWNP = {1: [5], 2: [6], 3: [7]}
R_TO_A = {11: [0], 12: [1], 13: [2, 3], 14: [4], 15: [5]}
R_TO_F = {12: [0], 13: [1], 15: [2]}
def r_to_r(c):
    d = {}
    for i in range(4): d.setdefault(max(c, 12 + i if i < 3 else 14), []).append(i)
    return d
F_TO_A = {13: [0, 1], 14: [2, 3], 15: [4, 5]}
F_TO_R = {13: [0], 14: [1, 2], 15: [3]}
A_OWN = {1: [8], 2: [9, 10], 3: [11, 12], 4: [13, 14], 5: [15]}
A_TO_R = {6: [0, 1], 7: [2], 8: [3, 4]}
A_TO_F = {6: [0], 7: [1], 8: [2]}
R_TO_P = {12: [0], 13: [1], 14: [2]}
def prog_of(mask):
    p = []
    for gi in range(8):
        p.append('F' if gi % 4 == 0 else 'R')
        if mask >> gi & 1: p.append('A')
    return p
def verify_ring(cfg):
    for mask in cfg.masks:
        prog = prog_of(mask) + ['P']
        assert prog.count('A') == 4
        live = {}; issued = set()
        def rng(ph, i):
            k = prog[ph]
            if k == 'F': return (g_base(i, True), g_base(i, True) + 29184)
            if k == 'R': return (g_base(i, False), g_base(i, False) + 20736)
            if k == 'P': return (i*PT, (i+1)*PT)
            return (t_base(i), t_base(i) + HS)
        def iss(ph, i):
            lo, hi = rng(ph, i)
            for t, (a, c) in live.items(): assert hi <= a or c <= lo, (prog, ph, i, t)
            assert (ph, i) not in issued, (prog, ph, i)
            live[(ph, i)] = (lo, hi); issued.add((ph, i))
        for i in range(3): iss(0, i)
        for ph, k in enumerate(prog[:-1]):
            nx = prog[ph+1]; pv = prog[ph-1] if ph else None
            for t in range(9 if k == 'A' else 16):
                if k == 'F':
                    own = [t+3] if t <= 12 else []
                    if pv == 'A' and t < 2: own = [[], [3, 4]][t]
                    nxt = {'A': F_TO_A, 'R': F_TO_R}[nx].get(t, [])
                elif k == 'R':
                    own = R_OWN.get(t, []) if t else ([] if pv == 'A' else [4])
                    if pv != 'A' and t in R_OWNP: own = R_OWNP[t]
                    nxt = {'A': R_TO_A, 'F': R_TO_F, 'R': r_to_r(cfg.rrc), 'P': R_TO_P}[nx].get(t, [])
                else:
                    own = A_OWN.get(t, []) if t else [6, 7]
                    nxt = {'R': A_TO_R, 'F': A_TO_F}[nx].get(t, [])
                for i in own: iss(ph, i)
                for i in nxt: iss(ph+1, i)
                for tg in cons_tags(ph, 'a' if k == 'A' else 'g', t):
                    assert tg in live, (prog, tg); del live[tg]
        assert len(live) == 3 and len(issued) == 195

ACC = 0; RES = 48; BF = [176, 200]; A1 = 224; VW = 232; VX = 233; VWB = 235; VXB = 236; VQW = 238; GB = 240; GT = 244
def acc(nt, qb): return ACC + 8*qb + 4*nt
def gemm_setup(b):
    lane = LANE; t0, t1, t2 = GT, GT+1, GT+2
    b.v('v_bfe_u32', t0, lane, '2', '3'); b.v('v_mul_u32_u24', VWB, '1056', t0)
    b.v('v_lshrrev_b32', t0, '5', lane); b.v('v_lshlrev_b32', t0, '9', t0); b.v('v_add_u32', VWB, VWB, t0)
    b.v('v_and_b32', t0, '3', lane); b.v('v_lshlrev_b32', t0, '3', t0)
    b.s('s_lshl_b32 s39, s34, 6'); b.v('v_add3_u32', VWB, VWB, t0, 's39')
    b.v('v_and_b32', t0, '15', lane); b.v('v_lshrrev_b32', t2, '1', t0); b.v('v_lshrrev_b32', t1, '4', lane); b.v('v_xor_b32', t2, t2, t1)
    b.v('v_lshlrev_b32', t0, '7', t0)
    for h in range(2):
        b.v('v_xor_b32', VXB+h, str(4*h), t2); b.v('v_lshlrev_b32', VXB+h, '4', VXB+h); b.v('v_add_u32', VXB+h, VXB+h, t0)
def gemm_addr_ops(b, base):
    base = str(base)
    return [lambda: b.v('v_add_u32', VX, base, VXB), lambda: b.v('v_add_u32', VX+1, base, VXB+1), lambda: b.v('v_add_u32', VW, base, VWB)]
def rdA(b, h, areg):
    return [lambda nt=nt, e=e: b.dsr('ds_read_b64_tr_b16', areg+4*nt+2*e, 2, VW, (WO1 if h else WO0) + e*256 + nt*32) for nt in range(2) for e in range(2)]
def rdB(b, h):
    return [lambda qb=qb: b.dsr('ds_read_b128', BF[h]+4*qb, 4, VX+h, XO + qb*2048) for qb in range(6)]
def g_block(b, h, areg, gaps, zero=False, prewait=None):
    k = 0
    for qb in range(6):
        for nt in range(2):
            if prewait and k in prewait: b.wait_lgkm(prewait[k])
            b.mfma16(acc(nt, qb), areg+4*nt, BF[h]+4*qb, None if zero else acc(nt, qb))
            for f in gaps.get(k, []): f()
            k += 1
def g_interval(b, a0, load_a0, first, nxt_ops, endfn, defer=False, zero=None, x1=None, x0=None, mid=None):
    B0, B1, Aa = rdB(b, 0), rdB(b, 1), rdA(b, 1, A1)
    A0 = rdA(b, 0, a0) if load_a0 else []
    if first:
        for f in A0 + B0: f()
        rest = B1 + Aa
        pw = None
    else:
        seq = A0 + B0 + B1
        g1 = {k: [seq[k]] for k in range(12)}
        for k, fs in (x1 or {}).items(): g1[k] = fs + g1[k]
        rest = seq[12:] + Aa
        g_block(b, 1, A1, g1, prewait=({0: 0} if defer else None))
        if mid: mid()
        ny = 12 - len(A0) - 6
        pw = {0: ny} if not load_a0 else {0: ny + 3, 6: 6 + ny}
    g0 = {k: [f] for k, f in enumerate(rest)}
    for k, fs in (x0 or {}).items(): g0.setdefault(k, []).extend(fs)
    k = len(rest)
    for f in nxt_ops:
        g0.setdefault(min(k, 10), []).append(f); k += 1
    def tail():
        if not defer: b.wait_lgkm(0)
        endfn(); b.barrier()
    g0.setdefault(10, []).append(tail)
    g_block(b, 0, a0, g0, zero=(first if zero is None else zero), prewait=pw)
def g_tail_q(b):
    def cv(qb, nt):
        a = acc(nt, qb); pk = BF[0] + 2*((2*qb+nt) % 8)
        return [lambda z=z: b.v('v_mul_f32', a+z, 's56', a+z) for z in range(4)] + \
               [lambda: b.v('v_cvt_pk_bf16_f32', pk, a, a+1), lambda: b.v('v_cvt_pk_bf16_f32', pk+1, a+2, a+3),
                lambda: b.dsw('ds_write_b64', VQW, pk, 2, qb*16*QROW + nt*32)]
    ops = sum([cv(qb, nt) for qb in range(6) for nt in range(2)], [])
    gaps = {}
    for k in range(5, 12): gaps[k] = [ops.pop(0), ops.pop(0)]
    g_block(b, 1, A1, gaps)
    for f in ops: f()
    b.wait_lgkm(0)
def g_main(b, cfg, full, M):
    for f in gemm_addr_ops(b, g_base(0, full)): f()
    for c in range(16):
        x0 = {7: [lambda: M.psignal(GF)]} if (c == 5 and not full) else None
        if c == 1 and not full: b.label('L_gem_R1')
        g_interval(b, RES + 8*c, full, c == 0, gemm_addr_ops(b, g_base(c+1, full)) if c < 15 else [], (lambda c=c: M.need({('g', c+1)}) if c != 4 else b.vm(0)), x0=x0)
GF = 248

O_ = 0; Q_ = 96; KF = 144; VF = 176; S_ = 208; P_ = 224; NM = 232; L_ = 244
VKA = 247; VVA = 248; VKB = 249; VVB = 250; T0 = 251; VVH = 253
LB = S_ + 8
def Oreg(c, dt): return O_ + 32*c + 4*dt
def att_setup(b):
    lane = LANE; t0 = T0
    b.s('s_mul_i32 s39, s55, 8448')
    b.v('v_and_b32', t0, '7', lane); b.v('v_mul_u32_u24', VKB, '1056', t0)
    b.v('v_bfe_u32', t0, lane, '3', '1'); b.v('v_lshlrev_b32', t0, '8', t0); b.v('v_add_u32', VKB, VKB, t0)
    b.v('v_lshrrev_b32', t0, '4', lane); b.v('v_lshlrev_b32', t0, '4', t0); b.v('v_add3_u32', VKB, VKB, t0, 's39')
    b.v('v_bfe_u32', t0, lane, '2', '3'); b.v('v_mul_u32_u24', VVB, '1056', t0)
    b.v('v_lshrrev_b32', t0, '5', lane); b.v('v_lshlrev_b32', t0, '8', t0); b.v('v_add_u32', VVB, VVB, t0)
    b.s('s_lshl_b32 s50, s55, 7'); b.s('s_add_u32 s39, s39, s50')
    b.v('v_and_b32', t0, '3', lane); b.v('v_lshlrev_b32', t0, '3', t0); b.v('v_add3_u32', VVB, VVB, t0, 's39')
    b.s('s_lshl_b32 s77, s55, 8'); b.s('s_sub_u32 s77, 128, s77')
def q_addr(b, t0, t1):
    b.s('s_and_b32 s39, s34, 1'); b.s(f's_mul_i32 s39, s39, {48*QROW}'); b.s(f's_add_u32 s39, s39, {XB}')
    b.v('v_and_b32', t0, '15', LANE); b.v('v_mul_u32_u24', t0, str(QROW), t0)
    b.v('v_lshrrev_b32', t1, '4', LANE); b.v('v_lshlrev_b32', t1, '4', t1); b.v('v_add3_u32', t0, t0, t1, 's39')
def q_reads(b, t0):
    for c in range(3):
        for m in range(4): b.dsr('ds_read_b128', Q_+16*c+4*m, 4, t0, c*16*QROW + m*64)
def crossred(b, t, u, op='v_max_f32'):
    b.v('v_mov_b32', u, t); b.swap32(t, u); b.v(op, t, t, u)
    b.v('v_mov_b32', u, t); b.swap16(t, u); b.v(op, t, t, u)

class Att:
    def __init__(self, b, cfg): self.b, self.cfg, self.rare = b, cfg, []
    def qk_list(self, task):
        b = self.b; i, c = divmod(task, 3); buf = task & 1; out = []
        for m in range(4):
            for t in range(2):
                d = S_ + 8*buf + 4*t
                cc = d if m else (None if i == 0 else NM + 4*c)
                out.append(lambda d=d, t=t, m=m, cc=cc: b.mfma16(d, KF+16*t+4*m, Q_+16*c+4*m, cc))
        return out
    def pv_list(self, task):
        b = self.b; i, c = divmod(task, 3); buf = task & 1
        return [lambda dt=dt: b.mfma16(Oreg(c, dt), VF+4*dt, P_+4*buf, None if i == 0 else Oreg(c, dt)) for dt in range(8)]
    def kread(self, k):
        m, t = divmod(k, 2)
        return lambda: self.b.dsr('ds_read_b128', KF+16*t+4*m, 4, VKA, t*512+m*64)
    def vread(self, k):
        dt, t = divmod(k, 2)
        return lambda: self.b.dsr('ds_read_b64_tr_b16', VF+4*dt+2*t, 2, VVA if dt < 4 else VVH, t*512+(dt % 4)*32)
    def pre(self, task):
        b = self.b; i, c = divmod(task, 3); S = S_ + 8*(task & 1); t, u = T0, T0+1
        o = [(4, lambda: b.v('v_max3_f32', t, S, S+1, S+2)), (4, lambda: b.v('v_max3_f32', u, S+3, S+4, S+5)),
             (4, lambda: b.v('v_max3_f32', t, S+6, S+7, t)), (4, lambda: b.v('v_max_f32', t, t, u))]
        if i > 0: o.append((4, lambda: b.emit(f'v_cmp_lt_f32 vcc, 4.0, {vr(t)}', 'valu', (), {t})))
        return o
    def main(self, task):
        b = self.b; i, c = divmod(task, 3); buf = task & 1
        S = S_ + 8*buf; P = P_ + 4*buf; t, u = T0, T0+1
        o = []
        if i == 0:
            o += [(4, lambda: b.v('v_mov_b32', u, t)), (8, lambda: b.swap32(t, u)), (4, lambda: b.v('v_max_f32', t, t, u)),
                  (4, lambda: b.v('v_mov_b32', u, t)), (8, lambda: b.swap16(t, u)), (4, lambda: b.v('v_max_f32', t, t, u))]
            for k in range(8): o.append((4, lambda k=k: b.v('v_sub_f32', S+k, S+k, t)))
            for k in range(4): o.append((4, lambda k=k: b.v('v_sub_f32', NM+4*c+k, '0', t)))
        else:
            def br():
                b.s(f's_cbranch_vccnz L_rare{task}'); b.label(f'L_back{task}'); self.rare.append(task)
            o.append((6, br))
        for k in range(8):
            o.append((8, lambda k=k: b.exp(S+k, S+k)))
            if k >= 1:
                kk = k - 1
                if i == 0 and kk == 0: o.append((4, lambda: b.v('v_mov_b32', L_+c, S)))
                else: o.append((4, lambda kk=kk: b.v('v_add_f32', L_+c, L_+c, S+kk)))
            if k >= 2 and k % 2 == 0:
                h = k//2 - 1
                o.append((4, lambda h=h: b.v('v_cvt_pk_bf16_f32', P+h, S+2*h, S+2*h+1)))
        o.append((4, lambda: b.v('v_add_f32', L_+c, L_+c, S+7)))
        o.append((4, lambda: b.v('v_cvt_pk_bf16_f32', P+3, S+6, S+7)))
        return o
    def addr_k(self, j): self.b.v('v_add_u32', VKA, str(t_base(KPOS[j])), VKB)
    def addr_v(self, j): self.b.v('v_add_u32', VVA, str(t_base(VPOS[j])), VVB); self.b.v('v_add_u32', VVH, 's77', VVA)
    def step(self, s, endfn=None):
        b = self.b; mf = []; prew = {}
        i, c = divmod(s, 3)
        if s + 1 <= 23: mf += self.qk_list(s + 1)
        if s - 1 >= 0: mf += self.pv_list(s - 1)
        n = len(mf)
        post = [[] for _ in range(n)]
        hasK = i + 1 <= 7
        if c == 0:
            off = 8 if s else 0
            for k in range(8): post[off + k].append(self.vread(k))
        elif c == 1:
            for k in range(8): post[k].append(self.vread(8 + k))
            if hasK:
                for k in range(8): post[8 + k].append(self.kread(k))
            prew[8] = 8; prew[12] = 4 if hasK else 0
        elif hasK:
            prew[0] = 4; prew[4] = 0
        sm = self.main(s) + (self.pre(s + 1) if s + 1 <= 23 else [])
        if B.skel: sm = []
        ecost = 20
        tot = sum(x for x, _ in sm) + 4*sum(len(p) for p in post) + 4*len(prew) + (ecost if endfn else 0)
        acc_ = 0; k = 0
        for j in range(n):
            if j in prew: b.wait_lgkm(prew[j]); acc_ += 4
            mf[j]()
            for f in post[j]: f(); acc_ += 4
            if endfn and j == n - 4:
                endfn(); acc_ += ecost
                continue
            tgt = tot * (j + 1) / n
            while k < len(sm) and (acc_ + sm[k][0]/2 <= tgt or j == n - 1):
                sm[k][1](); acc_ += sm[k][0]; k += 1
    def start(self):
        for f in self.qk_list(0): f()
        for _, f in self.pre(0): f()
    def intervals(self, L):
        b, cfg = self.b, self.cfg
        for j in range(1, 9):
            for s in range(3*(j-1), 3*j):
                if s == 23:
                    b.wait_lgkm(0)
                    b.s('s_cmp_eq_u32 s48, 0'); b.s('s_cbranch_scc1 L_a_noq1')
                    b.s('s_cmp_ge_u32 s41, 3'); b.s('s_cbranch_scc1 L_a_noq1')
                    sv = b.save(); q_addr(b, KF, KF+1); q_reads(b, KF); b.restore(sv)
                    b.label('L_a_noq1')
                def endfn(j=j):
                    b.wait_lgkm(0)
                    if j == 8: b.raw('s_waitcnt lgkmcnt(0)')
                    else:
                        self.addr_v(j)
                        if j + 1 <= 7: self.addr_k(j + 1)
                    L.need(cons_tags('a', 'a', j + 1))
                    b.barrier()
                self.step(s, endfn if s == 3*j - 1 else None)
    XA = KF; SA = KF+1; XP = KF+2; OS = KF+4; FO = KF+10; FT = KF+13; PK = VF; UP = S_; VO = P_+2
    def pack(self, c, mp):
        b = self.b; pk = KF + 16 + 4*((2*c+mp) % 4); r = []
        for h in range(2):
            o = Oreg(c, 4 + 2*mp + h)
            r += [lambda o=o, h=h: b.v('v_cvt_pk_bf16_f32', pk+2*h, o, o+1), lambda o=o, h=h: b.v('v_cvt_pk_bf16_f32', pk+2*h+1, o+2, o+3)]
        return r + [lambda: b.dsw('ds_write_b128', self.XA, pk, 4, (2*c+mp)*1024)]
    def c0(self):
        b = self.b; XA = self.XA
        b.s('s_mul_i32 s50, s34, 6144'); b.s(f's_add_u32 s50, s50, {XB}')
        fill = [lambda: b.v('v_lshl_add_u32', XA, LANE, '4', 's50')]
        fill += self.pack(0, 0) + self.pack(0, 1) + self.pack(1, 0) + self.pack(1, 1)
        pv = self.pv_list(23)
        for dt in (4, 5, 6, 7, 0, 1, 2, 3):
            pv[dt]()
            for _ in range(2): fill.pop(0)()
        for f in fill: f()
    def c1(self):
        b = self.b; SA = self.SA
        red = []
        for c in range(3):
            Lr = L_ + c; uu = S_ + c
            red.append([lambda Lr=Lr, uu=uu: b.v('v_mov_b32', uu, Lr), lambda Lr=Lr, uu=uu: b.swap32(Lr, uu), lambda Lr=Lr, uu=uu: b.v('v_add_f32', Lr, Lr, uu),
                        lambda Lr=Lr, uu=uu: b.v('v_mov_b32', uu, Lr), lambda Lr=Lr, uu=uu: b.swap16(Lr, uu), lambda Lr=Lr, uu=uu, c=c: b.v('v_add_f32', NM+4*c+1, Lr, uu)])
        o = [lambda: (b.s('s_mul_i32 s50, s34, 384'), b.s(f's_add_u32 s50, s50, {STAT}'))]
        o += self.pack(2, 0) + self.pack(2, 1)
        o += [lambda: b.v('v_and_b32', SA, '15', LANE), lambda: b.v('v_mad_u32_u24', SA, SA, '24', 's50')]
        o += [red[c][k] for k in range(6) for c in range(3)]
        o += [lambda c=c: b.dsw('ds_write_b64', SA, NM+4*c, 2, 8*c) for c in range(3)]
        o += [lambda: (b.s('s_mul_i32 s51, s77, 96'), b.s('s_mul_i32 s50, s77, 6')), lambda: b.v('v_add_u32', self.XP, 's51', self.XA), lambda: b.v('v_add_u32', SA, 's50', SA)]
        return o
    def c2a(self):
        b = self.b
        return [lambda c=c: b.dsr('ds_read_b64', self.OS+2*c, 2, self.SA, 8*c) for c in range(3)] + \
               [lambda k=k: b.dsr('ds_read_b128', self.PK+4*k, 4, self.XP, k*1024) for k in range(6)]
    def c2b(self):
        b = self.b; ops = []
        for c in range(3):
            nm, lo = NM+4*c, NM+4*c+1; on, ol = self.OS+2*c, self.OS+2*c+1; fo, ft = self.FO+c, self.FT+c; t = NM+4*c+2
            ops.append([lambda t=t, nm=nm, on=on: b.v('v_min_f32', t, nm, on), lambda fo=fo, t=t, nm=nm: b.v('v_sub_f32', fo, t, nm), lambda ft=ft, t=t, on=on: b.v('v_sub_f32', ft, t, on),
                        lambda fo=fo: b.exp(fo, fo), lambda ft=ft: b.exp(ft, ft), lambda t=t, fo=fo, lo=lo: b.v('v_mul_f32', t, fo, lo), lambda t=t, ft=ft, ol=ol: b.v('v_fma_f32', t, ft, ol, t),
                        lambda t=t: b.v('v_rcp_f32', t, t, kind='trans'), lambda fo=fo, t=t: b.v('v_mul_f32', fo, fo, t), lambda ft=ft, t=t: b.v('v_mul_f32', ft, ft, t)])
        return [ops[c][k] for k in range(10) for c in range(3)] + [lambda: b.v('v_lshlrev_b32', self.VO, '4', LANE), lambda: b.s('s_add_u32 s51, s54, 4096')]
    def part(self, pi):
        b = self.b; o_ = []
        def V(*a, **k): o_.append(lambda: b.v(*a, **k))
        c, mp = divmod(pi, 2); fo, ft = self.FO+c, self.FT+c
        pk = self.PK + 4*pi
        for h in range(2):
            o = Oreg(c, 2*mp + h); up = self.UP + 4*h
            V('v_lshlrev_b32', up, '16', pk+2*h); V('v_and_b32', up+1, '0xffff0000', pk+2*h)
            V('v_lshlrev_b32', up+2, '16', pk+2*h+1); V('v_and_b32', up+3, '0xffff0000', pk+2*h+1)
            for z in range(4): V('v_mul_f32', o+z, o+z, fo)
            for z in range(4): V('v_fmac_f32', o+z, up+z, ft, extra_r={o+z})
            V('v_cvt_pk_bf16_f32', pk+2*h, o, o+1); V('v_cvt_pk_bf16_f32', pk+2*h+1, o+2, o+3)
        return o_
    def store(self, pi, L):
        def f():
            self.b.store(4, self.PK + 4*pi, self.VO, 20, 's54' if pi < 4 else 's51', (pi % 4)*1024, self.cfg.opol); L.q.append(('st', 1))
        return [f]
    def rare_block(self, task):
        b = self.b; i, c = divmod(task, 3); S = S_ + 8*(task & 1); t, u = T0, T0+1
        b.reset(); b.label(f'L_rare{task}'); b.nop(2)
        crossred(b, t, u)
        b.v('v_max_f32', t, '0', t)
        b.v('v_sub_f32', u, '0', t); b.exp(u, u)
        for k in range(8): b.v('v_sub_f32', S+k, S+k, t)
        for k in range(4): b.v('v_sub_f32', NM+4*c+k, NM+4*c+k, t)
        b.v('v_mul_f32', L_+c, L_+c, u)
        for k in range(32): b.v('v_mul_f32', O_+32*c+k, O_+32*c+k, u)
        b.nop(2); b.s(f's_branch L_back{task}')

def phase_stamp(b, cfg):
    if cfg.stamps:
        b.raw('s_memrealtime s[90:91]'); b.raw('s_waitcnt lgkmcnt(0)'); b.raw('s_sub_u32 s90, s90, s88')
        b.raw('s_add_u32 s91, s40, s41'); b.raw('s_max_u32 s91, s91, 3'); b.raw('s_sub_u32 s91, s91, 3'); b.raw('s_mov_b32 m0, s91'); b.raw('s_nop 0'); b.raw('s_movreld_b32 s91, s90')
def stamp_dump(b, cfg):
    if cfg.stamps:
        b.raw('s_memrealtime s[90:91]'); b.raw('s_waitcnt lgkmcnt(0)'); b.raw('s_sub_u32 s99, s90, s88')
        b.raw('s_cmp_lg_u32 s35, 4'); b.raw('s_cbranch_scc1 L_k1_end')
        b.raw('s_lshl_b32 s91, s2, 5'); b.raw(f's_add_u32 s80, s20, {64 << 20}'); b.raw('s_addc_u32 s81, s21, 0')
        b.raw(f'v_mov_b32 v{GT+1}, s91')
        for k in range(8):
            b.raw(f'v_mov_b32 v{GT}, s{92+k}'); b.raw(f'global_store_dword v{GT+1}, v{GT}, s[80:81] offset:{4*k}')
    if cfg.ivw is not None:
        b.raw('s_cmp_lg_u32 s35, 4'); b.raw('s_cbranch_scc1 L_k1_end')
        b.raw(f's_add_u32 s80, s20, {66 << 20}'); b.raw('s_addc_u32 s81, s21, 0'); b.raw('s_lshl_b32 s91, s2, 8')
        b.raw(f'v_lshlrev_b32 v{GT}, 2, v{LANE}'); b.raw(f'v_add_u32 v{GT}, s91, v{GT}'); b.raw(f'global_store_dword v{GT}, v247, s[80:81]')

def k1(cfg):
    verify_ring(cfg)
    b = B()
    KN = NAME + '_kernel'
    b.raw(f'.globl {KN}'); b.raw('.p2align 8'); b.raw(f'.type {KN},@function'); b.label(KN)
    b.s('s_cmp_ge_u32 s2, 256'); b.s('s_cbranch_scc1 L_k1_end')
    if cfg.stamps: b.raw('s_memrealtime s[88:89]')
    b.s('s_and_b32 s60, s2, 7'); b.s('s_lshr_b32 s61, s2, 3'); b.s('s_lshr_b32 s62, s60, 2')
    b.s('s_mul_i32 s63, s62, 40'); b.s('s_add_u32 s64, s0, s63'); b.s('s_addc_u32 s65, s1, 0')
    b.s('s_load_dwordx4 s[68:71], s[64:65], 0'); b.s('s_load_dwordx4 s[72:75], s[64:65], 16')
    b.s('s_load_dwordx2 s[76:77], s[64:65], 32'); b.s('s_load_dwordx2 s[78:79], s[0:1], 96'); b.s('s_load_dwordx4 s[28:31], s[0:1], 80')
    if cfg.wopf == 3: b.s('s_load_dwordx2 s[92:93], s[0:1], 32'); b.s('s_load_dwordx2 s[96:97], s[0:1], 72')
    if cfg.codepf:
        b.s('s_and_b32 s39, s61, 15'); b.s('s_cmp_lg_u32 s39, 0'); b.s('s_cbranch_scc1 L_nocpf')
        b.raw('s_getpc_b64 s[82:83]')
        b.label('L_pc')
        b.v('v_lshlrev_b32', 2, '7', 0)
        b.v('v_min_u32', 2, 'L_code_end-L_pc-4', 2)
        b.v('v_mov_b32', 3, 's83')
        b.emit('v_add_co_u32 v2, vcc, s82, v2', 'valu', {2}, {2}); b.nop(2)
        b.emit('v_addc_co_u32 v3, vcc, 0, v3, vcc', 'valu', {3}, {3})
        b.emit(f'global_load_dword v{DUM}, v[2:3], off', 'vmem', {DUM}, {2, 3})
        b.label('L_nocpf')
    b.v('v_lshrrev_b32', 1, '6', 0); b.rfl(35, 1)
    lane_id(b, LANE)
    b.s('s_and_b32 s34, s35, 3'); b.s('s_lshr_b32 s55, s34, 1')
    b.s('s_and_b32 s33, s60, 3'); b.s('s_lshl_b32 s66, s33, 3'); b.s('s_and_b32 s67, s61, 7'); b.s('s_add_u32 s66, s66, s67')
    b.s('s_lshr_b32 s63, s61, 3')
    b.s('s_and_b32 s48, s63, 1' if cfg.stagger else 's_mov_b32 s48, 0')
    b.s('s_mov_b32 s40, 0'); b.s('s_mov_b32 s41, 0'); b.s('s_mov_b32 s37, 0')
    b.s(f's_mov_b32 s32, {cfg.masks[1]}'); b.s('s_cmp_eq_u32 s48, 0'); b.s(f's_cselect_b32 s32, {cfg.masks[0]}, s32')
    b.s('s_mul_i32 s44, s63, 196608'); b.s('s_lshl_b32 s45, s66, 8')
    b.s('s_lshl_b32 s46, s63, 5'); b.s('s_add_u32 s46, s46, s66'); b.s('s_lshl_b32 s46, s46, 17')
    b.s('s_lshl_b32 s80, s62, 4'); b.s('s_add_u32 s80, s80, s63')
    b.s('s_lshl_b32 s47, s80, 6')
    b.s('s_lshl_b32 s39, s66, 1'); b.s('s_add_u32 s47, s47, s39'); b.s('s_add_u32 s47, s47, s55'); b.s('s_mul_i32 s47, s47, 12288')
    b.s('s_and_b32 s39, s34, 1'); b.s('s_mul_i32 s39, s39, 6144'); b.s('s_add_u32 s47, s47, s39')
    b.s('s_mul_i32 s52, s34, 1056'); b.s('s_lshl_b32 s53, s34, 10')
    b.s(f's_mov_b32 s56, {f2u(CEXP):#x}')
    b.s('s_mul_i32 s57, s67, 24576'); b.s('s_lshl_b32 s39, s34, 13'); b.s('s_add_u32 s57, s57, s39'); b.s('s_add_u32 s57, s57, s44')
    b.s('s_cmp_eq_u32 s34, 3'); b.s(f's_cselect_b32 s57, {OOB}, s57')
    b.raw('s_waitcnt lgkmcnt(0)')
    srd(b, 4, 68, 16*96*1024*2); srd(b, 8, 70, 1 << 26); srd(b, 12, 72, 1 << 26); srd(b, 16, 74, 1 << 23)
    srd(b, 20, 78, FB); srd(b, 24, 76, 1 << 23)
    b.s(f's_add_u32 s68, s78, {FB}'); b.s('s_addc_u32 s69, s79, 0'); b.s('s_mov_b32 s70, 49152'); b.s('s_mov_b32 s71, 0x20000')
    b.s('s_mov_b32 s64, s30'); b.s('s_mov_b32 s65, s31')
    b.s(f's_mov_b32 s30, {16*96*2048*2}'); b.s('s_mov_b32 s31, 0x20000')
    b.s('s_lshl_b32 s72, s80, 9'); b.s('s_lshl_b32 s50, s33, 7'); b.s('s_add_u32 s72, s72, s50'); b.s('s_lshl_b32 s50, s67, 3'); b.s('s_add_u32 s72, s72, s50')
    b.s('s_lshl_b32 s81, s80, 3'); b.s('s_add_u32 s81, s81, s67')
    b.s('s_lshl_b32 s73, s81, 7'); b.s('s_add_u32 s73, s73, 16384')
    b.s(f's_mul_i32 s78, s81, {3*PT}'); b.s('s_mul_i32 s79, s34, 6144'); b.s('s_add_u32 s78, s78, s79'); b.s(f's_add_u32 s78, s78, {PB}')
    b.s('s_lshl_b32 s74, s80, 2'); b.s('s_add_u32 s74, s74, s33'); b.s(f's_mul_i32 s74, s74, {16*12288}')
    b.s('s_lshl_b32 s75, s33, 21'); b.s('s_lshl_b32 s50, s67, 8'); b.s('s_add_u32 s75, s75, s50')
    b.s('s_add_u32 s39, s33, 3'); b.s('s_and_b32 s39, s39, 3'); b.s('s_lshl_b32 s39, s39, 2'); b.s('s_add_u32 s39, s39, s63'); b.s(f's_mul_i32 s76, s39, {96*4096}')
    b.s('s_add_u32 s76, s76, s50'); b.s('s_lshl_b32 s50, s62, 11'); b.s('s_add_u32 s76, s76, s50'); b.s('s_lshl_b32 s50, s34, 6'); b.s('s_add_u32 s76, s76, s50')
    b.s('s_lshl_b32 s87, s33, 21'); b.s('s_lshl_b32 s50, s61, 16'); b.s('s_add_u32 s87, s87, s50'); b.s('s_lshl_b32 s50, s34, 13'); b.s('s_add_u32 s87, s87, s50')
    if cfg.pf0 == 2:
        b.s('s_cmp_eq_u32 s48, 0'); b.s('s_cbranch_scc1 L_nopf0')
        b.v('v_lshlrev_b32', 3, '7', LANE)
        b.s('s_mul_i32 s39, s33, 786432'); b.s('s_add_u32 s39, s39, s57'); b.s('s_sub_u32 s39, s39, 196608'); b.s('s_cmp_ge_u32 s35, 3'); b.s(f's_cselect_b32 s39, {OOB}, s39')
        b.load1(DUM, 3, 4, 's39')
        b.v('v_lshrrev_b32', 2, '1', LANE); b.v('v_lshlrev_b32', 2, '13', 2); b.v('v_and_b32', 4, '1', LANE); b.v('v_lshlrev_b32', 4, '7', 4); b.v('v_add_u32', 2, 2, 4)
        b.s('s_lshl_b32 s39, s35, 1'); b.s('s_lshr_b32 s50, s63, 1'); b.s('s_add_u32 s39, s39, s50'); b.s('s_lshl_b32 s39, s39, 18'); b.s('s_add_u32 s39, s39, s45')
        b.load1(DUM, 2, 16, 's39')
        b.s(f's_add_u32 s39, s39, {16 << 18}')
        b.load1(DUM, 2, 16, 's39')
        b.s('s_lshr_b32 s39, s35, 2'); b.s('s_add_u32 s39, s39, s33'); b.s('s_and_b32 s39, s39, 3'); b.s('s_mul_i32 s39, s39, 786432'); b.s('s_add_u32 s39, s39, s57')
        b.load1(DUM, 3, 4, 's39')
        b.label('L_nopf0')
    if cfg.wopf == 3:
        n = cfg.won; assert sum(n) == 64 and max(n) <= 24
        base = [32*sum(n[:i]) for i in range(8)]
        b.s('s_mov_b32 s94, 0x800000'); b.s('s_mov_b32 s95, 0x20000'); b.s('s_mov_b32 s98, 0x800000'); b.s('s_mov_b32 s99, 0x20000')
        b.s('s_mov_b32 s50, 0'); b.s('s_mov_b32 s51, 0')
        for i in range(8):
            b.s(f's_cmp_eq_u32 s60, {i}'); b.s(f's_cselect_b32 s50, {n[i]}, s50'); b.s(f's_cselect_b32 s51, {base[i]}, s51')
        b.s('s_mul_i32 s39, s61, s50'); b.s('s_add_u32 s51, s51, s39'); b.s('s_add_u32 s51, s51, s35'); b.s('s_lshl_b32 s51, s51, 13')
        b.v('v_lshlrev_b32', 3, '7', LANE)
        for r in range((max(n) + 7) // 8):
            b.s(f's_add_u32 s39, s35, {8*r}'); b.s('s_cmp_lt_u32 s39, s50'); b.s('s_cbranch_scc0 L_wo_done')
            b.s(f's_add_u32 s39, s51, {r << 16}')
            b.load1(DUM, 3, 92, 's39')
            b.s('s_sub_u32 s39, s39, 0x800000')
            b.load1(DUM, 3, 96, 's39')
        b.label('L_wo_done')
    b.s('s_mov_b32 s66, 256'); b.s('s_mov_b32 s67, 0x20000')
    for r, v in ((42, 128), (43, 32*2048), (60, 64*8192), (61, 32*8192), (62, 8*8192), (63, 786432)): b.s(f's_mov_b32 s{r}, {v}')
    b.s('s_cmp_ge_u32 s35, 4'); b.s('s_cbranch_scc1 L_gem')
    A = Att(b, cfg)
    L = Loader(b, cfg, LB, T0)
    VP = KF + 20
    b.fence()
    loader_offsets(b, True, LB, 2048, 8192, False, T0)
    L.begin(0, False)
    for i in range(3): L.g(i, True, ('g', i))
    att_setup(b)
    L.need({('g', 0)}); b.barrier()
    b.fence()
    def f_loader(t0, t1, extra={}, fills={}):
        for t in range(t0, t1):
            L.setfill(fills.get(t, []), 7)
            L.g(t + 3, True, ('g', t+3))
            L.flush(); b.wait_lgkm(0)
            for f in extra.get(t, []): f()
            L.need({('g', t+1)} | ({'p', 'n'} if t == 12 else set())); b.barrier()
    def r_loader(t0, t1, extra={}, fills={}, plain=False):
        for t in range(t0, t1):
            own = R_OWNP[t] if (plain and t in R_OWNP) else R_OWN.get(t, [])
            L.setfill(fills.get(t, []), 5*len(own))
            for i in own: L.g(i, False, ('g', i))
            L.flush(); b.wait_lgkm(0)
            for f in extra.get(t, []): f()
            L.need({('g', t+1)}); b.barrier()
    def tail(t0, table, kind, pre={}):
        for t in range(t0, 16):
            for f in pre.get(t, []): f()
            for i in table.get(t, []):
                if kind == 'a': L.t(i, ('n', i))
                elif kind == 'p': pdma(i)
                else: L.g(i, kind == 'f', ('n', i))
            L.need({('g', t+1)} if t < 15 else ({('n', 0)} if kind != 'p' else {('n', 2)})); b.barrier()
        b.s('s_add_u32 s40, s40, 1')
        L.q = [((('a' if kind == 'a' else 'g'), t[1]) if isinstance(t, tuple) else t, n) for t, n in L.q]
    FJ = 9
    b.label('L_att_F')
    qF = list(L.q)
    f_loader(0, FJ)
    qFj = list(L.q)
    b.label('L_att_Fj')
    f_loader(FJ, 13, {10: [lambda: L.nonce_load(VP), lambda: L.poll(VP, 1)]})
    L.nonce_get(VP)
    q13 = list(L.q)
    b.s('s_bitcmp1_b32 s32, s40'); b.s('s_cbranch_scc0 L_att_FR')
    L.set_a(); tail(13, F_TO_A, 'a')
    qa = list(L.q)
    b.s('s_branch L_att_a')
    b.label('L_att_FR'); L.q = list(q13)
    L.begin(1, False); L.check(VP, 1)
    tail(13, F_TO_R, 'r')
    b.fence()
    b.label('L_att_R')
    qR = list(L.q)
    L.g(4, False, ('g', 4)); L.need({('g', 1)}); b.barrier()
    def rq():
        b.s('s_cmp_eq_u32 s41, 0'); b.s('s_cbranch_scc0 L_att_norq')
        q_addr(b, T0, T0+1); q_reads(b, T0); b.fence()
        b.label('L_att_norq')
    pollx = {9: [lambda: L.poll(VP, 1)]}
    r_loader(1, 11, {1: [rq], **pollx}, plain=True)
    qj = list(L.q); nj = L.items()
    b.fence()
    b.label('L_att_Rj')
    L.g(15, False, ('g', 15))
    qj = list(L.q)
    b.s('s_bitcmp1_b32 s32, s40'); b.s('s_cbranch_scc0 L_att_RG')
    L.set_a(); tail(11, R_TO_A, 'a')
    assert L.q == qa, (L.q, qa)
    b.fence()
    b.label('L_att_a')
    A.addr_k(0)
    for k in range(8): A.kread(k)()
    b.s('s_cmp_eq_u32 s48, 0'); b.s('s_cbranch_scc1 L_a_c0a')
    sv = b.save()
    A.start(); b.fence()
    b.label('L_a_c0a'); b.restore(sv)
    L.t(6, ('a', 6)); L.t(7, ('a', 7))
    q_addr(b, P_+4, P_+5)
    b.raw('s_waitcnt lgkmcnt(0)'); b.lds = []
    A.addr_v(0); A.addr_k(1)
    L.need(cons_tags('a', 'a', 1)); b.barrier()
    b.s('s_cmp_eq_u32 s48, 0'); b.s('s_cbranch_scc0 L_a_i1')
    q_reads(b, P_+4)
    A.start()
    b.fence()
    b.label('L_a_i1')
    A.intervals(L)
    b.s('s_add_u32 s41, s41, 1')
    A.c0()
    kvo = lambda: loader_offset_ops(b, True, LB, 2048, 8192, False, T0)[:5]
    usesAF = any(m >> 3 & 1 for m in cfg.masks)
    if usesAF:
        b.s('s_cmp_eq_u32 s40, 4'); b.s('s_cbranch_scc1 L_att_AF')
    sv = b.save()
    b.barrier()
    for f in A.c1(): f()
    L.begin(0, True); L.set_ost()
    b.barrier()
    L.q = []
    fi = {2: A.c2a() + kvo(), 3: A.c2b()}
    if cfg.fast:
        for k in range(3): fi[4+k] = A.part(2*k) + A.store(2*k, L) + A.part(2*k+1) + A.store(2*k+1, L)
        ex = {9: [lambda: L.poll(VP, 1)]}; ex.setdefault(cfg.sigat, []).append(lambda: L.need({'st'})); ex.setdefault(cfg.sigat+1, []).append(lambda: L.signal(VP))
    else:
        fi[3] = fi[3] + A.part(0) + A.store(0, L)
        for pi in range(1, 6): fi[3+pi] = A.part(pi) + A.store(pi, L)
        ex = {9: [lambda: L.poll(VP, 1), lambda: L.need({'st'})], 10: [lambda: L.signal(VP)]}
    r_loader(2, 11, ex, fi)
    got = L.items(); assert got == nj[len(nj)-len(got):], (L.q, qj)
    b.fence()
    b.s('s_branch L_att_Rj')
    if usesAF:
        b.label('L_att_AF'); b.restore(sv)
        L.begin(0, True); L.set_ost()
        b.barrier()
        L.q = []
        L.setfill(A.c1(), 14); L.g(3, True, ('g', 3)); L.g(4, True, ('g', 4)); L.flush()
        b.wait_lgkm(0); b.barrier()
        fi = {2: A.c2a() + kvo() + A.c2b()}
        for k in range(3): fi[3+k] = A.part(2*k) + A.store(2*k, L) + A.part(2*k+1) + A.store(2*k+1, L)
        f_loader(2, FJ, {FJ-2: [lambda: L.need({'st'})], FJ-1: [lambda: L.signal(VP)]}, fi)
        assert L.items() == [n for _, n in qFj]
        b.fence()
        b.s('s_branch L_att_Fj')
    b.label('L_att_RG'); b.reset()
    b.s('s_cmp_eq_u32 s40, 7'); b.s('s_cbranch_scc1 L_att_RP')
    b.s('s_cmp_eq_u32 s40, 3'); b.s('s_cbranch_scc1 L_att_RF')
    L.q = list(qj)
    c = cfg.rrc
    pre = {11: [lambda: L.begin(1, False)]}
    if c >= 13: pre.setdefault(c-2, []).append(lambda: (L.need({'p'}), L.poll(VP, 1)))
    pre.setdefault(c, []).append(lambda: (L.need({'p'}), L.check(VP, None)))
    tail(11, r_to_r(c), 'r', pre)
    assert L.q == qR, (L.q, qR)
    b.s('s_branch L_att_R')
    b.label('L_att_RF'); L.q = list(qj)
    tail(11, R_TO_F, 'f', {11: [lambda: L.begin(1, False)], 12: [lambda: (L.need({'p'}), L.check(VP, None))]})
    assert L.q == qF, (L.q, qF)
    b.s('s_branch L_att_F')
    b.label('L_att_RP'); L.q = list(qj)
    def pdma(i):
        for hlf, n in ((0, 4), (1, 2)):
            b.s(f's_add_u32 m0, s79, {i*PT + hlf*4096}'); b.s(f's_add_u32 s39, s58, {i*PT + hlf*4096}')
            for k in range(n): b.dma(A.VO, 20, 's39', k*1024, ' sc1')
        L.q.append((('n', i), 6))
    def p11():
        b.v('v_lshlrev_b32', A.VO, '4', LANE)
        L.ub('s58', 's40'); b.s(f's_mul_i32 s58, s58, {32*3*PT}'); b.s('s_add_u32 s58, s58, s78')
    tail(11, R_TO_P, 'p', {11: [p11], 12: [lambda: (L.need({'p'}), L.check(VP, None))]})
    b.s('s_endpgm')
    b.reset()
    b.label('L_gem')
    if cfg.prio & 1: b.s('s_setprio 2')
    if cfg.ivw is not None:
        b.s(f's_mov_b32 s86, {(-cfg.ivw) & 0xffffffff}'); b.v('v_mov_b32', 247, '0')
        ob = b.barrier; cnt = [0]
        def nb():
            ob(); cnt[0] += 1
            b.raw('s_cmp_lt_u32 s86, 64'); b.raw(f's_cbranch_scc0 L_iv{cnt[0]}')
            b.raw('s_memtime s[90:91]'); b.raw('s_mov_b32 m0, s86'); b.raw('s_waitcnt lgkmcnt(0)'); b.raw('v_writelane_b32 v247, s90, m0')
            b.raw(f'L_iv{cnt[0]}:'); b.raw('s_add_u32 s86, s86, 1')
        b.barrier = nb
    M = Loader(b, cfg, GB, GT)
    b.s('s_mov_b32 s77, 0')
    gemm_setup(b)
    loader_offsets(b, 2, GB, 2048, 8192, False, GT)
    b.v('v_and_b32', GT, '15', LANE); b.v('v_mul_u32_u24', VQW, str(QROW), GT)
    b.v('v_lshrrev_b32', GT, '4', LANE); b.v('v_lshlrev_b32', GT, '3', GT)
    b.s('s_lshl_b32 s39, s34, 6'); b.s(f's_add_u32 s39, s39, {XB}'); b.v('v_add3_u32', VQW, VQW, GT, 's39')
    b.s('s_add_u32 s39, s2, s34'); b.s('s_cmp_lg_u32 s39, 0'); b.s('s_cbranch_scc1 L_nononce')
    b.raw('s_memrealtime s[50:51]'); b.raw('s_waitcnt lgkmcnt(0)'); b.s('s_or_b32 s50, s50, 1')
    b.v('v_mov_b32', GF, 's50'); b.v('v_mov_b32', GF+1, 's51')
    b.s('s_mov_b64 exec, 1')
    b.emit(f'buffer_store_dwordx2 {vr(GF,2)}, off, s[64:67], 0 sc1', 'vmem', (), R(GF, 2))
    b.s('s_mov_b64 exec, -1')
    b.label('L_nononce')
    b.barrier()
    b.fence()
    b.label('L_gem_F')
    xq = [(None, cfg.kvpf)] if cfg.kvpf else []
    qf = [(('g', i), 7) for i in (1, 2)] + xq; qg = [(('g', i), 5) for i in range(1, 5)] + xq
    M.q = list(qf)
    g_main(b, cfg, True, M)
    b.s('s_branch L_gem_done')
    b.fence()
    b.label('L_gem_R')
    M.q = list(qg)
    g_main(b, cfg, False, M)
    b.label('L_gem_done')
    phase_stamp(b, cfg)
    b.s('s_cmp_ge_u32 s40, 4'); b.s('s_cbranch_scc1 L_gem_ot')
    sv = b.save()
    g_tail_q(b)
    b.s('s_cmp_lg_u32 s40, 3'); b.s('s_cbranch_scc1 L_gem_nx')
    for h in range(2): b.v('v_lshlrev_b32', VXB+h, '4', LANE)
    b.v('v_add_u32', VXB+1, '1024', VXB+1)
    b.fence()
    b.label('L_gem_nx')
    b.s('s_bitcmp1_b32 s32, s40'); b.s('s_cselect_b32 s39, 1, 0'); b.s('s_add_u32 s40, s40, 1')
    b.s('s_cmp_eq_u32 s39, 1'); b.s('s_cbranch_scc1 L_gem_a')
    b.s('s_cmp_eq_u32 s40, 4'); b.s('s_cbranch_scc1 L_gem_F')
    b.s('s_branch L_gem_R')
    b.label('L_gem_ot'); b.restore(sv)
    b.s('s_cmp_eq_u32 s40, 7'); b.s('s_cbranch_scc1 L_gem_fin')
    M.ub('s39', 's40'); b.s(f's_mul_i32 s50, s39, {32*3*PT}'); b.s('s_add_u32 s50, s50, s78')
    b.s('s_lshl_b32 s83, s39, 12'); b.s('s_add_u32 s83, s83, s73')
    b.s('s_and_b32 s39, s40, 3'); b.s(f's_mul_i32 s51, s39, {PT}'); b.s('s_add_u32 s50, s50, s51'); b.s('s_add_u32 s51, s50, 4096')
    b.s('s_lshl_b32 s39, s39, 3'); b.s('s_add_u32 s83, s83, s39')
    def pk_ops(qb, base):
        pk = base(qb); o = []
        for nt in range(2):
            a = acc(nt, qb)
            o += [lambda a=a, nt=nt: b.v('v_cvt_pk_bf16_f32', pk+2*nt, a, a+1), lambda a=a, nt=nt: b.v('v_cvt_pk_bf16_f32', pk+2*nt+1, a+2, a+3)]
        return o
    inpl = lambda qb: acc(0, qb)
    def pstore(qb): b.store(4, inpl(qb), VXB, 20, 's50' if qb < 4 else 's51', (qb % 4)*1024, cfg.opol)
    b.s('s_bitcmp1_b32 s32, s40'); b.s('s_cbranch_scc1 L_gem_pa')
    sv2 = b.save()
    b.s('s_cmp_eq_u32 s35, 4'); b.s('s_cselect_b32 s37, 1, 0'); b.s('s_add_u32 s40, s40, 1')
    for f in gemm_addr_ops(b, g_base(0, False)): f()
    ops = sum([pk_ops(qb, inpl) + [lambda qb=qb: pstore(qb)] for qb in range(6)], [])
    x1 = {k: [ops.pop(0)] for k in range(7, 12)}
    def mid():
        for f in ops: f()
    g_interval(b, RES, False, False, gemm_addr_ops(b, g_base(1, False)), lambda: None, zero=True, x1=x1, mid=mid)
    b.s('s_branch L_gem_R1')
    b.label('L_gem_pa'); b.restore(sv2)
    ops = sum([pk_ops(qb, inpl) for qb in range(6)], [])
    gaps = {}
    for k in range(6, 12): gaps[k] = [ops.pop(0), ops.pop(0)]
    g_block(b, 1, A1, gaps)
    for f in ops: f()
    b.s('s_mov_b32 s77, 1'); b.s('s_add_u32 s40, s40, 1')
    b.fence()
    b.label('L_gem_a'); b.reset()
    M.q = []
    M.set_a()
    b.barrier()
    def a_loader(t0, t1, nxt):
        for t in range(t0, t1):
            if t == 1: M.nonce_load(GF)
            if t == 3: M.poll(GF, 0)
            for p in A_OWN.get(t, []): M.t(p, ('a', p))
            if t == 1 and cfg.pf:
                M.ub('s39', 's40'); b.s('s_mul_i32 s39, s39, 786432'); b.s('s_add_u32 s39, s39, s57')
                b.s('s_cmp_ge_u32 s40, 4'); b.s(f's_cselect_b32 s39, {OOB}, s39')
                b.load1(DUM, GB+3, 4, 's39'); M.other(1)
            if t == 2 and cfg.wl2 is not None:
                b.s('s_add_u32 s39, s41, s48'); b.s(f's_cmp_eq_u32 s39, {cfg.wl2}'); b.s(f's_cselect_b32 s39, s87, {OOB}')
                b.load1(DUM, GB+3, 24, 's39'); b.s('s_add_u32 s39, s39, 32768'); b.load1(DUM, GB+3, 24, 's39'); M.other(2)
            if t == 4: M.nonce_get(GF)
            if t == 5: M.begin(0, False)
            if t == cfg.pst and nxt == 'R':
                b.s('s_cmp_eq_u32 s77, 0'); b.s('s_cbranch_scc1 L_gem_nops')
                for qb in range(6): pstore(qb)
                b.s('s_mov_b32 s77, 0'); b.s('s_cmp_eq_u32 s35, 4'); b.s('s_cselect_b32 s37, 1, 0')
                b.label('L_gem_nops')
            if t == 6: M.check(GF, 0)
            if nxt:
                for i in (A_TO_R if nxt == 'R' else A_TO_F).get(t, []): M.g(i, nxt == 'F', ('g', i))
            if t == 8 and cfg.kvpf:
                M.ub('s39', 's41', 1); b.s('s_lshl_b32 s39, s39, 24'); b.s('s_add_u32 s39, s39, s46')
                b.s('s_lshl_b32 s58, s34, 13'); b.s('s_add_u32 s39, s39, s58')
                b.s('s_cmp_ge_u32 s41, 3'); b.s(f's_cselect_b32 s39, {OOB}, s39')
                if not cfg.kvpfall: b.s('s_bitcmp1_b32 s32, s40'); b.s(f's_cselect_b32 s39, s39, {OOB}')
                for k in range(cfg.kvpf):
                    if k == 2: b.s('s_add_u32 s39, s39, 32768')
                    b.load1(DUM, GB+3, 8 if k % 2 == 0 else 12, 's39', cfg.kvpfpol)
                M.other(cfg.kvpf)
            M.need(cons_tags('a', 'a', t+1) if t < 8 else {('g', 0)})
            b.barrier()
    a_loader(1, 6, None)
    q5 = list(M.q)
    if usesAF: b.s('s_cmp_eq_u32 s40, 4'); b.s('s_cbranch_scc1 L_gem_AF')
    a_loader(6, 9, 'R')
    assert M.q == qg, (M.q, qg)
    phase_stamp(b, cfg)
    b.s('s_add_u32 s41, s41, 1')
    b.s('s_branch L_gem_R')
    if usesAF:
        b.label('L_gem_AF'); M.q = list(q5)
        a_loader(6, 9, 'F')
        assert M.q == qf, (M.q, qf)
        phase_stamp(b, cfg)
        b.s('s_add_u32 s41, s41, 1')
        b.s('s_branch L_gem_F')
    b.label('L_gem_fin'); b.restore(sv)
    ID = RES; PF_ = RES + 8; t = GT
    b.v('v_add_u32', VX, 's79', VXB)
    rd = [lambda p=p, qb=qb: b.dsr('ds_read_b128', PF_ + 24*p + 4*qb, 4, VX, p*PT + qb*1024) for p in range(3) for qb in range(6)]
    g_block(b, 1, A1, {k: [rd.pop(0)] for k in range(12)})
    for f in rd: f()
    b.v('v_bfe_u32', t, LANE, '2', '2'); b.v('v_lshrrev_b32', t+1, '4', LANE)
    b.emit(f'v_cmp_eq_u32 vcc, {vr(t)}, {vr(t+1)}', 'valu', (), {t, t+1})
    b.v('v_and_b32', t, '1', LANE); b.v('v_lshlrev_b32', t, '4', t); b.v('v_mov_b32', t+1, '0x3f80'); b.v('v_lshlrev_b32', t, t, t+1)
    b.emit(f'v_cndmask_b32 {vr(t)}, 0, {vr(t)}, vcc', 'valu', {t}, {t})
    b.v('v_and_b32', t+1, '2', LANE)
    b.emit(f'v_cmp_eq_u32 vcc, 0, {vr(t+1)}', 'valu', (), {t+1})
    for k in (0, 1, 4, 5): b.v('v_mov_b32', ID+k, '0')
    b.emit(f'v_cndmask_b32 {vr(ID+2)}, 0, {vr(t)}, vcc', 'valu', {ID+2}, {t})
    b.v('v_sub_u32', ID+3, t, ID+2)
    for p in range(3):
        for qb in range(6):
            for nt in range(2): b.mfma16(acc(nt, qb), ID + (2 if nt == 0 else 0), PF_ + 24*p + 4*qb, acc(nt, qb))
    b.v('v_and_b32', t, '15', LANE); b.v('v_lshlrev_b32', t, '12', t)
    b.v('v_bfe_u32', t+1, LANE, '4', '1'); b.v('v_lshlrev_b32', t+1, '5', t+1); b.v('v_add_u32', t, t, t+1)
    b.v('v_lshrrev_b32', t+1, '5', LANE); b.v('v_lshlrev_b32', t+1, '4', t+1); b.v('v_add_u32', t, t, t+1)
    for qb in range(6):
        pk = BF[0] + 4*qb
        for f in pk_ops(qb, lambda qb: BF[0] + 4*qb): f()
        b.swap16(pk, pk+2); b.swap16(pk+1, pk+3)
        b.store(4, pk, t, 28, 's76', 0, cfg.outpol)
        if qb < 5: b.s(f's_add_u32 s76, s76, {16*4096}')
    stamp_dump(b, cfg)
    b.label('L_k1_end')
    b.s('s_endpgm')
    b.label('L_code_end')
    for task in A.rare: A.rare_block(task)
    return b

def desc(name, nv):
    return f'''.p2align 6
.amdhsa_kernel {name}
  .amdhsa_next_free_vgpr {nv}
  .amdhsa_next_free_sgpr 102
  .amdhsa_accum_offset {nv}
  .amdhsa_group_segment_fixed_size 0
  .amdhsa_kernarg_size 104
  .amdhsa_user_sgpr_count 2
  .amdhsa_user_sgpr_kernarg_segment_ptr 1
  .amdhsa_system_sgpr_workgroup_id_x 1
.end_amdhsa_kernel
'''
def build(path, cfg, which=None):
    B.nodma = cfg.nodma; B.skel = cfg.skel; G['cfg'] = cfg; B.guard = False
    a = k1(cfg)
    s = '; @launch grid=(256,1,1) block=(512,1,1) lds=163840\n.amdgcn_target "amdgcn-amd-amdhsa--gfx950"\n.text\n' + a.text()
    s += '.section .rodata,"a"\n' + desc(NAME + '_kernel', 256)
    open(path, 'w').write(s)
    return a, a
def mk(path, which=('k1', 'k2'), **kw):
    cfg = Cfg()
    for k, v in kw.items():
        assert hasattr(cfg, k), k
        setattr(cfg, k, v)
    return build(path, cfg, which)

if __name__ == '__main__':
    a, c = mk('v9.s')
    print('k1 lines', len(a.lines), 'nops', a.nnop, 'k2 lines', len(c.lines), 'nops', c.nnop)
```

```python
import math, struct, sys
from asmb import *
NAME = 'concat_heads__mha_block_cached__gqa_block_cached__near_ridge'
RING = 135168; XB = RING
HS = 16896; AS = 33792; GS = 22528; WG = 8448
QROW = 272; STAT = XB + 24576
def f2u(x): return struct.unpack('<I', struct.pack('<f', x))[0]
CEXP = math.log2(math.e) / math.sqrt(128.0)
LANE = 255; DUM = 254
OOB = 0x40000000

class Cfg:
    kvpol = ' nt'; opol = ' sc1'; xpol = ' sc1'; outpol = ''; pf = True; pf0 = 2; stamps = False; stagger = True
    wopf = 3; won = (0, 2, 5, 7, 9, 11, 14, 16); nodma = False; skel = False; codepf = True; nosig = False
    ivw = None; prio = 1; masks = (0x17, 0x2e); dropst = 0; kvpf = 1; kvpfpol = ''; kvpfall = False; fast = False; pst = 8; sigat = 8; rrc = 12; wl2 = None

PB = 26 << 20; FB = 48 << 20; PT = 24576
G = {}
def srd(b, d, lo, size):
    b.s(f's_mov_b32 s{d}, s{lo}'); b.s(f's_mov_b32 s{d+1}, s{lo+1}'); b.s(f's_mov_b32 s{d+2}, {size}'); b.s(f's_mov_b32 s{d+3}, 0x20000')
def lane_id(b, d):
    b.v('v_mbcnt_lo_u32_b32', d, '-1', '0'); b.v('v_mbcnt_hi_u32_b32', d, '-1', d)

XO = 0; WO1 = 12288; WO0 = 12288 + WG
GMAP = [0,1,2,3,4,5,0,1,2,3,0,1,2,3,4,5]
HMAP = [p % 8 for p in range(16)]
def g_base(i, full, cls=0): return (i % 4)*AS if full else GMAP[i]*GS
TILES = [('K',0)] + sum([[('K',j+1), ('V',j)] for j in range(7)], []) + [('V',7)]
def t_base(p): return HMAP[p]*HS
KPOS = {j: TILES.index(('K', j)) for j in range(8)}
VPOS = {j: TILES.index(('V', j)) for j in range(8)}
def t_cons(p): k, j = TILES[p]; return j if k == 'K' else j + 1

def loader_offset_ops(b, kv, base, xstride, wstride, operm, t):
    lane = LANE
    vKV, vX, vW, vPF = base, base+1, base+2, base+3
    t0, t1 = t, t+1
    o = []
    def V(*a): o.append(lambda: b.v(*a))
    V('v_and_b32', t0, '15', lane); V('v_lshlrev_b32', t0, '4', t0)
    V('v_lshrrev_b32', t1, '4', lane)
    if kv:
        V('v_lshl_add_u32', vKV, t1, '3', 's34'); V('v_lshl_add_u32', vKV, vKV, '8', t0)
    sa, sb = (4, 3) if operm else (2, 4)
    V('v_and_b32', vW, '1', t1); V('v_lshl_add_u32', vW, vW, str(sa), 's34')
    V('v_lshrrev_b32', t1, '1', t1); V('v_lshl_add_u32', vW, t1, str(sb), vW)
    V('v_lshl_add_u32', vW, vW, str(int(math.log2(wstride))), t0)
    if operm:
        V('v_lshl_add_u32', vX, lane, '4', 's53')
    else:
        V('v_lshrrev_b32', t0, '3', lane); V('v_lshl_add_u32', t0, 's34', '3', t0)
        V('v_lshrrev_b32', t1, '1', t0); V('v_xor_b32', t1, t1, lane); V('v_and_b32', t1, '7', t1); V('v_lshlrev_b32', t1, '4', t1)
        V('v_lshl_add_u32', vX, t0, str(int(math.log2(xstride))), t1)
    if kv == 2: V('v_lshlrev_b32', vPF, '7', lane)
    return o
def loader_offsets(b, *a):
    for f in loader_offset_ops(b, *a): f()


class Loader:
    def __init__(self, b, cfg, base, t): self.b, self.cfg, self.base, self.tmp, self.q, self.fill, self.per, self.n = b, cfg, base, t, [], [], 0, 0
    def lab(self, s): self.n += 1; return f'L_{s}{self.base}_{self.n}'
    def setfill(self, ops, ndma):
        self.fill = list(ops); self.per = -(-len(self.fill) // max(ndma, 1))
    def _f(self):
        for _ in range(self.per):
            if self.fill: self.fill.pop(0)()
    def flush(self):
        while self.fill: self.fill.pop(0)()
    def g(self, i, full, tag):
        b = self.b; vX, vW = self.base+1, self.base+2; lds = g_base(i, full)
        b.s(f's_mul_i32 s58, s42, {i}'); b.s('s_add_u32 s58, s58, s36')
        b.s(f's_mul_i32 s59, s60, {i}'); b.s('s_add_u32 s59, s59, s45')
        for z in range(3):
            b.s(f's_add_u32 m0, s53, {lds + XO + z*4096}')
            if z: b.s('s_add_u32 s58, s58, s43')
            b.dma(vX, 4, 's58', 0, self.cfg.xpol); self.q.append((tag, 1)); self._f()
        for h in (0, 1):
            if h: b.s('s_add_u32 s59, s59, s61')
            if h == 0 and not full: continue
            for z in (0, 1):
                b.s(f's_add_u32 m0, s52, {lds + (WO1 if h else WO0) + z*4224}')
                if z: b.s('s_add_u32 s39, s59, s62')
                b.dma(vW, 16, 's39' if z else 's59'); self.q.append((tag, 1)); self._f()
        self.norm()
    def t(self, p, tag):
        b = self.b; k, j = TILES[p]; srd_ = 8 if k == 'K' else 12; lds = t_base(p); pol = self.cfg.kvpol
        for kh in range(2):
            b.s(f's_add_u32 m0, s52, {lds + kh*8448}'); b.s(f's_add_u32 s39, s38, {j*16384 + kh*8192}')
            b.dma(self.base, srd_, 's39', 0, pol)
            b.s('s_add_u32 m0, m0, 3200')
            b.dma(self.base, srd_, 's39', 1024, pol)
        self.q.append((tag, 4))
    def norm(self):
        q = []
        for t, n in self.q:
            if q and q[-1][0] == t: q[-1] = (t, q[-1][1] + n)
            else: q.append((t, n))
        self.q = q
    def items(self):
        t = Loader(self.b, self.cfg, 0, 0); t.q = [x for x in self.q if isinstance(x[0], tuple)]; t.norm(); return [n for _, n in t.q]
    def other(self, n): self.q.append((None, n))
    def need(self, tags):
        last = -1
        for i, (t, n) in enumerate(self.q):
            if t in tags: last = i
        if last >= 0:
            self.q = self.q[last+1:]
            self.b.vm(min(63, sum(n for _, n in self.q)))
    def ub(self, d, unit_sgpr, plus=0):
        self.b.s(f's_add_u32 {d}, {unit_sgpr}, s33')
        if plus: self.b.s(f's_add_u32 {d}, {d}, {plus & 3}')
        self.b.s(f's_and_b32 {d}, {d}, 3')
    def begin(self, plus, recompute):
        b = self.b; lo, le = self.lab('bo'), self.lab('be')
        b.fence()
        b.s(f's_cmp_ge_u32 s40, {4 - plus}'); b.s(f's_cbranch_scc1 {lo}')
        if recompute: loader_offsets(b, False, self.base, 2048, 8192, False, self.tmp)
        b.s(f's_branch {le}')
        b.label(lo)
        for k in range(3): b.s(f's_mov_b32 s{4+k}, s{20+k}')
        for k in range(2): b.s(f's_mov_b32 s{16+k}, s{24+k}')
        for r, v in ((42, 12288), (43, 4096), (60, 64*2048), (61, 32*2048), (62, 4*2048), (63, 3145728), (44, 's74'), (45, 's75')): b.s(f's_mov_b32 s{r}, {v}')
        loader_offsets(b, False, self.base, 128, 2048, True, self.tmp)
        b.label(le)
        self.ub('s36', 's40', plus); b.s('s_mul_i32 s36, s36, s63'); b.s('s_add_u32 s36, s36, s44')
        b.fence()
    def set_a(self):
        self.ub('s38', 's41'); self.b.s('s_lshl_b32 s38, s38, 24'); self.b.s('s_add_u32 s38, s38, s46')
    def set_ost(self):
        self.ub('s54', 's41', 3); self.b.s('s_mul_i32 s54, s54, 3145728'); self.b.s('s_add_u32 s54, s54, s47')
        if self.cfg.dropst: self.b.s(f's_cmp_le_u32 s41, {self.cfg.dropst}'); self.b.s(f's_cselect_b32 s54, {OOB}, s54')
    def nonce_load(self, v):
        self.b.emit(f'buffer_load_dwordx2 {vr(v+4,2)}, off, s[64:67], 0 sc1', 'vmem', R(v+4, 2)); self.q.append(('n', 1))
    def nonce_get(self, v):
        b = self.b; l0, l1 = self.lab('nc'), self.lab('nk')
        assert all(x[0] != 'n' for x in self.q)
        b.s('s_mov_b32 s49, 0x40000')
        b.label(l0)
        b.rfl(84, v+4); b.rfl(85, v+5); b.nop(1)
        b.s('s_cmp_lg_u32 s84, 0'); b.s(f's_cbranch_scc1 {l1}')
        b.s('s_sleep 4')
        b.emit(f'buffer_load_dwordx2 {vr(v+4,2)}, off, s[64:67], 0 sc1', 'vmem', R(v+4, 2)); b.vm(0)
        b.s('s_sub_u32 s49, s49, 1'); b.s('s_cmp_lg_u32 s49, 0'); b.s(f's_cbranch_scc1 {l0}')
        b.label(l1)
    def poll(self, v, plus):
        b = self.b
        self.ub('s82', 's40', plus); b.s('s_lshl_b32 s82, s82, 11'); b.s('s_add_u32 s82, s82, s72'); b.s('s_andn2_b32 s82, s82, 127')
        b.s(f's_cmp_lt_u32 s40, {4 - plus}'); b.s(f's_cselect_b32 s82, {OOB}, s82')
        if plus:
            b.s('s_bitcmp1_b32 s32, s40'); b.s(f's_cselect_b32 s82, {OOB}, s82')
            self.ub('s39', 's40'); b.s('s_lshl_b32 s39, s39, 12'); b.s('s_add_u32 s39, s39, s73')
            b.s('s_cmp_eq_u32 s40, 7'); b.s('s_cselect_b32 s82, s39, s82'); b.s('s_cselect_b32 s39, 2, 7')
            b.v('v_min_u32', v+2, 's39', LANE)
        else:
            b.v('v_min_u32', v+2, '7', LANE)
        b.v('v_lshlrev_b32', v+2, '3', v+2)
        b.emit(f'buffer_load_dwordx2 {vr(v,2)}, {vr(v+2)}, s[68:71], s82 offen sc1', 'vmem', R(v, 2), {v+2}); self.q.append(('p', 1))
    def check(self, v, plus):
        b = self.b; l0, l1 = self.lab('ck'), self.lab('ok')
        assert all(x[0] != 'p' for x in self.q)
        if self.cfg.nosig: return
        if plus is not None: b.s(f's_cmp_lt_u32 s40, {4 - plus}'); b.s(f's_cbranch_scc1 {l1}')
        b.s('s_mov_b32 s49, 0x40000')
        b.label(l0)
        b.emit(f'v_cmp_ne_u64 vcc, s[84:85], {vr(v,2)}', 'valu', (), R(v, 2))
        b.s(f's_cbranch_vccz {l1}')
        b.s('s_sleep 2')
        b.emit(f'buffer_load_dwordx2 {vr(v,2)}, {vr(v+2)}, s[68:71], s82 offen sc1', 'vmem', R(v, 2), {v+2}); b.vm(0)
        b.s('s_sub_u32 s49, s49, 1'); b.s('s_cmp_lg_u32 s49, 0'); b.s(f's_cbranch_scc1 {l0}')
        b.label(l1)
    def flag_store(self, v, soff):
        b = self.b
        b.v('v_mov_b32', v+4, 's84'); b.v('v_mov_b32', v+5, 's85')
        b.s('s_mov_b64 exec, 1')
        b.emit(f'buffer_store_dwordx2 {vr(v+4,2)}, off, s[68:71], {soff} sc1', 'vmem', (), R(v+4, 2))
        b.s('s_mov_b64 exec, -1')
    def signal(self, v):
        b = self.b
        assert all(x[0] != 'st' for x in self.q)
        self.ub('s39', 's41', 3); b.s('s_lshl_b32 s39, s39, 11'); b.s('s_add_u32 s39, s39, s72')
        b.s('s_cmp_eq_u32 s35, 0'); b.s(f's_cselect_b32 s39, s39, {OOB}')
        self.flag_store(v, 's39'); self.other(1)
    def psignal(self, v):
        b = self.b; l = self.lab('ps')
        b.s('s_cmp_eq_u32 s37, 0'); b.s(f's_cbranch_scc1 {l}')
        sv = b.save(); self.flag_store(v, 's83'); b.s('s_mov_b32 s37, 0'); b.restore(sv)
        b.label(l)

def cons_tags(ph, kind, t):
    if kind == 'g': return {(ph, t)}
    return {(ph, p) for p in range(16) if t_cons(p) == t}
R_OWN = {2: [5], 3: [6, 7], 4: [8], 5: [9], 6: [14], 7: [10], 8: [11], 9: [12], 10: [13], 11: [15]}
R_OWNP = {1: [5], 2: [6], 3: [7]}
R_TO_A = {11: [0], 12: [1], 13: [2, 3], 14: [4], 15: [5]}
R_TO_F = {12: [0], 13: [1], 15: [2]}
def r_to_r(c):
    d = {}
    for i in range(4): d.setdefault(max(c, 12 + i if i < 3 else 14), []).append(i)
    return d
F_TO_A = {13: [0, 1], 14: [2, 3], 15: [4, 5]}
F_TO_R = {13: [0], 14: [1, 2], 15: [3]}
A_OWN = {1: [8], 2: [9, 10], 3: [11, 12], 4: [13, 14], 5: [15]}
A_TO_R = {6: [0, 1], 7: [2], 8: [3, 4]}
A_TO_F = {6: [0], 7: [1], 8: [2]}
R_TO_P = {12: [0, 1], 13: [2]}
PLDS = [XB, 0, PT]
R_OWNS = {2: [], 3: [5, 6], 4: [7, 8]}
def prog_of(mask):
    p = []
    for gi in range(8):
        p.append('F' if gi % 4 == 0 else 'R')
        if mask >> gi & 1: p.append('A')
    return p
def verify_ring(cfg):
    for mask in cfg.masks:
        prog = prog_of(mask) + ['P']
        assert prog.count('A') == 4
        if mask & 1: assert not (mask >> 5), 'Q3 would be clobbered in X'
        else: assert mask >> 3 & 3
        live = {}; issued = set()
        def rng(ph, i):
            k = prog[ph]
            if k == 'F': return (g_base(i, True), g_base(i, True) + 29184)
            if k == 'R': return (g_base(i, False), g_base(i, False) + 20736)
            if k == 'P': return (PLDS[i], PLDS[i] + PT)
            return (t_base(i), t_base(i) + HS)
        def iss(ph, i):
            lo, hi = rng(ph, i)
            for t, (a, c) in live.items(): assert hi <= a or c <= lo, (prog, ph, i, t)
            assert (ph, i) not in issued, (prog, ph, i)
            live[(ph, i)] = (lo, hi); issued.add((ph, i))
        for i in range(3): iss(0, i)
        for ph, k in enumerate(prog[:-1]):
            nx = prog[ph+1]; pv = prog[ph-1] if ph else None
            for t in range(9 if k == 'A' else 16):
                if k == 'F':
                    own = [t+3] if t <= 12 else []
                    if pv == 'A' and t < 2: own = [[], [3, 4]][t]
                    nxt = {'A': F_TO_A, 'R': F_TO_R}[nx].get(t, [])
                elif k == 'R':
                    own = R_OWN.get(t, []) if t else ([] if pv == 'A' else [4])
                    if pv != 'A' and t in R_OWNP: own = R_OWNP[t]
                    nxt = {'A': R_TO_A, 'F': R_TO_F, 'R': r_to_r(cfg.rrc), 'P': R_TO_P}[nx].get(t, [])
                else:
                    own = A_OWN.get(t, []) if t else [6, 7]
                    nxt = {'R': A_TO_R, 'F': A_TO_F}[nx].get(t, [])
                for i in own: iss(ph, i)
                for i in nxt: iss(ph+1, i)
                for tg in cons_tags(ph, 'a' if k == 'A' else 'g', t):
                    assert tg in live, (prog, tg); del live[tg]
        assert len(live) == 3 and len(issued) == 195

ACC = 0; RES = 48; BF = [176, 200]; A1 = 224; VW = 232; VX = 233; VWB = 235; VXB = 236; VQW = 238; GB = 240; GT = 244
def acc(nt, qb): return ACC + 8*qb + 4*nt
def gemm_setup(b):
    lane = LANE; t0, t1, t2 = GT, GT+1, GT+2
    b.v('v_bfe_u32', t0, lane, '2', '3'); b.v('v_mul_u32_u24', VWB, '1056', t0)
    b.v('v_lshrrev_b32', t0, '5', lane); b.v('v_lshlrev_b32', t0, '9', t0); b.v('v_add_u32', VWB, VWB, t0)
    b.v('v_and_b32', t0, '3', lane); b.v('v_lshlrev_b32', t0, '3', t0)
    b.s('s_lshl_b32 s39, s34, 6'); b.v('v_add3_u32', VWB, VWB, t0, 's39')
    b.v('v_and_b32', t0, '15', lane); b.v('v_lshrrev_b32', t2, '1', t0); b.v('v_lshrrev_b32', t1, '4', lane); b.v('v_xor_b32', t2, t2, t1)
    b.v('v_lshlrev_b32', t0, '7', t0)
    for h in range(2):
        b.v('v_xor_b32', VXB+h, str(4*h), t2); b.v('v_lshlrev_b32', VXB+h, '4', VXB+h); b.v('v_add_u32', VXB+h, VXB+h, t0)
def gemm_addr_ops(b, base):
    base = str(base)
    return [lambda: b.v('v_add_u32', VX, base, VXB), lambda: b.v('v_add_u32', VX+1, base, VXB+1), lambda: b.v('v_add_u32', VW, base, VWB)]
def rdA(b, h, areg):
    return [lambda nt=nt, e=e: b.dsr('ds_read_b64_tr_b16', areg+4*nt+2*e, 2, VW, (WO1 if h else WO0) + e*256 + nt*32) for nt in range(2) for e in range(2)]
def rdB(b, h):
    return [lambda qb=qb: b.dsr('ds_read_b128', BF[h]+4*qb, 4, VX+h, XO + qb*2048) for qb in range(6)]
def g_block(b, h, areg, gaps, zero=False, prewait=None):
    k = 0
    for qb in range(6):
        for nt in range(2):
            if prewait and k in prewait: b.wait_lgkm(prewait[k])
            b.mfma16(acc(nt, qb), areg+4*nt, BF[h]+4*qb, None if zero else acc(nt, qb))
            for f in gaps.get(k, []): f()
            k += 1
def g_interval(b, a0, load_a0, first, nxt_ops, endfn, defer=False, zero=None, x1=None, x0=None, mid=None):
    B0, B1, Aa = rdB(b, 0), rdB(b, 1), rdA(b, 1, A1)
    A0 = rdA(b, 0, a0) if load_a0 else []
    if first:
        for f in A0 + B0: f()
        rest = B1 + Aa
        pw = None
    else:
        seq = A0 + B0 + B1
        g1 = {k: [seq[k]] for k in range(12)}
        for k, fs in (x1 or {}).items(): g1[k] = fs + g1[k]
        rest = seq[12:] + Aa
        g_block(b, 1, A1, g1, prewait=({0: 0} if defer else None))
        if mid: mid()
        ny = 12 - len(A0) - 6
        pw = {0: ny} if not load_a0 else {0: ny + 3, 6: 6 + ny}
    g0 = {k: [f] for k, f in enumerate(rest)}
    for k, fs in (x0 or {}).items(): g0.setdefault(k, []).extend(fs)
    k = len(rest)
    for f in nxt_ops:
        g0.setdefault(min(k, 10), []).append(f); k += 1
    def tail():
        if not defer: b.wait_lgkm(0)
        endfn(); b.barrier()
    g0.setdefault(10, []).append(tail)
    g_block(b, 0, a0, g0, zero=(first if zero is None else zero), prewait=pw)
def q_ops(b):
    def cv(qb, nt):
        a = acc(nt, qb)
        return [lambda z=z: b.v('v_mul_f32', a+z, 's56', a+z) for z in range(4)] + \
               [lambda: b.v('v_cvt_pk_bf16_f32', a, a, a+1), lambda: b.v('v_cvt_pk_bf16_f32', a+1, a+2, a+3),
                lambda: b.dsw('ds_write_b64', VQW, a, 2, qb*16*QROW + nt*32)]
    return sum([cv(qb, nt) for qb in range(6) for nt in range(2)], [])
def g_tail(b, ops):
    gaps = {}
    for k in range(5, 12): gaps[k] = [ops.pop(0), ops.pop(0)]
    g_block(b, 1, A1, gaps)
    for f in ops: f()
    b.wait_lgkm(0)
def g_fused(b, ops, full):
    for f in gemm_addr_ops(b, g_base(0, full)): f()
    x1 = {k: [ops.pop(0)] for k in range(6, 12)}
    def mid():
        for f in ops: f()
    g_interval(b, RES, full, False, gemm_addr_ops(b, g_base(1, full)), lambda: None, zero=True, x1=x1, mid=mid)
    b.s('s_branch L_gem_F1' if full else 's_branch L_gem_R1')
def g_main(b, cfg, full, M):
    for f in gemm_addr_ops(b, g_base(0, full)): f()
    for c in range(16):
        x0 = {7: [lambda: M.psignal(GF)]} if (c == 5 and not full) else None
        if c == 1: b.label('L_gem_F1' if full else 'L_gem_R1')
        g_interval(b, RES + 8*c, full, c == 0, gemm_addr_ops(b, g_base(c+1, full)) if c < 15 else [], (lambda c=c: M.need({('g', c+1)}) if c != 4 else b.vm(0)), x0=x0)
GF = 248

O_ = 0; Q_ = 96; KF = 144; VF = 176; S_ = 208; P_ = 224; NM = 232; L_ = 244
VKA = 247; VVA = 248; VKB = 249; VVB = 250; T0 = 251; VVH = 253
LB = S_ + 8
def Oreg(c, dt): return O_ + 32*c + 4*dt
def att_setup(b):
    lane = LANE; t0 = T0
    b.s('s_mul_i32 s39, s55, 8448')
    b.v('v_and_b32', t0, '7', lane); b.v('v_mul_u32_u24', VKB, '1056', t0)
    b.v('v_bfe_u32', t0, lane, '3', '1'); b.v('v_lshlrev_b32', t0, '8', t0); b.v('v_add_u32', VKB, VKB, t0)
    b.v('v_lshrrev_b32', t0, '4', lane); b.v('v_lshlrev_b32', t0, '4', t0); b.v('v_add3_u32', VKB, VKB, t0, 's39')
    b.v('v_bfe_u32', t0, lane, '2', '3'); b.v('v_mul_u32_u24', VVB, '1056', t0)
    b.v('v_lshrrev_b32', t0, '5', lane); b.v('v_lshlrev_b32', t0, '8', t0); b.v('v_add_u32', VVB, VVB, t0)
    b.s('s_lshl_b32 s50, s55, 7'); b.s('s_add_u32 s39, s39, s50')
    b.v('v_and_b32', t0, '3', lane); b.v('v_lshlrev_b32', t0, '3', t0); b.v('v_add3_u32', VVB, VVB, t0, 's39')
    b.s('s_lshl_b32 s77, s55, 8'); b.s('s_sub_u32 s77, 128, s77')
def q_addr(b, t0, t1):
    b.s('s_and_b32 s39, s34, 1'); b.s(f's_mul_i32 s39, s39, {48*QROW}'); b.s(f's_add_u32 s39, s39, {XB}')
    b.v('v_and_b32', t0, '15', LANE); b.v('v_mul_u32_u24', t0, str(QROW), t0)
    b.v('v_lshrrev_b32', t1, '4', LANE); b.v('v_lshlrev_b32', t1, '4', t1); b.v('v_add3_u32', t0, t0, t1, 's39')
def q_reads(b, t0):
    for c in range(3):
        for m in range(4): b.dsr('ds_read_b128', Q_+16*c+4*m, 4, t0, c*16*QROW + m*64)
def crossred(b, t, u, op='v_max_f32'):
    b.v('v_mov_b32', u, t); b.swap32(t, u); b.v(op, t, t, u)
    b.v('v_mov_b32', u, t); b.swap16(t, u); b.v(op, t, t, u)

class Att:
    def __init__(self, b, cfg): self.b, self.cfg, self.rare = b, cfg, []
    def qk_list(self, task):
        b = self.b; i, c = divmod(task, 3); buf = task & 1; out = []
        for m in range(4):
            for t in range(2):
                d = S_ + 8*buf + 4*t
                cc = d if m else (None if i == 0 else NM + 4*c)
                out.append(lambda d=d, t=t, m=m, cc=cc: b.mfma16(d, KF+16*t+4*m, Q_+16*c+4*m, cc))
        return out
    def pv_list(self, task):
        b = self.b; i, c = divmod(task, 3); buf = task & 1
        return [lambda dt=dt: b.mfma16(Oreg(c, dt), VF+4*dt, P_+4*buf, None if i == 0 else Oreg(c, dt)) for dt in range(8)]
    def kread(self, k):
        m, t = divmod(k, 2)
        return lambda: self.b.dsr('ds_read_b128', KF+16*t+4*m, 4, VKA, t*512+m*64)
    def vread(self, k):
        dt, t = divmod(k, 2)
        return lambda: self.b.dsr('ds_read_b64_tr_b16', VF+4*dt+2*t, 2, VVA if dt < 4 else VVH, t*512+(dt % 4)*32)
    def pre(self, task):
        b = self.b; i, c = divmod(task, 3); S = S_ + 8*(task & 1); t, u = T0, T0+1
        o = [(4, lambda: b.v('v_max3_f32', t, S, S+1, S+2)), (4, lambda: b.v('v_max3_f32', u, S+3, S+4, S+5)),
             (4, lambda: b.v('v_max3_f32', t, S+6, S+7, t)), (4, lambda: b.v('v_max_f32', t, t, u))]
        if i > 0: o.append((4, lambda: b.emit(f'v_cmp_lt_f32 vcc, 4.0, {vr(t)}', 'valu', (), {t})))
        return o
    def main(self, task):
        b = self.b; i, c = divmod(task, 3); buf = task & 1
        S = S_ + 8*buf; P = P_ + 4*buf; t, u = T0, T0+1
        o = []
        if i == 0:
            o += [(4, lambda: b.v('v_mov_b32', u, t)), (8, lambda: b.swap32(t, u)), (4, lambda: b.v('v_max_f32', t, t, u)),
                  (4, lambda: b.v('v_mov_b32', u, t)), (8, lambda: b.swap16(t, u)), (4, lambda: b.v('v_max_f32', t, t, u))]
            for k in range(8): o.append((4, lambda k=k: b.v('v_sub_f32', S+k, S+k, t)))
            for k in range(4): o.append((4, lambda k=k: b.v('v_sub_f32', NM+4*c+k, '0', t)))
        else:
            def br():
                b.s(f's_cbranch_vccnz L_rare{task}'); b.label(f'L_back{task}'); self.rare.append(task)
            o.append((6, br))
        for k in range(8):
            o.append((8, lambda k=k: b.exp(S+k, S+k)))
            if k >= 1:
                kk = k - 1
                if i == 0 and kk == 0: o.append((4, lambda: b.v('v_mov_b32', L_+c, S)))
                else: o.append((4, lambda kk=kk: b.v('v_add_f32', L_+c, L_+c, S+kk)))
            if k >= 2 and k % 2 == 0:
                h = k//2 - 1
                o.append((4, lambda h=h: b.v('v_cvt_pk_bf16_f32', P+h, S+2*h, S+2*h+1)))
        o.append((4, lambda: b.v('v_add_f32', L_+c, L_+c, S+7)))
        o.append((4, lambda: b.v('v_cvt_pk_bf16_f32', P+3, S+6, S+7)))
        return o
    def addr_k(self, j): self.b.v('v_add_u32', VKA, str(t_base(KPOS[j])), VKB)
    def addr_v(self, j): self.b.v('v_add_u32', VVA, str(t_base(VPOS[j])), VVB); self.b.v('v_add_u32', VVH, 's77', VVA)
    def step(self, s, endfn=None):
        b = self.b; mf = []; prew = {}
        i, c = divmod(s, 3)
        if s + 1 <= 23: mf += self.qk_list(s + 1)
        if s - 1 >= 0: mf += self.pv_list(s - 1)
        n = len(mf)
        post = [[] for _ in range(n)]
        hasK = i + 1 <= 7
        if c == 0:
            off = 8 if s else 0
            for k in range(8): post[off + k].append(self.vread(k))
        elif c == 1:
            for k in range(8): post[k].append(self.vread(8 + k))
            if hasK:
                for k in range(8): post[8 + k].append(self.kread(k))
            prew[8] = 8; prew[12] = 4 if hasK else 0
        elif hasK:
            prew[0] = 4; prew[4] = 0
        sm = self.main(s) + (self.pre(s + 1) if s + 1 <= 23 else [])
        if B.skel: sm = []
        ecost = 20
        tot = sum(x for x, _ in sm) + 4*sum(len(p) for p in post) + 4*len(prew) + (ecost if endfn else 0)
        acc_ = 0; k = 0
        for j in range(n):
            if j in prew: b.wait_lgkm(prew[j]); acc_ += 4
            mf[j]()
            for f in post[j]: f(); acc_ += 4
            if endfn and j == n - 4:
                endfn(); acc_ += ecost
                continue
            tgt = tot * (j + 1) / n
            while k < len(sm) and (acc_ + sm[k][0]/2 <= tgt or j == n - 1):
                sm[k][1](); acc_ += sm[k][0]; k += 1
    def start(self):
        for f in self.qk_list(0): f()
        for _, f in self.pre(0): f()
    def intervals(self, L):
        b, cfg = self.b, self.cfg
        for j in range(1, 9):
            for s in range(3*(j-1), 3*j):
                if s == 23:
                    b.wait_lgkm(0)
                    b.s('s_cmp_eq_u32 s48, 0'); b.s('s_cbranch_scc1 L_a_noq1')
                    b.s('s_cmp_ge_u32 s41, 3'); b.s('s_cbranch_scc1 L_a_noq1')
                    sv = b.save(); q_addr(b, KF, KF+1); q_reads(b, KF); b.restore(sv)
                    b.label('L_a_noq1')
                def endfn(j=j):
                    b.wait_lgkm(0)
                    if j == 8: b.raw('s_waitcnt lgkmcnt(0)')
                    else:
                        self.addr_v(j)
                        if j + 1 <= 7: self.addr_k(j + 1)
                    L.need(cons_tags('a', 'a', j + 1))
                    b.barrier()
                self.step(s, endfn if s == 3*j - 1 else None)
    XA = KF; SA = KF+1; XP = KF+2; OS = KF+4; FO = KF+10; FT = KF+13; PK = VF; UP = S_; VO = P_+2
    def pack(self, c, mp):
        b = self.b; pk = KF + 16 + 4*((2*c+mp) % 4); r = []
        for h in range(2):
            o = Oreg(c, 4 + 2*mp + h)
            r += [lambda o=o, h=h: b.v('v_cvt_pk_bf16_f32', pk+2*h, o, o+1), lambda o=o, h=h: b.v('v_cvt_pk_bf16_f32', pk+2*h+1, o+2, o+3)]
        return r + [lambda: b.dsw('ds_write_b128', self.XA, pk, 4, (2*c+mp)*1024)]
    def c0(self):
        b = self.b; XA = self.XA
        b.s('s_mul_i32 s50, s34, 6144'); b.s(f's_add_u32 s50, s50, {XB}')
        fill = [lambda: b.v('v_lshl_add_u32', XA, LANE, '4', 's50')]
        fill += self.pack(0, 0) + self.pack(0, 1) + self.pack(1, 0) + self.pack(1, 1)
        pv = self.pv_list(23)
        for dt in (4, 5, 6, 7, 0, 1, 2, 3):
            pv[dt]()
            for _ in range(2): fill.pop(0)()
        for f in fill: f()
    def c1(self):
        b = self.b; SA = self.SA
        red = []
        for c in range(3):
            Lr = L_ + c; uu = S_ + c
            red.append([lambda Lr=Lr, uu=uu: b.v('v_mov_b32', uu, Lr), lambda Lr=Lr, uu=uu: b.swap32(Lr, uu), lambda Lr=Lr, uu=uu: b.v('v_add_f32', Lr, Lr, uu),
                        lambda Lr=Lr, uu=uu: b.v('v_mov_b32', uu, Lr), lambda Lr=Lr, uu=uu: b.swap16(Lr, uu), lambda Lr=Lr, uu=uu, c=c: b.v('v_add_f32', NM+4*c+1, Lr, uu)])
        o = [lambda: (b.s('s_mul_i32 s50, s34, 384'), b.s(f's_add_u32 s50, s50, {STAT}'))]
        o += self.pack(2, 0) + self.pack(2, 1)
        o += [lambda: b.v('v_and_b32', SA, '15', LANE), lambda: b.v('v_mad_u32_u24', SA, SA, '24', 's50')]
        o += [red[c][k] for k in range(6) for c in range(3)]
        o += [lambda c=c: b.dsw('ds_write_b64', SA, NM+4*c, 2, 8*c) for c in range(3)]
        o += [lambda: (b.s('s_mul_i32 s51, s77, 96'), b.s('s_mul_i32 s50, s77, 6')), lambda: b.v('v_add_u32', self.XP, 's51', self.XA), lambda: b.v('v_add_u32', SA, 's50', SA)]
        return o
    def c2a(self):
        b = self.b
        return [lambda c=c: b.dsr('ds_read_b64', self.OS+2*c, 2, self.SA, 8*c) for c in range(3)] + \
               [lambda k=k: b.dsr('ds_read_b128', self.PK+4*k, 4, self.XP, k*1024) for k in range(6)]
    def c2b(self):
        b = self.b; ops = []
        for c in range(3):
            nm, lo = NM+4*c, NM+4*c+1; on, ol = self.OS+2*c, self.OS+2*c+1; fo, ft = self.FO+c, self.FT+c; t = NM+4*c+2
            ops.append([lambda t=t, nm=nm, on=on: b.v('v_min_f32', t, nm, on), lambda fo=fo, t=t, nm=nm: b.v('v_sub_f32', fo, t, nm), lambda ft=ft, t=t, on=on: b.v('v_sub_f32', ft, t, on),
                        lambda fo=fo: b.exp(fo, fo), lambda ft=ft: b.exp(ft, ft), lambda t=t, fo=fo, lo=lo: b.v('v_mul_f32', t, fo, lo), lambda t=t, ft=ft, ol=ol: b.v('v_fma_f32', t, ft, ol, t),
                        lambda t=t: b.v('v_rcp_f32', t, t, kind='trans'), lambda fo=fo, t=t: b.v('v_mul_f32', fo, fo, t), lambda ft=ft, t=t: b.v('v_mul_f32', ft, ft, t)])
        return [ops[c][k] for k in range(10) for c in range(3)] + [lambda: b.v('v_lshlrev_b32', self.VO, '4', LANE), lambda: b.s('s_add_u32 s51, s54, 4096')]
    def part(self, pi):
        b = self.b; o_ = []
        def V(*a, **k): o_.append(lambda: b.v(*a, **k))
        c, mp = divmod(pi, 2); fo, ft = self.FO+c, self.FT+c
        pk = self.PK + 4*pi
        for h in range(2):
            o = Oreg(c, 2*mp + h); up = self.UP + 4*h
            V('v_lshlrev_b32', up, '16', pk+2*h); V('v_and_b32', up+1, '0xffff0000', pk+2*h)
            V('v_lshlrev_b32', up+2, '16', pk+2*h+1); V('v_and_b32', up+3, '0xffff0000', pk+2*h+1)
            for z in range(4): V('v_mul_f32', o+z, o+z, fo)
            for z in range(4): V('v_fmac_f32', o+z, up+z, ft, extra_r={o+z})
            V('v_cvt_pk_bf16_f32', pk+2*h, o, o+1); V('v_cvt_pk_bf16_f32', pk+2*h+1, o+2, o+3)
        return o_
    def store(self, pi, L):
        def f():
            self.b.store(4, self.PK + 4*pi, self.VO, 20, 's54' if pi < 4 else 's51', (pi % 4)*1024, self.cfg.opol); L.q.append(('st', 1))
        return [f]
    def rare_block(self, task):
        b = self.b; i, c = divmod(task, 3); S = S_ + 8*(task & 1); t, u = T0, T0+1
        b.reset(); b.label(f'L_rare{task}'); b.nop(2)
        crossred(b, t, u)
        b.v('v_max_f32', t, '0', t)
        b.v('v_sub_f32', u, '0', t); b.exp(u, u)
        for k in range(8): b.v('v_sub_f32', S+k, S+k, t)
        for k in range(4): b.v('v_sub_f32', NM+4*c+k, NM+4*c+k, t)
        b.v('v_mul_f32', L_+c, L_+c, u)
        for k in range(32): b.v('v_mul_f32', O_+32*c+k, O_+32*c+k, u)
        b.nop(2); b.s(f's_branch L_back{task}')

def phase_stamp(b, cfg):
    if cfg.stamps:
        b.raw('s_memrealtime s[90:91]'); b.raw('s_waitcnt lgkmcnt(0)'); b.raw('s_sub_u32 s90, s90, s88')
        b.raw('s_add_u32 s91, s40, s41'); b.raw('s_max_u32 s91, s91, 3'); b.raw('s_sub_u32 s91, s91, 3'); b.raw('s_mov_b32 m0, s91'); b.raw('s_nop 0'); b.raw('s_movreld_b32 s91, s90')
def stamp_dump(b, cfg):
    if cfg.stamps:
        b.raw('s_memrealtime s[90:91]'); b.raw('s_waitcnt lgkmcnt(0)'); b.raw('s_sub_u32 s99, s90, s88')
        b.raw('s_cmp_lg_u32 s35, 4'); b.raw('s_cbranch_scc1 L_k1_end')
        b.raw('s_lshl_b32 s91, s2, 5'); b.raw(f's_add_u32 s80, s20, {64 << 20}'); b.raw('s_addc_u32 s81, s21, 0')
        b.raw(f'v_mov_b32 v{GT+1}, s91')
        for k in range(8):
            b.raw(f'v_mov_b32 v{GT}, s{92+k}'); b.raw(f'global_store_dword v{GT+1}, v{GT}, s[80:81] offset:{4*k}')
    if cfg.ivw is not None:
        b.raw('s_cmp_lg_u32 s35, 4'); b.raw('s_cbranch_scc1 L_k1_end')
        b.raw(f's_add_u32 s80, s20, {66 << 20}'); b.raw('s_addc_u32 s81, s21, 0'); b.raw('s_lshl_b32 s91, s2, 8')
        b.raw(f'v_lshlrev_b32 v{GT}, 2, v{LANE}'); b.raw(f'v_add_u32 v{GT}, s91, v{GT}'); b.raw(f'global_store_dword v{GT}, v247, s[80:81]')

def k1(cfg):
    verify_ring(cfg)
    b = B()
    KN = NAME + '_kernel'
    b.raw(f'.globl {KN}'); b.raw('.p2align 8'); b.raw(f'.type {KN},@function'); b.label(KN)
    b.s('s_cmp_ge_u32 s2, 256'); b.s('s_cbranch_scc1 L_k1_end')
    if cfg.stamps: b.raw('s_memrealtime s[88:89]')
    b.s('s_and_b32 s60, s2, 7'); b.s('s_lshr_b32 s61, s2, 3'); b.s('s_lshr_b32 s62, s60, 2')
    b.s('s_mul_i32 s63, s62, 40'); b.s('s_add_u32 s64, s0, s63'); b.s('s_addc_u32 s65, s1, 0')
    b.s('s_load_dwordx4 s[68:71], s[64:65], 0'); b.s('s_load_dwordx4 s[72:75], s[64:65], 16')
    b.s('s_load_dwordx2 s[76:77], s[64:65], 32'); b.s('s_load_dwordx2 s[78:79], s[0:1], 96'); b.s('s_load_dwordx4 s[28:31], s[0:1], 80')
    if cfg.wopf == 3: b.s('s_load_dwordx2 s[92:93], s[0:1], 32'); b.s('s_load_dwordx2 s[96:97], s[0:1], 72')
    if cfg.codepf:
        b.s('s_and_b32 s39, s61, 15'); b.s('s_cmp_lg_u32 s39, 0'); b.s('s_cbranch_scc1 L_nocpf')
        b.raw('s_getpc_b64 s[82:83]')
        b.label('L_pc')
        b.v('v_lshlrev_b32', 2, '7', 0)
        b.v('v_min_u32', 2, 'L_code_end-L_pc-4', 2)
        b.v('v_mov_b32', 3, 's83')
        b.emit('v_add_co_u32 v2, vcc, s82, v2', 'valu', {2}, {2}); b.nop(2)
        b.emit('v_addc_co_u32 v3, vcc, 0, v3, vcc', 'valu', {3}, {3})
        b.emit(f'global_load_dword v{DUM}, v[2:3], off', 'vmem', {DUM}, {2, 3})
        b.label('L_nocpf')
    b.v('v_lshrrev_b32', 1, '6', 0); b.rfl(35, 1)
    lane_id(b, LANE)
    b.s('s_and_b32 s34, s35, 3'); b.s('s_lshr_b32 s55, s34, 1')
    b.s('s_and_b32 s33, s60, 3'); b.s('s_lshl_b32 s66, s33, 3'); b.s('s_and_b32 s67, s61, 7'); b.s('s_add_u32 s66, s66, s67')
    b.s('s_lshr_b32 s63, s61, 3')
    b.s('s_and_b32 s48, s63, 1' if cfg.stagger else 's_mov_b32 s48, 0')
    b.s('s_mov_b32 s40, 0'); b.s('s_mov_b32 s41, 0'); b.s('s_mov_b32 s37, 0')
    b.s(f's_mov_b32 s32, {cfg.masks[1]}'); b.s('s_cmp_eq_u32 s48, 0'); b.s(f's_cselect_b32 s32, {cfg.masks[0]}, s32')
    b.s('s_mul_i32 s44, s63, 196608'); b.s('s_lshl_b32 s45, s66, 8')
    b.s('s_lshl_b32 s46, s63, 5'); b.s('s_add_u32 s46, s46, s66'); b.s('s_lshl_b32 s46, s46, 17')
    b.s('s_lshl_b32 s80, s62, 4'); b.s('s_add_u32 s80, s80, s63')
    b.s('s_lshl_b32 s47, s80, 6')
    b.s('s_lshl_b32 s39, s66, 1'); b.s('s_add_u32 s47, s47, s39'); b.s('s_add_u32 s47, s47, s55'); b.s('s_mul_i32 s47, s47, 12288')
    b.s('s_and_b32 s39, s34, 1'); b.s('s_mul_i32 s39, s39, 6144'); b.s('s_add_u32 s47, s47, s39')
    b.s('s_mul_i32 s52, s34, 1056'); b.s('s_lshl_b32 s53, s34, 10')
    b.s(f's_mov_b32 s56, {f2u(CEXP):#x}')
    b.s('s_mul_i32 s57, s67, 24576'); b.s('s_lshl_b32 s39, s34, 13'); b.s('s_add_u32 s57, s57, s39'); b.s('s_add_u32 s57, s57, s44')
    b.s('s_cmp_eq_u32 s34, 3'); b.s(f's_cselect_b32 s57, {OOB}, s57')
    b.raw('s_waitcnt lgkmcnt(0)')
    srd(b, 4, 68, 16*96*1024*2); srd(b, 8, 70, 1 << 26); srd(b, 12, 72, 1 << 26); srd(b, 16, 74, 1 << 23)
    srd(b, 20, 78, FB); srd(b, 24, 76, 1 << 23)
    b.s(f's_add_u32 s68, s78, {FB}'); b.s('s_addc_u32 s69, s79, 0'); b.s('s_mov_b32 s70, 49152'); b.s('s_mov_b32 s71, 0x20000')
    b.s('s_mov_b32 s64, s30'); b.s('s_mov_b32 s65, s31')
    b.s(f's_mov_b32 s30, {16*96*2048*2}'); b.s('s_mov_b32 s31, 0x20000')
    b.s('s_lshl_b32 s72, s80, 9'); b.s('s_lshl_b32 s50, s33, 7'); b.s('s_add_u32 s72, s72, s50'); b.s('s_lshl_b32 s50, s67, 3'); b.s('s_add_u32 s72, s72, s50')
    b.s('s_lshl_b32 s81, s80, 3'); b.s('s_add_u32 s81, s81, s67')
    b.s('s_lshl_b32 s73, s81, 7'); b.s('s_add_u32 s73, s73, 16384')
    b.s(f's_mul_i32 s78, s81, {3*PT}'); b.s('s_mul_i32 s79, s34, 6144'); b.s('s_add_u32 s78, s78, s79'); b.s(f's_add_u32 s78, s78, {PB}')
    b.s('s_lshl_b32 s74, s80, 2'); b.s('s_add_u32 s74, s74, s33'); b.s(f's_mul_i32 s74, s74, {16*12288}')
    b.s('s_lshl_b32 s75, s33, 21'); b.s('s_lshl_b32 s50, s67, 8'); b.s('s_add_u32 s75, s75, s50')
    b.s('s_add_u32 s39, s33, 3'); b.s('s_and_b32 s39, s39, 3'); b.s('s_lshl_b32 s39, s39, 2'); b.s('s_add_u32 s39, s39, s63'); b.s(f's_mul_i32 s76, s39, {96*4096}')
    b.s('s_add_u32 s76, s76, s50'); b.s('s_lshl_b32 s50, s62, 11'); b.s('s_add_u32 s76, s76, s50'); b.s('s_lshl_b32 s50, s34, 6'); b.s('s_add_u32 s76, s76, s50')
    b.s('s_lshl_b32 s87, s33, 21'); b.s('s_lshl_b32 s50, s61, 16'); b.s('s_add_u32 s87, s87, s50'); b.s('s_lshl_b32 s50, s34, 13'); b.s('s_add_u32 s87, s87, s50')
    if cfg.pf0 == 2:
        b.s('s_cmp_eq_u32 s48, 0'); b.s('s_cbranch_scc1 L_nopf0')
        b.v('v_lshlrev_b32', 3, '7', LANE)
        b.s('s_mul_i32 s39, s33, 786432'); b.s('s_add_u32 s39, s39, s57'); b.s('s_sub_u32 s39, s39, 196608'); b.s('s_cmp_ge_u32 s35, 3'); b.s(f's_cselect_b32 s39, {OOB}, s39')
        b.load1(DUM, 3, 4, 's39')
        b.v('v_lshrrev_b32', 2, '1', LANE); b.v('v_lshlrev_b32', 2, '13', 2); b.v('v_and_b32', 4, '1', LANE); b.v('v_lshlrev_b32', 4, '7', 4); b.v('v_add_u32', 2, 2, 4)
        b.s('s_lshl_b32 s39, s35, 1'); b.s('s_lshr_b32 s50, s63, 1'); b.s('s_add_u32 s39, s39, s50'); b.s('s_lshl_b32 s39, s39, 18'); b.s('s_add_u32 s39, s39, s45')
        b.load1(DUM, 2, 16, 's39')
        b.s(f's_add_u32 s39, s39, {16 << 18}')
        b.load1(DUM, 2, 16, 's39')
        b.s('s_lshr_b32 s39, s35, 2'); b.s('s_add_u32 s39, s39, s33'); b.s('s_and_b32 s39, s39, 3'); b.s('s_mul_i32 s39, s39, 786432'); b.s('s_add_u32 s39, s39, s57')
        b.load1(DUM, 3, 4, 's39')
        b.label('L_nopf0')
    if cfg.wopf == 3:
        n = cfg.won; assert sum(n) == 64 and max(n) <= 24
        base = [32*sum(n[:i]) for i in range(8)]
        b.s('s_mov_b32 s94, 0x800000'); b.s('s_mov_b32 s95, 0x20000'); b.s('s_mov_b32 s98, 0x800000'); b.s('s_mov_b32 s99, 0x20000')
        b.s('s_mov_b32 s50, 0'); b.s('s_mov_b32 s51, 0')
        for i in range(8):
            b.s(f's_cmp_eq_u32 s60, {i}'); b.s(f's_cselect_b32 s50, {n[i]}, s50'); b.s(f's_cselect_b32 s51, {base[i]}, s51')
        b.s('s_mul_i32 s39, s61, s50'); b.s('s_add_u32 s51, s51, s39'); b.s('s_add_u32 s51, s51, s35'); b.s('s_lshl_b32 s51, s51, 13')
        b.v('v_lshlrev_b32', 3, '7', LANE)
        for r in range((max(n) + 7) // 8):
            b.s(f's_add_u32 s39, s35, {8*r}'); b.s('s_cmp_lt_u32 s39, s50'); b.s('s_cbranch_scc0 L_wo_done')
            b.s(f's_add_u32 s39, s51, {r << 16}')
            b.load1(DUM, 3, 92, 's39')
            b.s('s_sub_u32 s39, s39, 0x800000')
            b.load1(DUM, 3, 96, 's39')
        b.label('L_wo_done')
    b.s('s_mov_b32 s66, 256'); b.s('s_mov_b32 s67, 0x20000')
    for r, v in ((42, 128), (43, 32*2048), (60, 64*8192), (61, 32*8192), (62, 8*8192), (63, 786432)): b.s(f's_mov_b32 s{r}, {v}')
    b.s('s_cmp_ge_u32 s35, 4'); b.s('s_cbranch_scc1 L_gem')
    A = Att(b, cfg)
    L = Loader(b, cfg, LB, T0)
    VP = KF + 20
    b.fence()
    loader_offsets(b, True, LB, 2048, 8192, False, T0)
    L.begin(0, False)
    for i in range(3): L.g(i, True, ('g', i))
    att_setup(b)
    L.need({('g', 0)}); b.barrier()
    b.fence()
    def f_loader(t0, t1, extra={}, fills={}):
        for t in range(t0, t1):
            L.setfill(fills.get(t, []), 7)
            L.g(t + 3, True, ('g', t+3))
            L.flush(); b.wait_lgkm(0)
            for f in extra.get(t, []): f()
            L.need({('g', t+1)} | ({'p', 'n'} if t == 12 else set())); b.barrier()
    def r_loader(t0, t1, extra={}, fills={}, over={}):
        for t in range(t0, t1):
            own = over[t] if t in over else R_OWN.get(t, [])
            L.setfill(fills.get(t, []), 5*len(own))
            for i in own: L.g(i, False, ('g', i))
            L.flush(); b.wait_lgkm(0)
            for f in extra.get(t, []): f()
            L.need({('g', t+1)}); b.barrier()
    def tail(t0, table, kind, pre={}, t1=16):
        for t in range(t0, t1):
            for f in pre.get(t, []): f()
            if t == 15 and t0 != 13:
                assert all(x[0] != ('g', 15) for x in L.q)
                L.psignal(VP)
            for i in table.get(t, []):
                if kind == 'a': L.t(i, ('n', i))
                elif kind == 'p': pdma(i)
                else: L.g(i, kind == 'f', ('n', i))
            L.need({('g', t+1)} if t < 15 else ({('n', 0)} if kind != 'p' else {('n', 2)})); b.barrier()
        if t1 < 16: return
        b.s('s_add_u32 s40, s40, 1')
        L.q = [((('a' if kind == 'a' else 'g'), t[1]) if isinstance(t, tuple) else t, n) for t, n in L.q]
    FJ = 9
    b.label('L_att_F')
    qF = list(L.q)
    f_loader(0, FJ)
    qFj = list(L.q)
    b.label('L_att_Fj')
    f_loader(FJ, 13, {10: [lambda: L.nonce_load(VP), lambda: L.poll(VP, 1)]})
    L.nonce_get(VP)
    q13 = list(L.q)
    b.s('s_bitcmp1_b32 s32, s40'); b.s('s_cbranch_scc0 L_att_FR')
    L.set_a(); tail(13, F_TO_A, 'a')
    qa = list(L.q)
    b.s('s_branch L_att_a')
    b.label('L_att_FR'); L.q = list(q13)
    L.begin(1, False); L.check(VP, 1)
    tail(13, F_TO_R, 'r')
    b.fence()
    b.label('L_att_R')
    qR = list(L.q)
    pollx = lambda: L.poll(VP, 1)
    L.g(4, False, ('g', 4)); L.need({('g', 1)}); b.barrier()
    q1 = list(L.q)
    b.s('s_cmp_ge_u32 s40, 4'); b.s('s_cbranch_scc1 L_att_RO')
    def rq(): q_addr(b, T0, T0+1); q_reads(b, T0)
    r_loader(1, 11, {9: [pollx]}, {1: [rq]}, R_OWNP)
    qj = list(L.q); nj = L.items()
    b.fence()
    b.s('s_branch L_att_Rj')
    b.label('L_att_RO'); L.q = list(q1)
    L.ub('s39', 's40', 3); b.s(f's_mul_i32 s54, s39, {32*3*PT}'); b.s('s_add_u32 s54, s54, s78')
    b.s('s_lshl_b32 s83, s39, 12'); b.s('s_add_u32 s83, s83, s73')
    b.s('s_sub_u32 s39, s40, 5'); b.s(f's_mul_i32 s51, s39, {PT}'); b.s('s_add_u32 s54, s54, s51'); b.s('s_add_u32 s51, s54, 4096')
    b.s('s_lshl_b32 s39, s39, 3'); b.s('s_add_u32 s83, s83, s39')
    b.s('s_cmp_eq_u32 s35, 0'); b.s('s_cselect_b32 s37, 1, 0')
    b.s(f's_add_u32 s50, s79, {XB}')
    b.v('v_lshlrev_b32', A.VO, '4', LANE); b.v('v_add_u32', A.XP, 's50', A.VO)
    fi = {1: A.c2a()[3:]}
    for k in range(3): fi[2+k] = A.store(2*k, L) + A.store(2*k+1, L)
    r_loader(1, 11, {7: [lambda: L.need({'st'})], 8: [lambda: L.psignal(VP)], 9: [pollx]}, fi, R_OWNP)
    assert L.q == qj, (L.q, qj)
    b.fence()
    b.label('L_att_Rj')
    L.g(15, False, ('g', 15))
    qj = list(L.q)
    b.s('s_bitcmp1_b32 s32, s40'); b.s('s_cbranch_scc0 L_att_RG')
    L.set_a(); tail(11, R_TO_A, 'a')
    assert L.q == qa, (L.q, qa)
    b.fence()
    b.label('L_att_a')
    A.addr_k(0)
    for k in range(8): A.kread(k)()
    b.s('s_cmp_eq_u32 s48, 0'); b.s('s_cbranch_scc1 L_a_c0a')
    sv = b.save()
    A.start(); b.fence()
    b.label('L_a_c0a'); b.restore(sv)
    L.t(6, ('a', 6)); L.t(7, ('a', 7))
    q_addr(b, P_+4, P_+5)
    b.raw('s_waitcnt lgkmcnt(0)'); b.lds = []
    A.addr_v(0); A.addr_k(1)
    L.need(cons_tags('a', 'a', 1)); b.barrier()
    b.s('s_cmp_eq_u32 s48, 0'); b.s('s_cbranch_scc0 L_a_i1')
    q_reads(b, P_+4)
    A.start()
    b.fence()
    b.label('L_a_i1')
    A.intervals(L)
    b.s('s_add_u32 s41, s41, 1')
    A.c0()
    kvo = lambda: loader_offset_ops(b, True, LB, 2048, 8192, False, T0)[:5]
    usesAF = any(m >> 3 & 1 for m in cfg.masks)
    if usesAF:
        b.s('s_cmp_eq_u32 s40, 4'); b.s('s_cbranch_scc1 L_att_AF')
    sv = b.save()
    b.barrier()
    for f in A.c1(): f()
    b.wait_lgkm(0)
    b.s('s_add_u32 s39, s41, 2'); b.s('s_cmp_eq_u32 s39, s40'); b.s('s_cbranch_scc1 L_att_AU')
    sv3 = b.save()
    b.barrier()
    L.q = []
    for f in A.c2a(): f()
    L.begin(0, True); L.set_ost()
    L.ub('s83', 's41', 3); b.s('s_lshl_b32 s83, s83, 11'); b.s('s_add_u32 s83, s83, s72')
    b.s('s_cmp_eq_u32 s35, 0'); b.s('s_cselect_b32 s37, 1, 0')
    b.barrier()
    fi = {3: A.c2b() + kvo()}
    for pi in range(6): fi[4+pi] = A.part(pi) + (A.store(pi-1, L) if pi else [])
    fi[10] = A.store(5, L)
    r_loader(3, 11, {9: [pollx]}, fi, R_OWNS)
    assert L.items() == nj, (L.q, qj)
    b.fence()
    b.s('s_branch L_att_Rj')
    b.label('L_att_AU'); b.restore(sv3)
    L.begin(0, True); L.set_ost()
    b.barrier()
    L.q = []
    fi = {2: A.c2a() + kvo() + A.c2b()}
    for k in range(3): fi[3+k] = A.part(2*k) + A.store(2*k, L) + A.part(2*k+1) + A.store(2*k+1, L)
    ex = {9: [pollx]}; ex.setdefault(cfg.sigat-1, []).append(lambda: L.need({'st'})); ex.setdefault(cfg.sigat, []).append(lambda: L.signal(VP))
    r_loader(2, 11, ex, fi)
    got = L.items(); assert got == nj[len(nj)-len(got):], (L.q, qj)
    b.fence()
    b.s('s_branch L_att_Rj')
    if usesAF:
        b.label('L_att_AF'); b.restore(sv)
        L.begin(0, True); L.set_ost()
        b.barrier()
        L.q = []
        L.setfill(A.c1(), 14); L.g(3, True, ('g', 3)); L.g(4, True, ('g', 4)); L.flush()
        b.wait_lgkm(0); b.barrier()
        fi = {2: A.c2a() + kvo() + A.c2b()}
        for k in range(3): fi[3+k] = A.part(2*k) + A.store(2*k, L) + A.part(2*k+1) + A.store(2*k+1, L)
        f_loader(2, FJ, {FJ-2: [lambda: L.need({'st'})], FJ-1: [lambda: L.signal(VP)]}, fi)
        assert L.items() == [n for _, n in qFj]
        b.fence()
        b.s('s_branch L_att_Fj')
    b.label('L_att_RG'); b.reset()
    b.s('s_cmp_eq_u32 s40, 7'); b.s('s_cbranch_scc1 L_att_RP')
    b.s('s_cmp_eq_u32 s40, 3'); b.s('s_cbranch_scc1 L_att_RF')
    L.q = list(qj)
    tail(11, {}, 'r', {11: [lambda: L.begin(1, False)]}, 12)
    L.need({'p'})
    q12 = list(L.q)
    b.emit(f'v_cmp_ne_u64 vcc, s[84:85], {vr(VP,2)}', 'valu', (), R(VP, 2))
    b.s('s_cbranch_vccnz L_att_RRl')
    tail(12, r_to_r(12), 'r')
    assert L.q == qR, (L.q, qR)
    b.s('s_branch L_att_R')
    b.label('L_att_RRl'); L.q = list(q12)
    tail(12, r_to_r(14), 'r', {12: [pollx], 14: [lambda: (L.need({'p'}), L.check(VP, None))]})
    assert L.q == qR, (L.q, qR)
    b.s('s_branch L_att_R')
    b.label('L_att_RF'); L.q = list(qj)
    tail(11, R_TO_F, 'f', {11: [lambda: L.begin(1, False)], 12: [lambda: (L.need({'p'}), L.check(VP, None))]})
    assert L.q == qF, (L.q, qF)
    b.s('s_branch L_att_F')
    b.label('L_att_RP'); L.q = list(qj)
    def pdma(i):
        for hlf, n in ((0, 4), (1, 2)):
            b.s(f's_add_u32 m0, s79, {PLDS[i] + hlf*4096}'); b.s(f's_add_u32 s39, s58, {i*PT + hlf*4096}')
            for k in range(n): b.dma(A.VO, 20, 's39', k*1024, ' sc1')
        L.q.append((('n', i), 6))
    def p11():
        b.v('v_lshlrev_b32', A.VO, '4', LANE)
        L.ub('s58', 's40'); b.s(f's_mul_i32 s58, s58, {32*3*PT}'); b.s('s_add_u32 s58, s58, s78')
    tail(11, R_TO_P, 'p', {11: [p11], 12: [lambda: (L.need({'p'}), L.check(VP, None))]})
    b.s('s_endpgm')
    b.reset()
    b.label('L_gem')
    if cfg.prio & 1: b.s('s_setprio 2')
    if cfg.ivw is not None:
        b.s(f's_mov_b32 s86, {(-cfg.ivw) & 0xffffffff}'); b.v('v_mov_b32', 247, '0')
        ob = b.barrier; cnt = [0]
        def nb():
            ob(); cnt[0] += 1
            b.raw('s_cmp_lt_u32 s86, 64'); b.raw(f's_cbranch_scc0 L_iv{cnt[0]}')
            b.raw('s_memtime s[90:91]'); b.raw('s_mov_b32 m0, s86'); b.raw('s_waitcnt lgkmcnt(0)'); b.raw('v_writelane_b32 v247, s90, m0')
            b.raw(f'L_iv{cnt[0]}:'); b.raw('s_add_u32 s86, s86, 1')
        b.barrier = nb
    M = Loader(b, cfg, GB, GT)
    b.s('s_mov_b32 s77, 0')
    gemm_setup(b)
    loader_offsets(b, 2, GB, 2048, 8192, False, GT)
    b.v('v_and_b32', GT, '15', LANE); b.v('v_mul_u32_u24', VQW, str(QROW), GT)
    b.v('v_lshrrev_b32', GT, '4', LANE); b.v('v_lshlrev_b32', GT, '3', GT)
    b.s('s_lshl_b32 s39, s34, 6'); b.s(f's_add_u32 s39, s39, {XB}'); b.v('v_add3_u32', VQW, VQW, GT, 's39')
    b.s('s_add_u32 s39, s2, s34'); b.s('s_cmp_lg_u32 s39, 0'); b.s('s_cbranch_scc1 L_nononce')
    b.raw('s_memrealtime s[50:51]'); b.raw('s_waitcnt lgkmcnt(0)'); b.s('s_or_b32 s50, s50, 1')
    b.v('v_mov_b32', GF, 's50'); b.v('v_mov_b32', GF+1, 's51')
    b.s('s_mov_b64 exec, 1')
    b.emit(f'buffer_store_dwordx2 {vr(GF,2)}, off, s[64:67], 0 sc1', 'vmem', (), R(GF, 2))
    b.s('s_mov_b64 exec, -1')
    b.label('L_nononce')
    b.barrier()
    b.fence()
    b.label('L_gem_F')
    xq = [(None, cfg.kvpf)] if cfg.kvpf else []
    qf = [(('g', i), 7) for i in (1, 2)] + xq; qg = [(('g', i), 5) for i in range(1, 5)] + xq
    M.q = list(qf)
    g_main(b, cfg, True, M)
    b.s('s_branch L_gem_done')
    b.fence()
    b.label('L_gem_R')
    M.q = list(qg)
    g_main(b, cfg, False, M)
    b.label('L_gem_done')
    phase_stamp(b, cfg)
    sv = b.save()
    b.s('s_cmp_lg_u32 s40, 3'); b.s('s_cbranch_scc1 L_gem_nsw')
    for h in range(2): b.v('v_lshlrev_b32', VXB+h, '4', LANE)
    b.v('v_add_u32', VXB+1, '1024', VXB+1)
    b.label('L_gem_nsw'); b.restore(sv)
    b.s('s_cmp_ge_u32 s40, 4'); b.s('s_cbranch_scc1 L_gem_ot')
    b.s('s_bitcmp1_b32 s32, s40'); b.s('s_cbranch_scc0 L_gem_qg')
    b.s('s_add_u32 s40, s40, 1')
    g_tail(b, q_ops(b)); b.fence()
    b.s('s_branch L_gem_a')
    b.label('L_gem_qg'); b.restore(sv)
    b.s('s_add_u32 s40, s40, 1'); b.s('s_cmp_eq_u32 s40, 4'); b.s('s_cbranch_scc1 L_gem_qf')
    g_fused(b, q_ops(b), False)
    b.label('L_gem_qf'); b.restore(sv)
    g_fused(b, q_ops(b), True)
    b.label('L_gem_ot'); b.restore(sv)
    b.s('s_cmp_eq_u32 s40, 7'); b.s('s_cbranch_scc1 L_gem_fin')
    def pk_ops(qb, base):
        pk = base(qb); o = []
        for nt in range(2):
            a = acc(nt, qb)
            o += [lambda a=a, nt=nt: b.v('v_cvt_pk_bf16_f32', pk+2*nt, a, a+1), lambda a=a, nt=nt: b.v('v_cvt_pk_bf16_f32', pk+2*nt+1, a+2, a+3)]
        return o
    inpl = lambda qb: acc(0, qb)
    def pstore(qb): b.store(4, inpl(qb), VXB, 20, 's50' if qb < 4 else 's51', (qb % 4)*1024, cfg.opol)
    b.s('s_bitcmp1_b32 s32, s40'); b.s('s_cbranch_scc1 L_gem_pa')
    b.s('s_add_u32 s40, s40, 1'); b.s(f's_add_u32 s39, s79, {XB}')
    b.v('v_add_u32', GT, 's39', VXB)
    g_fused(b, sum([pk_ops(qb, inpl) + [lambda qb=qb: b.dsw('ds_write_b128', GT, inpl(qb), 4, qb*1024)] for qb in range(6)], []), False)
    b.label('L_gem_pa'); b.restore(sv)
    M.ub('s39', 's40'); b.s(f's_mul_i32 s50, s39, {32*3*PT}'); b.s('s_add_u32 s50, s50, s78')
    b.s('s_lshl_b32 s83, s39, 12'); b.s('s_add_u32 s83, s83, s73')
    b.s('s_and_b32 s39, s40, 3'); b.s(f's_mul_i32 s51, s39, {PT}'); b.s('s_add_u32 s50, s50, s51'); b.s('s_add_u32 s51, s50, 4096')
    b.s('s_lshl_b32 s39, s39, 3'); b.s('s_add_u32 s83, s83, s39')
    g_tail(b, sum([pk_ops(qb, inpl) for qb in range(6)], []))
    b.s('s_mov_b32 s77, 1'); b.s('s_add_u32 s40, s40, 1')
    b.fence()
    b.label('L_gem_a'); b.reset()
    M.q = []
    M.set_a()
    b.barrier()
    def a_loader(t0, t1, nxt):
        for t in range(t0, t1):
            if t == 1: M.nonce_load(GF)
            if t == 3: M.poll(GF, 0)
            for p in A_OWN.get(t, []): M.t(p, ('a', p))
            if t == 1 and cfg.pf:
                M.ub('s39', 's40'); b.s('s_mul_i32 s39, s39, 786432'); b.s('s_add_u32 s39, s39, s57')
                b.s('s_cmp_ge_u32 s40, 4'); b.s(f's_cselect_b32 s39, {OOB}, s39')
                b.load1(DUM, GB+3, 4, 's39'); M.other(1)
            if t == 2 and cfg.wl2 is not None:
                b.s('s_add_u32 s39, s41, s48'); b.s(f's_cmp_eq_u32 s39, {cfg.wl2}'); b.s(f's_cselect_b32 s39, s87, {OOB}')
                b.load1(DUM, GB+3, 24, 's39'); b.s('s_add_u32 s39, s39, 32768'); b.load1(DUM, GB+3, 24, 's39'); M.other(2)
            if t == 4: M.nonce_get(GF)
            if t == 5: M.begin(0, False)
            if t == cfg.pst and nxt == 'R':
                b.s('s_cmp_eq_u32 s77, 0'); b.s('s_cbranch_scc1 L_gem_nops')
                for qb in range(6): pstore(qb)
                b.s('s_mov_b32 s77, 0'); b.s('s_cmp_eq_u32 s35, 4'); b.s('s_cselect_b32 s37, 1, 0')
                b.label('L_gem_nops')
            if t == 6: M.check(GF, 0)
            if nxt:
                for i in (A_TO_R if nxt == 'R' else A_TO_F).get(t, []): M.g(i, nxt == 'F', ('g', i))
            if t == 8 and cfg.kvpf:
                M.ub('s39', 's41', 1); b.s('s_lshl_b32 s39, s39, 24'); b.s('s_add_u32 s39, s39, s46')
                b.s('s_lshl_b32 s58, s34, 13'); b.s('s_add_u32 s39, s39, s58')
                b.s('s_cmp_ge_u32 s41, 3'); b.s(f's_cselect_b32 s39, {OOB}, s39')
                if not cfg.kvpfall: b.s('s_bitcmp1_b32 s32, s40'); b.s(f's_cselect_b32 s39, s39, {OOB}')
                for k in range(cfg.kvpf):
                    if k == 2: b.s('s_add_u32 s39, s39, 32768')
                    b.load1(DUM, GB+3, 8 if k % 2 == 0 else 12, 's39', cfg.kvpfpol)
                M.other(cfg.kvpf)
            M.need(cons_tags('a', 'a', t+1) if t < 8 else {('g', 0)})
            b.barrier()
    a_loader(1, 6, None)
    q5 = list(M.q)
    if usesAF: b.s('s_cmp_eq_u32 s40, 4'); b.s('s_cbranch_scc1 L_gem_AF')
    a_loader(6, 9, 'R')
    assert M.q == qg, (M.q, qg)
    phase_stamp(b, cfg)
    b.s('s_add_u32 s41, s41, 1')
    b.s('s_branch L_gem_R')
    if usesAF:
        b.label('L_gem_AF'); M.q = list(q5)
        a_loader(6, 9, 'F')
        assert M.q == qf, (M.q, qf)
        phase_stamp(b, cfg)
        b.s('s_add_u32 s41, s41, 1')
        b.s('s_branch L_gem_F')
    b.label('L_gem_fin'); b.restore(sv)
    ID = RES; PF_ = RES + 8; t = GT
    b.v('v_add_u32', VX, 's79', VXB); b.v('v_add_u32', VX+1, str(XB), VX)
    rd = [lambda p=p, qb=qb: b.dsr('ds_read_b128', PF_ + 12*qb + 4*p, 4, VX+1 if p == 0 else VX, (PLDS[p] if p else 0) + qb*1024) for qb in range(6) for p in range(3)]
    u = RES + 84
    idops = [lambda: b.v('v_bfe_u32', u, LANE, '2', '2'), lambda: b.v('v_lshrrev_b32', u+1, '4', LANE),
             lambda: b.emit(f'v_cmp_eq_u32 vcc, {vr(u)}, {vr(u+1)}', 'valu', (), {u, u+1}),
             lambda: b.v('v_and_b32', u, '1', LANE), lambda: b.v('v_lshlrev_b32', u, '4', u), lambda: b.v('v_mov_b32', u+1, '0x3f80'), lambda: b.v('v_lshlrev_b32', u, u, u+1),
             lambda: b.emit(f'v_cndmask_b32 {vr(u)}, 0, {vr(u)}, vcc', 'valu', {u}, {u}),
             lambda: b.v('v_and_b32', u+1, '2', LANE),
             lambda: b.emit(f'v_cmp_eq_u32 vcc, 0, {vr(u+1)}', 'valu', (), {u+1})]
    idops += [lambda k=k: b.v('v_mov_b32', ID+k, '0') for k in (0, 1, 4, 5)]
    idops += [lambda: b.emit(f'v_cndmask_b32 {vr(ID+2)}, 0, {vr(u)}, vcc', 'valu', {ID+2}, {u}), lambda: b.v('v_sub_u32', ID+3, u, ID+2)]
    g_block(b, 1, A1, {k: [rd.pop(0), idops.pop(0)] for k in range(12)})
    for f in idops: f()
    fill = rd + [lambda: b.v('v_and_b32', t, '15', LANE), lambda: b.v('v_lshlrev_b32', t, '12', t),
                 lambda: b.v('v_bfe_u32', t+1, LANE, '4', '1'), lambda: b.v('v_lshl_add_u32', t, t+1, '5', t),
                 lambda: b.v('v_lshrrev_b32', t+1, '5', LANE), lambda: b.v('v_lshl_add_u32', t, t+1, '4', t)]
    def epi(qb):
        pk = BF[0] + 4*qb
        return pk_ops(qb, lambda qb: BF[0] + 4*qb) + [lambda: b.swap16(pk, pk+2), lambda: b.swap16(pk+1, pk+3),
                lambda: (b.store(4, pk, t, 28, 's76', 0, cfg.outpol), b.s(f's_add_u32 s76, s76, {16*4096}'))]
    for qb in range(6):
        if qb >= 2: fill += epi(qb-2)
        for p in range(3):
            for nt in range(2):
                b.mfma16(acc(nt, qb), ID + (2 if nt == 0 else 0), PF_ + 12*qb + 4*p, acc(nt, qb))
                if fill: fill.pop(0)()
    for f in fill + epi(4) + epi(5): f()
    stamp_dump(b, cfg)
    b.label('L_k1_end')
    b.s('s_endpgm')
    b.label('L_code_end')
    for task in A.rare: A.rare_block(task)
    return b

def desc(name, nv):
    return f'''.p2align 6
.amdhsa_kernel {name}
  .amdhsa_next_free_vgpr {nv}
  .amdhsa_next_free_sgpr 102
  .amdhsa_accum_offset {nv}
  .amdhsa_group_segment_fixed_size 0
  .amdhsa_kernarg_size 104
  .amdhsa_user_sgpr_count 2
  .amdhsa_user_sgpr_kernarg_segment_ptr 1
  .amdhsa_system_sgpr_workgroup_id_x 1
.end_amdhsa_kernel
'''
def build(path, cfg, which=None):
    B.nodma = cfg.nodma; B.skel = cfg.skel; G['cfg'] = cfg; B.guard = False
    a = k1(cfg)
    s = '; @launch grid=(256,1,1) block=(512,1,1) lds=163840\n.amdgcn_target "amdgcn-amd-amdhsa--gfx950"\n.text\n' + a.text()
    s += '.section .rodata,"a"\n' + desc(NAME + '_kernel', 256)
    open(path, 'w').write(s)
    return a, a
def mk(path, which=('k1', 'k2'), **kw):
    cfg = Cfg()
    for k, v in kw.items():
        assert hasattr(cfg, k), k
        setattr(cfg, k, v)
    return build(path, cfg, which)

if __name__ == '__main__':
    a, c = mk('v10.s')
    print('k1 lines', len(a.lines), 'nops', a.nnop, 'k2 lines', len(c.lines), 'nops', c.nnop)
```

```python
import gen9, gen10
k = dict(masks=(0x17,0x2e), fast=True, sigat=8, rrc=14, kvpf=1)
gen9.mk('o_9.s', **k)
gen9.mk('o_9w.s', won=(0,0,2,5,8,12,16,21), **k)
gen9.mk('o_9m.s', won=(2,4,5,7,9,11,12,14), **k)
gen9.mk('o_9i.s', won=(0,9,2,11,5,14,7,16), **k)
gen10.mk('o_10.s')
gen10.mk('o_10k0.s', kvpf=0)
```

```python
import math, struct, sys
from asmb import *
NAME = 'concat_heads__mha_block_cached__gqa_block_cached__near_ridge'
RING = 135168; XB = RING
HS = 16896; AS = 33792; GS = 22528; WG = 8448
QROW = 272; STAT = XB + 24576
def f2u(x): return struct.unpack('<I', struct.pack('<f', x))[0]
CEXP = math.log2(math.e) / math.sqrt(128.0)
LANE = 255; DUM = 254
OOB = 0x40000000

class Cfg:
    kvpol = ' nt'; opol = ' sc1'; xpol = ' sc1'; outpol = ''; pf = True; pf0 = 2; stamps = False; stagger = True
    wopf = 3; won = (0, 9, 2, 11, 5, 14, 7, 16); nodma = False; skel = False; codepf = True; nosig = False
    ivw = None; prio = 1; masks = (0x17, 0x2e); dropst = 0; allfast = True; pdirect = True; burst = False; kvpf = 1; kvpfpol = ''; kvpfall = False; fast = False; pst = 8; sigat = 9; rrc = 12; wl2 = None

PB = 26 << 20; FB = 48 << 20; PT = 24576
G = {}
def srd(b, d, lo, size):
    b.s(f's_mov_b32 s{d}, s{lo}'); b.s(f's_mov_b32 s{d+1}, s{lo+1}'); b.s(f's_mov_b32 s{d+2}, {size}'); b.s(f's_mov_b32 s{d+3}, 0x20000')
def lane_id(b, d):
    b.v('v_mbcnt_lo_u32_b32', d, '-1', '0'); b.v('v_mbcnt_hi_u32_b32', d, '-1', d)

XO = 0; WO1 = 12288; WO0 = 12288 + WG
GMAP = [0,1,2,3,4,5,0,1,2,3,0,1,2,3,4,5]
HMAP = [p % 8 for p in range(16)]
def g_base(i, full, cls=0): return (i % 4)*AS if full else GMAP[i]*GS
TILES = [('K',0)] + sum([[('K',j+1), ('V',j)] for j in range(7)], []) + [('V',7)]
def t_base(p): return HMAP[p]*HS
KPOS = {j: TILES.index(('K', j)) for j in range(8)}
VPOS = {j: TILES.index(('V', j)) for j in range(8)}
def t_cons(p): k, j = TILES[p]; return j if k == 'K' else j + 1

def loader_offset_ops(b, kv, base, xstride, wstride, operm, t):
    lane = LANE
    vKV, vX, vW, vPF = base, base+1, base+2, base+3
    t0, t1 = t, t+1
    o = []
    def V(*a): o.append(lambda: b.v(*a))
    V('v_and_b32', t0, '15', lane); V('v_lshlrev_b32', t0, '4', t0)
    V('v_lshrrev_b32', t1, '4', lane)
    if kv:
        V('v_lshl_add_u32', vKV, t1, '3', 's34'); V('v_lshl_add_u32', vKV, vKV, '8', t0)
    sa, sb = (4, 3) if operm else (2, 4)
    V('v_and_b32', vW, '1', t1); V('v_lshl_add_u32', vW, vW, str(sa), 's34')
    V('v_lshrrev_b32', t1, '1', t1); V('v_lshl_add_u32', vW, t1, str(sb), vW)
    V('v_lshl_add_u32', vW, vW, str(int(math.log2(wstride))), t0)
    if operm:
        V('v_lshl_add_u32', vX, lane, '4', 's53')
    else:
        V('v_lshrrev_b32', t0, '3', lane); V('v_lshl_add_u32', t0, 's34', '3', t0)
        V('v_lshrrev_b32', t1, '1', t0); V('v_xor_b32', t1, t1, lane); V('v_and_b32', t1, '7', t1); V('v_lshlrev_b32', t1, '4', t1)
        V('v_lshl_add_u32', vX, t0, str(int(math.log2(xstride))), t1)
    if kv == 2: V('v_lshlrev_b32', vPF, '7', lane)
    return o
def loader_offsets(b, *a):
    for f in loader_offset_ops(b, *a): f()


class Loader:
    def __init__(self, b, cfg, base, t): self.b, self.cfg, self.base, self.tmp, self.q, self.fill, self.per, self.n = b, cfg, base, t, [], [], 0, 0
    def lab(self, s): self.n += 1; return f'L_{s}{self.base}_{self.n}'
    def setfill(self, ops, ndma):
        self.fill = list(ops); self.per = -(-len(self.fill) // max(ndma, 1))
    def _f(self):
        for _ in range(self.per):
            if self.fill: self.fill.pop(0)()
    def flush(self):
        while self.fill: self.fill.pop(0)()
    def g(self, i, full, tag):
        b = self.b; vX, vW = self.base+1, self.base+2; lds = g_base(i, full)
        b.s(f's_mul_i32 s58, s42, {i}'); b.s('s_add_u32 s58, s58, s36')
        b.s(f's_mul_i32 s59, s60, {i}'); b.s('s_add_u32 s59, s59, s45')
        for z in range(3):
            b.s(f's_add_u32 m0, s53, {lds + XO + z*4096}')
            if z: b.s('s_add_u32 s58, s58, s43')
            b.dma(vX, 4, 's58', 0, self.cfg.xpol); self.q.append((tag, 1)); self._f()
        for h in (0, 1):
            if h: b.s('s_add_u32 s59, s59, s61')
            if h == 0 and not full: continue
            for z in (0, 1):
                b.s(f's_add_u32 m0, s52, {lds + (WO1 if h else WO0) + z*4224}')
                if z: b.s('s_add_u32 s39, s59, s62')
                b.dma(vW, 16, 's39' if z else 's59'); self.q.append((tag, 1)); self._f()
        self.norm()
    def t(self, p, tag):
        b = self.b; k, j = TILES[p]; srd_ = 8 if k == 'K' else 12; lds = t_base(p); pol = self.cfg.kvpol
        for kh in range(2):
            b.s(f's_add_u32 m0, s52, {lds + kh*8448}'); b.s(f's_add_u32 s39, s38, {j*16384 + kh*8192}')
            b.dma(self.base, srd_, 's39', 0, pol)
            b.s('s_add_u32 m0, m0, 3200')
            b.dma(self.base, srd_, 's39', 1024, pol)
        self.q.append((tag, 4))
    def norm(self):
        q = []
        for t, n in self.q:
            if q and q[-1][0] == t: q[-1] = (t, q[-1][1] + n)
            else: q.append((t, n))
        self.q = q
    def items(self):
        t = Loader(self.b, self.cfg, 0, 0); t.q = [x for x in self.q if isinstance(x[0], tuple)]; t.norm(); return [n for _, n in t.q]
    def other(self, n): self.q.append((None, n))
    def need(self, tags):
        last = -1
        for i, (t, n) in enumerate(self.q):
            if t in tags: last = i
        if last >= 0:
            self.q = self.q[last+1:]
            self.b.vm(min(63, sum(n for _, n in self.q)))
    def ub(self, d, unit_sgpr, plus=0):
        self.b.s(f's_add_u32 {d}, {unit_sgpr}, s33')
        if plus: self.b.s(f's_add_u32 {d}, {d}, {plus & 3}')
        self.b.s(f's_and_b32 {d}, {d}, 3')
    def begin(self, plus, recompute):
        b = self.b; lo, le = self.lab('bo'), self.lab('be')
        b.fence()
        b.s(f's_cmp_ge_u32 s40, {4 - plus}'); b.s(f's_cbranch_scc1 {lo}')
        if recompute: loader_offsets(b, False, self.base, 2048, 8192, False, self.tmp)
        b.s(f's_branch {le}')
        b.label(lo)
        for k in range(3): b.s(f's_mov_b32 s{4+k}, s{20+k}')
        for k in range(2): b.s(f's_mov_b32 s{16+k}, s{24+k}')
        for r, v in ((42, 12288), (43, 4096), (60, 64*2048), (61, 32*2048), (62, 4*2048), (63, 3145728), (44, 's74'), (45, 's75')): b.s(f's_mov_b32 s{r}, {v}')
        loader_offsets(b, False, self.base, 128, 2048, True, self.tmp)
        b.label(le)
        self.ub('s36', 's40', plus); b.s('s_mul_i32 s36, s36, s63'); b.s('s_add_u32 s36, s36, s44')
        b.fence()
    def set_a(self):
        self.ub('s38', 's41'); self.b.s('s_lshl_b32 s38, s38, 24'); self.b.s('s_add_u32 s38, s38, s46')
    def set_ost(self):
        self.ub('s54', 's41', 3); self.b.s('s_mul_i32 s54, s54, 3145728'); self.b.s('s_add_u32 s54, s54, s47')
        if self.cfg.dropst: self.b.s(f's_cmp_le_u32 s41, {self.cfg.dropst}'); self.b.s(f's_cselect_b32 s54, {OOB}, s54')
    def nonce_load(self, v):
        self.b.emit(f'buffer_load_dwordx2 {vr(v+4,2)}, off, s[64:67], 0 sc1', 'vmem', R(v+4, 2)); self.q.append(('n', 1))
    def nonce_get(self, v):
        b = self.b; l0, l1 = self.lab('nc'), self.lab('nk')
        assert all(x[0] != 'n' for x in self.q)
        b.s('s_mov_b32 s49, 0x40000')
        b.label(l0)
        b.rfl(84, v+4); b.rfl(85, v+5); b.nop(1)
        b.s('s_cmp_lg_u32 s84, 0'); b.s(f's_cbranch_scc1 {l1}')
        b.s('s_sleep 4')
        b.emit(f'buffer_load_dwordx2 {vr(v+4,2)}, off, s[64:67], 0 sc1', 'vmem', R(v+4, 2)); b.vm(0)
        b.s('s_sub_u32 s49, s49, 1'); b.s('s_cmp_lg_u32 s49, 0'); b.s(f's_cbranch_scc1 {l0}')
        b.label(l1)
    def poll(self, v, plus):
        b = self.b
        self.ub('s82', 's40', plus); b.s('s_lshl_b32 s82, s82, 11'); b.s('s_add_u32 s82, s82, s72'); b.s('s_andn2_b32 s82, s82, 127')
        b.s(f's_cmp_lt_u32 s40, {4 - plus}'); b.s(f's_cselect_b32 s82, {OOB}, s82')
        if plus:
            b.s('s_bitcmp1_b32 s32, s40'); b.s(f's_cselect_b32 s82, {OOB}, s82')
            self.ub('s39', 's40'); b.s('s_lshl_b32 s39, s39, 12'); b.s('s_add_u32 s39, s39, s73')
            b.s('s_cmp_eq_u32 s40, 7'); b.s('s_cselect_b32 s82, s39, s82'); b.s('s_cselect_b32 s39, 2, 7')
            b.v('v_min_u32', v+2, 's39', LANE)
        else:
            b.v('v_min_u32', v+2, '7', LANE)
        b.v('v_lshlrev_b32', v+2, '3', v+2)
        b.emit(f'buffer_load_dwordx2 {vr(v,2)}, {vr(v+2)}, s[68:71], s82 offen sc1', 'vmem', R(v, 2), {v+2}); self.q.append(('p', 1))
    def check(self, v, plus):
        b = self.b; l0, l1 = self.lab('ck'), self.lab('ok')
        assert all(x[0] != 'p' for x in self.q)
        if self.cfg.nosig: return
        if plus is not None: b.s(f's_cmp_lt_u32 s40, {4 - plus}'); b.s(f's_cbranch_scc1 {l1}')
        b.s('s_mov_b32 s49, 0x40000')
        b.label(l0)
        b.emit(f'v_cmp_ne_u64 vcc, s[84:85], {vr(v,2)}', 'valu', (), R(v, 2))
        b.s(f's_cbranch_vccz {l1}')
        b.s('s_sleep 2')
        b.emit(f'buffer_load_dwordx2 {vr(v,2)}, {vr(v+2)}, s[68:71], s82 offen sc1', 'vmem', R(v, 2), {v+2}); b.vm(0)
        b.s('s_sub_u32 s49, s49, 1'); b.s('s_cmp_lg_u32 s49, 0'); b.s(f's_cbranch_scc1 {l0}')
        b.label(l1)
    def flag_store(self, v, soff):
        b = self.b
        b.v('v_mov_b32', v+4, 's84'); b.v('v_mov_b32', v+5, 's85')
        b.s('s_mov_b64 exec, 1')
        b.emit(f'buffer_store_dwordx2 {vr(v+4,2)}, off, s[68:71], {soff} sc1', 'vmem', (), R(v+4, 2))
        b.s('s_mov_b64 exec, -1')
    def signal(self, v):
        b = self.b
        assert all(x[0] != 'st' for x in self.q)
        self.ub('s39', 's41', 3); b.s('s_lshl_b32 s39, s39, 11'); b.s('s_add_u32 s39, s39, s72')
        b.s('s_cmp_eq_u32 s35, 0'); b.s(f's_cselect_b32 s39, s39, {OOB}')
        self.flag_store(v, 's39'); self.other(1)
    def psignal(self, v):
        b = self.b; l = self.lab('ps')
        b.s('s_cmp_eq_u32 s37, 0'); b.s(f's_cbranch_scc1 {l}')
        sv = b.save(); self.flag_store(v, 's83'); b.s('s_mov_b32 s37, 0'); b.restore(sv)
        b.label(l)

def cons_tags(ph, kind, t):
    if kind == 'g': return {(ph, t)}
    return {(ph, p) for p in range(16) if t_cons(p) == t}
R_OWN = {2: [5], 3: [6, 7], 4: [8], 5: [9], 6: [14], 7: [10], 8: [11], 9: [12], 10: [13], 11: [15]}
R_OWNP = {1: [5], 2: [6], 3: [7]}
R_TO_A = {11: [0], 12: [1], 13: [2, 3], 14: [4], 15: [5]}
R_TO_F = {12: [0], 13: [1], 15: [2]}
def r_to_r(c):
    d = {}
    for i in range(4): d.setdefault(max(c, 12 + i if i < 3 else 14), []).append(i)
    return d
F_TO_A = {13: [0, 1], 14: [2, 3], 15: [4, 5]}
F_TO_R = {13: [0], 14: [1, 2], 15: [3]}
A_OWN = {1: [8], 2: [9, 10], 3: [11, 12], 4: [13, 14], 5: [15]}
A_TO_R = {6: [0, 1], 7: [2], 8: [3, 4]}
A_TO_F = {6: [0], 7: [1], 8: [2]}
R_TO_P = {12: [0, 1], 13: [2]}
PLDS = [XB, 0, PT]
R_OWNS = {2: [], 3: [5, 6], 4: [7, 8]}
def prog_of(mask):
    p = []
    for gi in range(8):
        p.append('F' if gi % 4 == 0 else 'R')
        if mask >> gi & 1: p.append('A')
    return p
def verify_ring(cfg):
    for mask in cfg.masks:
        prog = prog_of(mask) + ['P']
        assert prog.count('A') == 4
        if mask & 1: assert cfg.pdirect or not (mask >> 5), 'Q3 would be clobbered in X'
        else: assert mask >> 3 & 3
        live = {}; issued = set()
        def rng(ph, i):
            k = prog[ph]
            if k == 'F': return (g_base(i, True), g_base(i, True) + 29184)
            if k == 'R': return (g_base(i, False), g_base(i, False) + 20736)
            if k == 'P': return (PLDS[i], PLDS[i] + PT)
            return (t_base(i), t_base(i) + HS)
        def iss(ph, i):
            lo, hi = rng(ph, i)
            for t, (a, c) in live.items(): assert hi <= a or c <= lo, (prog, ph, i, t)
            assert (ph, i) not in issued, (prog, ph, i)
            live[(ph, i)] = (lo, hi); issued.add((ph, i))
        for i in range(3): iss(0, i)
        for ph, k in enumerate(prog[:-1]):
            nx = prog[ph+1]; pv = prog[ph-1] if ph else None
            for t in range(9 if k == 'A' else 16):
                if k == 'F':
                    own = [t+3] if t <= 12 else []
                    if pv == 'A' and t < 2: own = [[], [3, 4]][t]
                    nxt = {'A': F_TO_A, 'R': F_TO_R}[nx].get(t, [])
                elif k == 'R':
                    own = R_OWN.get(t, []) if t else ([] if pv == 'A' else [4])
                    if pv != 'A' and t in R_OWNP: own = R_OWNP[t]
                    nxt = {'A': R_TO_A, 'F': R_TO_F, 'R': r_to_r(cfg.rrc), 'P': R_TO_P}[nx].get(t, [])
                else:
                    own = A_OWN.get(t, []) if t else [6, 7]
                    nxt = {'R': A_TO_R, 'F': A_TO_F}[nx].get(t, [])
                for i in own: iss(ph, i)
                for i in nxt: iss(ph+1, i)
                for tg in cons_tags(ph, 'a' if k == 'A' else 'g', t):
                    assert tg in live, (prog, tg); del live[tg]
        assert len(live) == 3 and len(issued) == 195

ACC = 0; RES = 48; BF = [176, 200]; A1 = 224; VW = 232; VX = 233; VWB = 235; VXB = 236; VQW = 238; GB = 240; GT = 244
def acc(nt, qb): return ACC + 8*qb + 4*nt
def gemm_setup(b):
    lane = LANE; t0, t1, t2 = GT, GT+1, GT+2
    b.v('v_bfe_u32', t0, lane, '2', '3'); b.v('v_mul_u32_u24', VWB, '1056', t0)
    b.v('v_lshrrev_b32', t0, '5', lane); b.v('v_lshlrev_b32', t0, '9', t0); b.v('v_add_u32', VWB, VWB, t0)
    b.v('v_and_b32', t0, '3', lane); b.v('v_lshlrev_b32', t0, '3', t0)
    b.s('s_lshl_b32 s39, s34, 6'); b.v('v_add3_u32', VWB, VWB, t0, 's39')
    b.v('v_and_b32', t0, '15', lane); b.v('v_lshrrev_b32', t2, '1', t0); b.v('v_lshrrev_b32', t1, '4', lane); b.v('v_xor_b32', t2, t2, t1)
    b.v('v_lshlrev_b32', t0, '7', t0)
    for h in range(2):
        b.v('v_xor_b32', VXB+h, str(4*h), t2); b.v('v_lshlrev_b32', VXB+h, '4', VXB+h); b.v('v_add_u32', VXB+h, VXB+h, t0)
def gemm_addr_ops(b, base):
    base = str(base)
    return [lambda: b.v('v_add_u32', VX, base, VXB), lambda: b.v('v_add_u32', VX+1, base, VXB+1), lambda: b.v('v_add_u32', VW, base, VWB)]
def rdA(b, h, areg):
    return [lambda nt=nt, e=e: b.dsr('ds_read_b64_tr_b16', areg+4*nt+2*e, 2, VW, (WO1 if h else WO0) + e*256 + nt*32) for nt in range(2) for e in range(2)]
def rdB(b, h):
    return [lambda qb=qb: b.dsr('ds_read_b128', BF[h]+4*qb, 4, VX+h, XO + qb*2048) for qb in range(6)]
def g_block(b, h, areg, gaps, zero=False, prewait=None):
    k = 0
    for qb in range(6):
        for nt in range(2):
            if prewait and k in prewait: b.wait_lgkm(prewait[k])
            b.mfma16(acc(nt, qb), areg+4*nt, BF[h]+4*qb, None if zero else acc(nt, qb))
            for f in gaps.get(k, []): f()
            k += 1
def g_interval(b, a0, load_a0, first, nxt_ops, endfn, defer=False, zero=None, x1=None, x0=None, mid=None):
    B0, B1, Aa = rdB(b, 0), rdB(b, 1), rdA(b, 1, A1)
    A0 = rdA(b, 0, a0) if load_a0 else []
    if first:
        for f in A0 + B0: f()
        rest = B1 + Aa
        pw = None
    else:
        seq = A0 + B0 + B1
        g1 = {k: [seq[k]] for k in range(12)}
        for k, fs in (x1 or {}).items(): g1[k] = fs + g1[k]
        rest = seq[12:] + Aa
        g_block(b, 1, A1, g1, prewait=({0: 0} if defer else None))
        if mid: mid()
        ny = 12 - len(A0) - 6
        pw = {0: ny} if not load_a0 else {0: ny + 3, 6: 6 + ny}
    g0 = {k: [f] for k, f in enumerate(rest)}
    for k, fs in (x0 or {}).items(): g0.setdefault(k, []).extend(fs)
    k = len(rest)
    for f in nxt_ops:
        g0.setdefault(min(k, 10), []).append(f); k += 1
    def tail():
        if not defer: b.wait_lgkm(0)
        endfn(); b.barrier()
    g0.setdefault(10, []).append(tail)
    g_block(b, 0, a0, g0, zero=(first if zero is None else zero), prewait=pw)
def q_ops(b):
    def cv(qb, nt):
        a = acc(nt, qb)
        return [lambda z=z: b.v('v_mul_f32', a+z, 's56', a+z) for z in range(4)] + \
               [lambda: b.v('v_cvt_pk_bf16_f32', a, a, a+1), lambda: b.v('v_cvt_pk_bf16_f32', a+1, a+2, a+3),
                lambda: b.dsw('ds_write_b64', VQW, a, 2, qb*16*QROW + nt*32)]
    return sum([cv(qb, nt) for qb in range(6) for nt in range(2)], [])
def g_tail(b, ops):
    gaps = {}
    for k in range(5, 12): gaps[k] = [ops.pop(0), ops.pop(0)]
    g_block(b, 1, A1, gaps)
    for f in ops: f()
    b.wait_lgkm(0)
def g_fused(b, ops, full):
    for f in gemm_addr_ops(b, g_base(0, full)): f()
    x1 = {k: [ops.pop(0)] for k in range(6, 12)}
    def mid():
        for f in ops: f()
    g_interval(b, RES, full, False, gemm_addr_ops(b, g_base(1, full)), lambda: None, zero=True, x1=x1, mid=mid)
    b.s('s_branch L_gem_F1' if full else 's_branch L_gem_R1')
def g_main(b, cfg, full, M):
    for f in gemm_addr_ops(b, g_base(0, full)): f()
    for c in range(16):
        x0 = {7: [lambda: M.psignal(GF)]} if (c == 5 and not full) else None
        if c == 1: b.label('L_gem_F1' if full else 'L_gem_R1')
        g_interval(b, RES + 8*c, full, c == 0, gemm_addr_ops(b, g_base(c+1, full)) if c < 15 else [], (lambda c=c: M.need({('g', c+1)}) if c != 4 else b.vm(0)), x0=x0)
GF = 248

O_ = 0; Q_ = 96; KF = 144; VF = 176; S_ = 208; P_ = 224; NM = 232; L_ = 244
VKA = 247; VVA = 248; VKB = 249; VVB = 250; T0 = 251; VVH = 253
LB = S_ + 8
def Oreg(c, dt): return O_ + 32*c + 4*dt
def att_setup(b):
    lane = LANE; t0 = T0
    b.s('s_mul_i32 s39, s55, 8448')
    b.v('v_and_b32', t0, '7', lane); b.v('v_mul_u32_u24', VKB, '1056', t0)
    b.v('v_bfe_u32', t0, lane, '3', '1'); b.v('v_lshlrev_b32', t0, '8', t0); b.v('v_add_u32', VKB, VKB, t0)
    b.v('v_lshrrev_b32', t0, '4', lane); b.v('v_lshlrev_b32', t0, '4', t0); b.v('v_add3_u32', VKB, VKB, t0, 's39')
    b.v('v_bfe_u32', t0, lane, '2', '3'); b.v('v_mul_u32_u24', VVB, '1056', t0)
    b.v('v_lshrrev_b32', t0, '5', lane); b.v('v_lshlrev_b32', t0, '8', t0); b.v('v_add_u32', VVB, VVB, t0)
    b.s('s_lshl_b32 s50, s55, 7'); b.s('s_add_u32 s39, s39, s50')
    b.v('v_and_b32', t0, '3', lane); b.v('v_lshlrev_b32', t0, '3', t0); b.v('v_add3_u32', VVB, VVB, t0, 's39')
    b.s('s_lshl_b32 s77, s55, 8'); b.s('s_sub_u32 s77, 128, s77')
def q_addr(b, t0, t1):
    b.s('s_and_b32 s39, s34, 1'); b.s(f's_mul_i32 s39, s39, {48*QROW}'); b.s(f's_add_u32 s39, s39, {XB}')
    b.v('v_and_b32', t0, '15', LANE); b.v('v_mul_u32_u24', t0, str(QROW), t0)
    b.v('v_lshrrev_b32', t1, '4', LANE); b.v('v_lshlrev_b32', t1, '4', t1); b.v('v_add3_u32', t0, t0, t1, 's39')
def q_reads(b, t0):
    for c in range(3):
        for m in range(4): b.dsr('ds_read_b128', Q_+16*c+4*m, 4, t0, c*16*QROW + m*64)
def crossred(b, t, u, op='v_max_f32'):
    b.v('v_mov_b32', u, t); b.swap32(t, u); b.v(op, t, t, u)
    b.v('v_mov_b32', u, t); b.swap16(t, u); b.v(op, t, t, u)

class Att:
    def __init__(self, b, cfg): self.b, self.cfg, self.rare = b, cfg, []
    def qk_list(self, task):
        b = self.b; i, c = divmod(task, 3); buf = task & 1; out = []
        for m in range(4):
            for t in range(2):
                d = S_ + 8*buf + 4*t
                cc = d if m else (None if i == 0 else NM + 4*c)
                out.append(lambda d=d, t=t, m=m, cc=cc: b.mfma16(d, KF+16*t+4*m, Q_+16*c+4*m, cc))
        return out
    def pv_list(self, task):
        b = self.b; i, c = divmod(task, 3); buf = task & 1
        return [lambda dt=dt: b.mfma16(Oreg(c, dt), VF+4*dt, P_+4*buf, None if i == 0 else Oreg(c, dt)) for dt in range(8)]
    def kread(self, k):
        m, t = divmod(k, 2)
        return lambda: self.b.dsr('ds_read_b128', KF+16*t+4*m, 4, VKA, t*512+m*64)
    def vread(self, k):
        dt, t = divmod(k, 2)
        return lambda: self.b.dsr('ds_read_b64_tr_b16', VF+4*dt+2*t, 2, VVA if dt < 4 else VVH, t*512+(dt % 4)*32)
    def pre(self, task):
        b = self.b; i, c = divmod(task, 3); S = S_ + 8*(task & 1); t, u = T0, T0+1
        o = [(4, lambda: b.v('v_max3_f32', t, S, S+1, S+2)), (4, lambda: b.v('v_max3_f32', u, S+3, S+4, S+5)),
             (4, lambda: b.v('v_max3_f32', t, S+6, S+7, t)), (4, lambda: b.v('v_max_f32', t, t, u))]
        if i > 0: o.append((4, lambda: b.emit(f'v_cmp_lt_f32 vcc, 4.0, {vr(t)}', 'valu', (), {t})))
        return o
    def main(self, task):
        b = self.b; i, c = divmod(task, 3); buf = task & 1
        S = S_ + 8*buf; P = P_ + 4*buf; t, u = T0, T0+1
        o = []
        if i == 0:
            o += [(4, lambda: b.v('v_mov_b32', u, t)), (8, lambda: b.swap32(t, u)), (4, lambda: b.v('v_max_f32', t, t, u)),
                  (4, lambda: b.v('v_mov_b32', u, t)), (8, lambda: b.swap16(t, u)), (4, lambda: b.v('v_max_f32', t, t, u))]
            for k in range(8): o.append((4, lambda k=k: b.v('v_sub_f32', S+k, S+k, t)))
            for k in range(4): o.append((4, lambda k=k: b.v('v_sub_f32', NM+4*c+k, '0', t)))
        else:
            def br():
                b.s(f's_cbranch_vccnz L_rare{task}'); b.label(f'L_back{task}'); self.rare.append(task)
            o.append((6, br))
        for k in range(8):
            o.append((8, lambda k=k: b.exp(S+k, S+k)))
            if k >= 1:
                kk = k - 1
                if i == 0 and kk == 0: o.append((4, lambda: b.v('v_mov_b32', L_+c, S)))
                else: o.append((4, lambda kk=kk: b.v('v_add_f32', L_+c, L_+c, S+kk)))
            if k >= 2 and k % 2 == 0:
                h = k//2 - 1
                o.append((4, lambda h=h: b.v('v_cvt_pk_bf16_f32', P+h, S+2*h, S+2*h+1)))
        o.append((4, lambda: b.v('v_add_f32', L_+c, L_+c, S+7)))
        o.append((4, lambda: b.v('v_cvt_pk_bf16_f32', P+3, S+6, S+7)))
        return o
    def addr_k(self, j): self.b.v('v_add_u32', VKA, str(t_base(KPOS[j])), VKB)
    def addr_v(self, j): self.b.v('v_add_u32', VVA, str(t_base(VPOS[j])), VVB); self.b.v('v_add_u32', VVH, 's77', VVA)
    def step(self, s, endfn=None):
        b = self.b; mf = []; prew = {}
        i, c = divmod(s, 3)
        if s + 1 <= 23: mf += self.qk_list(s + 1)
        if s - 1 >= 0: mf += self.pv_list(s - 1)
        n = len(mf)
        post = [[] for _ in range(n)]
        hasK = i + 1 <= 7
        if c == 0:
            off = 8 if s else 0
            for k in range(8): post[off + k].append(self.vread(k))
        elif c == 1:
            for k in range(8): post[k].append(self.vread(8 + k))
            if hasK:
                for k in range(8): post[8 + k].append(self.kread(k))
            prew[8] = 8; prew[12] = 4 if hasK else 0
        elif hasK:
            prew[0] = 4; prew[4] = 0
        sm = self.main(s) + (self.pre(s + 1) if s + 1 <= 23 else [])
        if B.skel: sm = []
        ecost = 20
        tot = sum(x for x, _ in sm) + 4*sum(len(p) for p in post) + 4*len(prew) + (ecost if endfn else 0)
        acc_ = 0; k = 0
        for j in range(n):
            if j in prew: b.wait_lgkm(prew[j]); acc_ += 4
            mf[j]()
            for f in post[j]: f(); acc_ += 4
            if endfn and j == n - 4:
                endfn(); acc_ += ecost
                continue
            tgt = tot * (j + 1) / n
            while k < len(sm) and (acc_ + sm[k][0]/2 <= tgt or j == n - 1):
                sm[k][1](); acc_ += sm[k][0]; k += 1
    def start(self):
        for f in self.qk_list(0): f()
        for _, f in self.pre(0): f()
    def intervals(self, L):
        b, cfg = self.b, self.cfg
        for j in range(1, 9):
            for s in range(3*(j-1), 3*j):
                if s == 23:
                    b.wait_lgkm(0)
                    b.s('s_cmp_eq_u32 s48, 0'); b.s('s_cbranch_scc1 L_a_noq1')
                    b.s('s_cmp_ge_u32 s41, 3'); b.s('s_cbranch_scc1 L_a_noq1')
                    sv = b.save(); q_addr(b, KF, KF+1); q_reads(b, KF); b.restore(sv)
                    b.label('L_a_noq1')
                def endfn(j=j):
                    b.wait_lgkm(0)
                    if j == 8: b.raw('s_waitcnt lgkmcnt(0)')
                    else:
                        self.addr_v(j)
                        if j + 1 <= 7: self.addr_k(j + 1)
                    L.need(cons_tags('a', 'a', j + 1))
                    b.barrier()
                self.step(s, endfn if s == 3*j - 1 else None)
    XA = KF; SA = KF+1; XP = KF+2; OS = KF+4; FO = KF+10; FT = KF+13; PK = VF; UP = S_; VO = P_+2
    def pack(self, c, mp):
        b = self.b; pk = KF + 16 + 4*((2*c+mp) % 4); r = []
        for h in range(2):
            o = Oreg(c, 4 + 2*mp + h)
            r += [lambda o=o, h=h: b.v('v_cvt_pk_bf16_f32', pk+2*h, o, o+1), lambda o=o, h=h: b.v('v_cvt_pk_bf16_f32', pk+2*h+1, o+2, o+3)]
        return r + [lambda: b.dsw('ds_write_b128', self.XA, pk, 4, (2*c+mp)*1024)]
    def c0(self):
        b = self.b; XA = self.XA
        b.s('s_mul_i32 s50, s34, 6144'); b.s(f's_add_u32 s50, s50, {XB}')
        fill = [lambda: b.v('v_lshl_add_u32', XA, LANE, '4', 's50')]
        fill += self.pack(0, 0) + self.pack(0, 1) + self.pack(1, 0) + self.pack(1, 1)
        pv = self.pv_list(23)
        for dt in (4, 5, 6, 7, 0, 1, 2, 3):
            pv[dt]()
            for _ in range(2): fill.pop(0)()
        for f in fill: f()
    def c1(self):
        b = self.b; SA = self.SA
        red = []
        for c in range(3):
            Lr = L_ + c; uu = S_ + c
            red.append([lambda Lr=Lr, uu=uu: b.v('v_mov_b32', uu, Lr), lambda Lr=Lr, uu=uu: b.swap32(Lr, uu), lambda Lr=Lr, uu=uu: b.v('v_add_f32', Lr, Lr, uu),
                        lambda Lr=Lr, uu=uu: b.v('v_mov_b32', uu, Lr), lambda Lr=Lr, uu=uu: b.swap16(Lr, uu), lambda Lr=Lr, uu=uu, c=c: b.v('v_add_f32', NM+4*c+1, Lr, uu)])
        o = [lambda: (b.s('s_mul_i32 s50, s34, 384'), b.s(f's_add_u32 s50, s50, {STAT}'))]
        o += self.pack(2, 0) + self.pack(2, 1)
        o += [lambda: b.v('v_and_b32', SA, '15', LANE), lambda: b.v('v_mad_u32_u24', SA, SA, '24', 's50')]
        o += [red[c][k] for k in range(6) for c in range(3)]
        o += [lambda c=c: b.dsw('ds_write_b64', SA, NM+4*c, 2, 8*c) for c in range(3)]
        o += [lambda: (b.s('s_mul_i32 s51, s77, 96'), b.s('s_mul_i32 s50, s77, 6')), lambda: b.v('v_add_u32', self.XP, 's51', self.XA), lambda: b.v('v_add_u32', SA, 's50', SA)]
        return o
    def c2a(self):
        b = self.b
        return [lambda c=c: b.dsr('ds_read_b64', self.OS+2*c, 2, self.SA, 8*c) for c in range(3)] + \
               [lambda k=k: b.dsr('ds_read_b128', self.PK+4*k, 4, self.XP, k*1024) for k in range(6)]
    def c2b(self):
        b = self.b; ops = []
        for c in range(3):
            nm, lo = NM+4*c, NM+4*c+1; on, ol = self.OS+2*c, self.OS+2*c+1; fo, ft = self.FO+c, self.FT+c; t = NM+4*c+2
            ops.append([lambda t=t, nm=nm, on=on: b.v('v_min_f32', t, nm, on), lambda fo=fo, t=t, nm=nm: b.v('v_sub_f32', fo, t, nm), lambda ft=ft, t=t, on=on: b.v('v_sub_f32', ft, t, on),
                        lambda fo=fo: b.exp(fo, fo), lambda ft=ft: b.exp(ft, ft), lambda t=t, fo=fo, lo=lo: b.v('v_mul_f32', t, fo, lo), lambda t=t, ft=ft, ol=ol: b.v('v_fma_f32', t, ft, ol, t),
                        lambda t=t: b.v('v_rcp_f32', t, t, kind='trans'), lambda fo=fo, t=t: b.v('v_mul_f32', fo, fo, t), lambda ft=ft, t=t: b.v('v_mul_f32', ft, ft, t)])
        return [ops[c][k] for k in range(10) for c in range(3)] + [lambda: b.v('v_lshlrev_b32', self.VO, '4', LANE), lambda: b.s('s_add_u32 s51, s54, 4096')]
    def part(self, pi):
        b = self.b; o_ = []
        def V(*a, **k): o_.append(lambda: b.v(*a, **k))
        c, mp = divmod(pi, 2); fo, ft = self.FO+c, self.FT+c
        pk = self.PK + 4*pi
        for h in range(2):
            o = Oreg(c, 2*mp + h); up = self.UP + 4*h
            V('v_lshlrev_b32', up, '16', pk+2*h); V('v_and_b32', up+1, '0xffff0000', pk+2*h)
            V('v_lshlrev_b32', up+2, '16', pk+2*h+1); V('v_and_b32', up+3, '0xffff0000', pk+2*h+1)
            for z in range(4): V('v_mul_f32', o+z, o+z, fo)
            for z in range(4): V('v_fmac_f32', o+z, up+z, ft, extra_r={o+z})
            V('v_cvt_pk_bf16_f32', pk+2*h, o, o+1); V('v_cvt_pk_bf16_f32', pk+2*h+1, o+2, o+3)
        return o_
    def store(self, pi, L):
        def f():
            self.b.store(4, self.PK + 4*pi, self.VO, 20, 's54' if pi < 4 else 's51', (pi % 4)*1024, self.cfg.opol); L.q.append(('st', 1))
        return [f]
    def rare_block(self, task):
        b = self.b; i, c = divmod(task, 3); S = S_ + 8*(task & 1); t, u = T0, T0+1
        b.reset(); b.label(f'L_rare{task}'); b.nop(2)
        crossred(b, t, u)
        b.v('v_max_f32', t, '0', t)
        b.v('v_sub_f32', u, '0', t); b.exp(u, u)
        for k in range(8): b.v('v_sub_f32', S+k, S+k, t)
        for k in range(4): b.v('v_sub_f32', NM+4*c+k, NM+4*c+k, t)
        b.v('v_mul_f32', L_+c, L_+c, u)
        for k in range(32): b.v('v_mul_f32', O_+32*c+k, O_+32*c+k, u)
        b.nop(2); b.s(f's_branch L_back{task}')

def phase_stamp(b, cfg):
    if cfg.stamps:
        b.raw('s_memrealtime s[90:91]'); b.raw('s_waitcnt lgkmcnt(0)'); b.raw('s_sub_u32 s90, s90, s88')
        b.raw('s_add_u32 s91, s40, s41'); b.raw('s_max_u32 s91, s91, 3'); b.raw('s_sub_u32 s91, s91, 3'); b.raw('s_mov_b32 m0, s91'); b.raw('s_nop 0'); b.raw('s_movreld_b32 s91, s90')
def stamp_dump(b, cfg):
    if cfg.stamps:
        b.raw('s_memrealtime s[90:91]'); b.raw('s_waitcnt lgkmcnt(0)'); b.raw('s_sub_u32 s99, s90, s88')
        b.raw('s_cmp_lg_u32 s35, 4'); b.raw('s_cbranch_scc1 L_k1_end')
        b.raw('s_lshl_b32 s91, s2, 5'); b.raw(f's_add_u32 s80, s20, {64 << 20}'); b.raw('s_addc_u32 s81, s21, 0')
        b.raw(f'v_mov_b32 v{GT+1}, s91')
        for k in range(8):
            b.raw(f'v_mov_b32 v{GT}, s{92+k}'); b.raw(f'global_store_dword v{GT+1}, v{GT}, s[80:81] offset:{4*k}')
    if cfg.ivw is not None:
        b.raw('s_cmp_lg_u32 s35, 4'); b.raw('s_cbranch_scc1 L_k1_end')
        b.raw(f's_add_u32 s80, s20, {66 << 20}'); b.raw('s_addc_u32 s81, s21, 0'); b.raw('s_lshl_b32 s91, s2, 8')
        b.raw(f'v_lshlrev_b32 v{GT}, 2, v{LANE}'); b.raw(f'v_add_u32 v{GT}, s91, v{GT}'); b.raw(f'global_store_dword v{GT}, v247, s[80:81]')

def k1(cfg):
    verify_ring(cfg)
    b = B()
    KN = NAME + '_kernel'
    b.raw(f'.globl {KN}'); b.raw('.p2align 8'); b.raw(f'.type {KN},@function'); b.label(KN)
    b.s('s_cmp_ge_u32 s2, 256'); b.s('s_cbranch_scc1 L_k1_end')
    if cfg.stamps: b.raw('s_memrealtime s[88:89]')
    b.s('s_and_b32 s60, s2, 7'); b.s('s_lshr_b32 s61, s2, 3'); b.s('s_lshr_b32 s62, s60, 2')
    b.s('s_mul_i32 s63, s62, 40'); b.s('s_add_u32 s64, s0, s63'); b.s('s_addc_u32 s65, s1, 0')
    b.s('s_load_dwordx4 s[68:71], s[64:65], 0'); b.s('s_load_dwordx4 s[72:75], s[64:65], 16')
    b.s('s_load_dwordx2 s[76:77], s[64:65], 32'); b.s('s_load_dwordx2 s[78:79], s[0:1], 96'); b.s('s_load_dwordx4 s[28:31], s[0:1], 80')
    if cfg.wopf == 3: b.s('s_load_dwordx2 s[92:93], s[0:1], 32'); b.s('s_load_dwordx2 s[96:97], s[0:1], 72')
    if cfg.codepf:
        b.s('s_and_b32 s39, s61, 15'); b.s('s_cmp_lg_u32 s39, 0'); b.s('s_cbranch_scc1 L_nocpf')
        b.raw('s_getpc_b64 s[82:83]')
        b.label('L_pc')
        b.v('v_lshlrev_b32', 2, '7', 0)
        b.v('v_min_u32', 2, 'L_code_end-L_pc-4', 2)
        b.v('v_mov_b32', 3, 's83')
        b.emit('v_add_co_u32 v2, vcc, s82, v2', 'valu', {2}, {2}); b.nop(2)
        b.emit('v_addc_co_u32 v3, vcc, 0, v3, vcc', 'valu', {3}, {3})
        b.emit(f'global_load_dword v{DUM}, v[2:3], off', 'vmem', {DUM}, {2, 3})
        b.label('L_nocpf')
    b.v('v_lshrrev_b32', 1, '6', 0); b.rfl(35, 1)
    lane_id(b, LANE)
    b.s('s_and_b32 s34, s35, 3'); b.s('s_lshr_b32 s55, s34, 1')
    b.s('s_and_b32 s33, s60, 3'); b.s('s_lshl_b32 s66, s33, 3'); b.s('s_and_b32 s67, s61, 7'); b.s('s_add_u32 s66, s66, s67')
    b.s('s_lshr_b32 s63, s61, 3')
    b.s('s_and_b32 s48, s63, 1' if cfg.stagger else 's_mov_b32 s48, 0')
    b.s('s_mov_b32 s40, 0'); b.s('s_mov_b32 s41, 0'); b.s('s_mov_b32 s37, 0')
    b.s(f's_mov_b32 s32, {cfg.masks[1]}'); b.s('s_cmp_eq_u32 s48, 0'); b.s(f's_cselect_b32 s32, {cfg.masks[0]}, s32')
    b.s('s_mul_i32 s44, s63, 196608'); b.s('s_lshl_b32 s45, s66, 8')
    b.s('s_lshl_b32 s46, s63, 5'); b.s('s_add_u32 s46, s46, s66'); b.s('s_lshl_b32 s46, s46, 17')
    b.s('s_lshl_b32 s80, s62, 4'); b.s('s_add_u32 s80, s80, s63')
    b.s('s_lshl_b32 s47, s80, 6')
    b.s('s_lshl_b32 s39, s66, 1'); b.s('s_add_u32 s47, s47, s39'); b.s('s_add_u32 s47, s47, s55'); b.s('s_mul_i32 s47, s47, 12288')
    b.s('s_and_b32 s39, s34, 1'); b.s('s_mul_i32 s39, s39, 6144'); b.s('s_add_u32 s47, s47, s39')
    b.s('s_mul_i32 s52, s34, 1056'); b.s('s_lshl_b32 s53, s34, 10')
    b.s(f's_mov_b32 s56, {f2u(CEXP):#x}')
    b.s('s_mul_i32 s57, s67, 24576'); b.s('s_lshl_b32 s39, s34, 13'); b.s('s_add_u32 s57, s57, s39'); b.s('s_add_u32 s57, s57, s44')
    b.s('s_cmp_eq_u32 s34, 3'); b.s(f's_cselect_b32 s57, {OOB}, s57')
    b.raw('s_waitcnt lgkmcnt(0)')
    srd(b, 4, 68, 16*96*1024*2); srd(b, 8, 70, 1 << 26); srd(b, 12, 72, 1 << 26); srd(b, 16, 74, 1 << 23)
    srd(b, 20, 78, FB); srd(b, 24, 76, 1 << 23)
    b.s(f's_add_u32 s68, s78, {FB}'); b.s('s_addc_u32 s69, s79, 0'); b.s('s_mov_b32 s70, 49152'); b.s('s_mov_b32 s71, 0x20000')
    b.s('s_mov_b32 s64, s30'); b.s('s_mov_b32 s65, s31')
    b.s(f's_mov_b32 s30, {16*96*2048*2}'); b.s('s_mov_b32 s31, 0x20000')
    b.s('s_lshl_b32 s72, s80, 9'); b.s('s_lshl_b32 s50, s33, 7'); b.s('s_add_u32 s72, s72, s50'); b.s('s_lshl_b32 s50, s67, 3'); b.s('s_add_u32 s72, s72, s50')
    b.s('s_lshl_b32 s81, s80, 3'); b.s('s_add_u32 s81, s81, s67')
    b.s('s_lshl_b32 s73, s81, 7'); b.s('s_add_u32 s73, s73, 16384')
    b.s(f's_mul_i32 s78, s81, {3*PT}'); b.s('s_mul_i32 s79, s34, 6144'); b.s('s_add_u32 s78, s78, s79'); b.s(f's_add_u32 s78, s78, {PB}')
    b.s('s_lshl_b32 s74, s80, 2'); b.s('s_add_u32 s74, s74, s33'); b.s(f's_mul_i32 s74, s74, {16*12288}')
    b.s('s_lshl_b32 s75, s33, 21'); b.s('s_lshl_b32 s50, s67, 8'); b.s('s_add_u32 s75, s75, s50')
    b.s('s_add_u32 s39, s33, 3'); b.s('s_and_b32 s39, s39, 3'); b.s('s_lshl_b32 s39, s39, 2'); b.s('s_add_u32 s39, s39, s63'); b.s(f's_mul_i32 s76, s39, {96*4096}')
    b.s('s_add_u32 s76, s76, s50'); b.s('s_lshl_b32 s50, s62, 11'); b.s('s_add_u32 s76, s76, s50'); b.s('s_lshl_b32 s50, s34, 6'); b.s('s_add_u32 s76, s76, s50')
    b.s('s_lshl_b32 s87, s33, 21'); b.s('s_lshl_b32 s50, s61, 16'); b.s('s_add_u32 s87, s87, s50'); b.s('s_lshl_b32 s50, s34, 13'); b.s('s_add_u32 s87, s87, s50')
    if cfg.pf0 == 2:
        b.s('s_cmp_eq_u32 s48, 0'); b.s('s_cbranch_scc1 L_nopf0')
        b.v('v_lshlrev_b32', 3, '7', LANE)
        b.s('s_mul_i32 s39, s33, 786432'); b.s('s_add_u32 s39, s39, s57'); b.s('s_sub_u32 s39, s39, 196608'); b.s('s_cmp_ge_u32 s35, 3'); b.s(f's_cselect_b32 s39, {OOB}, s39')
        b.load1(DUM, 3, 4, 's39')
        b.v('v_lshrrev_b32', 2, '1', LANE); b.v('v_lshlrev_b32', 2, '13', 2); b.v('v_and_b32', 4, '1', LANE); b.v('v_lshlrev_b32', 4, '7', 4); b.v('v_add_u32', 2, 2, 4)
        b.s('s_lshl_b32 s39, s35, 1'); b.s('s_lshr_b32 s50, s63, 1'); b.s('s_add_u32 s39, s39, s50'); b.s('s_lshl_b32 s39, s39, 18'); b.s('s_add_u32 s39, s39, s45')
        b.load1(DUM, 2, 16, 's39')
        b.s(f's_add_u32 s39, s39, {16 << 18}')
        b.load1(DUM, 2, 16, 's39')
        b.s('s_lshr_b32 s39, s35, 2'); b.s('s_add_u32 s39, s39, s33'); b.s('s_and_b32 s39, s39, 3'); b.s('s_mul_i32 s39, s39, 786432'); b.s('s_add_u32 s39, s39, s57')
        b.load1(DUM, 3, 4, 's39')
        b.label('L_nopf0')
    if cfg.wopf == 3:
        n = cfg.won; assert sum(n) == 64 and max(n) <= 24
        base = [32*sum(n[:i]) for i in range(8)]
        b.s('s_mov_b32 s94, 0x800000'); b.s('s_mov_b32 s95, 0x20000'); b.s('s_mov_b32 s98, 0x800000'); b.s('s_mov_b32 s99, 0x20000')
        b.s('s_mov_b32 s50, 0'); b.s('s_mov_b32 s51, 0')
        for i in range(8):
            b.s(f's_cmp_eq_u32 s60, {i}'); b.s(f's_cselect_b32 s50, {n[i]}, s50'); b.s(f's_cselect_b32 s51, {base[i]}, s51')
        b.s('s_mul_i32 s39, s61, s50'); b.s('s_add_u32 s51, s51, s39'); b.s('s_add_u32 s51, s51, s35'); b.s('s_lshl_b32 s51, s51, 13')
        b.v('v_lshlrev_b32', 3, '7', LANE)
        for r in range((max(n) + 7) // 8):
            b.s(f's_add_u32 s39, s35, {8*r}'); b.s('s_cmp_lt_u32 s39, s50'); b.s('s_cbranch_scc0 L_wo_done')
            b.s(f's_add_u32 s39, s51, {r << 16}')
            b.load1(DUM, 3, 92, 's39')
            b.s('s_sub_u32 s39, s39, 0x800000')
            b.load1(DUM, 3, 96, 's39')
        b.label('L_wo_done')
    b.s('s_mov_b32 s66, 256'); b.s('s_mov_b32 s67, 0x20000')
    for r, v in ((42, 128), (43, 32*2048), (60, 64*8192), (61, 32*8192), (62, 8*8192), (63, 786432)): b.s(f's_mov_b32 s{r}, {v}')
    b.s('s_cmp_ge_u32 s35, 4'); b.s('s_cbranch_scc1 L_gem')
    A = Att(b, cfg)
    L = Loader(b, cfg, LB, T0)
    VP = KF + 20
    b.fence()
    loader_offsets(b, True, LB, 2048, 8192, False, T0)
    L.begin(0, False)
    for i in range(3): L.g(i, True, ('g', i))
    att_setup(b)
    L.need({('g', 0)}); b.barrier()
    b.fence()
    def f_loader(t0, t1, extra={}, fills={}):
        for t in range(t0, t1):
            L.setfill(fills.get(t, []), 7)
            L.g(t + 3, True, ('g', t+3))
            L.flush(); b.wait_lgkm(0)
            for f in extra.get(t, []): f()
            L.need({('g', t+1)} | ({'p', 'n'} if t == 12 else set())); b.barrier()
    def r_loader(t0, t1, extra={}, fills={}, over={}):
        for t in range(t0, t1):
            own = over[t] if t in over else R_OWN.get(t, [])
            L.setfill(fills.get(t, []), 5*len(own))
            for i in own: L.g(i, False, ('g', i))
            L.flush(); b.wait_lgkm(0)
            for f in extra.get(t, []): f()
            L.need({('g', t+1)}); b.barrier()
    def tail(t0, table, kind, pre={}, t1=16):
        for t in range(t0, t1):
            for f in pre.get(t, []): f()
            if t == 15 and t0 != 13:
                assert all(x[0] != ('g', 15) for x in L.q)
                L.psignal(VP)
            for i in table.get(t, []):
                if kind == 'a': L.t(i, ('n', i))
                elif kind == 'p': pdma(i)
                else: L.g(i, kind == 'f', ('n', i))
            L.need({('g', t+1)} if t < 15 else ({('n', 0)} if kind != 'p' else {('n', 2)})); b.barrier()
        if t1 < 16: return
        b.s('s_add_u32 s40, s40, 1')
        L.q = [((('a' if kind == 'a' else 'g'), t[1]) if isinstance(t, tuple) else t, n) for t, n in L.q]
    FJ = 9
    b.label('L_att_F')
    qF = list(L.q)
    f_loader(0, FJ)
    qFj = list(L.q)
    b.label('L_att_Fj')
    f_loader(FJ, 13, {10: [lambda: L.nonce_load(VP), lambda: L.poll(VP, 1)]})
    L.nonce_get(VP)
    q13 = list(L.q)
    b.s('s_bitcmp1_b32 s32, s40'); b.s('s_cbranch_scc0 L_att_FR')
    L.set_a(); tail(13, F_TO_A, 'a')
    qa = list(L.q)
    b.s('s_branch L_att_a')
    b.label('L_att_FR'); L.q = list(q13)
    L.begin(1, False); L.check(VP, 1)
    tail(13, F_TO_R, 'r')
    b.fence()
    b.label('L_att_R')
    qR = list(L.q)
    pollx = lambda: L.poll(VP, 1)
    L.g(4, False, ('g', 4)); L.need({('g', 1)}); b.barrier()
    q1 = list(L.q)
    if not cfg.pdirect: b.s('s_cmp_ge_u32 s40, 4'); b.s('s_cbranch_scc1 L_att_RO')
    def rq():
        if cfg.pdirect: b.s('s_cmp_eq_u32 s41, 0'); b.s('s_cbranch_scc0 L_att_norq')
        sv = b.save(); q_addr(b, T0, T0+1); q_reads(b, T0); b.wait_lgkm(0); b.restore(sv)
        b.label('L_att_norq')
    r_loader(1, 11, {1: [rq], 9: [pollx]}, {}, R_OWNP)
    qj = list(L.q); nj = L.items()
    b.fence()
    if not cfg.pdirect:
        b.s('s_branch L_att_Rj')
        b.label('L_att_RO'); L.q = list(q1)
        L.ub('s39', 's40', 3); b.s(f's_mul_i32 s54, s39, {32*3*PT}'); b.s('s_add_u32 s54, s54, s78')
        b.s('s_lshl_b32 s83, s39, 12'); b.s('s_add_u32 s83, s83, s73')
        b.s('s_sub_u32 s39, s40, 5'); b.s(f's_mul_i32 s51, s39, {PT}'); b.s('s_add_u32 s54, s54, s51'); b.s('s_add_u32 s51, s54, 4096')
        b.s('s_lshl_b32 s39, s39, 3'); b.s('s_add_u32 s83, s83, s39')
        b.s('s_cmp_eq_u32 s35, 0'); b.s('s_cselect_b32 s37, 1, 0')
        b.s(f's_add_u32 s50, s79, {XB}')
        b.v('v_lshlrev_b32', A.VO, '4', LANE); b.v('v_add_u32', A.XP, 's50', A.VO)
        fi = {1: A.c2a()[3:]}
        for k in range(3): fi[2+k] = A.store(2*k, L) + A.store(2*k+1, L)
        r_loader(1, 11, {7: [lambda: L.need({'st'})], 8: [lambda: L.psignal(VP)], 9: [pollx]}, fi, R_OWNP)
        assert L.q == qj, (L.q, qj)
        b.fence()
    b.label('L_att_Rj')
    L.g(15, False, ('g', 15))
    qj = list(L.q)
    b.s('s_bitcmp1_b32 s32, s40'); b.s('s_cbranch_scc0 L_att_RG')
    L.set_a(); tail(11, R_TO_A, 'a')
    assert L.q == qa, (L.q, qa)
    b.fence()
    b.label('L_att_a')
    A.addr_k(0)
    for k in range(8): A.kread(k)()
    b.s('s_cmp_eq_u32 s48, 0'); b.s('s_cbranch_scc1 L_a_c0a')
    sv = b.save()
    A.start(); b.fence()
    b.label('L_a_c0a'); b.restore(sv)
    L.t(6, ('a', 6)); L.t(7, ('a', 7))
    q_addr(b, P_+4, P_+5)
    b.raw('s_waitcnt lgkmcnt(0)'); b.lds = []
    A.addr_v(0); A.addr_k(1)
    L.need(cons_tags('a', 'a', 1)); b.barrier()
    b.s('s_cmp_eq_u32 s48, 0'); b.s('s_cbranch_scc0 L_a_i1')
    q_reads(b, P_+4)
    A.start()
    b.fence()
    b.label('L_a_i1')
    A.intervals(L)
    b.s('s_add_u32 s41, s41, 1')
    A.c0()
    kvo = lambda: loader_offset_ops(b, True, LB, 2048, 8192, False, T0)[:5]
    usesAF = any(m >> 3 & 1 for m in cfg.masks)
    if usesAF:
        b.s('s_cmp_eq_u32 s40, 4'); b.s('s_cbranch_scc1 L_att_AF')
    sv = b.save()
    b.barrier()
    for f in A.c1(): f()
    b.wait_lgkm(0)
    if not cfg.allfast:
        b.s('s_add_u32 s39, s41, 2'); b.s('s_cmp_eq_u32 s39, s40'); b.s('s_cbranch_scc1 L_att_AU')
        sv3 = b.save()
        b.barrier()
        L.q = []
        for f in A.c2a(): f()
        L.begin(0, True); L.set_ost()
        L.ub('s83', 's41', 3); b.s('s_lshl_b32 s83, s83, 11'); b.s('s_add_u32 s83, s83, s72')
        b.s('s_cmp_eq_u32 s35, 0'); b.s('s_cselect_b32 s37, 1, 0')
        b.barrier()
        fi = {3: A.c2b() + kvo()}
        for pi in range(6): fi[4+pi] = A.part(pi) + (A.store(pi-1, L) if pi else [])
        fi[10] = A.store(5, L)
        r_loader(3, 11, {9: [pollx]}, fi, R_OWNS)
        assert L.items() == nj, (L.q, qj)
        b.fence()
        b.s('s_branch L_att_Rj')
        b.label('L_att_AU'); b.restore(sv3)
    L.begin(0, True); L.set_ost()
    b.barrier()
    L.q = []
    fi = {2: A.c2a() + kvo(), 3: A.c2b()}
    if cfg.burst:
        for k in range(3): fi[4+k] = A.part(2*k) + A.part(2*k+1)
        fi[6] = fi[6] + sum([A.store(k, L) for k in range(6)], [])
    else:
        for k in range(3): fi[4+k] = A.part(2*k) + A.store(2*k, L) + A.part(2*k+1) + A.store(2*k+1, L)
    ex = {9: [pollx]}; ex.setdefault(cfg.sigat-1, []).append(lambda: L.need({'st'})); ex.setdefault(cfg.sigat, []).append(lambda: L.signal(VP))
    r_loader(2, 11, ex, fi)
    got = L.items(); assert got == nj[len(nj)-len(got):], (L.q, qj)
    b.fence()
    b.s('s_branch L_att_Rj')
    if usesAF:
        b.label('L_att_AF'); b.restore(sv)
        L.begin(0, True); L.set_ost()
        b.barrier()
        L.q = []
        L.setfill(A.c1(), 14); L.g(3, True, ('g', 3)); L.g(4, True, ('g', 4)); L.flush()
        b.wait_lgkm(0); b.barrier()
        fi = {2: A.c2a() + kvo() + A.c2b()}
        for k in range(3): fi[3+k] = A.part(2*k) + A.store(2*k, L) + A.part(2*k+1) + A.store(2*k+1, L)
        f_loader(2, FJ, {FJ-2: [lambda: L.need({'st'})], FJ-1: [lambda: L.signal(VP)]}, fi)
        assert L.items() == [n for _, n in qFj]
        b.fence()
        b.s('s_branch L_att_Fj')
    b.label('L_att_RG'); b.reset()
    b.s('s_cmp_eq_u32 s40, 7'); b.s('s_cbranch_scc1 L_att_RP')
    b.s('s_cmp_eq_u32 s40, 3'); b.s('s_cbranch_scc1 L_att_RF')
    L.q = list(qj)
    tail(11, {}, 'r', {11: [lambda: L.begin(1, False)]}, 12)
    L.need({'p'})
    q12 = list(L.q)
    b.emit(f'v_cmp_ne_u64 vcc, s[84:85], {vr(VP,2)}', 'valu', (), R(VP, 2))
    b.s('s_cbranch_vccnz L_att_RRl')
    tail(12, r_to_r(12), 'r')
    assert L.q == qR, (L.q, qR)
    b.s('s_branch L_att_R')
    b.label('L_att_RRl'); L.q = list(q12)
    tail(12, r_to_r(14), 'r', {12: [pollx], 14: [lambda: (L.need({'p'}), L.check(VP, None))]})
    assert L.q == qR, (L.q, qR)
    b.s('s_branch L_att_R')
    b.label('L_att_RF'); L.q = list(qj)
    tail(11, R_TO_F, 'f', {11: [lambda: L.begin(1, False)], 12: [lambda: (L.need({'p'}), L.check(VP, None))]})
    assert L.q == qF, (L.q, qF)
    b.s('s_branch L_att_F')
    b.label('L_att_RP'); L.q = list(qj)
    def pdma(i):
        for hlf, n in ((0, 4), (1, 2)):
            b.s(f's_add_u32 m0, s79, {PLDS[i] + hlf*4096}'); b.s(f's_add_u32 s39, s58, {i*PT + hlf*4096}')
            for k in range(n): b.dma(A.VO, 20, 's39', k*1024, ' sc1')
        L.q.append((('n', i), 6))
    def p11():
        b.v('v_lshlrev_b32', A.VO, '4', LANE)
        L.ub('s58', 's40'); b.s(f's_mul_i32 s58, s58, {32*3*PT}'); b.s('s_add_u32 s58, s58, s78')
    tail(11, R_TO_P, 'p', {11: [p11], 12: [lambda: (L.need({'p'}), L.check(VP, None))]})
    b.s('s_endpgm')
    b.reset()
    b.label('L_gem')
    if cfg.prio & 1: b.s('s_setprio 2')
    if cfg.ivw is not None:
        b.s(f's_mov_b32 s86, {(-cfg.ivw) & 0xffffffff}'); b.v('v_mov_b32', 247, '0')
        ob = b.barrier; cnt = [0]
        def nb():
            ob(); cnt[0] += 1
            b.raw('s_cmp_lt_u32 s86, 64'); b.raw(f's_cbranch_scc0 L_iv{cnt[0]}')
            b.raw('s_memtime s[90:91]'); b.raw('s_mov_b32 m0, s86'); b.raw('s_waitcnt lgkmcnt(0)'); b.raw('v_writelane_b32 v247, s90, m0')
            b.raw(f'L_iv{cnt[0]}:'); b.raw('s_add_u32 s86, s86, 1')
        b.barrier = nb
    M = Loader(b, cfg, GB, GT)
    b.s('s_mov_b32 s77, 0')
    gemm_setup(b)
    loader_offsets(b, 2, GB, 2048, 8192, False, GT)
    b.v('v_and_b32', GT, '15', LANE); b.v('v_mul_u32_u24', VQW, str(QROW), GT)
    b.v('v_lshrrev_b32', GT, '4', LANE); b.v('v_lshlrev_b32', GT, '3', GT)
    b.s('s_lshl_b32 s39, s34, 6'); b.s(f's_add_u32 s39, s39, {XB}'); b.v('v_add3_u32', VQW, VQW, GT, 's39')
    b.s('s_add_u32 s39, s2, s34'); b.s('s_cmp_lg_u32 s39, 0'); b.s('s_cbranch_scc1 L_nononce')
    b.raw('s_memrealtime s[50:51]'); b.raw('s_waitcnt lgkmcnt(0)'); b.s('s_or_b32 s50, s50, 1')
    b.v('v_mov_b32', GF, 's50'); b.v('v_mov_b32', GF+1, 's51')
    b.s('s_mov_b64 exec, 1')
    b.emit(f'buffer_store_dwordx2 {vr(GF,2)}, off, s[64:67], 0 sc1', 'vmem', (), R(GF, 2))
    b.s('s_mov_b64 exec, -1')
    b.label('L_nononce')
    b.barrier()
    b.fence()
    b.label('L_gem_F')
    xq = [(None, cfg.kvpf)] if cfg.kvpf else []
    qf = [(('g', i), 7) for i in (1, 2)] + xq; qg = [(('g', i), 5) for i in range(1, 5)] + xq
    M.q = list(qf)
    g_main(b, cfg, True, M)
    b.s('s_branch L_gem_done')
    b.fence()
    b.label('L_gem_R')
    M.q = list(qg)
    g_main(b, cfg, False, M)
    b.label('L_gem_done')
    phase_stamp(b, cfg)
    sv = b.save()
    b.s('s_cmp_lg_u32 s40, 3'); b.s('s_cbranch_scc1 L_gem_nsw')
    for h in range(2): b.v('v_lshlrev_b32', VXB+h, '4', LANE)
    b.v('v_add_u32', VXB+1, '1024', VXB+1)
    b.label('L_gem_nsw'); b.restore(sv)
    b.s('s_cmp_ge_u32 s40, 4'); b.s('s_cbranch_scc1 L_gem_ot')
    b.s('s_bitcmp1_b32 s32, s40'); b.s('s_cbranch_scc0 L_gem_qg')
    b.s('s_add_u32 s40, s40, 1')
    g_tail(b, q_ops(b)); b.fence()
    b.s('s_branch L_gem_a')
    b.label('L_gem_qg'); b.restore(sv)
    b.s('s_add_u32 s40, s40, 1'); b.s('s_cmp_eq_u32 s40, 4'); b.s('s_cbranch_scc1 L_gem_qf')
    g_fused(b, q_ops(b), False)
    b.label('L_gem_qf'); b.restore(sv)
    g_fused(b, q_ops(b), True)
    b.label('L_gem_ot'); b.restore(sv)
    b.s('s_cmp_eq_u32 s40, 7'); b.s('s_cbranch_scc1 L_gem_fin')
    def pk_ops(qb, base):
        pk = base(qb); o = []
        for nt in range(2):
            a = acc(nt, qb)
            o += [lambda a=a, nt=nt: b.v('v_cvt_pk_bf16_f32', pk+2*nt, a, a+1), lambda a=a, nt=nt: b.v('v_cvt_pk_bf16_f32', pk+2*nt+1, a+2, a+3)]
        return o
    inpl = lambda qb: acc(0, qb)
    def pstore(qb): b.store(4, inpl(qb), VXB, 20, 's50' if qb < 4 else 's51', (qb % 4)*1024, cfg.opol)
    def paddr():
        M.ub('s39', 's40'); b.s(f's_mul_i32 s50, s39, {32*3*PT}'); b.s('s_add_u32 s50, s50, s78')
        b.s('s_lshl_b32 s83, s39, 12'); b.s('s_add_u32 s83, s83, s73')
        b.s('s_and_b32 s39, s40, 3'); b.s(f's_mul_i32 s51, s39, {PT}'); b.s('s_add_u32 s50, s50, s51'); b.s('s_add_u32 s51, s50, 4096')
        b.s('s_lshl_b32 s39, s39, 3'); b.s('s_add_u32 s83, s83, s39')
    paddr()
    b.s('s_bitcmp1_b32 s32, s40'); b.s('s_cbranch_scc1 L_gem_pa')
    if cfg.pdirect:
        b.s('s_cmp_eq_u32 s35, 4'); b.s('s_cselect_b32 s37, 1, 0'); b.s('s_add_u32 s40, s40, 1')
        for f in gemm_addr_ops(b, g_base(0, False)): f()
        po = [pk_ops(qb, inpl) + [lambda qb=qb: pstore(qb)] for qb in range(6)]
        x1 = {7+k: [po[0][k]] for k in range(5)}
        x0 = {}
        for qb in range(2, 6):
            x0[2*(qb-2)] = po[qb][:2]; x0[2*(qb-2)+1] = po[qb][2:]
        def mid():
            for f in po[1]: f()
        g_interval(b, RES, False, False, gemm_addr_ops(b, g_base(1, False)), lambda: None, zero=True, x1=x1, x0=x0, mid=mid)
        b.s('s_branch L_gem_R1')
    else:
        b.s('s_add_u32 s40, s40, 1'); b.s(f's_add_u32 s39, s79, {XB}')
        b.v('v_add_u32', GT, 's39', VXB)
        g_fused(b, sum([pk_ops(qb, inpl) + [lambda qb=qb: b.dsw('ds_write_b128', GT, inpl(qb), 4, qb*1024)] for qb in range(6)], []), False)
    b.label('L_gem_pa'); b.restore(sv)
    g_tail(b, sum([pk_ops(qb, inpl) for qb in range(6)], []))
    b.s('s_mov_b32 s77, 1'); b.s('s_add_u32 s40, s40, 1')
    b.fence()
    b.label('L_gem_a'); b.reset()
    M.q = []
    M.set_a()
    b.barrier()
    def a_loader(t0, t1, nxt):
        for t in range(t0, t1):
            if t == 1: M.nonce_load(GF)
            if t == 3: M.poll(GF, 0)
            for p in A_OWN.get(t, []): M.t(p, ('a', p))
            if t == 1 and cfg.pf:
                M.ub('s39', 's40'); b.s('s_mul_i32 s39, s39, 786432'); b.s('s_add_u32 s39, s39, s57')
                b.s('s_cmp_ge_u32 s40, 4'); b.s(f's_cselect_b32 s39, {OOB}, s39')
                b.load1(DUM, GB+3, 4, 's39'); M.other(1)
            if t == 2 and cfg.wl2 is not None:
                b.s('s_add_u32 s39, s41, s48'); b.s(f's_cmp_eq_u32 s39, {cfg.wl2}'); b.s(f's_cselect_b32 s39, s87, {OOB}')
                b.load1(DUM, GB+3, 24, 's39'); b.s('s_add_u32 s39, s39, 32768'); b.load1(DUM, GB+3, 24, 's39'); M.other(2)
            if t == 4: M.nonce_get(GF)
            if t == 5: M.begin(0, False)
            if t == cfg.pst and nxt == 'R':
                b.s('s_cmp_eq_u32 s77, 0'); b.s('s_cbranch_scc1 L_gem_nops')
                for qb in range(6): pstore(qb)
                b.s('s_mov_b32 s77, 0'); b.s('s_cmp_eq_u32 s35, 4'); b.s('s_cselect_b32 s37, 1, 0')
                b.label('L_gem_nops')
            if t == 6: M.check(GF, 0)
            if nxt:
                for i in (A_TO_R if nxt == 'R' else A_TO_F).get(t, []): M.g(i, nxt == 'F', ('g', i))
            if t == 8 and cfg.kvpf:
                M.ub('s39', 's41', 1); b.s('s_lshl_b32 s39, s39, 24'); b.s('s_add_u32 s39, s39, s46')
                b.s('s_lshl_b32 s58, s34, 13'); b.s('s_add_u32 s39, s39, s58')
                b.s('s_cmp_ge_u32 s41, 3'); b.s(f's_cselect_b32 s39, {OOB}, s39')
                if not cfg.kvpfall: b.s('s_bitcmp1_b32 s32, s40'); b.s(f's_cselect_b32 s39, s39, {OOB}')
                for k in range(cfg.kvpf):
                    if k == 2: b.s('s_add_u32 s39, s39, 32768')
                    b.load1(DUM, GB+3, 8 if k % 2 == 0 else 12, 's39', cfg.kvpfpol)
                M.other(cfg.kvpf)
            M.need(cons_tags('a', 'a', t+1) if t < 8 else {('g', 0)})
            b.barrier()
    a_loader(1, 6, None)
    q5 = list(M.q)
    if usesAF: b.s('s_cmp_eq_u32 s40, 4'); b.s('s_cbranch_scc1 L_gem_AF')
    a_loader(6, 9, 'R')
    assert M.q == qg, (M.q, qg)
    phase_stamp(b, cfg)
    b.s('s_add_u32 s41, s41, 1')
    b.s('s_branch L_gem_R')
    if usesAF:
        b.label('L_gem_AF'); M.q = list(q5)
        a_loader(6, 9, 'F')
        assert M.q == qf, (M.q, qf)
        phase_stamp(b, cfg)
        b.s('s_add_u32 s41, s41, 1')
        b.s('s_branch L_gem_F')
    b.label('L_gem_fin'); b.restore(sv)
    ID = RES; PF_ = RES + 8; t = GT
    b.v('v_add_u32', VX, 's79', VXB); b.v('v_add_u32', VX+1, str(XB), VX)
    rd = [lambda p=p, qb=qb: b.dsr('ds_read_b128', PF_ + 12*qb + 4*p, 4, VX+1 if p == 0 else VX, (PLDS[p] if p else 0) + qb*1024) for qb in range(6) for p in range(3)]
    u = RES + 84
    idops = [lambda: b.v('v_bfe_u32', u, LANE, '2', '2'), lambda: b.v('v_lshrrev_b32', u+1, '4', LANE),
             lambda: b.emit(f'v_cmp_eq_u32 vcc, {vr(u)}, {vr(u+1)}', 'valu', (), {u, u+1}),
             lambda: b.v('v_and_b32', u, '1', LANE), lambda: b.v('v_lshlrev_b32', u, '4', u), lambda: b.v('v_mov_b32', u+1, '0x3f80'), lambda: b.v('v_lshlrev_b32', u, u, u+1),
             lambda: b.emit(f'v_cndmask_b32 {vr(u)}, 0, {vr(u)}, vcc', 'valu', {u}, {u}),
             lambda: b.v('v_and_b32', u+1, '2', LANE),
             lambda: b.emit(f'v_cmp_eq_u32 vcc, 0, {vr(u+1)}', 'valu', (), {u+1})]
    idops += [lambda k=k: b.v('v_mov_b32', ID+k, '0') for k in (0, 1, 4, 5)]
    idops += [lambda: b.emit(f'v_cndmask_b32 {vr(ID+2)}, 0, {vr(u)}, vcc', 'valu', {ID+2}, {u}), lambda: b.v('v_sub_u32', ID+3, u, ID+2)]
    g_block(b, 1, A1, {k: [rd.pop(0), idops.pop(0)] for k in range(12)})
    for f in idops: f()
    fill = rd + [lambda: b.v('v_and_b32', t, '15', LANE), lambda: b.v('v_lshlrev_b32', t, '12', t),
                 lambda: b.v('v_bfe_u32', t+1, LANE, '4', '1'), lambda: b.v('v_lshl_add_u32', t, t+1, '5', t),
                 lambda: b.v('v_lshrrev_b32', t+1, '5', LANE), lambda: b.v('v_lshl_add_u32', t, t+1, '4', t)]
    def epi(qb):
        pk = BF[0] + 4*qb
        return pk_ops(qb, lambda qb: BF[0] + 4*qb) + [lambda: b.swap16(pk, pk+2), lambda: b.swap16(pk+1, pk+3),
                lambda: (b.store(4, pk, t, 28, 's76', 0, cfg.outpol), b.s(f's_add_u32 s76, s76, {16*4096}'))]
    for qb in range(6):
        if qb >= 2: fill += epi(qb-2)
        for p in range(3):
            for nt in range(2):
                b.mfma16(acc(nt, qb), ID + (2 if nt == 0 else 0), PF_ + 12*qb + 4*p, acc(nt, qb))
                if fill: fill.pop(0)()
    for f in fill + epi(4) + epi(5): f()
    stamp_dump(b, cfg)
    b.label('L_k1_end')
    b.s('s_endpgm')
    b.label('L_code_end')
    for task in A.rare: A.rare_block(task)
    return b

def desc(name, nv):
    return f'''.p2align 6
.amdhsa_kernel {name}
  .amdhsa_next_free_vgpr {nv}
  .amdhsa_next_free_sgpr 102
  .amdhsa_accum_offset {nv}
  .amdhsa_group_segment_fixed_size 0
  .amdhsa_kernarg_size 104
  .amdhsa_user_sgpr_count 2
  .amdhsa_user_sgpr_kernarg_segment_ptr 1
  .amdhsa_system_sgpr_workgroup_id_x 1
.end_amdhsa_kernel
'''
def build(path, cfg, which=None):
    B.nodma = cfg.nodma; B.skel = cfg.skel; G['cfg'] = cfg; B.guard = False
    a = k1(cfg)
    s = '; @launch grid=(256,1,1) block=(512,1,1) lds=163840\n.amdgcn_target "amdgcn-amd-amdhsa--gfx950"\n.text\n' + a.text()
    s += '.section .rodata,"a"\n' + desc(NAME + '_kernel', 256)
    open(path, 'w').write(s)
    return a, a
def mk(path, which=('k1', 'k2'), **kw):
    cfg = Cfg()
    for k, v in kw.items():
        assert hasattr(cfg, k), k
        setattr(cfg, k, v)
    return build(path, cfg, which)

if __name__ == '__main__':
    a, c = mk('v10.s')
    print('k1 lines', len(a.lines), 'nops', a.nnop, 'k2 lines', len(c.lines), 'nops', c.nnop)
```

```python
import math, struct, sys
from asmb import *
NAME = 'concat_heads__mha_block_cached__gqa_block_cached__near_ridge'
RING = 135168; XB = RING
HS = 16896; AS = 33792; GS = 22528; WG = 8448
QROW = 272; STAT = XB + 24576
def f2u(x): return struct.unpack('<I', struct.pack('<f', x))[0]
CEXP = math.log2(math.e) / math.sqrt(128.0)
LANE = 255; DUM = 254
OOB = 0x40000000

class Cfg:
    kvpol = ' nt'; opol = ' sc1'; xpol = ' sc1'; outpol = ''; pf = True; pf0 = 2; stamps = False; stagger = True
    wopf = 3; won = (0, 9, 2, 11, 5, 14, 7, 16); nodma = False; skel = False; codepf = True; nosig = False
    ivw = None; prio = 1; masks = (0x17, 0x2e); dropst = 0; allfast = True; pdirect = True; burst = True; kvpf = 1; kvpfpol = ''; kvpfall = False; fast = False; pst = 7; sigat = 9; rrc = 12; wl2 = None

PB = 26 << 20; FB = 48 << 20; PT = 24576
G = {}
def srd(b, d, lo, size):
    b.s(f's_mov_b32 s{d}, s{lo}'); b.s(f's_mov_b32 s{d+1}, s{lo+1}'); b.s(f's_mov_b32 s{d+2}, {size}'); b.s(f's_mov_b32 s{d+3}, 0x20000')
def lane_id(b, d):
    b.v('v_mbcnt_lo_u32_b32', d, '-1', '0'); b.v('v_mbcnt_hi_u32_b32', d, '-1', d)

XO = 0; WO1 = 12288; WO0 = 12288 + WG
GMAP = [0,1,2,3,4,5,0,1,2,3,0,1,2,3,4,5]
HMAP = [p % 8 for p in range(16)]
def g_base(i, full, cls=0): return (i % 4)*AS if full else GMAP[i]*GS
TILES = [('K',0)] + sum([[('K',j+1), ('V',j)] for j in range(7)], []) + [('V',7)]
def t_base(p): return HMAP[p]*HS
KPOS = {j: TILES.index(('K', j)) for j in range(8)}
VPOS = {j: TILES.index(('V', j)) for j in range(8)}
def t_cons(p): k, j = TILES[p]; return j if k == 'K' else j + 1

def loader_offset_ops(b, kv, base, xstride, wstride, operm, t):
    lane = LANE
    vKV, vX, vW, vPF = base, base+1, base+2, base+3
    t0, t1 = t, t+1
    o = []
    def V(*a): o.append(lambda: b.v(*a))
    V('v_and_b32', t0, '15', lane); V('v_lshlrev_b32', t0, '4', t0)
    V('v_lshrrev_b32', t1, '4', lane)
    if kv:
        V('v_lshl_add_u32', vKV, t1, '3', 's34'); V('v_lshl_add_u32', vKV, vKV, '8', t0)
    sa, sb = (4, 3) if operm else (2, 4)
    V('v_and_b32', vW, '1', t1); V('v_lshl_add_u32', vW, vW, str(sa), 's34')
    V('v_lshrrev_b32', t1, '1', t1); V('v_lshl_add_u32', vW, t1, str(sb), vW)
    V('v_lshl_add_u32', vW, vW, str(int(math.log2(wstride))), t0)
    if operm:
        V('v_lshl_add_u32', vX, lane, '4', 's53')
    else:
        V('v_lshrrev_b32', t0, '3', lane); V('v_lshl_add_u32', t0, 's34', '3', t0)
        V('v_lshrrev_b32', t1, '1', t0); V('v_xor_b32', t1, t1, lane); V('v_and_b32', t1, '7', t1); V('v_lshlrev_b32', t1, '4', t1)
        V('v_lshl_add_u32', vX, t0, str(int(math.log2(xstride))), t1)
    if kv == 2: V('v_lshlrev_b32', vPF, '7', lane)
    return o
def loader_offsets(b, *a):
    for f in loader_offset_ops(b, *a): f()


class Loader:
    def __init__(self, b, cfg, base, t): self.b, self.cfg, self.base, self.tmp, self.q, self.fill, self.per, self.n = b, cfg, base, t, [], [], 0, 0
    def lab(self, s): self.n += 1; return f'L_{s}{self.base}_{self.n}'
    def setfill(self, ops, ndma):
        self.fill = list(ops); self.per = -(-len(self.fill) // max(ndma, 1))
    def _f(self):
        for _ in range(self.per):
            if self.fill: self.fill.pop(0)()
    def flush(self):
        while self.fill: self.fill.pop(0)()
    def g(self, i, full, tag):
        b = self.b; vX, vW = self.base+1, self.base+2; lds = g_base(i, full)
        b.s(f's_mul_i32 s58, s42, {i}'); b.s('s_add_u32 s58, s58, s36')
        b.s(f's_mul_i32 s59, s60, {i}'); b.s('s_add_u32 s59, s59, s45')
        for z in range(3):
            b.s(f's_add_u32 m0, s53, {lds + XO + z*4096}')
            if z: b.s('s_add_u32 s58, s58, s43')
            b.dma(vX, 4, 's58', 0, self.cfg.xpol); self.q.append((tag, 1)); self._f()
        for h in (0, 1):
            if h: b.s('s_add_u32 s59, s59, s61')
            if h == 0 and not full: continue
            for z in (0, 1):
                b.s(f's_add_u32 m0, s52, {lds + (WO1 if h else WO0) + z*4224}')
                if z: b.s('s_add_u32 s39, s59, s62')
                b.dma(vW, 16, 's39' if z else 's59'); self.q.append((tag, 1)); self._f()
        self.norm()
    def t(self, p, tag):
        b = self.b; k, j = TILES[p]; srd_ = 8 if k == 'K' else 12; lds = t_base(p); pol = self.cfg.kvpol
        for kh in range(2):
            b.s(f's_add_u32 m0, s52, {lds + kh*8448}'); b.s(f's_add_u32 s39, s38, {j*16384 + kh*8192}')
            b.dma(self.base, srd_, 's39', 0, pol)
            b.s('s_add_u32 m0, m0, 3200')
            b.dma(self.base, srd_, 's39', 1024, pol)
        self.q.append((tag, 4))
    def norm(self):
        q = []
        for t, n in self.q:
            if q and q[-1][0] == t: q[-1] = (t, q[-1][1] + n)
            else: q.append((t, n))
        self.q = q
    def items(self):
        t = Loader(self.b, self.cfg, 0, 0); t.q = [x for x in self.q if isinstance(x[0], tuple)]; t.norm(); return [n for _, n in t.q]
    def other(self, n): self.q.append((None, n))
    def need(self, tags):
        last = -1
        for i, (t, n) in enumerate(self.q):
            if t in tags: last = i
        if last >= 0:
            self.q = self.q[last+1:]
            self.b.vm(min(63, sum(n for _, n in self.q)))
    def ub(self, d, unit_sgpr, plus=0):
        self.b.s(f's_add_u32 {d}, {unit_sgpr}, s33')
        if plus: self.b.s(f's_add_u32 {d}, {d}, {plus & 3}')
        self.b.s(f's_and_b32 {d}, {d}, 3')
    def begin(self, plus, recompute):
        b = self.b; lo, le = self.lab('bo'), self.lab('be')
        b.fence()
        b.s(f's_cmp_ge_u32 s40, {4 - plus}'); b.s(f's_cbranch_scc1 {lo}')
        if recompute: loader_offsets(b, False, self.base, 2048, 8192, False, self.tmp)
        b.s(f's_branch {le}')
        b.label(lo)
        for k in range(3): b.s(f's_mov_b32 s{4+k}, s{20+k}')
        for k in range(2): b.s(f's_mov_b32 s{16+k}, s{24+k}')
        for r, v in ((42, 12288), (43, 4096), (60, 64*2048), (61, 32*2048), (62, 4*2048), (63, 3145728), (44, 's74'), (45, 's75')): b.s(f's_mov_b32 s{r}, {v}')
        loader_offsets(b, False, self.base, 128, 2048, True, self.tmp)
        b.label(le)
        self.ub('s36', 's40', plus); b.s('s_mul_i32 s36, s36, s63'); b.s('s_add_u32 s36, s36, s44')
        b.fence()
    def set_a(self):
        self.ub('s38', 's41'); self.b.s('s_lshl_b32 s38, s38, 24'); self.b.s('s_add_u32 s38, s38, s46')
    def set_ost(self):
        self.ub('s54', 's41', 3); self.b.s('s_mul_i32 s54, s54, 3145728'); self.b.s('s_add_u32 s54, s54, s47')
        if self.cfg.dropst: self.b.s(f's_cmp_le_u32 s41, {self.cfg.dropst}'); self.b.s(f's_cselect_b32 s54, {OOB}, s54')
    def nonce_load(self, v):
        self.b.emit(f'buffer_load_dwordx2 {vr(v+4,2)}, off, s[64:67], 0 sc1', 'vmem', R(v+4, 2)); self.q.append(('n', 1))
    def nonce_get(self, v):
        b = self.b; l0, l1 = self.lab('nc'), self.lab('nk')
        assert all(x[0] != 'n' for x in self.q)
        b.s('s_mov_b32 s49, 0x40000')
        b.label(l0)
        b.rfl(84, v+4); b.rfl(85, v+5); b.nop(1)
        b.s('s_cmp_lg_u32 s84, 0'); b.s(f's_cbranch_scc1 {l1}')
        b.s('s_sleep 4')
        b.emit(f'buffer_load_dwordx2 {vr(v+4,2)}, off, s[64:67], 0 sc1', 'vmem', R(v+4, 2)); b.vm(0)
        b.s('s_sub_u32 s49, s49, 1'); b.s('s_cmp_lg_u32 s49, 0'); b.s(f's_cbranch_scc1 {l0}')
        b.label(l1)
    def poll(self, v, plus):
        b = self.b
        self.ub('s82', 's40', plus); b.s('s_lshl_b32 s82, s82, 11'); b.s('s_add_u32 s82, s82, s72'); b.s('s_andn2_b32 s82, s82, 127')
        b.s(f's_cmp_lt_u32 s40, {4 - plus}'); b.s(f's_cselect_b32 s82, {OOB}, s82')
        if plus:
            b.s('s_bitcmp1_b32 s32, s40'); b.s(f's_cselect_b32 s82, {OOB}, s82')
            self.ub('s39', 's40'); b.s('s_lshl_b32 s39, s39, 12'); b.s('s_add_u32 s39, s39, s73')
            b.s('s_cmp_eq_u32 s40, 7'); b.s('s_cselect_b32 s82, s39, s82'); b.s('s_cselect_b32 s39, 2, 7')
            b.v('v_min_u32', v+2, 's39', LANE)
        else:
            b.v('v_min_u32', v+2, '7', LANE)
        b.v('v_lshlrev_b32', v+2, '3', v+2)
        b.emit(f'buffer_load_dwordx2 {vr(v,2)}, {vr(v+2)}, s[68:71], s82 offen sc1', 'vmem', R(v, 2), {v+2}); self.q.append(('p', 1))
    def check(self, v, plus):
        b = self.b; l0, l1 = self.lab('ck'), self.lab('ok')
        assert all(x[0] != 'p' for x in self.q)
        if self.cfg.nosig: return
        if plus is not None: b.s(f's_cmp_lt_u32 s40, {4 - plus}'); b.s(f's_cbranch_scc1 {l1}')
        b.s('s_mov_b32 s49, 0x40000')
        b.label(l0)
        b.emit(f'v_cmp_ne_u64 vcc, s[84:85], {vr(v,2)}', 'valu', (), R(v, 2))
        b.s(f's_cbranch_vccz {l1}')
        b.s('s_sleep 2')
        b.emit(f'buffer_load_dwordx2 {vr(v,2)}, {vr(v+2)}, s[68:71], s82 offen sc1', 'vmem', R(v, 2), {v+2}); b.vm(0)
        b.s('s_sub_u32 s49, s49, 1'); b.s('s_cmp_lg_u32 s49, 0'); b.s(f's_cbranch_scc1 {l0}')
        b.label(l1)
    def flag_store(self, v, soff):
        b = self.b
        b.v('v_mov_b32', v+4, 's84'); b.v('v_mov_b32', v+5, 's85')
        b.s('s_mov_b64 exec, 1')
        b.emit(f'buffer_store_dwordx2 {vr(v+4,2)}, off, s[68:71], {soff} sc1', 'vmem', (), R(v+4, 2))
        b.s('s_mov_b64 exec, -1')
    def signal(self, v):
        b = self.b
        assert all(x[0] != 'st' for x in self.q)
        self.ub('s39', 's41', 3); b.s('s_lshl_b32 s39, s39, 11'); b.s('s_add_u32 s39, s39, s72')
        b.s('s_cmp_eq_u32 s35, 0'); b.s(f's_cselect_b32 s39, s39, {OOB}')
        self.flag_store(v, 's39'); self.other(1)
    def psignal(self, v):
        b = self.b; l = self.lab('ps')
        b.s('s_cmp_eq_u32 s37, 0'); b.s(f's_cbranch_scc1 {l}')
        sv = b.save(); self.flag_store(v, 's83'); b.s('s_mov_b32 s37, 0'); b.restore(sv)
        b.label(l)

def cons_tags(ph, kind, t):
    if kind == 'g': return {(ph, t)}
    return {(ph, p) for p in range(16) if t_cons(p) == t}
R_OWN = {2: [5], 3: [6, 7], 4: [8], 5: [9], 6: [14], 7: [10], 8: [11], 9: [12], 10: [13], 11: [15]}
R_OWNP = {1: [5], 2: [6], 3: [7]}
R_TO_A = {11: [0], 12: [1], 13: [2, 3], 14: [4], 15: [5]}
R_TO_F = {12: [0], 13: [1], 15: [2]}
def r_to_r(c):
    d = {}
    for i in range(4): d.setdefault(max(c, 12 + i if i < 3 else 14), []).append(i)
    return d
F_TO_A = {13: [0, 1], 14: [2, 3], 15: [4, 5]}
F_TO_R = {13: [0], 14: [1, 2], 15: [3]}
A_OWN = {1: [8], 2: [9, 10], 3: [11, 12], 4: [13, 14], 5: [15]}
A_TO_R = {6: [0, 1], 7: [2], 8: [3, 4]}
A_TO_F = {6: [0], 7: [1], 8: [2]}
R_TO_P = {12: [0, 1], 13: [2]}
PLDS = [XB, 0, PT]
R_OWNS = {2: [], 3: [5, 6], 4: [7, 8]}
def prog_of(mask):
    p = []
    for gi in range(8):
        p.append('F' if gi % 4 == 0 else 'R')
        if mask >> gi & 1: p.append('A')
    return p
def verify_ring(cfg):
    for mask in cfg.masks:
        prog = prog_of(mask) + ['P']
        assert prog.count('A') == 4
        if mask & 1: assert cfg.pdirect or not (mask >> 5), 'Q3 would be clobbered in X'
        else: assert mask >> 3 & 3
        live = {}; issued = set()
        def rng(ph, i):
            k = prog[ph]
            if k == 'F': return (g_base(i, True), g_base(i, True) + 29184)
            if k == 'R': return (g_base(i, False), g_base(i, False) + 20736)
            if k == 'P': return (PLDS[i], PLDS[i] + PT)
            return (t_base(i), t_base(i) + HS)
        def iss(ph, i):
            lo, hi = rng(ph, i)
            for t, (a, c) in live.items(): assert hi <= a or c <= lo, (prog, ph, i, t)
            assert (ph, i) not in issued, (prog, ph, i)
            live[(ph, i)] = (lo, hi); issued.add((ph, i))
        for i in range(3): iss(0, i)
        for ph, k in enumerate(prog[:-1]):
            nx = prog[ph+1]; pv = prog[ph-1] if ph else None
            for t in range(9 if k == 'A' else 16):
                if k == 'F':
                    own = [t+3] if t <= 12 else []
                    if pv == 'A' and t < 2: own = [[], [3, 4]][t]
                    nxt = {'A': F_TO_A, 'R': F_TO_R}[nx].get(t, [])
                elif k == 'R':
                    own = R_OWN.get(t, []) if t else ([] if pv == 'A' else [4])
                    if pv != 'A' and t in R_OWNP: own = R_OWNP[t]
                    nxt = {'A': R_TO_A, 'F': R_TO_F, 'R': r_to_r(cfg.rrc), 'P': R_TO_P}[nx].get(t, [])
                else:
                    own = A_OWN.get(t, []) if t else [6, 7]
                    nxt = {'R': A_TO_R, 'F': A_TO_F}[nx].get(t, [])
                for i in own: iss(ph, i)
                for i in nxt: iss(ph+1, i)
                for tg in cons_tags(ph, 'a' if k == 'A' else 'g', t):
                    assert tg in live, (prog, tg); del live[tg]
        assert len(live) == 3 and len(issued) == 195

ACC = 0; RES = 48; BF = [176, 200]; A1 = 224; VW = 232; VX = 233; VWB = 235; VXB = 236; VQW = 238; GB = 240; GT = 244
def acc(nt, qb): return ACC + 8*qb + 4*nt
def gemm_setup(b):
    lane = LANE; t0, t1, t2 = GT, GT+1, GT+2
    b.v('v_bfe_u32', t0, lane, '2', '3'); b.v('v_mul_u32_u24', VWB, '1056', t0)
    b.v('v_lshrrev_b32', t0, '5', lane); b.v('v_lshlrev_b32', t0, '9', t0); b.v('v_add_u32', VWB, VWB, t0)
    b.v('v_and_b32', t0, '3', lane); b.v('v_lshlrev_b32', t0, '3', t0)
    b.s('s_lshl_b32 s39, s34, 6'); b.v('v_add3_u32', VWB, VWB, t0, 's39')
    b.v('v_and_b32', t0, '15', lane); b.v('v_lshrrev_b32', t2, '1', t0); b.v('v_lshrrev_b32', t1, '4', lane); b.v('v_xor_b32', t2, t2, t1)
    b.v('v_lshlrev_b32', t0, '7', t0)
    for h in range(2):
        b.v('v_xor_b32', VXB+h, str(4*h), t2); b.v('v_lshlrev_b32', VXB+h, '4', VXB+h); b.v('v_add_u32', VXB+h, VXB+h, t0)
def gemm_addr_ops(b, base):
    base = str(base)
    return [lambda: b.v('v_add_u32', VX, base, VXB), lambda: b.v('v_add_u32', VX+1, base, VXB+1), lambda: b.v('v_add_u32', VW, base, VWB)]
def rdA(b, h, areg):
    return [lambda nt=nt, e=e: b.dsr('ds_read_b64_tr_b16', areg+4*nt+2*e, 2, VW, (WO1 if h else WO0) + e*256 + nt*32) for nt in range(2) for e in range(2)]
def rdB(b, h):
    return [lambda qb=qb: b.dsr('ds_read_b128', BF[h]+4*qb, 4, VX+h, XO + qb*2048) for qb in range(6)]
def g_block(b, h, areg, gaps, zero=False, prewait=None):
    k = 0
    for qb in range(6):
        for nt in range(2):
            if prewait and k in prewait: b.wait_lgkm(prewait[k])
            b.mfma16(acc(nt, qb), areg+4*nt, BF[h]+4*qb, None if zero else acc(nt, qb))
            for f in gaps.get(k, []): f()
            k += 1
def g_interval(b, a0, load_a0, first, nxt_ops, endfn, defer=False, zero=None, x1=None, x0=None, mid=None):
    B0, B1, Aa = rdB(b, 0), rdB(b, 1), rdA(b, 1, A1)
    A0 = rdA(b, 0, a0) if load_a0 else []
    if first:
        for f in A0 + B0: f()
        rest = B1 + Aa
        pw = None
    else:
        seq = A0 + B0 + B1
        g1 = {k: [seq[k]] for k in range(12)}
        for k, fs in (x1 or {}).items(): g1[k] = fs + g1[k]
        rest = seq[12:] + Aa
        g_block(b, 1, A1, g1, prewait=({0: 0} if defer else None))
        if mid: mid()
        ny = 12 - len(A0) - 6
        pw = {0: ny} if not load_a0 else {0: ny + 3, 6: 6 + ny}
    g0 = {k: [f] for k, f in enumerate(rest)}
    for k, fs in (x0 or {}).items(): g0.setdefault(k, []).extend(fs)
    k = len(rest)
    for f in nxt_ops:
        g0.setdefault(min(k, 10), []).append(f); k += 1
    def tail():
        if not defer: b.wait_lgkm(0)
        endfn(); b.barrier()
    g0.setdefault(10, []).append(tail)
    g_block(b, 0, a0, g0, zero=(first if zero is None else zero), prewait=pw)
def q_ops(b):
    def cv(qb, nt):
        a = acc(nt, qb)
        return [lambda z=z: b.v('v_mul_f32', a+z, 's56', a+z) for z in range(4)] + \
               [lambda: b.v('v_cvt_pk_bf16_f32', a, a, a+1), lambda: b.v('v_cvt_pk_bf16_f32', a+1, a+2, a+3),
                lambda: b.dsw('ds_write_b64', VQW, a, 2, qb*16*QROW + nt*32)]
    return sum([cv(qb, nt) for qb in range(6) for nt in range(2)], [])
def g_tail(b, ops):
    gaps = {}
    for k in range(5, 12): gaps[k] = [ops.pop(0), ops.pop(0)]
    g_block(b, 1, A1, gaps)
    for f in ops: f()
    b.wait_lgkm(0)
def g_fused(b, ops, full):
    for f in gemm_addr_ops(b, g_base(0, full)): f()
    x1 = {k: [ops.pop(0)] for k in range(6, 12)}
    def mid():
        for f in ops: f()
    g_interval(b, RES, full, False, gemm_addr_ops(b, g_base(1, full)), lambda: None, zero=True, x1=x1, mid=mid)
    b.s('s_branch L_gem_F1' if full else 's_branch L_gem_R1')
def g_main(b, cfg, full, M):
    for f in gemm_addr_ops(b, g_base(0, full)): f()
    for c in range(16):
        x0 = {7: [lambda: M.psignal(GF)]} if (c == 5 and not full) else None
        if c == 1: b.label('L_gem_F1' if full else 'L_gem_R1')
        g_interval(b, RES + 8*c, full, c == 0, gemm_addr_ops(b, g_base(c+1, full)) if c < 15 else [], (lambda c=c: M.need({('g', c+1)}) if c != 4 else b.vm(0)), x0=x0)
GF = 248

O_ = 0; Q_ = 96; KF = 144; VF = 176; S_ = 208; P_ = 224; NM = 232; L_ = 244
VKA = 247; VVA = 248; VKB = 249; VVB = 250; T0 = 251; VVH = 253
LB = S_ + 8
def Oreg(c, dt): return O_ + 32*c + 4*dt
def att_setup(b):
    lane = LANE; t0 = T0
    b.s('s_mul_i32 s39, s55, 8448')
    b.v('v_and_b32', t0, '7', lane); b.v('v_mul_u32_u24', VKB, '1056', t0)
    b.v('v_bfe_u32', t0, lane, '3', '1'); b.v('v_lshlrev_b32', t0, '8', t0); b.v('v_add_u32', VKB, VKB, t0)
    b.v('v_lshrrev_b32', t0, '4', lane); b.v('v_lshlrev_b32', t0, '4', t0); b.v('v_add3_u32', VKB, VKB, t0, 's39')
    b.v('v_bfe_u32', t0, lane, '2', '3'); b.v('v_mul_u32_u24', VVB, '1056', t0)
    b.v('v_lshrrev_b32', t0, '5', lane); b.v('v_lshlrev_b32', t0, '8', t0); b.v('v_add_u32', VVB, VVB, t0)
    b.s('s_lshl_b32 s50, s55, 7'); b.s('s_add_u32 s39, s39, s50')
    b.v('v_and_b32', t0, '3', lane); b.v('v_lshlrev_b32', t0, '3', t0); b.v('v_add3_u32', VVB, VVB, t0, 's39')
    b.s('s_lshl_b32 s77, s55, 8'); b.s('s_sub_u32 s77, 128, s77')
def q_addr(b, t0, t1):
    b.s('s_and_b32 s39, s34, 1'); b.s(f's_mul_i32 s39, s39, {48*QROW}'); b.s(f's_add_u32 s39, s39, {XB}')
    b.v('v_and_b32', t0, '15', LANE); b.v('v_mul_u32_u24', t0, str(QROW), t0)
    b.v('v_lshrrev_b32', t1, '4', LANE); b.v('v_lshlrev_b32', t1, '4', t1); b.v('v_add3_u32', t0, t0, t1, 's39')
def q_reads(b, t0):
    for c in range(3):
        for m in range(4): b.dsr('ds_read_b128', Q_+16*c+4*m, 4, t0, c*16*QROW + m*64)
def crossred(b, t, u, op='v_max_f32'):
    b.v('v_mov_b32', u, t); b.swap32(t, u); b.v(op, t, t, u)
    b.v('v_mov_b32', u, t); b.swap16(t, u); b.v(op, t, t, u)

class Att:
    def __init__(self, b, cfg): self.b, self.cfg, self.rare = b, cfg, []
    def qk_list(self, task):
        b = self.b; i, c = divmod(task, 3); buf = task & 1; out = []
        for m in range(4):
            for t in range(2):
                d = S_ + 8*buf + 4*t
                cc = d if m else (None if i == 0 else NM + 4*c)
                out.append(lambda d=d, t=t, m=m, cc=cc: b.mfma16(d, KF+16*t+4*m, Q_+16*c+4*m, cc))
        return out
    def pv_list(self, task):
        b = self.b; i, c = divmod(task, 3); buf = task & 1
        return [lambda dt=dt: b.mfma16(Oreg(c, dt), VF+4*dt, P_+4*buf, None if i == 0 else Oreg(c, dt)) for dt in range(8)]
    def kread(self, k):
        m, t = divmod(k, 2)
        return lambda: self.b.dsr('ds_read_b128', KF+16*t+4*m, 4, VKA, t*512+m*64)
    def vread(self, k):
        dt, t = divmod(k, 2)
        return lambda: self.b.dsr('ds_read_b64_tr_b16', VF+4*dt+2*t, 2, VVA if dt < 4 else VVH, t*512+(dt % 4)*32)
    def pre(self, task):
        b = self.b; i, c = divmod(task, 3); S = S_ + 8*(task & 1); t, u = T0, T0+1
        o = [(4, lambda: b.v('v_max3_f32', t, S, S+1, S+2)), (4, lambda: b.v('v_max3_f32', u, S+3, S+4, S+5)),
             (4, lambda: b.v('v_max3_f32', t, S+6, S+7, t)), (4, lambda: b.v('v_max_f32', t, t, u))]
        if i > 0: o.append((4, lambda: b.emit(f'v_cmp_lt_f32 vcc, 4.0, {vr(t)}', 'valu', (), {t})))
        return o
    def main(self, task):
        b = self.b; i, c = divmod(task, 3); buf = task & 1
        S = S_ + 8*buf; P = P_ + 4*buf; t, u = T0, T0+1
        o = []
        if i == 0:
            o += [(4, lambda: b.v('v_mov_b32', u, t)), (8, lambda: b.swap32(t, u)), (4, lambda: b.v('v_max_f32', t, t, u)),
                  (4, lambda: b.v('v_mov_b32', u, t)), (8, lambda: b.swap16(t, u)), (4, lambda: b.v('v_max_f32', t, t, u))]
            for k in range(8): o.append((4, lambda k=k: b.v('v_sub_f32', S+k, S+k, t)))
            for k in range(4): o.append((4, lambda k=k: b.v('v_sub_f32', NM+4*c+k, '0', t)))
        else:
            def br():
                b.s(f's_cbranch_vccnz L_rare{task}'); b.label(f'L_back{task}'); self.rare.append(task)
            o.append((6, br))
        for k in range(8):
            o.append((8, lambda k=k: b.exp(S+k, S+k)))
            if k >= 1:
                kk = k - 1
                if i == 0 and kk == 0: o.append((4, lambda: b.v('v_mov_b32', L_+c, S)))
                else: o.append((4, lambda kk=kk: b.v('v_add_f32', L_+c, L_+c, S+kk)))
            if k >= 2 and k % 2 == 0:
                h = k//2 - 1
                o.append((4, lambda h=h: b.v('v_cvt_pk_bf16_f32', P+h, S+2*h, S+2*h+1)))
        o.append((4, lambda: b.v('v_add_f32', L_+c, L_+c, S+7)))
        o.append((4, lambda: b.v('v_cvt_pk_bf16_f32', P+3, S+6, S+7)))
        return o
    def addr_k(self, j): self.b.v('v_add_u32', VKA, str(t_base(KPOS[j])), VKB)
    def addr_v(self, j): self.b.v('v_add_u32', VVA, str(t_base(VPOS[j])), VVB); self.b.v('v_add_u32', VVH, 's77', VVA)
    def step(self, s, endfn=None):
        b = self.b; mf = []; prew = {}
        i, c = divmod(s, 3)
        if s + 1 <= 23: mf += self.qk_list(s + 1)
        if s - 1 >= 0: mf += self.pv_list(s - 1)
        n = len(mf)
        post = [[] for _ in range(n)]
        hasK = i + 1 <= 7
        if c == 0:
            off = 8 if s else 0
            for k in range(8): post[off + k].append(self.vread(k))
        elif c == 1:
            for k in range(8): post[k].append(self.vread(8 + k))
            if hasK:
                for k in range(8): post[8 + k].append(self.kread(k))
            prew[8] = 8; prew[12] = 4 if hasK else 0
        elif hasK:
            prew[0] = 4; prew[4] = 0
        sm = self.main(s) + (self.pre(s + 1) if s + 1 <= 23 else [])
        if B.skel: sm = []
        ecost = 20
        tot = sum(x for x, _ in sm) + 4*sum(len(p) for p in post) + 4*len(prew) + (ecost if endfn else 0)
        acc_ = 0; k = 0
        for j in range(n):
            if j in prew: b.wait_lgkm(prew[j]); acc_ += 4
            mf[j]()
            for f in post[j]: f(); acc_ += 4
            if endfn and j == n - 4:
                endfn(); acc_ += ecost
                continue
            tgt = tot * (j + 1) / n
            while k < len(sm) and (acc_ + sm[k][0]/2 <= tgt or j == n - 1):
                sm[k][1](); acc_ += sm[k][0]; k += 1
    def start(self):
        for f in self.qk_list(0): f()
        for _, f in self.pre(0): f()
    def intervals(self, L):
        b, cfg = self.b, self.cfg
        for j in range(1, 9):
            for s in range(3*(j-1), 3*j):
                if s == 23:
                    b.wait_lgkm(0)
                    b.s('s_cmp_eq_u32 s48, 0'); b.s('s_cbranch_scc1 L_a_noq1')
                    b.s('s_cmp_ge_u32 s41, 3'); b.s('s_cbranch_scc1 L_a_noq1')
                    sv = b.save(); q_addr(b, KF, KF+1); q_reads(b, KF); b.restore(sv)
                    b.label('L_a_noq1')
                def endfn(j=j):
                    b.wait_lgkm(0)
                    if j == 8: b.raw('s_waitcnt lgkmcnt(0)')
                    else:
                        self.addr_v(j)
                        if j + 1 <= 7: self.addr_k(j + 1)
                    L.need(cons_tags('a', 'a', j + 1))
                    b.barrier()
                self.step(s, endfn if s == 3*j - 1 else None)
    XA = KF; SA = KF+1; XP = KF+2; OS = KF+4; FO = KF+10; FT = KF+13; PK = VF; UP = S_; VO = P_+2
    def pack(self, c, mp):
        b = self.b; pk = KF + 16 + 4*((2*c+mp) % 4); r = []
        for h in range(2):
            o = Oreg(c, 4 + 2*mp + h)
            r += [lambda o=o, h=h: b.v('v_cvt_pk_bf16_f32', pk+2*h, o, o+1), lambda o=o, h=h: b.v('v_cvt_pk_bf16_f32', pk+2*h+1, o+2, o+3)]
        return r + [lambda: b.dsw('ds_write_b128', self.XA, pk, 4, (2*c+mp)*1024)]
    def c0(self):
        b = self.b; XA = self.XA
        b.s('s_mul_i32 s50, s34, 6144'); b.s(f's_add_u32 s50, s50, {XB}')
        fill = [lambda: b.v('v_lshl_add_u32', XA, LANE, '4', 's50')]
        fill += self.pack(0, 0) + self.pack(0, 1) + self.pack(1, 0) + self.pack(1, 1)
        pv = self.pv_list(23)
        for dt in (4, 5, 6, 7, 0, 1, 2, 3):
            pv[dt]()
            for _ in range(2): fill.pop(0)()
        for f in fill: f()
    def c1(self):
        b = self.b; SA = self.SA
        red = []
        for c in range(3):
            Lr = L_ + c; uu = S_ + c
            red.append([lambda Lr=Lr, uu=uu: b.v('v_mov_b32', uu, Lr), lambda Lr=Lr, uu=uu: b.swap32(Lr, uu), lambda Lr=Lr, uu=uu: b.v('v_add_f32', Lr, Lr, uu),
                        lambda Lr=Lr, uu=uu: b.v('v_mov_b32', uu, Lr), lambda Lr=Lr, uu=uu: b.swap16(Lr, uu), lambda Lr=Lr, uu=uu, c=c: b.v('v_add_f32', NM+4*c+1, Lr, uu)])
        o = [lambda: (b.s('s_mul_i32 s50, s34, 384'), b.s(f's_add_u32 s50, s50, {STAT}'))]
        o += self.pack(2, 0) + self.pack(2, 1)
        o += [lambda: b.v('v_and_b32', SA, '15', LANE), lambda: b.v('v_mad_u32_u24', SA, SA, '24', 's50')]
        o += [red[c][k] for k in range(6) for c in range(3)]
        o += [lambda c=c: b.dsw('ds_write_b64', SA, NM+4*c, 2, 8*c) for c in range(3)]
        o += [lambda: (b.s('s_mul_i32 s51, s77, 96'), b.s('s_mul_i32 s50, s77, 6')), lambda: b.v('v_add_u32', self.XP, 's51', self.XA), lambda: b.v('v_add_u32', SA, 's50', SA)]
        return o
    def c2a(self):
        b = self.b
        return [lambda c=c: b.dsr('ds_read_b64', self.OS+2*c, 2, self.SA, 8*c) for c in range(3)] + \
               [lambda k=k: b.dsr('ds_read_b128', self.PK+4*k, 4, self.XP, k*1024) for k in range(6)]
    def c2b(self):
        b = self.b; ops = []
        for c in range(3):
            nm, lo = NM+4*c, NM+4*c+1; on, ol = self.OS+2*c, self.OS+2*c+1; fo, ft = self.FO+c, self.FT+c; t = NM+4*c+2
            ops.append([lambda t=t, nm=nm, on=on: b.v('v_min_f32', t, nm, on), lambda fo=fo, t=t, nm=nm: b.v('v_sub_f32', fo, t, nm), lambda ft=ft, t=t, on=on: b.v('v_sub_f32', ft, t, on),
                        lambda fo=fo: b.exp(fo, fo), lambda ft=ft: b.exp(ft, ft), lambda t=t, fo=fo, lo=lo: b.v('v_mul_f32', t, fo, lo), lambda t=t, ft=ft, ol=ol: b.v('v_fma_f32', t, ft, ol, t),
                        lambda t=t: b.v('v_rcp_f32', t, t, kind='trans'), lambda fo=fo, t=t: b.v('v_mul_f32', fo, fo, t), lambda ft=ft, t=t: b.v('v_mul_f32', ft, ft, t)])
        return [ops[c][k] for k in range(10) for c in range(3)] + [lambda: b.v('v_lshlrev_b32', self.VO, '4', LANE), lambda: b.s('s_add_u32 s51, s54, 4096')]
    def part(self, pi):
        b = self.b; o_ = []
        def V(*a, **k): o_.append(lambda: b.v(*a, **k))
        c, mp = divmod(pi, 2); fo, ft = self.FO+c, self.FT+c
        pk = self.PK + 4*pi
        for h in range(2):
            o = Oreg(c, 2*mp + h); up = self.UP + 4*h
            V('v_lshlrev_b32', up, '16', pk+2*h); V('v_and_b32', up+1, '0xffff0000', pk+2*h)
            V('v_lshlrev_b32', up+2, '16', pk+2*h+1); V('v_and_b32', up+3, '0xffff0000', pk+2*h+1)
            for z in range(4): V('v_mul_f32', o+z, o+z, fo)
            for z in range(4): V('v_fmac_f32', o+z, up+z, ft, extra_r={o+z})
            V('v_cvt_pk_bf16_f32', pk+2*h, o, o+1); V('v_cvt_pk_bf16_f32', pk+2*h+1, o+2, o+3)
        return o_
    def store(self, pi, L):
        def f():
            self.b.store(4, self.PK + 4*pi, self.VO, 20, 's54' if pi < 4 else 's51', (pi % 4)*1024, self.cfg.opol); L.q.append(('st', 1))
        return [f]
    def rare_block(self, task):
        b = self.b; i, c = divmod(task, 3); S = S_ + 8*(task & 1); t, u = T0, T0+1
        b.reset(); b.label(f'L_rare{task}'); b.nop(2)
        crossred(b, t, u)
        b.v('v_max_f32', t, '0', t)
        b.v('v_sub_f32', u, '0', t); b.exp(u, u)
        for k in range(8): b.v('v_sub_f32', S+k, S+k, t)
        for k in range(4): b.v('v_sub_f32', NM+4*c+k, NM+4*c+k, t)
        b.v('v_mul_f32', L_+c, L_+c, u)
        for k in range(32): b.v('v_mul_f32', O_+32*c+k, O_+32*c+k, u)
        b.nop(2); b.s(f's_branch L_back{task}')

def phase_stamp(b, cfg):
    if cfg.stamps:
        b.raw('s_memrealtime s[90:91]'); b.raw('s_waitcnt lgkmcnt(0)'); b.raw('s_sub_u32 s90, s90, s88')
        b.raw('s_add_u32 s91, s40, s41'); b.raw('s_max_u32 s91, s91, 3'); b.raw('s_sub_u32 s91, s91, 3'); b.raw('s_mov_b32 m0, s91'); b.raw('s_nop 0'); b.raw('s_movreld_b32 s91, s90')
def stamp_dump(b, cfg):
    if cfg.stamps:
        b.raw('s_memrealtime s[90:91]'); b.raw('s_waitcnt lgkmcnt(0)'); b.raw('s_sub_u32 s99, s90, s88')
        b.raw('s_cmp_lg_u32 s35, 4'); b.raw('s_cbranch_scc1 L_k1_end')
        b.raw('s_lshl_b32 s91, s2, 5'); b.raw(f's_add_u32 s80, s20, {64 << 20}'); b.raw('s_addc_u32 s81, s21, 0')
        b.raw(f'v_mov_b32 v{GT+1}, s91')
        for k in range(8):
            b.raw(f'v_mov_b32 v{GT}, s{92+k}'); b.raw(f'global_store_dword v{GT+1}, v{GT}, s[80:81] offset:{4*k}')
    if cfg.ivw is not None:
        b.raw('s_cmp_lg_u32 s35, 4'); b.raw('s_cbranch_scc1 L_k1_end')
        b.raw(f's_add_u32 s80, s20, {66 << 20}'); b.raw('s_addc_u32 s81, s21, 0'); b.raw('s_lshl_b32 s91, s2, 8')
        b.raw(f'v_lshlrev_b32 v{GT}, 2, v{LANE}'); b.raw(f'v_add_u32 v{GT}, s91, v{GT}'); b.raw(f'global_store_dword v{GT}, v247, s[80:81]')

def k1(cfg):
    verify_ring(cfg)
    b = B()
    KN = NAME + '_kernel'
    b.raw(f'.globl {KN}'); b.raw('.p2align 8'); b.raw(f'.type {KN},@function'); b.label(KN)
    b.s('s_cmp_ge_u32 s2, 256'); b.s('s_cbranch_scc1 L_k1_end')
    if cfg.stamps: b.raw('s_memrealtime s[88:89]')
    b.s('s_and_b32 s60, s2, 7'); b.s('s_lshr_b32 s61, s2, 3'); b.s('s_lshr_b32 s62, s60, 2')
    b.s('s_mul_i32 s63, s62, 40'); b.s('s_add_u32 s64, s0, s63'); b.s('s_addc_u32 s65, s1, 0')
    b.s('s_load_dwordx4 s[68:71], s[64:65], 0'); b.s('s_load_dwordx4 s[72:75], s[64:65], 16')
    b.s('s_load_dwordx2 s[76:77], s[64:65], 32'); b.s('s_load_dwordx2 s[78:79], s[0:1], 96'); b.s('s_load_dwordx4 s[28:31], s[0:1], 80')
    if cfg.wopf == 3: b.s('s_load_dwordx2 s[92:93], s[0:1], 32'); b.s('s_load_dwordx2 s[96:97], s[0:1], 72')
    if cfg.codepf:
        b.s('s_and_b32 s39, s61, 15'); b.s('s_cmp_lg_u32 s39, 0'); b.s('s_cbranch_scc1 L_nocpf')
        b.raw('s_getpc_b64 s[82:83]')
        b.label('L_pc')
        b.v('v_lshlrev_b32', 2, '7', 0)
        b.v('v_min_u32', 2, 'L_code_end-L_pc-4', 2)
        b.v('v_mov_b32', 3, 's83')
        b.emit('v_add_co_u32 v2, vcc, s82, v2', 'valu', {2}, {2}); b.nop(2)
        b.emit('v_addc_co_u32 v3, vcc, 0, v3, vcc', 'valu', {3}, {3})
        b.emit(f'global_load_dword v{DUM}, v[2:3], off', 'vmem', {DUM}, {2, 3})
        b.label('L_nocpf')
    b.v('v_lshrrev_b32', 1, '6', 0); b.rfl(35, 1)
    lane_id(b, LANE)
    b.s('s_and_b32 s34, s35, 3'); b.s('s_lshr_b32 s55, s34, 1')
    b.s('s_and_b32 s33, s60, 3'); b.s('s_lshl_b32 s66, s33, 3'); b.s('s_and_b32 s67, s61, 7'); b.s('s_add_u32 s66, s66, s67')
    b.s('s_lshr_b32 s63, s61, 3')
    b.s('s_and_b32 s48, s63, 1' if cfg.stagger else 's_mov_b32 s48, 0')
    b.s('s_mov_b32 s40, 0'); b.s('s_mov_b32 s41, 0'); b.s('s_mov_b32 s37, 0')
    b.s(f's_mov_b32 s32, {cfg.masks[1]}'); b.s('s_cmp_eq_u32 s48, 0'); b.s(f's_cselect_b32 s32, {cfg.masks[0]}, s32')
    b.s('s_mul_i32 s44, s63, 196608'); b.s('s_lshl_b32 s45, s66, 8')
    b.s('s_lshl_b32 s46, s63, 5'); b.s('s_add_u32 s46, s46, s66'); b.s('s_lshl_b32 s46, s46, 17')
    b.s('s_lshl_b32 s80, s62, 4'); b.s('s_add_u32 s80, s80, s63')
    b.s('s_lshl_b32 s47, s80, 6')
    b.s('s_lshl_b32 s39, s66, 1'); b.s('s_add_u32 s47, s47, s39'); b.s('s_add_u32 s47, s47, s55'); b.s('s_mul_i32 s47, s47, 12288')
    b.s('s_and_b32 s39, s34, 1'); b.s('s_mul_i32 s39, s39, 6144'); b.s('s_add_u32 s47, s47, s39')
    b.s('s_mul_i32 s52, s34, 1056'); b.s('s_lshl_b32 s53, s34, 10')
    b.s(f's_mov_b32 s56, {f2u(CEXP):#x}')
    b.s('s_mul_i32 s57, s67, 24576'); b.s('s_lshl_b32 s39, s34, 13'); b.s('s_add_u32 s57, s57, s39'); b.s('s_add_u32 s57, s57, s44')
    b.s('s_cmp_eq_u32 s34, 3'); b.s(f's_cselect_b32 s57, {OOB}, s57')
    b.raw('s_waitcnt lgkmcnt(0)')
    srd(b, 4, 68, 16*96*1024*2); srd(b, 8, 70, 1 << 26); srd(b, 12, 72, 1 << 26); srd(b, 16, 74, 1 << 23)
    srd(b, 20, 78, FB); srd(b, 24, 76, 1 << 23)
    b.s(f's_add_u32 s68, s78, {FB}'); b.s('s_addc_u32 s69, s79, 0'); b.s('s_mov_b32 s70, 49152'); b.s('s_mov_b32 s71, 0x20000')
    b.s('s_mov_b32 s64, s30'); b.s('s_mov_b32 s65, s31')
    b.s(f's_mov_b32 s30, {16*96*2048*2}'); b.s('s_mov_b32 s31, 0x20000')
    b.s('s_lshl_b32 s72, s80, 9'); b.s('s_lshl_b32 s50, s33, 7'); b.s('s_add_u32 s72, s72, s50'); b.s('s_lshl_b32 s50, s67, 3'); b.s('s_add_u32 s72, s72, s50')
    b.s('s_lshl_b32 s81, s80, 3'); b.s('s_add_u32 s81, s81, s67')
    b.s('s_lshl_b32 s73, s81, 7'); b.s('s_add_u32 s73, s73, 16384')
    b.s(f's_mul_i32 s78, s81, {3*PT}'); b.s('s_mul_i32 s79, s34, 6144'); b.s('s_add_u32 s78, s78, s79'); b.s(f's_add_u32 s78, s78, {PB}')
    b.s('s_lshl_b32 s74, s80, 2'); b.s('s_add_u32 s74, s74, s33'); b.s(f's_mul_i32 s74, s74, {16*12288}')
    b.s('s_lshl_b32 s75, s33, 21'); b.s('s_lshl_b32 s50, s67, 8'); b.s('s_add_u32 s75, s75, s50')
    b.s('s_add_u32 s39, s33, 3'); b.s('s_and_b32 s39, s39, 3'); b.s('s_lshl_b32 s39, s39, 2'); b.s('s_add_u32 s39, s39, s63'); b.s(f's_mul_i32 s76, s39, {96*4096}')
    b.s('s_add_u32 s76, s76, s50'); b.s('s_lshl_b32 s50, s62, 11'); b.s('s_add_u32 s76, s76, s50'); b.s('s_lshl_b32 s50, s34, 6'); b.s('s_add_u32 s76, s76, s50')
    b.s('s_lshl_b32 s87, s33, 21'); b.s('s_lshl_b32 s50, s61, 16'); b.s('s_add_u32 s87, s87, s50'); b.s('s_lshl_b32 s50, s34, 13'); b.s('s_add_u32 s87, s87, s50')
    if cfg.pf0 == 2:
        b.s('s_cmp_eq_u32 s48, 0'); b.s('s_cbranch_scc1 L_nopf0')
        b.v('v_lshlrev_b32', 3, '7', LANE)
        b.s('s_mul_i32 s39, s33, 786432'); b.s('s_add_u32 s39, s39, s57'); b.s('s_sub_u32 s39, s39, 196608'); b.s('s_cmp_ge_u32 s35, 3'); b.s(f's_cselect_b32 s39, {OOB}, s39')
        b.load1(DUM, 3, 4, 's39')
        b.v('v_lshrrev_b32', 2, '1', LANE); b.v('v_lshlrev_b32', 2, '13', 2); b.v('v_and_b32', 4, '1', LANE); b.v('v_lshlrev_b32', 4, '7', 4); b.v('v_add_u32', 2, 2, 4)
        b.s('s_lshl_b32 s39, s35, 1'); b.s('s_lshr_b32 s50, s63, 1'); b.s('s_add_u32 s39, s39, s50'); b.s('s_lshl_b32 s39, s39, 18'); b.s('s_add_u32 s39, s39, s45')
        b.load1(DUM, 2, 16, 's39')
        b.s(f's_add_u32 s39, s39, {16 << 18}')
        b.load1(DUM, 2, 16, 's39')
        b.s('s_lshr_b32 s39, s35, 2'); b.s('s_add_u32 s39, s39, s33'); b.s('s_and_b32 s39, s39, 3'); b.s('s_mul_i32 s39, s39, 786432'); b.s('s_add_u32 s39, s39, s57')
        b.load1(DUM, 3, 4, 's39')
        b.label('L_nopf0')
    if cfg.wopf == 3:
        n = cfg.won; assert sum(n) == 64 and max(n) <= 24
        base = [32*sum(n[:i]) for i in range(8)]
        b.s('s_mov_b32 s94, 0x800000'); b.s('s_mov_b32 s95, 0x20000'); b.s('s_mov_b32 s98, 0x800000'); b.s('s_mov_b32 s99, 0x20000')
        b.s('s_mov_b32 s50, 0'); b.s('s_mov_b32 s51, 0')
        for i in range(8):
            b.s(f's_cmp_eq_u32 s60, {i}'); b.s(f's_cselect_b32 s50, {n[i]}, s50'); b.s(f's_cselect_b32 s51, {base[i]}, s51')
        b.s('s_mul_i32 s39, s61, s50'); b.s('s_add_u32 s51, s51, s39'); b.s('s_add_u32 s51, s51, s35'); b.s('s_lshl_b32 s51, s51, 13')
        b.v('v_lshlrev_b32', 3, '7', LANE)
        for r in range((max(n) + 7) // 8):
            b.s(f's_add_u32 s39, s35, {8*r}'); b.s('s_cmp_lt_u32 s39, s50'); b.s('s_cbranch_scc0 L_wo_done')
            b.s(f's_add_u32 s39, s51, {r << 16}')
            b.load1(DUM, 3, 92, 's39')
            b.s('s_sub_u32 s39, s39, 0x800000')
            b.load1(DUM, 3, 96, 's39')
        b.label('L_wo_done')
    b.s('s_mov_b32 s66, 256'); b.s('s_mov_b32 s67, 0x20000')
    for r, v in ((42, 128), (43, 32*2048), (60, 64*8192), (61, 32*8192), (62, 8*8192), (63, 786432)): b.s(f's_mov_b32 s{r}, {v}')
    b.s('s_cmp_ge_u32 s35, 4'); b.s('s_cbranch_scc1 L_gem')
    A = Att(b, cfg)
    L = Loader(b, cfg, LB, T0)
    VP = KF + 20
    b.fence()
    loader_offsets(b, True, LB, 2048, 8192, False, T0)
    L.begin(0, False)
    for i in range(3): L.g(i, True, ('g', i))
    att_setup(b)
    L.need({('g', 0)}); b.barrier()
    b.fence()
    def f_loader(t0, t1, extra={}, fills={}):
        for t in range(t0, t1):
            L.setfill(fills.get(t, []), 7)
            L.g(t + 3, True, ('g', t+3))
            L.flush(); b.wait_lgkm(0)
            for f in extra.get(t, []): f()
            L.need({('g', t+1)} | ({'p', 'n'} if t == 12 else set())); b.barrier()
    def r_loader(t0, t1, extra={}, fills={}, over={}):
        for t in range(t0, t1):
            own = over[t] if t in over else R_OWN.get(t, [])
            L.setfill(fills.get(t, []), 5*len(own))
            for i in own: L.g(i, False, ('g', i))
            L.flush(); b.wait_lgkm(0)
            for f in extra.get(t, []): f()
            L.need({('g', t+1)}); b.barrier()
    def tail(t0, table, kind, pre={}, t1=16):
        for t in range(t0, t1):
            for f in pre.get(t, []): f()
            if t == 15 and t0 != 13:
                assert all(x[0] != ('g', 15) for x in L.q)
                L.psignal(VP)
            for i in table.get(t, []):
                if kind == 'a': L.t(i, ('n', i))
                elif kind == 'p': pdma(i)
                else: L.g(i, kind == 'f', ('n', i))
            L.need({('g', t+1)} if t < 15 else ({('n', 0)} if kind != 'p' else {('n', 2)})); b.barrier()
        if t1 < 16: return
        b.s('s_add_u32 s40, s40, 1')
        L.q = [((('a' if kind == 'a' else 'g'), t[1]) if isinstance(t, tuple) else t, n) for t, n in L.q]
    FJ = 9
    b.label('L_att_F')
    qF = list(L.q)
    f_loader(0, FJ)
    qFj = list(L.q)
    b.label('L_att_Fj')
    f_loader(FJ, 13, {10: [lambda: L.nonce_load(VP), lambda: L.poll(VP, 1)]})
    L.nonce_get(VP)
    q13 = list(L.q)
    b.s('s_bitcmp1_b32 s32, s40'); b.s('s_cbranch_scc0 L_att_FR')
    L.set_a(); tail(13, F_TO_A, 'a')
    qa = list(L.q)
    b.s('s_branch L_att_a')
    b.label('L_att_FR'); L.q = list(q13)
    L.begin(1, False); L.check(VP, 1)
    tail(13, F_TO_R, 'r')
    b.fence()
    b.label('L_att_R')
    qR = list(L.q)
    pollx = lambda: L.poll(VP, 1)
    L.g(4, False, ('g', 4)); L.need({('g', 1)}); b.barrier()
    q1 = list(L.q)
    if not cfg.pdirect: b.s('s_cmp_ge_u32 s40, 4'); b.s('s_cbranch_scc1 L_att_RO')
    def rq():
        if cfg.pdirect: b.s('s_cmp_eq_u32 s41, 0'); b.s('s_cbranch_scc0 L_att_norq')
        sv = b.save(); q_addr(b, T0, T0+1); q_reads(b, T0); b.wait_lgkm(0); b.restore(sv)
        b.label('L_att_norq')
    r_loader(1, 11, {1: [rq], 9: [pollx]}, {}, R_OWNP)
    qj = list(L.q); nj = L.items()
    b.fence()
    if not cfg.pdirect:
        b.s('s_branch L_att_Rj')
        b.label('L_att_RO'); L.q = list(q1)
        L.ub('s39', 's40', 3); b.s(f's_mul_i32 s54, s39, {32*3*PT}'); b.s('s_add_u32 s54, s54, s78')
        b.s('s_lshl_b32 s83, s39, 12'); b.s('s_add_u32 s83, s83, s73')
        b.s('s_sub_u32 s39, s40, 5'); b.s(f's_mul_i32 s51, s39, {PT}'); b.s('s_add_u32 s54, s54, s51'); b.s('s_add_u32 s51, s54, 4096')
        b.s('s_lshl_b32 s39, s39, 3'); b.s('s_add_u32 s83, s83, s39')
        b.s('s_cmp_eq_u32 s35, 0'); b.s('s_cselect_b32 s37, 1, 0')
        b.s(f's_add_u32 s50, s79, {XB}')
        b.v('v_lshlrev_b32', A.VO, '4', LANE); b.v('v_add_u32', A.XP, 's50', A.VO)
        fi = {1: A.c2a()[3:]}
        for k in range(3): fi[2+k] = A.store(2*k, L) + A.store(2*k+1, L)
        r_loader(1, 11, {7: [lambda: L.need({'st'})], 8: [lambda: L.psignal(VP)], 9: [pollx]}, fi, R_OWNP)
        assert L.q == qj, (L.q, qj)
        b.fence()
    b.label('L_att_Rj')
    L.g(15, False, ('g', 15))
    qj = list(L.q)
    b.s('s_bitcmp1_b32 s32, s40'); b.s('s_cbranch_scc0 L_att_RG')
    L.set_a(); tail(11, R_TO_A, 'a')
    assert L.q == qa, (L.q, qa)
    b.fence()
    b.label('L_att_a')
    A.addr_k(0)
    for k in range(8): A.kread(k)()
    b.s('s_cmp_eq_u32 s48, 0'); b.s('s_cbranch_scc1 L_a_c0a')
    sv = b.save()
    A.start(); b.fence()
    b.label('L_a_c0a'); b.restore(sv)
    L.t(6, ('a', 6)); L.t(7, ('a', 7))
    q_addr(b, P_+4, P_+5)
    b.raw('s_waitcnt lgkmcnt(0)'); b.lds = []
    A.addr_v(0); A.addr_k(1)
    L.need(cons_tags('a', 'a', 1)); b.barrier()
    b.s('s_cmp_eq_u32 s48, 0'); b.s('s_cbranch_scc0 L_a_i1')
    q_reads(b, P_+4)
    A.start()
    b.fence()
    b.label('L_a_i1')
    A.intervals(L)
    b.s('s_add_u32 s41, s41, 1')
    A.c0()
    kvo = lambda: loader_offset_ops(b, True, LB, 2048, 8192, False, T0)[:5]
    usesAF = any(m >> 3 & 1 for m in cfg.masks)
    if usesAF:
        b.s('s_cmp_eq_u32 s40, 4'); b.s('s_cbranch_scc1 L_att_AF')
    sv = b.save()
    b.barrier()
    for f in A.c1(): f()
    b.wait_lgkm(0)
    if not cfg.allfast:
        b.s('s_add_u32 s39, s41, 2'); b.s('s_cmp_eq_u32 s39, s40'); b.s('s_cbranch_scc1 L_att_AU')
        sv3 = b.save()
        b.barrier()
        L.q = []
        for f in A.c2a(): f()
        L.begin(0, True); L.set_ost()
        L.ub('s83', 's41', 3); b.s('s_lshl_b32 s83, s83, 11'); b.s('s_add_u32 s83, s83, s72')
        b.s('s_cmp_eq_u32 s35, 0'); b.s('s_cselect_b32 s37, 1, 0')
        b.barrier()
        fi = {3: A.c2b() + kvo()}
        if cfg.burst:
            for pi in range(6): fi[4+pi] = A.part(pi)
            fi[10] = [lambda: None]*30 + sum([A.store(k, L) for k in range(6)], [])
        else:
            for pi in range(6): fi[4+pi] = A.part(pi) + (A.store(pi-1, L) if pi else [])
            fi[10] = A.store(5, L)
        r_loader(3, 11, {9: [pollx]}, fi, R_OWNS)
        assert L.items() == nj, (L.q, qj)
        b.fence()
        b.s('s_branch L_att_Rj')
        b.label('L_att_AU'); b.restore(sv3)
    L.begin(0, True); L.set_ost()
    b.barrier()
    L.q = []
    fi = {2: A.c2a() + kvo(), 3: A.c2b()}
    if cfg.burst:
        for k in range(3): fi[4+k] = A.part(2*k) + A.part(2*k+1)
        fi[6] = fi[6] + sum([A.store(k, L) for k in range(6)], [])
    else:
        for k in range(3): fi[4+k] = A.part(2*k) + A.store(2*k, L) + A.part(2*k+1) + A.store(2*k+1, L)
    ex = {9: [pollx]}; ex.setdefault(cfg.sigat-1, []).append(lambda: L.need({'st'})); ex.setdefault(cfg.sigat, []).append(lambda: L.signal(VP))
    r_loader(2, 11, ex, fi)
    got = L.items(); assert got == nj[len(nj)-len(got):], (L.q, qj)
    b.fence()
    b.s('s_branch L_att_Rj')
    if usesAF:
        b.label('L_att_AF'); b.restore(sv)
        L.begin(0, True); L.set_ost()
        b.barrier()
        L.q = []
        L.setfill(A.c1(), 14); L.g(3, True, ('g', 3)); L.g(4, True, ('g', 4)); L.flush()
        b.wait_lgkm(0); b.barrier()
        fi = {2: A.c2a() + kvo() + A.c2b()}
        if cfg.burst:
            for k in range(3): fi[3+k] = A.part(2*k) + A.part(2*k+1)
            fi[5] = fi[5] + sum([A.store(k, L) for k in range(6)], [])
        else:
            for k in range(3): fi[3+k] = A.part(2*k) + A.store(2*k, L) + A.part(2*k+1) + A.store(2*k+1, L)
        f_loader(2, FJ, {FJ-2: [lambda: L.need({'st'})], FJ-1: [lambda: L.signal(VP)]}, fi)
        assert L.items() == [n for _, n in qFj]
        b.fence()
        b.s('s_branch L_att_Fj')
    b.label('L_att_RG'); b.reset()
    b.s('s_cmp_eq_u32 s40, 7'); b.s('s_cbranch_scc1 L_att_RP')
    b.s('s_cmp_eq_u32 s40, 3'); b.s('s_cbranch_scc1 L_att_RF')
    L.q = list(qj)
    tail(11, {}, 'r', {11: [lambda: L.begin(1, False)]}, 12)
    L.need({'p'})
    q12 = list(L.q)
    b.emit(f'v_cmp_ne_u64 vcc, s[84:85], {vr(VP,2)}', 'valu', (), R(VP, 2))
    b.s('s_cbranch_vccnz L_att_RRl')
    tail(12, r_to_r(12), 'r')
    assert L.q == qR, (L.q, qR)
    b.s('s_branch L_att_R')
    b.label('L_att_RRl'); L.q = list(q12)
    tail(12, r_to_r(14), 'r', {12: [pollx], 14: [lambda: (L.need({'p'}), L.check(VP, None))]})
    assert L.q == qR, (L.q, qR)
    b.s('s_branch L_att_R')
    b.label('L_att_RF'); L.q = list(qj)
    tail(11, R_TO_F, 'f', {11: [lambda: L.begin(1, False)], 12: [lambda: (L.need({'p'}), L.check(VP, None))]})
    assert L.q == qF, (L.q, qF)
    b.s('s_branch L_att_F')
    b.label('L_att_RP'); L.q = list(qj)
    def pdma(i):
        for hlf, n in ((0, 4), (1, 2)):
            b.s(f's_add_u32 m0, s79, {PLDS[i] + hlf*4096}'); b.s(f's_add_u32 s39, s58, {i*PT + hlf*4096}')
            for k in range(n): b.dma(A.VO, 20, 's39', k*1024, ' sc1')
        L.q.append((('n', i), 6))
    def p11():
        b.v('v_lshlrev_b32', A.VO, '4', LANE)
        L.ub('s58', 's40'); b.s(f's_mul_i32 s58, s58, {32*3*PT}'); b.s('s_add_u32 s58, s58, s78')
    tail(11, R_TO_P, 'p', {11: [p11], 12: [lambda: (L.need({'p'}), L.check(VP, None))]})
    b.s('s_endpgm')
    b.reset()
    b.label('L_gem')
    if cfg.prio & 1: b.s('s_setprio 2')
    if cfg.ivw is not None:
        b.s(f's_mov_b32 s86, {(-cfg.ivw) & 0xffffffff}'); b.v('v_mov_b32', 247, '0')
        ob = b.barrier; cnt = [0]
        def nb():
            ob(); cnt[0] += 1
            b.raw('s_cmp_lt_u32 s86, 64'); b.raw(f's_cbranch_scc0 L_iv{cnt[0]}')
            b.raw('s_memtime s[90:91]'); b.raw('s_mov_b32 m0, s86'); b.raw('s_waitcnt lgkmcnt(0)'); b.raw('v_writelane_b32 v247, s90, m0')
            b.raw(f'L_iv{cnt[0]}:'); b.raw('s_add_u32 s86, s86, 1')
        b.barrier = nb
    M = Loader(b, cfg, GB, GT)
    b.s('s_mov_b32 s77, 0')
    gemm_setup(b)
    loader_offsets(b, 2, GB, 2048, 8192, False, GT)
    b.v('v_and_b32', GT, '15', LANE); b.v('v_mul_u32_u24', VQW, str(QROW), GT)
    b.v('v_lshrrev_b32', GT, '4', LANE); b.v('v_lshlrev_b32', GT, '3', GT)
    b.s('s_lshl_b32 s39, s34, 6'); b.s(f's_add_u32 s39, s39, {XB}'); b.v('v_add3_u32', VQW, VQW, GT, 's39')
    b.s('s_add_u32 s39, s2, s34'); b.s('s_cmp_lg_u32 s39, 0'); b.s('s_cbranch_scc1 L_nononce')
    b.raw('s_memrealtime s[50:51]'); b.raw('s_waitcnt lgkmcnt(0)'); b.s('s_or_b32 s50, s50, 1')
    b.v('v_mov_b32', GF, 's50'); b.v('v_mov_b32', GF+1, 's51')
    b.s('s_mov_b64 exec, 1')
    b.emit(f'buffer_store_dwordx2 {vr(GF,2)}, off, s[64:67], 0 sc1', 'vmem', (), R(GF, 2))
    b.s('s_mov_b64 exec, -1')
    b.label('L_nononce')
    b.barrier()
    b.fence()
    b.label('L_gem_F')
    xq = [(None, cfg.kvpf)] if cfg.kvpf else []
    qf = [(('g', i), 7) for i in (1, 2)] + xq; qg = [(('g', i), 5) for i in range(1, 5)] + xq
    M.q = list(qf)
    g_main(b, cfg, True, M)
    b.s('s_branch L_gem_done')
    b.fence()
    b.label('L_gem_R')
    M.q = list(qg)
    g_main(b, cfg, False, M)
    b.label('L_gem_done')
    phase_stamp(b, cfg)
    sv = b.save()
    b.s('s_cmp_lg_u32 s40, 3'); b.s('s_cbranch_scc1 L_gem_nsw')
    for h in range(2): b.v('v_lshlrev_b32', VXB+h, '4', LANE)
    b.v('v_add_u32', VXB+1, '1024', VXB+1)
    b.label('L_gem_nsw'); b.restore(sv)
    b.s('s_cmp_ge_u32 s40, 4'); b.s('s_cbranch_scc1 L_gem_ot')
    b.s('s_bitcmp1_b32 s32, s40'); b.s('s_cbranch_scc0 L_gem_qg')
    b.s('s_add_u32 s40, s40, 1')
    g_tail(b, q_ops(b)); b.fence()
    b.s('s_branch L_gem_a')
    b.label('L_gem_qg'); b.restore(sv)
    b.s('s_add_u32 s40, s40, 1'); b.s('s_cmp_eq_u32 s40, 4'); b.s('s_cbranch_scc1 L_gem_qf')
    g_fused(b, q_ops(b), False)
    b.label('L_gem_qf'); b.restore(sv)
    g_fused(b, q_ops(b), True)
    b.label('L_gem_ot'); b.restore(sv)
    b.s('s_cmp_eq_u32 s40, 7'); b.s('s_cbranch_scc1 L_gem_fin')
    def pk_ops(qb, base):
        pk = base(qb); o = []
        for nt in range(2):
            a = acc(nt, qb)
            o += [lambda a=a, nt=nt: b.v('v_cvt_pk_bf16_f32', pk+2*nt, a, a+1), lambda a=a, nt=nt: b.v('v_cvt_pk_bf16_f32', pk+2*nt+1, a+2, a+3)]
        return o
    inpl = lambda qb: acc(0, qb)
    def pstore(qb): b.store(4, inpl(qb), VXB, 20, 's50' if qb < 4 else 's51', (qb % 4)*1024, cfg.opol)
    def paddr():
        M.ub('s39', 's40'); b.s(f's_mul_i32 s50, s39, {32*3*PT}'); b.s('s_add_u32 s50, s50, s78')
        b.s('s_lshl_b32 s83, s39, 12'); b.s('s_add_u32 s83, s83, s73')
        b.s('s_and_b32 s39, s40, 3'); b.s(f's_mul_i32 s51, s39, {PT}'); b.s('s_add_u32 s50, s50, s51'); b.s('s_add_u32 s51, s50, 4096')
        b.s('s_lshl_b32 s39, s39, 3'); b.s('s_add_u32 s83, s83, s39')
    paddr()
    b.s('s_bitcmp1_b32 s32, s40'); b.s('s_cbranch_scc1 L_gem_pa')
    if cfg.pdirect:
        b.s('s_cmp_eq_u32 s35, 4'); b.s('s_cselect_b32 s37, 1, 0'); b.s('s_add_u32 s40, s40, 1')
        for f in gemm_addr_ops(b, g_base(0, False)): f()
        po = [pk_ops(qb, inpl) + [lambda qb=qb: pstore(qb)] for qb in range(6)]
        x1 = {7+k: [po[0][k]] for k in range(5)}
        x0 = {}
        for qb in range(2, 6):
            x0[2*(qb-2)] = po[qb][:2]; x0[2*(qb-2)+1] = po[qb][2:]
        def mid():
            for f in po[1]: f()
        g_interval(b, RES, False, False, gemm_addr_ops(b, g_base(1, False)), lambda: None, zero=True, x1=x1, x0=x0, mid=mid)
        b.s('s_branch L_gem_R1')
    else:
        b.s('s_add_u32 s40, s40, 1'); b.s(f's_add_u32 s39, s79, {XB}')
        b.v('v_add_u32', GT, 's39', VXB)
        g_fused(b, sum([pk_ops(qb, inpl) + [lambda qb=qb: b.dsw('ds_write_b128', GT, inpl(qb), 4, qb*1024)] for qb in range(6)], []), False)
    b.label('L_gem_pa'); b.restore(sv)
    g_tail(b, sum([pk_ops(qb, inpl) for qb in range(6)], []))
    b.s('s_mov_b32 s77, 1'); b.s('s_add_u32 s40, s40, 1')
    b.fence()
    b.label('L_gem_a'); b.reset()
    M.q = []
    M.set_a()
    b.barrier()
    def a_loader(t0, t1, nxt):
        for t in range(t0, t1):
            if t == 1: M.nonce_load(GF)
            if t == 3: M.poll(GF, 0)
            for p in A_OWN.get(t, []): M.t(p, ('a', p))
            if t == 1 and cfg.pf:
                M.ub('s39', 's40'); b.s('s_mul_i32 s39, s39, 786432'); b.s('s_add_u32 s39, s39, s57')
                b.s('s_cmp_ge_u32 s40, 4'); b.s(f's_cselect_b32 s39, {OOB}, s39')
                b.load1(DUM, GB+3, 4, 's39'); M.other(1)
            if t == 2 and cfg.wl2 is not None:
                b.s('s_add_u32 s39, s41, s48'); b.s(f's_cmp_eq_u32 s39, {cfg.wl2}'); b.s(f's_cselect_b32 s39, s87, {OOB}')
                b.load1(DUM, GB+3, 24, 's39'); b.s('s_add_u32 s39, s39, 32768'); b.load1(DUM, GB+3, 24, 's39'); M.other(2)
            if t == 4: M.nonce_get(GF)
            if t == 5: M.begin(0, False)
            if t == cfg.pst and nxt == 'R':
                b.s('s_cmp_eq_u32 s77, 0'); b.s('s_cbranch_scc1 L_gem_nops')
                for qb in range(6): pstore(qb)
                b.s('s_mov_b32 s77, 0'); b.s('s_cmp_eq_u32 s35, 4'); b.s('s_cselect_b32 s37, 1, 0')
                b.label('L_gem_nops')
            if t == 6: M.check(GF, 0)
            if nxt:
                for i in (A_TO_R if nxt == 'R' else A_TO_F).get(t, []): M.g(i, nxt == 'F', ('g', i))
            if t == 8 and cfg.kvpf:
                M.ub('s39', 's41', 1); b.s('s_lshl_b32 s39, s39, 24'); b.s('s_add_u32 s39, s39, s46')
                b.s('s_lshl_b32 s58, s34, 13'); b.s('s_add_u32 s39, s39, s58')
                b.s('s_cmp_ge_u32 s41, 3'); b.s(f's_cselect_b32 s39, {OOB}, s39')
                if not cfg.kvpfall: b.s('s_bitcmp1_b32 s32, s40'); b.s(f's_cselect_b32 s39, s39, {OOB}')
                for k in range(cfg.kvpf):
                    if k == 2: b.s('s_add_u32 s39, s39, 32768')
                    b.load1(DUM, GB+3, 8 if k % 2 == 0 else 12, 's39', cfg.kvpfpol)
                M.other(cfg.kvpf)
            M.need(cons_tags('a', 'a', t+1) if t < 8 else {('g', 0)})
            b.barrier()
    a_loader(1, 6, None)
    q5 = list(M.q)
    if usesAF: b.s('s_cmp_eq_u32 s40, 4'); b.s('s_cbranch_scc1 L_gem_AF')
    a_loader(6, 9, 'R')
    assert M.q == qg, (M.q, qg)
    phase_stamp(b, cfg)
    b.s('s_add_u32 s41, s41, 1')
    b.s('s_branch L_gem_R')
    if usesAF:
        b.label('L_gem_AF'); M.q = list(q5)
        a_loader(6, 9, 'F')
        assert M.q == qf, (M.q, qf)
        phase_stamp(b, cfg)
        b.s('s_add_u32 s41, s41, 1')
        b.s('s_branch L_gem_F')
    b.label('L_gem_fin'); b.restore(sv)
    ID = RES; PF_ = RES + 8; t = GT
    b.v('v_add_u32', VX, 's79', VXB); b.v('v_add_u32', VX+1, str(XB), VX)
    rd = [lambda p=p, qb=qb: b.dsr('ds_read_b128', PF_ + 12*qb + 4*p, 4, VX+1 if p == 0 else VX, (PLDS[p] if p else 0) + qb*1024) for qb in range(6) for p in range(3)]
    u = RES + 84
    idops = [lambda: b.v('v_bfe_u32', u, LANE, '2', '2'), lambda: b.v('v_lshrrev_b32', u+1, '4', LANE),
             lambda: b.emit(f'v_cmp_eq_u32 vcc, {vr(u)}, {vr(u+1)}', 'valu', (), {u, u+1}),
             lambda: b.v('v_and_b32', u, '1', LANE), lambda: b.v('v_lshlrev_b32', u, '4', u), lambda: b.v('v_mov_b32', u+1, '0x3f80'), lambda: b.v('v_lshlrev_b32', u, u, u+1),
             lambda: b.emit(f'v_cndmask_b32 {vr(u)}, 0, {vr(u)}, vcc', 'valu', {u}, {u}),
             lambda: b.v('v_and_b32', u+1, '2', LANE),
             lambda: b.emit(f'v_cmp_eq_u32 vcc, 0, {vr(u+1)}', 'valu', (), {u+1})]
    idops += [lambda k=k: b.v('v_mov_b32', ID+k, '0') for k in (0, 1, 4, 5)]
    idops += [lambda: b.emit(f'v_cndmask_b32 {vr(ID+2)}, 0, {vr(u)}, vcc', 'valu', {ID+2}, {u}), lambda: b.v('v_sub_u32', ID+3, u, ID+2)]
    g_block(b, 1, A1, {k: [rd.pop(0), idops.pop(0)] for k in range(12)})
    for f in idops: f()
    fill = rd + [lambda: b.v('v_and_b32', t, '15', LANE), lambda: b.v('v_lshlrev_b32', t, '12', t),
                 lambda: b.v('v_bfe_u32', t+1, LANE, '4', '1'), lambda: b.v('v_lshl_add_u32', t, t+1, '5', t),
                 lambda: b.v('v_lshrrev_b32', t+1, '5', LANE), lambda: b.v('v_lshl_add_u32', t, t+1, '4', t)]
    def epi(qb):
        pk = BF[0] + 4*qb
        return pk_ops(qb, lambda qb: BF[0] + 4*qb) + [lambda: b.swap16(pk, pk+2), lambda: b.swap16(pk+1, pk+3),
                lambda: (b.store(4, pk, t, 28, 's76', 0, cfg.outpol), b.s(f's_add_u32 s76, s76, {16*4096}'))]
    for qb in range(6):
        if qb >= 2: fill += epi(qb-2)
        for p in range(3):
            for nt in range(2):
                b.mfma16(acc(nt, qb), ID + (2 if nt == 0 else 0), PF_ + 12*qb + 4*p, acc(nt, qb))
                if fill: fill.pop(0)()
    for f in fill + epi(4) + epi(5): f()
    stamp_dump(b, cfg)
    b.label('L_k1_end')
    b.s('s_endpgm')
    b.label('L_code_end')
    for task in A.rare: A.rare_block(task)
    return b

def desc(name, nv):
    return f'''.p2align 6
.amdhsa_kernel {name}
  .amdhsa_next_free_vgpr {nv}
  .amdhsa_next_free_sgpr 102
  .amdhsa_accum_offset {nv}
  .amdhsa_group_segment_fixed_size 0
  .amdhsa_kernarg_size 104
  .amdhsa_user_sgpr_count 2
  .amdhsa_user_sgpr_kernarg_segment_ptr 1
  .amdhsa_system_sgpr_workgroup_id_x 1
.end_amdhsa_kernel
'''
def build(path, cfg, which=None):
    B.nodma = cfg.nodma; B.skel = cfg.skel; G['cfg'] = cfg; B.guard = False
    a = k1(cfg)
    s = '; @launch grid=(256,1,1) block=(512,1,1) lds=163840\n.amdgcn_target "amdgcn-amd-amdhsa--gfx950"\n.text\n' + a.text()
    s += '.section .rodata,"a"\n' + desc(NAME + '_kernel', 256)
    open(path, 'w').write(s)
    return a, a
def mk(path, which=('k1', 'k2'), **kw):
    cfg = Cfg()
    for k, v in kw.items():
        assert hasattr(cfg, k), k
        setattr(cfg, k, v)
    return build(path, cfg, which)

if __name__ == '__main__':
    a, c = mk('v10.s')
    print('k1 lines', len(a.lines), 'nops', a.nnop, 'k2 lines', len(c.lines), 'nops', c.nnop)
```

```python
import math, struct, sys
from asmb import *
NAME = 'concat_heads__mha_block_cached__gqa_block_cached__near_ridge'
RING = 135168; XB = RING
HS = 16896; AS = 33792; GS = 22528; WG = 8448
QROW = 272; STAT = XB + 24576
def f2u(x): return struct.unpack('<I', struct.pack('<f', x))[0]
CEXP = math.log2(math.e) / math.sqrt(128.0)
LANE = 255; DUM = 254
OOB = 0x40000000

class Cfg:
    kvpol = ' nt'; opol = ' sc1'; xpol = ' sc1'; outpol = ''; pf = True; pf0 = 2; stamps = False; stagger = True
    wopf = 3; won = (0, 9, 2, 11, 5, 14, 7, 16); nodma = False; skel = False; codepf = True; nosig = False
    ivw = None; prio = 1; masks = (0x17, 0x2e); dropst = 0; allfast = True; pdirect = True; burst = True; hstamp = False; won1 = None; kvpf = 1; kvpfpol = ''; kvpfall = False; fast = False; pst = 7; sigat = 9; rrc = 12; wl2 = None

PB = 26 << 20; FB = 48 << 20; PT = 24576
G = {}
def srd(b, d, lo, size):
    b.s(f's_mov_b32 s{d}, s{lo}'); b.s(f's_mov_b32 s{d+1}, s{lo+1}'); b.s(f's_mov_b32 s{d+2}, {size}'); b.s(f's_mov_b32 s{d+3}, 0x20000')
def lane_id(b, d):
    b.v('v_mbcnt_lo_u32_b32', d, '-1', '0'); b.v('v_mbcnt_hi_u32_b32', d, '-1', d)

XO = 0; WO1 = 12288; WO0 = 12288 + WG
GMAP = [0,1,2,3,4,5,0,1,2,3,0,1,2,3,4,5]
HMAP = [p % 8 for p in range(16)]
def g_base(i, full, cls=0): return (i % 4)*AS if full else GMAP[i]*GS
TILES = [('K',0)] + sum([[('K',j+1), ('V',j)] for j in range(7)], []) + [('V',7)]
def t_base(p): return HMAP[p]*HS
KPOS = {j: TILES.index(('K', j)) for j in range(8)}
VPOS = {j: TILES.index(('V', j)) for j in range(8)}
def t_cons(p): k, j = TILES[p]; return j if k == 'K' else j + 1

def loader_offset_ops(b, kv, base, xstride, wstride, operm, t):
    lane = LANE
    vKV, vX, vW, vPF = base, base+1, base+2, base+3
    t0, t1 = t, t+1
    o = []
    def V(*a): o.append(lambda: b.v(*a))
    V('v_and_b32', t0, '15', lane); V('v_lshlrev_b32', t0, '4', t0)
    V('v_lshrrev_b32', t1, '4', lane)
    if kv:
        V('v_lshl_add_u32', vKV, t1, '3', 's34'); V('v_lshl_add_u32', vKV, vKV, '8', t0)
    sa, sb = (4, 3) if operm else (2, 4)
    V('v_and_b32', vW, '1', t1); V('v_lshl_add_u32', vW, vW, str(sa), 's34')
    V('v_lshrrev_b32', t1, '1', t1); V('v_lshl_add_u32', vW, t1, str(sb), vW)
    V('v_lshl_add_u32', vW, vW, str(int(math.log2(wstride))), t0)
    if operm:
        V('v_lshl_add_u32', vX, lane, '4', 's53')
    else:
        V('v_lshrrev_b32', t0, '3', lane); V('v_lshl_add_u32', t0, 's34', '3', t0)
        V('v_lshrrev_b32', t1, '1', t0); V('v_xor_b32', t1, t1, lane); V('v_and_b32', t1, '7', t1); V('v_lshlrev_b32', t1, '4', t1)
        V('v_lshl_add_u32', vX, t0, str(int(math.log2(xstride))), t1)
    if kv == 2: V('v_lshlrev_b32', vPF, '7', lane)
    return o
def loader_offsets(b, *a):
    for f in loader_offset_ops(b, *a): f()


class Loader:
    def __init__(self, b, cfg, base, t): self.b, self.cfg, self.base, self.tmp, self.q, self.fill, self.per, self.n = b, cfg, base, t, [], [], 0, 0
    def lab(self, s): self.n += 1; return f'L_{s}{self.base}_{self.n}'
    def setfill(self, ops, ndma):
        self.fill = list(ops); self.per = -(-len(self.fill) // max(ndma, 1))
    def _f(self):
        for _ in range(self.per):
            if self.fill: self.fill.pop(0)()
    def flush(self):
        while self.fill: self.fill.pop(0)()
    def g(self, i, full, tag):
        b = self.b; vX, vW = self.base+1, self.base+2; lds = g_base(i, full)
        b.s(f's_mul_i32 s58, s42, {i}'); b.s('s_add_u32 s58, s58, s36')
        b.s(f's_mul_i32 s59, s60, {i}'); b.s('s_add_u32 s59, s59, s45')
        for z in range(3):
            b.s(f's_add_u32 m0, s53, {lds + XO + z*4096}')
            if z: b.s('s_add_u32 s58, s58, s43')
            b.dma(vX, 4, 's58', 0, self.cfg.xpol); self.q.append((tag, 1)); self._f()
        for h in (0, 1):
            if h: b.s('s_add_u32 s59, s59, s61')
            if h == 0 and not full: continue
            for z in (0, 1):
                b.s(f's_add_u32 m0, s52, {lds + (WO1 if h else WO0) + z*4224}')
                if z: b.s('s_add_u32 s39, s59, s62')
                b.dma(vW, 16, 's39' if z else 's59'); self.q.append((tag, 1)); self._f()
        self.norm()
    def t(self, p, tag):
        b = self.b; k, j = TILES[p]; srd_ = 8 if k == 'K' else 12; lds = t_base(p); pol = self.cfg.kvpol
        for kh in range(2):
            b.s(f's_add_u32 m0, s52, {lds + kh*8448}'); b.s(f's_add_u32 s39, s38, {j*16384 + kh*8192}')
            b.dma(self.base, srd_, 's39', 0, pol)
            b.s('s_add_u32 m0, m0, 3200')
            b.dma(self.base, srd_, 's39', 1024, pol)
        self.q.append((tag, 4))
    def norm(self):
        q = []
        for t, n in self.q:
            if q and q[-1][0] == t: q[-1] = (t, q[-1][1] + n)
            else: q.append((t, n))
        self.q = q
    def items(self):
        t = Loader(self.b, self.cfg, 0, 0); t.q = [x for x in self.q if isinstance(x[0], tuple)]; t.norm(); return [n for _, n in t.q]
    def other(self, n): self.q.append((None, n))
    def need(self, tags):
        last = -1
        for i, (t, n) in enumerate(self.q):
            if t in tags: last = i
        if last >= 0:
            self.q = self.q[last+1:]
            self.b.vm(min(63, sum(n for _, n in self.q)))
    def ub(self, d, unit_sgpr, plus=0):
        self.b.s(f's_add_u32 {d}, {unit_sgpr}, s33')
        if plus: self.b.s(f's_add_u32 {d}, {d}, {plus & 3}')
        self.b.s(f's_and_b32 {d}, {d}, 3')
    def begin(self, plus, recompute):
        b = self.b; lo, le = self.lab('bo'), self.lab('be')
        b.fence()
        b.s(f's_cmp_ge_u32 s40, {4 - plus}'); b.s(f's_cbranch_scc1 {lo}')
        if recompute: loader_offsets(b, False, self.base, 2048, 8192, False, self.tmp)
        b.s(f's_branch {le}')
        b.label(lo)
        for k in range(3): b.s(f's_mov_b32 s{4+k}, s{20+k}')
        for k in range(2): b.s(f's_mov_b32 s{16+k}, s{24+k}')
        for r, v in ((42, 12288), (43, 4096), (60, 64*2048), (61, 32*2048), (62, 4*2048), (63, 3145728), (44, 's74'), (45, 's75')): b.s(f's_mov_b32 s{r}, {v}')
        loader_offsets(b, False, self.base, 128, 2048, True, self.tmp)
        b.label(le)
        self.ub('s36', 's40', plus); b.s('s_mul_i32 s36, s36, s63'); b.s('s_add_u32 s36, s36, s44')
        b.fence()
    def set_a(self):
        self.ub('s38', 's41'); self.b.s('s_lshl_b32 s38, s38, 24'); self.b.s('s_add_u32 s38, s38, s46')
    def set_ost(self):
        self.ub('s54', 's41', 3); self.b.s('s_mul_i32 s54, s54, 3145728'); self.b.s('s_add_u32 s54, s54, s47')
        if self.cfg.dropst: self.b.s(f's_cmp_le_u32 s41, {self.cfg.dropst}'); self.b.s(f's_cselect_b32 s54, {OOB}, s54')
    def nonce_load(self, v):
        self.b.emit(f'buffer_load_dwordx2 {vr(v+4,2)}, off, s[64:67], 0 sc1', 'vmem', R(v+4, 2)); self.q.append(('n', 1))
    def nonce_get(self, v):
        b = self.b; l0, l1 = self.lab('nc'), self.lab('nk')
        assert all(x[0] != 'n' for x in self.q)
        b.s('s_mov_b32 s49, 0x40000')
        b.label(l0)
        b.rfl(84, v+4); b.rfl(85, v+5); b.nop(1)
        b.s('s_cmp_lg_u32 s84, 0'); b.s(f's_cbranch_scc1 {l1}')
        b.s('s_sleep 4')
        b.emit(f'buffer_load_dwordx2 {vr(v+4,2)}, off, s[64:67], 0 sc1', 'vmem', R(v+4, 2)); b.vm(0)
        b.s('s_sub_u32 s49, s49, 1'); b.s('s_cmp_lg_u32 s49, 0'); b.s(f's_cbranch_scc1 {l0}')
        b.label(l1)
    def poll(self, v, plus):
        b = self.b
        self.ub('s82', 's40', plus); b.s('s_lshl_b32 s82, s82, 11'); b.s('s_add_u32 s82, s82, s72'); b.s('s_andn2_b32 s82, s82, 127')
        b.s(f's_cmp_lt_u32 s40, {4 - plus}'); b.s(f's_cselect_b32 s82, {OOB}, s82')
        if plus:
            b.s('s_bitcmp1_b32 s32, s40'); b.s(f's_cselect_b32 s82, {OOB}, s82')
            self.ub('s39', 's40'); b.s('s_lshl_b32 s39, s39, 12'); b.s('s_add_u32 s39, s39, s73')
            b.s('s_cmp_eq_u32 s40, 7'); b.s('s_cselect_b32 s82, s39, s82'); b.s('s_cselect_b32 s39, 2, 7')
            b.v('v_min_u32', v+2, 's39', LANE)
        else:
            b.v('v_min_u32', v+2, '7', LANE)
        b.v('v_lshlrev_b32', v+2, '3', v+2)
        b.emit(f'buffer_load_dwordx2 {vr(v,2)}, {vr(v+2)}, s[68:71], s82 offen sc1', 'vmem', R(v, 2), {v+2}); self.q.append(('p', 1))
    def check(self, v, plus):
        b = self.b; l0, l1 = self.lab('ck'), self.lab('ok')
        assert all(x[0] != 'p' for x in self.q)
        if self.cfg.nosig: return
        if plus is not None: b.s(f's_cmp_lt_u32 s40, {4 - plus}'); b.s(f's_cbranch_scc1 {l1}')
        b.s('s_mov_b32 s49, 0x40000')
        b.label(l0)
        b.emit(f'v_cmp_ne_u64 vcc, s[84:85], {vr(v,2)}', 'valu', (), R(v, 2))
        b.s(f's_cbranch_vccz {l1}')
        b.s('s_sleep 2')
        b.emit(f'buffer_load_dwordx2 {vr(v,2)}, {vr(v+2)}, s[68:71], s82 offen sc1', 'vmem', R(v, 2), {v+2}); b.vm(0)
        b.s('s_sub_u32 s49, s49, 1'); b.s('s_cmp_lg_u32 s49, 0'); b.s(f's_cbranch_scc1 {l0}')
        b.label(l1)
    def flag_store(self, v, soff):
        b = self.b
        b.v('v_mov_b32', v+4, 's84'); b.v('v_mov_b32', v+5, 's85')
        b.s('s_mov_b64 exec, 1')
        b.emit(f'buffer_store_dwordx2 {vr(v+4,2)}, off, s[68:71], {soff} sc1', 'vmem', (), R(v+4, 2))
        b.s('s_mov_b64 exec, -1')
    def signal(self, v):
        b = self.b
        assert all(x[0] != 'st' for x in self.q)
        self.ub('s39', 's41', 3); b.s('s_lshl_b32 s39, s39, 11'); b.s('s_add_u32 s39, s39, s72')
        b.s('s_cmp_eq_u32 s35, 0'); b.s(f's_cselect_b32 s39, s39, {OOB}')
        self.flag_store(v, 's39'); self.other(1)
    def psignal(self, v):
        b = self.b; l = self.lab('ps')
        b.s('s_cmp_eq_u32 s37, 0'); b.s(f's_cbranch_scc1 {l}')
        sv = b.save(); self.flag_store(v, 's83'); b.s('s_mov_b32 s37, 0'); b.restore(sv)
        b.label(l)

def cons_tags(ph, kind, t):
    if kind == 'g': return {(ph, t)}
    return {(ph, p) for p in range(16) if t_cons(p) == t}
R_OWN = {2: [5], 3: [6, 7], 4: [8], 5: [9], 6: [14], 7: [10], 8: [11], 9: [12], 10: [13], 11: [15]}
R_OWNP = {1: [5], 2: [6], 3: [7]}
R_TO_A = {11: [0], 12: [1], 13: [2, 3], 14: [4], 15: [5]}
R_TO_F = {12: [0], 13: [1], 15: [2]}
def r_to_r(c):
    d = {}
    for i in range(4): d.setdefault(max(c, 12 + i if i < 3 else 14), []).append(i)
    return d
F_TO_A = {13: [0, 1], 14: [2, 3], 15: [4, 5]}
F_TO_R = {13: [0], 14: [1, 2], 15: [3]}
A_OWN = {1: [8], 2: [9, 10], 3: [11, 12], 4: [13, 14], 5: [15]}
A_TO_R = {6: [0, 1], 7: [2], 8: [3, 4]}
A_TO_F = {6: [0], 7: [1], 8: [2]}
R_TO_P = {12: [0, 1], 13: [2]}
PLDS = [XB, 0, PT]
R_OWNS = {2: [], 3: [5, 6], 4: [7, 8]}
def prog_of(mask):
    p = []
    for gi in range(8):
        p.append('F' if gi % 4 == 0 else 'R')
        if mask >> gi & 1: p.append('A')
    return p
def verify_ring(cfg):
    for mask in cfg.masks:
        prog = prog_of(mask) + ['P']
        assert prog.count('A') == 4
        if mask & 1: assert cfg.pdirect or not (mask >> 5), 'Q3 would be clobbered in X'
        else: assert mask >> 3 & 3
        live = {}; issued = set()
        def rng(ph, i):
            k = prog[ph]
            if k == 'F': return (g_base(i, True), g_base(i, True) + 29184)
            if k == 'R': return (g_base(i, False), g_base(i, False) + 20736)
            if k == 'P': return (PLDS[i], PLDS[i] + PT)
            return (t_base(i), t_base(i) + HS)
        def iss(ph, i):
            lo, hi = rng(ph, i)
            for t, (a, c) in live.items(): assert hi <= a or c <= lo, (prog, ph, i, t)
            assert (ph, i) not in issued, (prog, ph, i)
            live[(ph, i)] = (lo, hi); issued.add((ph, i))
        for i in range(3): iss(0, i)
        for ph, k in enumerate(prog[:-1]):
            nx = prog[ph+1]; pv = prog[ph-1] if ph else None
            for t in range(9 if k == 'A' else 16):
                if k == 'F':
                    own = [t+3] if t <= 12 else []
                    if pv == 'A' and t < 2: own = [[], [3, 4]][t]
                    nxt = {'A': F_TO_A, 'R': F_TO_R}[nx].get(t, [])
                elif k == 'R':
                    own = R_OWN.get(t, []) if t else ([] if pv == 'A' else [4])
                    if pv != 'A' and t in R_OWNP: own = R_OWNP[t]
                    nxt = {'A': R_TO_A, 'F': R_TO_F, 'R': r_to_r(cfg.rrc), 'P': R_TO_P}[nx].get(t, [])
                else:
                    own = A_OWN.get(t, []) if t else [6, 7]
                    nxt = {'R': A_TO_R, 'F': A_TO_F}[nx].get(t, [])
                for i in own: iss(ph, i)
                for i in nxt: iss(ph+1, i)
                for tg in cons_tags(ph, 'a' if k == 'A' else 'g', t):
                    assert tg in live, (prog, tg); del live[tg]
        assert len(live) == 3 and len(issued) == 195

ACC = 0; RES = 48; BF = [176, 200]; A1 = 224; VW = 232; VX = 233; VWB = 235; VXB = 236; VQW = 238; GB = 240; GT = 244
def acc(nt, qb): return ACC + 8*qb + 4*nt
def gemm_setup(b):
    lane = LANE; t0, t1, t2 = GT, GT+1, GT+2
    b.v('v_bfe_u32', t0, lane, '2', '3'); b.v('v_mul_u32_u24', VWB, '1056', t0)
    b.v('v_lshrrev_b32', t0, '5', lane); b.v('v_lshlrev_b32', t0, '9', t0); b.v('v_add_u32', VWB, VWB, t0)
    b.v('v_and_b32', t0, '3', lane); b.v('v_lshlrev_b32', t0, '3', t0)
    b.s('s_lshl_b32 s39, s34, 6'); b.v('v_add3_u32', VWB, VWB, t0, 's39')
    b.v('v_and_b32', t0, '15', lane); b.v('v_lshrrev_b32', t2, '1', t0); b.v('v_lshrrev_b32', t1, '4', lane); b.v('v_xor_b32', t2, t2, t1)
    b.v('v_lshlrev_b32', t0, '7', t0)
    for h in range(2):
        b.v('v_xor_b32', VXB+h, str(4*h), t2); b.v('v_lshlrev_b32', VXB+h, '4', VXB+h); b.v('v_add_u32', VXB+h, VXB+h, t0)
def gemm_addr_ops(b, base):
    base = str(base)
    return [lambda: b.v('v_add_u32', VX, base, VXB), lambda: b.v('v_add_u32', VX+1, base, VXB+1), lambda: b.v('v_add_u32', VW, base, VWB)]
def rdA(b, h, areg):
    return [lambda nt=nt, e=e: b.dsr('ds_read_b64_tr_b16', areg+4*nt+2*e, 2, VW, (WO1 if h else WO0) + e*256 + nt*32) for nt in range(2) for e in range(2)]
def rdB(b, h):
    return [lambda qb=qb: b.dsr('ds_read_b128', BF[h]+4*qb, 4, VX+h, XO + qb*2048) for qb in range(6)]
def g_block(b, h, areg, gaps, zero=False, prewait=None):
    k = 0
    for qb in range(6):
        for nt in range(2):
            if prewait and k in prewait: b.wait_lgkm(prewait[k])
            b.mfma16(acc(nt, qb), areg+4*nt, BF[h]+4*qb, None if zero else acc(nt, qb))
            for f in gaps.get(k, []): f()
            k += 1
def g_interval(b, a0, load_a0, first, nxt_ops, endfn, defer=False, zero=None, x1=None, x0=None, mid=None):
    B0, B1, Aa = rdB(b, 0), rdB(b, 1), rdA(b, 1, A1)
    A0 = rdA(b, 0, a0) if load_a0 else []
    if first:
        for f in A0 + B0: f()
        rest = B1 + Aa
        pw = None
    else:
        seq = A0 + B0 + B1
        g1 = {k: [seq[k]] for k in range(12)}
        for k, fs in (x1 or {}).items(): g1[k] = fs + g1[k]
        rest = seq[12:] + Aa
        g_block(b, 1, A1, g1, prewait=({0: 0} if defer else None))
        if mid: mid()
        ny = 12 - len(A0) - 6
        pw = {0: ny} if not load_a0 else {0: ny + 3, 6: 6 + ny}
    g0 = {k: [f] for k, f in enumerate(rest)}
    for k, fs in (x0 or {}).items(): g0.setdefault(k, []).extend(fs)
    k = len(rest)
    for f in nxt_ops:
        g0.setdefault(min(k, 10), []).append(f); k += 1
    def tail():
        if not defer: b.wait_lgkm(0)
        endfn(); b.barrier()
    g0.setdefault(10, []).append(tail)
    g_block(b, 0, a0, g0, zero=(first if zero is None else zero), prewait=pw)
def q_ops(b):
    def cv(qb, nt):
        a = acc(nt, qb)
        return [lambda z=z: b.v('v_mul_f32', a+z, 's56', a+z) for z in range(4)] + \
               [lambda: b.v('v_cvt_pk_bf16_f32', a, a, a+1), lambda: b.v('v_cvt_pk_bf16_f32', a+1, a+2, a+3),
                lambda: b.dsw('ds_write_b64', VQW, a, 2, qb*16*QROW + nt*32)]
    return sum([cv(qb, nt) for qb in range(6) for nt in range(2)], [])
def g_tail(b, ops):
    gaps = {}
    for k in range(5, 12): gaps[k] = [ops.pop(0), ops.pop(0)]
    g_block(b, 1, A1, gaps)
    for f in ops: f()
    b.wait_lgkm(0)
def g_fused(b, ops, full):
    for f in gemm_addr_ops(b, g_base(0, full)): f()
    x1 = {k: [ops.pop(0)] for k in range(6, 12)}
    def mid():
        for f in ops: f()
    g_interval(b, RES, full, False, gemm_addr_ops(b, g_base(1, full)), lambda: None, zero=True, x1=x1, mid=mid)
    b.s('s_branch L_gem_F1' if full else 's_branch L_gem_R1')
def g_main(b, cfg, full, M):
    for f in gemm_addr_ops(b, g_base(0, full)): f()
    for c in range(16):
        x0 = {7: [lambda: M.psignal(GF)]} if (c == 5 and not full) else None
        if c == 1: b.label('L_gem_F1' if full else 'L_gem_R1')
        g_interval(b, RES + 8*c, full, c == 0, gemm_addr_ops(b, g_base(c+1, full)) if c < 15 else [], (lambda c=c: M.need({('g', c+1)}) if c != 4 else b.vm(0)), x0=x0)
GF = 248

O_ = 0; Q_ = 96; KF = 144; VF = 176; S_ = 208; P_ = 224; NM = 232; L_ = 244
VKA = 247; VVA = 248; VKB = 249; VVB = 250; T0 = 251; VVH = 253
LB = S_ + 8
def Oreg(c, dt): return O_ + 32*c + 4*dt
def att_setup(b):
    lane = LANE; t0 = T0
    b.s('s_mul_i32 s39, s55, 8448')
    b.v('v_and_b32', t0, '7', lane); b.v('v_mul_u32_u24', VKB, '1056', t0)
    b.v('v_bfe_u32', t0, lane, '3', '1'); b.v('v_lshlrev_b32', t0, '8', t0); b.v('v_add_u32', VKB, VKB, t0)
    b.v('v_lshrrev_b32', t0, '4', lane); b.v('v_lshlrev_b32', t0, '4', t0); b.v('v_add3_u32', VKB, VKB, t0, 's39')
    b.v('v_bfe_u32', t0, lane, '2', '3'); b.v('v_mul_u32_u24', VVB, '1056', t0)
    b.v('v_lshrrev_b32', t0, '5', lane); b.v('v_lshlrev_b32', t0, '8', t0); b.v('v_add_u32', VVB, VVB, t0)
    b.s('s_lshl_b32 s50, s55, 7'); b.s('s_add_u32 s39, s39, s50')
    b.v('v_and_b32', t0, '3', lane); b.v('v_lshlrev_b32', t0, '3', t0); b.v('v_add3_u32', VVB, VVB, t0, 's39')
    b.s('s_lshl_b32 s77, s55, 8'); b.s('s_sub_u32 s77, 128, s77')
def q_addr(b, t0, t1):
    b.s('s_and_b32 s39, s34, 1'); b.s(f's_mul_i32 s39, s39, {48*QROW}'); b.s(f's_add_u32 s39, s39, {XB}')
    b.v('v_and_b32', t0, '15', LANE); b.v('v_mul_u32_u24', t0, str(QROW), t0)
    b.v('v_lshrrev_b32', t1, '4', LANE); b.v('v_lshlrev_b32', t1, '4', t1); b.v('v_add3_u32', t0, t0, t1, 's39')
def q_reads(b, t0):
    for c in range(3):
        for m in range(4): b.dsr('ds_read_b128', Q_+16*c+4*m, 4, t0, c*16*QROW + m*64)
def crossred(b, t, u, op='v_max_f32'):
    b.v('v_mov_b32', u, t); b.swap32(t, u); b.v(op, t, t, u)
    b.v('v_mov_b32', u, t); b.swap16(t, u); b.v(op, t, t, u)

class Att:
    def __init__(self, b, cfg): self.b, self.cfg, self.rare = b, cfg, []
    def qk_list(self, task):
        b = self.b; i, c = divmod(task, 3); buf = task & 1; out = []
        for m in range(4):
            for t in range(2):
                d = S_ + 8*buf + 4*t
                cc = d if m else (None if i == 0 else NM + 4*c)
                out.append(lambda d=d, t=t, m=m, cc=cc: b.mfma16(d, KF+16*t+4*m, Q_+16*c+4*m, cc))
        return out
    def pv_list(self, task):
        b = self.b; i, c = divmod(task, 3); buf = task & 1
        return [lambda dt=dt: b.mfma16(Oreg(c, dt), VF+4*dt, P_+4*buf, None if i == 0 else Oreg(c, dt)) for dt in range(8)]
    def kread(self, k):
        m, t = divmod(k, 2)
        return lambda: self.b.dsr('ds_read_b128', KF+16*t+4*m, 4, VKA, t*512+m*64)
    def vread(self, k):
        dt, t = divmod(k, 2)
        return lambda: self.b.dsr('ds_read_b64_tr_b16', VF+4*dt+2*t, 2, VVA if dt < 4 else VVH, t*512+(dt % 4)*32)
    def pre(self, task):
        b = self.b; i, c = divmod(task, 3); S = S_ + 8*(task & 1); t, u = T0, T0+1
        o = [(4, lambda: b.v('v_max3_f32', t, S, S+1, S+2)), (4, lambda: b.v('v_max3_f32', u, S+3, S+4, S+5)),
             (4, lambda: b.v('v_max3_f32', t, S+6, S+7, t)), (4, lambda: b.v('v_max_f32', t, t, u))]
        if i > 0: o.append((4, lambda: b.emit(f'v_cmp_lt_f32 vcc, 4.0, {vr(t)}', 'valu', (), {t})))
        return o
    def main(self, task):
        b = self.b; i, c = divmod(task, 3); buf = task & 1
        S = S_ + 8*buf; P = P_ + 4*buf; t, u = T0, T0+1
        o = []
        if i == 0:
            o += [(4, lambda: b.v('v_mov_b32', u, t)), (8, lambda: b.swap32(t, u)), (4, lambda: b.v('v_max_f32', t, t, u)),
                  (4, lambda: b.v('v_mov_b32', u, t)), (8, lambda: b.swap16(t, u)), (4, lambda: b.v('v_max_f32', t, t, u))]
            for k in range(8): o.append((4, lambda k=k: b.v('v_sub_f32', S+k, S+k, t)))
            for k in range(4): o.append((4, lambda k=k: b.v('v_sub_f32', NM+4*c+k, '0', t)))
        else:
            def br():
                b.s(f's_cbranch_vccnz L_rare{task}'); b.label(f'L_back{task}'); self.rare.append(task)
            o.append((6, br))
        for k in range(8):
            o.append((8, lambda k=k: b.exp(S+k, S+k)))
            if k >= 1:
                kk = k - 1
                if i == 0 and kk == 0: o.append((4, lambda: b.v('v_mov_b32', L_+c, S)))
                else: o.append((4, lambda kk=kk: b.v('v_add_f32', L_+c, L_+c, S+kk)))
            if k >= 2 and k % 2 == 0:
                h = k//2 - 1
                o.append((4, lambda h=h: b.v('v_cvt_pk_bf16_f32', P+h, S+2*h, S+2*h+1)))
        o.append((4, lambda: b.v('v_add_f32', L_+c, L_+c, S+7)))
        o.append((4, lambda: b.v('v_cvt_pk_bf16_f32', P+3, S+6, S+7)))
        return o
    def addr_k(self, j): self.b.v('v_add_u32', VKA, str(t_base(KPOS[j])), VKB)
    def addr_v(self, j): self.b.v('v_add_u32', VVA, str(t_base(VPOS[j])), VVB); self.b.v('v_add_u32', VVH, 's77', VVA)
    def step(self, s, endfn=None):
        b = self.b; mf = []; prew = {}
        i, c = divmod(s, 3)
        if s + 1 <= 23: mf += self.qk_list(s + 1)
        if s - 1 >= 0: mf += self.pv_list(s - 1)
        n = len(mf)
        post = [[] for _ in range(n)]
        hasK = i + 1 <= 7
        if c == 0:
            off = 8 if s else 0
            for k in range(8): post[off + k].append(self.vread(k))
        elif c == 1:
            for k in range(8): post[k].append(self.vread(8 + k))
            if hasK:
                for k in range(8): post[8 + k].append(self.kread(k))
            prew[8] = 8; prew[12] = 4 if hasK else 0
        elif hasK:
            prew[0] = 4; prew[4] = 0
        sm = self.main(s) + (self.pre(s + 1) if s + 1 <= 23 else [])
        if B.skel: sm = []
        ecost = 20
        tot = sum(x for x, _ in sm) + 4*sum(len(p) for p in post) + 4*len(prew) + (ecost if endfn else 0)
        acc_ = 0; k = 0
        for j in range(n):
            if j in prew: b.wait_lgkm(prew[j]); acc_ += 4
            mf[j]()
            for f in post[j]: f(); acc_ += 4
            if endfn and j == n - 4:
                endfn(); acc_ += ecost
                continue
            tgt = tot * (j + 1) / n
            while k < len(sm) and (acc_ + sm[k][0]/2 <= tgt or j == n - 1):
                sm[k][1](); acc_ += sm[k][0]; k += 1
    def start(self):
        for f in self.qk_list(0): f()
        for _, f in self.pre(0): f()
    def intervals(self, L):
        b, cfg = self.b, self.cfg
        for j in range(1, 9):
            for s in range(3*(j-1), 3*j):
                if s == 23:
                    b.wait_lgkm(0)
                    b.s('s_cmp_eq_u32 s48, 0'); b.s('s_cbranch_scc1 L_a_noq1')
                    b.s('s_cmp_ge_u32 s41, 3'); b.s('s_cbranch_scc1 L_a_noq1')
                    sv = b.save(); q_addr(b, KF, KF+1); q_reads(b, KF); b.restore(sv)
                    b.label('L_a_noq1')
                def endfn(j=j):
                    b.wait_lgkm(0)
                    if j == 8: b.raw('s_waitcnt lgkmcnt(0)')
                    else:
                        self.addr_v(j)
                        if j + 1 <= 7: self.addr_k(j + 1)
                    L.need(cons_tags('a', 'a', j + 1))
                    b.barrier()
                self.step(s, endfn if s == 3*j - 1 else None)
    XA = KF; SA = KF+1; XP = KF+2; OS = KF+4; FO = KF+10; FT = KF+13; PK = VF; UP = S_; VO = P_+2
    def pack(self, c, mp):
        b = self.b; pk = KF + 16 + 4*((2*c+mp) % 4); r = []
        for h in range(2):
            o = Oreg(c, 4 + 2*mp + h)
            r += [lambda o=o, h=h: b.v('v_cvt_pk_bf16_f32', pk+2*h, o, o+1), lambda o=o, h=h: b.v('v_cvt_pk_bf16_f32', pk+2*h+1, o+2, o+3)]
        return r + [lambda: b.dsw('ds_write_b128', self.XA, pk, 4, (2*c+mp)*1024)]
    def c0(self):
        b = self.b; XA = self.XA
        b.s('s_mul_i32 s50, s34, 6144'); b.s(f's_add_u32 s50, s50, {XB}')
        fill = [lambda: b.v('v_lshl_add_u32', XA, LANE, '4', 's50')]
        fill += self.pack(0, 0) + self.pack(0, 1) + self.pack(1, 0) + self.pack(1, 1)
        pv = self.pv_list(23)
        for dt in (4, 5, 6, 7, 0, 1, 2, 3):
            pv[dt]()
            for _ in range(2): fill.pop(0)()
        for f in fill: f()
    def c1(self):
        b = self.b; SA = self.SA
        red = []
        for c in range(3):
            Lr = L_ + c; uu = S_ + c
            red.append([lambda Lr=Lr, uu=uu: b.v('v_mov_b32', uu, Lr), lambda Lr=Lr, uu=uu: b.swap32(Lr, uu), lambda Lr=Lr, uu=uu: b.v('v_add_f32', Lr, Lr, uu),
                        lambda Lr=Lr, uu=uu: b.v('v_mov_b32', uu, Lr), lambda Lr=Lr, uu=uu: b.swap16(Lr, uu), lambda Lr=Lr, uu=uu, c=c: b.v('v_add_f32', NM+4*c+1, Lr, uu)])
        o = [lambda: (b.s('s_mul_i32 s50, s34, 384'), b.s(f's_add_u32 s50, s50, {STAT}'))]
        o += self.pack(2, 0) + self.pack(2, 1)
        o += [lambda: b.v('v_and_b32', SA, '15', LANE), lambda: b.v('v_mad_u32_u24', SA, SA, '24', 's50')]
        o += [red[c][k] for k in range(6) for c in range(3)]
        o += [lambda c=c: b.dsw('ds_write_b64', SA, NM+4*c, 2, 8*c) for c in range(3)]
        o += [lambda: (b.s('s_mul_i32 s51, s77, 96'), b.s('s_mul_i32 s50, s77, 6')), lambda: b.v('v_add_u32', self.XP, 's51', self.XA), lambda: b.v('v_add_u32', SA, 's50', SA)]
        return o
    def c2a(self):
        b = self.b
        return [lambda c=c: b.dsr('ds_read_b64', self.OS+2*c, 2, self.SA, 8*c) for c in range(3)] + \
               [lambda k=k: b.dsr('ds_read_b128', self.PK+4*k, 4, self.XP, k*1024) for k in range(6)]
    def c2b(self):
        b = self.b; ops = []
        for c in range(3):
            nm, lo = NM+4*c, NM+4*c+1; on, ol = self.OS+2*c, self.OS+2*c+1; fo, ft = self.FO+c, self.FT+c; t = NM+4*c+2
            ops.append([lambda t=t, nm=nm, on=on: b.v('v_min_f32', t, nm, on), lambda fo=fo, t=t, nm=nm: b.v('v_sub_f32', fo, t, nm), lambda ft=ft, t=t, on=on: b.v('v_sub_f32', ft, t, on),
                        lambda fo=fo: b.exp(fo, fo), lambda ft=ft: b.exp(ft, ft), lambda t=t, fo=fo, lo=lo: b.v('v_mul_f32', t, fo, lo), lambda t=t, ft=ft, ol=ol: b.v('v_fma_f32', t, ft, ol, t),
                        lambda t=t: b.v('v_rcp_f32', t, t, kind='trans'), lambda fo=fo, t=t: b.v('v_mul_f32', fo, fo, t), lambda ft=ft, t=t: b.v('v_mul_f32', ft, ft, t)])
        return [ops[c][k] for k in range(10) for c in range(3)] + [lambda: b.v('v_lshlrev_b32', self.VO, '4', LANE), lambda: b.s('s_add_u32 s51, s54, 4096')]
    def part(self, pi):
        b = self.b; o_ = []
        def V(*a, **k): o_.append(lambda: b.v(*a, **k))
        c, mp = divmod(pi, 2); fo, ft = self.FO+c, self.FT+c
        pk = self.PK + 4*pi
        for h in range(2):
            o = Oreg(c, 2*mp + h); up = self.UP + 4*h
            V('v_lshlrev_b32', up, '16', pk+2*h); V('v_and_b32', up+1, '0xffff0000', pk+2*h)
            V('v_lshlrev_b32', up+2, '16', pk+2*h+1); V('v_and_b32', up+3, '0xffff0000', pk+2*h+1)
            for z in range(4): V('v_mul_f32', o+z, o+z, fo)
            for z in range(4): V('v_fmac_f32', o+z, up+z, ft, extra_r={o+z})
            V('v_cvt_pk_bf16_f32', pk+2*h, o, o+1); V('v_cvt_pk_bf16_f32', pk+2*h+1, o+2, o+3)
        return o_
    def store(self, pi, L):
        def f():
            self.b.store(4, self.PK + 4*pi, self.VO, 20, 's54' if pi < 4 else 's51', (pi % 4)*1024, self.cfg.opol); L.q.append(('st', 1))
        return [f]
    def rare_block(self, task):
        b = self.b; i, c = divmod(task, 3); S = S_ + 8*(task & 1); t, u = T0, T0+1
        b.reset(); b.label(f'L_rare{task}'); b.nop(2)
        crossred(b, t, u)
        b.v('v_max_f32', t, '0', t)
        b.v('v_sub_f32', u, '0', t); b.exp(u, u)
        for k in range(8): b.v('v_sub_f32', S+k, S+k, t)
        for k in range(4): b.v('v_sub_f32', NM+4*c+k, NM+4*c+k, t)
        b.v('v_mul_f32', L_+c, L_+c, u)
        for k in range(32): b.v('v_mul_f32', O_+32*c+k, O_+32*c+k, u)
        b.nop(2); b.s(f's_branch L_back{task}')

def phase_stamp(b, cfg):
    if cfg.stamps:
        b.raw('s_memrealtime s[90:91]'); b.raw('s_waitcnt lgkmcnt(0)'); b.raw('s_sub_u32 s90, s90, s88')
        b.raw('s_add_u32 s91, s40, s41'); b.raw('s_max_u32 s91, s91, 3'); b.raw('s_sub_u32 s91, s91, 3'); b.raw('s_mov_b32 m0, s91'); b.raw('s_nop 0'); b.raw('s_movreld_b32 s91, s90')
def stamp_dump(b, cfg):
    if cfg.stamps:
        b.raw('s_memrealtime s[90:91]'); b.raw('s_waitcnt lgkmcnt(0)'); b.raw('s_sub_u32 s99, s90, s88')
        b.raw('s_cmp_lg_u32 s35, 4'); b.raw('s_cbranch_scc1 L_k1_end')
        b.raw('s_lshl_b32 s91, s2, 5'); b.raw(f's_add_u32 s80, s20, {64 << 20}'); b.raw('s_addc_u32 s81, s21, 0')
        b.raw(f'v_mov_b32 v{GT+1}, s91')
        for k in range(8):
            b.raw(f'v_mov_b32 v{GT}, s{92+k}'); b.raw(f'global_store_dword v{GT+1}, v{GT}, s[80:81] offset:{4*k}')
    if cfg.ivw is not None:
        b.raw('s_cmp_lg_u32 s35, 4'); b.raw('s_cbranch_scc1 L_k1_end')
        b.raw(f's_add_u32 s80, s20, {66 << 20}'); b.raw('s_addc_u32 s81, s21, 0'); b.raw('s_lshl_b32 s91, s2, 8')
        b.raw(f'v_lshlrev_b32 v{GT}, 2, v{LANE}'); b.raw(f'v_add_u32 v{GT}, s91, v{GT}'); b.raw(f'global_store_dword v{GT}, v247, s[80:81]')

def k1(cfg):
    verify_ring(cfg)
    b = B()
    KN = NAME + '_kernel'
    b.raw(f'.globl {KN}'); b.raw('.p2align 8'); b.raw(f'.type {KN},@function'); b.label(KN)
    b.s('s_cmp_ge_u32 s2, 256'); b.s('s_cbranch_scc1 L_k1_end')
    if cfg.stamps or cfg.hstamp: b.raw('s_memrealtime s[88:89]')
    def hs(k):
        if cfg.hstamp: b.raw('s_memrealtime s[90:91]'); b.raw('s_waitcnt lgkmcnt(0)'); b.raw(f's_sub_u32 s90, s90, s88'); b.raw(f'v_mov_b32 v{10+k}, s90')
    b.s('s_and_b32 s60, s2, 7'); b.s('s_lshr_b32 s61, s2, 3'); b.s('s_lshr_b32 s62, s60, 2')
    b.s('s_mul_i32 s63, s62, 40'); b.s('s_add_u32 s64, s0, s63'); b.s('s_addc_u32 s65, s1, 0')
    b.s('s_load_dwordx4 s[68:71], s[64:65], 0'); b.s('s_load_dwordx4 s[72:75], s[64:65], 16')
    b.s('s_load_dwordx2 s[76:77], s[64:65], 32'); b.s('s_load_dwordx2 s[78:79], s[0:1], 96'); b.s('s_load_dwordx4 s[28:31], s[0:1], 80')
    if cfg.wopf == 3: b.s('s_load_dwordx2 s[92:93], s[0:1], 32'); b.s('s_load_dwordx2 s[96:97], s[0:1], 72')
    if cfg.codepf:
        b.s('s_and_b32 s39, s61, 15'); b.s('s_cmp_lg_u32 s39, 0'); b.s('s_cbranch_scc1 L_nocpf')
        b.raw('s_getpc_b64 s[82:83]')
        b.label('L_pc')
        b.v('v_lshlrev_b32', 2, '7', 0)
        b.v('v_min_u32', 2, 'L_code_end-L_pc-4', 2)
        b.v('v_mov_b32', 3, 's83')
        b.emit('v_add_co_u32 v2, vcc, s82, v2', 'valu', {2}, {2}); b.nop(2)
        b.emit('v_addc_co_u32 v3, vcc, 0, v3, vcc', 'valu', {3}, {3})
        b.emit(f'global_load_dword v{DUM}, v[2:3], off', 'vmem', {DUM}, {2, 3})
        b.label('L_nocpf')
    b.v('v_lshrrev_b32', 1, '6', 0); b.rfl(35, 1)
    lane_id(b, LANE)
    b.s('s_and_b32 s34, s35, 3'); b.s('s_lshr_b32 s55, s34, 1')
    b.s('s_and_b32 s33, s60, 3'); b.s('s_lshl_b32 s66, s33, 3'); b.s('s_and_b32 s67, s61, 7'); b.s('s_add_u32 s66, s66, s67')
    b.s('s_lshr_b32 s63, s61, 3')
    b.s('s_and_b32 s48, s63, 1' if cfg.stagger else 's_mov_b32 s48, 0')
    b.s('s_mov_b32 s40, 0'); b.s('s_mov_b32 s41, 0'); b.s('s_mov_b32 s37, 0')
    b.s(f's_mov_b32 s32, {cfg.masks[1]}'); b.s('s_cmp_eq_u32 s48, 0'); b.s(f's_cselect_b32 s32, {cfg.masks[0]}, s32')
    b.s('s_mul_i32 s44, s63, 196608'); b.s('s_lshl_b32 s45, s66, 8')
    b.s('s_lshl_b32 s46, s63, 5'); b.s('s_add_u32 s46, s46, s66'); b.s('s_lshl_b32 s46, s46, 17')
    b.s('s_lshl_b32 s80, s62, 4'); b.s('s_add_u32 s80, s80, s63')
    b.s('s_lshl_b32 s47, s80, 6')
    b.s('s_lshl_b32 s39, s66, 1'); b.s('s_add_u32 s47, s47, s39'); b.s('s_add_u32 s47, s47, s55'); b.s('s_mul_i32 s47, s47, 12288')
    b.s('s_and_b32 s39, s34, 1'); b.s('s_mul_i32 s39, s39, 6144'); b.s('s_add_u32 s47, s47, s39')
    b.s('s_mul_i32 s52, s34, 1056'); b.s('s_lshl_b32 s53, s34, 10')
    b.s(f's_mov_b32 s56, {f2u(CEXP):#x}')
    b.s('s_mul_i32 s57, s67, 24576'); b.s('s_lshl_b32 s39, s34, 13'); b.s('s_add_u32 s57, s57, s39'); b.s('s_add_u32 s57, s57, s44')
    b.s('s_cmp_eq_u32 s34, 3'); b.s(f's_cselect_b32 s57, {OOB}, s57')
    hs(0)
    b.raw('s_waitcnt lgkmcnt(0)')
    srd(b, 4, 68, 16*96*1024*2); srd(b, 8, 70, 1 << 26); srd(b, 12, 72, 1 << 26); srd(b, 16, 74, 1 << 23)
    srd(b, 20, 78, FB); srd(b, 24, 76, 1 << 23)
    b.s(f's_add_u32 s68, s78, {FB}'); b.s('s_addc_u32 s69, s79, 0'); b.s('s_mov_b32 s70, 49152'); b.s('s_mov_b32 s71, 0x20000')
    b.s('s_mov_b32 s64, s30'); b.s('s_mov_b32 s65, s31')
    b.s(f's_mov_b32 s30, {16*96*2048*2}'); b.s('s_mov_b32 s31, 0x20000')
    b.s('s_lshl_b32 s72, s80, 9'); b.s('s_lshl_b32 s50, s33, 7'); b.s('s_add_u32 s72, s72, s50'); b.s('s_lshl_b32 s50, s67, 3'); b.s('s_add_u32 s72, s72, s50')
    b.s('s_lshl_b32 s81, s80, 3'); b.s('s_add_u32 s81, s81, s67')
    b.s('s_lshl_b32 s73, s81, 7'); b.s('s_add_u32 s73, s73, 16384')
    b.s(f's_mul_i32 s78, s81, {3*PT}'); b.s('s_mul_i32 s79, s34, 6144'); b.s('s_add_u32 s78, s78, s79'); b.s(f's_add_u32 s78, s78, {PB}')
    b.s('s_lshl_b32 s74, s80, 2'); b.s('s_add_u32 s74, s74, s33'); b.s(f's_mul_i32 s74, s74, {16*12288}')
    b.s('s_lshl_b32 s75, s33, 21'); b.s('s_lshl_b32 s50, s67, 8'); b.s('s_add_u32 s75, s75, s50')
    b.s('s_add_u32 s39, s33, 3'); b.s('s_and_b32 s39, s39, 3'); b.s('s_lshl_b32 s39, s39, 2'); b.s('s_add_u32 s39, s39, s63'); b.s(f's_mul_i32 s76, s39, {96*4096}')
    b.s('s_add_u32 s76, s76, s50'); b.s('s_lshl_b32 s50, s62, 11'); b.s('s_add_u32 s76, s76, s50'); b.s('s_lshl_b32 s50, s34, 6'); b.s('s_add_u32 s76, s76, s50')
    b.s('s_lshl_b32 s87, s33, 21'); b.s('s_lshl_b32 s50, s61, 16'); b.s('s_add_u32 s87, s87, s50'); b.s('s_lshl_b32 s50, s34, 13'); b.s('s_add_u32 s87, s87, s50')
    if cfg.pf0 == 2:
        b.s('s_cmp_eq_u32 s48, 0'); b.s('s_cbranch_scc1 L_nopf0')
        b.v('v_lshlrev_b32', 3, '7', LANE)
        b.s('s_mul_i32 s39, s33, 786432'); b.s('s_add_u32 s39, s39, s57'); b.s('s_sub_u32 s39, s39, 196608'); b.s('s_cmp_ge_u32 s35, 3'); b.s(f's_cselect_b32 s39, {OOB}, s39')
        b.load1(DUM, 3, 4, 's39')
        b.v('v_lshrrev_b32', 2, '1', LANE); b.v('v_lshlrev_b32', 2, '13', 2); b.v('v_and_b32', 4, '1', LANE); b.v('v_lshlrev_b32', 4, '7', 4); b.v('v_add_u32', 2, 2, 4)
        b.s('s_lshl_b32 s39, s35, 1'); b.s('s_lshr_b32 s50, s63, 1'); b.s('s_add_u32 s39, s39, s50'); b.s('s_lshl_b32 s39, s39, 18'); b.s('s_add_u32 s39, s39, s45')
        b.load1(DUM, 2, 16, 's39')
        b.s(f's_add_u32 s39, s39, {16 << 18}')
        b.load1(DUM, 2, 16, 's39')
        b.s('s_lshr_b32 s39, s35, 2'); b.s('s_add_u32 s39, s39, s33'); b.s('s_and_b32 s39, s39, 3'); b.s('s_mul_i32 s39, s39, 786432'); b.s('s_add_u32 s39, s39, s57')
        b.load1(DUM, 3, 4, 's39')
        b.label('L_nopf0')
    if cfg.wopf == 3:
        n = list(cfg.won) + list(cfg.won1 if cfg.won1 is not None else cfg.won); assert sum(n) <= 128
        base = [16*sum(n[:i]) for i in range(16)]
        b.s('s_mov_b32 s94, 0x800000'); b.s('s_mov_b32 s95, 0x20000'); b.s('s_mov_b32 s98, 0x800000'); b.s('s_mov_b32 s99, 0x20000')
        b.s('s_and_b32 s58, s63, 1'); b.s('s_lshl_b32 s58, s58, 3'); b.s('s_add_u32 s58, s58, s60')
        b.s('s_mov_b32 s50, 0')
        for i in range(16):
            b.s(f's_cmp_eq_u32 s58, {i}'); b.s(f's_cselect_b32 s50, {n[i] | base[i] << 8}, s50')
        b.s('s_lshr_b32 s51, s50, 8'); b.s('s_and_b32 s50, s50, 255')
        b.s('s_lshr_b32 s39, s63, 1'); b.s('s_lshl_b32 s39, s39, 3'); b.s('s_add_u32 s39, s39, s67')
        b.s('s_mul_i32 s39, s39, s50'); b.s('s_add_u32 s51, s51, s39'); b.s('s_add_u32 s51, s51, s35'); b.s('s_lshl_b32 s51, s51, 13')
        b.v('v_lshlrev_b32', 3, '7', LANE)
        for r in range((max(n) + 7) // 8):
            b.s(f's_add_u32 s39, s35, {8*r}'); b.s('s_cmp_lt_u32 s39, s50'); b.s('s_cbranch_scc0 L_wo_done')
            b.s(f's_add_u32 s39, s51, {r << 16}')
            b.load1(DUM, 3, 92, 's39')
            b.s('s_sub_u32 s39, s39, 0x800000')
            b.load1(DUM, 3, 96, 's39')
        b.label('L_wo_done')
    b.s('s_mov_b32 s66, 256'); b.s('s_mov_b32 s67, 0x20000')
    for r, v in ((42, 128), (43, 32*2048), (60, 64*8192), (61, 32*8192), (62, 8*8192), (63, 786432)): b.s(f's_mov_b32 s{r}, {v}')
    hs(1)
    b.s('s_cmp_ge_u32 s35, 4'); b.s('s_cbranch_scc1 L_gem')
    A = Att(b, cfg)
    L = Loader(b, cfg, LB, T0)
    VP = KF + 20
    b.fence()
    loader_offsets(b, True, LB, 2048, 8192, False, T0)
    L.begin(0, False)
    hs(2)
    for i in range(3): L.g(i, True, ('g', i))
    hs(3)
    att_setup(b)
    L.need({('g', 0)}); hs(4); b.barrier(); hs(5)
    if cfg.hstamp:
        b.raw('v_mov_b32 v16, s88'); b.raw('v_mov_b32 v17, 0')
        b.raw('s_cmp_lg_u32 s35, 0'); b.raw('s_cbranch_scc1 L_nohs')
        b.raw('s_lshl_b32 s91, s2, 5'); b.raw(f's_add_u32 s92, s20, {64 << 20}'); b.raw('s_addc_u32 s93, s21, 0')
        b.raw('v_mov_b32 v9, s91'); b.raw('global_store_dwordx4 v9, v[10:13], s[92:93]'); b.raw('global_store_dwordx4 v9, v[14:17], s[92:93] offset:16')
        b.label('L_nohs')
    b.fence()
    def f_loader(t0, t1, extra={}, fills={}):
        for t in range(t0, t1):
            L.setfill(fills.get(t, []), 7)
            L.g(t + 3, True, ('g', t+3))
            L.flush(); b.wait_lgkm(0)
            for f in extra.get(t, []): f()
            L.need({('g', t+1)} | ({'p', 'n'} if t == 12 else set())); b.barrier()
    def r_loader(t0, t1, extra={}, fills={}, over={}):
        for t in range(t0, t1):
            own = over[t] if t in over else R_OWN.get(t, [])
            L.setfill(fills.get(t, []), 5*len(own))
            for i in own: L.g(i, False, ('g', i))
            L.flush(); b.wait_lgkm(0)
            for f in extra.get(t, []): f()
            L.need({('g', t+1)}); b.barrier()
    def tail(t0, table, kind, pre={}, t1=16):
        for t in range(t0, t1):
            for f in pre.get(t, []): f()
            if t == 15 and t0 != 13:
                assert all(x[0] != ('g', 15) for x in L.q)
                L.psignal(VP)
            for i in table.get(t, []):
                if kind == 'a': L.t(i, ('n', i))
                elif kind == 'p': pdma(i)
                else: L.g(i, kind == 'f', ('n', i))
            L.need({('g', t+1)} if t < 15 else ({('n', 0)} if kind != 'p' else {('n', 2)})); b.barrier()
        if t1 < 16: return
        b.s('s_add_u32 s40, s40, 1')
        L.q = [((('a' if kind == 'a' else 'g'), t[1]) if isinstance(t, tuple) else t, n) for t, n in L.q]
    FJ = 9
    b.label('L_att_F')
    qF = list(L.q)
    f_loader(0, FJ)
    qFj = list(L.q)
    b.label('L_att_Fj')
    f_loader(FJ, 13, {10: [lambda: L.nonce_load(VP), lambda: L.poll(VP, 1)]})
    L.nonce_get(VP)
    q13 = list(L.q)
    b.s('s_bitcmp1_b32 s32, s40'); b.s('s_cbranch_scc0 L_att_FR')
    L.set_a(); tail(13, F_TO_A, 'a')
    qa = list(L.q)
    b.s('s_branch L_att_a')
    b.label('L_att_FR'); L.q = list(q13)
    L.begin(1, False); L.check(VP, 1)
    tail(13, F_TO_R, 'r')
    b.fence()
    b.label('L_att_R')
    qR = list(L.q)
    pollx = lambda: L.poll(VP, 1)
    L.g(4, False, ('g', 4)); L.need({('g', 1)}); b.barrier()
    q1 = list(L.q)
    if not cfg.pdirect: b.s('s_cmp_ge_u32 s40, 4'); b.s('s_cbranch_scc1 L_att_RO')
    def rq():
        if cfg.pdirect: b.s('s_cmp_eq_u32 s41, 0'); b.s('s_cbranch_scc0 L_att_norq')
        sv = b.save(); q_addr(b, T0, T0+1); q_reads(b, T0); b.wait_lgkm(0); b.restore(sv)
        b.label('L_att_norq')
    r_loader(1, 11, {1: [rq], 9: [pollx]}, {}, R_OWNP)
    qj = list(L.q); nj = L.items()
    b.fence()
    if not cfg.pdirect:
        b.s('s_branch L_att_Rj')
        b.label('L_att_RO'); L.q = list(q1)
        L.ub('s39', 's40', 3); b.s(f's_mul_i32 s54, s39, {32*3*PT}'); b.s('s_add_u32 s54, s54, s78')
        b.s('s_lshl_b32 s83, s39, 12'); b.s('s_add_u32 s83, s83, s73')
        b.s('s_sub_u32 s39, s40, 5'); b.s(f's_mul_i32 s51, s39, {PT}'); b.s('s_add_u32 s54, s54, s51'); b.s('s_add_u32 s51, s54, 4096')
        b.s('s_lshl_b32 s39, s39, 3'); b.s('s_add_u32 s83, s83, s39')
        b.s('s_cmp_eq_u32 s35, 0'); b.s('s_cselect_b32 s37, 1, 0')
        b.s(f's_add_u32 s50, s79, {XB}')
        b.v('v_lshlrev_b32', A.VO, '4', LANE); b.v('v_add_u32', A.XP, 's50', A.VO)
        fi = {1: A.c2a()[3:]}
        for k in range(3): fi[2+k] = A.store(2*k, L) + A.store(2*k+1, L)
        r_loader(1, 11, {7: [lambda: L.need({'st'})], 8: [lambda: L.psignal(VP)], 9: [pollx]}, fi, R_OWNP)
        assert L.q == qj, (L.q, qj)
        b.fence()
    b.label('L_att_Rj')
    L.g(15, False, ('g', 15))
    qj = list(L.q)
    b.s('s_bitcmp1_b32 s32, s40'); b.s('s_cbranch_scc0 L_att_RG')
    L.set_a(); tail(11, R_TO_A, 'a')
    assert L.q == qa, (L.q, qa)
    b.fence()
    b.label('L_att_a')
    A.addr_k(0)
    for k in range(8): A.kread(k)()
    b.s('s_cmp_eq_u32 s48, 0'); b.s('s_cbranch_scc1 L_a_c0a')
    sv = b.save()
    A.start(); b.fence()
    b.label('L_a_c0a'); b.restore(sv)
    L.t(6, ('a', 6)); L.t(7, ('a', 7))
    q_addr(b, P_+4, P_+5)
    b.raw('s_waitcnt lgkmcnt(0)'); b.lds = []
    A.addr_v(0); A.addr_k(1)
    L.need(cons_tags('a', 'a', 1)); b.barrier()
    b.s('s_cmp_eq_u32 s48, 0'); b.s('s_cbranch_scc0 L_a_i1')
    q_reads(b, P_+4)
    A.start()
    b.fence()
    b.label('L_a_i1')
    A.intervals(L)
    b.s('s_add_u32 s41, s41, 1')
    A.c0()
    kvo = lambda: loader_offset_ops(b, True, LB, 2048, 8192, False, T0)[:5]
    usesAF = any(m >> 3 & 1 for m in cfg.masks)
    if usesAF:
        b.s('s_cmp_eq_u32 s40, 4'); b.s('s_cbranch_scc1 L_att_AF')
    sv = b.save()
    b.barrier()
    for f in A.c1(): f()
    b.wait_lgkm(0)
    if not cfg.allfast:
        b.s('s_add_u32 s39, s41, 2'); b.s('s_cmp_eq_u32 s39, s40'); b.s('s_cbranch_scc1 L_att_AU')
        sv3 = b.save()
        b.barrier()
        L.q = []
        for f in A.c2a(): f()
        L.begin(0, True); L.set_ost()
        L.ub('s83', 's41', 3); b.s('s_lshl_b32 s83, s83, 11'); b.s('s_add_u32 s83, s83, s72')
        b.s('s_cmp_eq_u32 s35, 0'); b.s('s_cselect_b32 s37, 1, 0')
        b.barrier()
        fi = {3: A.c2b() + kvo()}
        if cfg.burst:
            for pi in range(6): fi[4+pi] = A.part(pi)
            fi[10] = [lambda: None]*30 + sum([A.store(k, L) for k in range(6)], [])
        else:
            for pi in range(6): fi[4+pi] = A.part(pi) + (A.store(pi-1, L) if pi else [])
            fi[10] = A.store(5, L)
        r_loader(3, 11, {9: [pollx]}, fi, R_OWNS)
        assert L.items() == nj, (L.q, qj)
        b.fence()
        b.s('s_branch L_att_Rj')
        b.label('L_att_AU'); b.restore(sv3)
    L.begin(0, True); L.set_ost()
    b.barrier()
    L.q = []
    fi = {2: A.c2a() + kvo(), 3: A.c2b()}
    if cfg.burst:
        for k in range(3): fi[4+k] = A.part(2*k) + A.part(2*k+1)
        fi[6] = fi[6] + sum([A.store(k, L) for k in range(6)], [])
    else:
        for k in range(3): fi[4+k] = A.part(2*k) + A.store(2*k, L) + A.part(2*k+1) + A.store(2*k+1, L)
    ex = {9: [pollx]}; ex.setdefault(cfg.sigat-1, []).append(lambda: L.need({'st'})); ex.setdefault(cfg.sigat, []).append(lambda: L.signal(VP))
    r_loader(2, 11, ex, fi)
    got = L.items(); assert got == nj[len(nj)-len(got):], (L.q, qj)
    b.fence()
    b.s('s_branch L_att_Rj')
    if usesAF:
        b.label('L_att_AF'); b.restore(sv)
        L.begin(0, True); L.set_ost()
        b.barrier()
        L.q = []
        L.setfill(A.c1(), 14); L.g(3, True, ('g', 3)); L.g(4, True, ('g', 4)); L.flush()
        b.wait_lgkm(0); b.barrier()
        fi = {2: A.c2a() + kvo() + A.c2b()}
        if cfg.burst:
            for k in range(3): fi[3+k] = A.part(2*k) + A.part(2*k+1)
            fi[5] = fi[5] + sum([A.store(k, L) for k in range(6)], [])
        else:
            for k in range(3): fi[3+k] = A.part(2*k) + A.store(2*k, L) + A.part(2*k+1) + A.store(2*k+1, L)
        f_loader(2, FJ, {FJ-2: [lambda: L.need({'st'})], FJ-1: [lambda: L.signal(VP)]}, fi)
        assert L.items() == [n for _, n in qFj]
        b.fence()
        b.s('s_branch L_att_Fj')
    b.label('L_att_RG'); b.reset()
    b.s('s_cmp_eq_u32 s40, 7'); b.s('s_cbranch_scc1 L_att_RP')
    b.s('s_cmp_eq_u32 s40, 3'); b.s('s_cbranch_scc1 L_att_RF')
    L.q = list(qj)
    tail(11, {}, 'r', {11: [lambda: L.begin(1, False)]}, 12)
    L.need({'p'})
    q12 = list(L.q)
    b.emit(f'v_cmp_ne_u64 vcc, s[84:85], {vr(VP,2)}', 'valu', (), R(VP, 2))
    b.s('s_cbranch_vccnz L_att_RRl')
    tail(12, r_to_r(12), 'r')
    assert L.q == qR, (L.q, qR)
    b.s('s_branch L_att_R')
    b.label('L_att_RRl'); L.q = list(q12)
    tail(12, r_to_r(14), 'r', {12: [pollx], 14: [lambda: (L.need({'p'}), L.check(VP, None))]})
    assert L.q == qR, (L.q, qR)
    b.s('s_branch L_att_R')
    b.label('L_att_RF'); L.q = list(qj)
    tail(11, R_TO_F, 'f', {11: [lambda: L.begin(1, False)], 12: [lambda: (L.need({'p'}), L.check(VP, None))]})
    assert L.q == qF, (L.q, qF)
    b.s('s_branch L_att_F')
    b.label('L_att_RP'); L.q = list(qj)
    def pdma(i):
        for hlf, n in ((0, 4), (1, 2)):
            b.s(f's_add_u32 m0, s79, {PLDS[i] + hlf*4096}'); b.s(f's_add_u32 s39, s58, {i*PT + hlf*4096}')
            for k in range(n): b.dma(A.VO, 20, 's39', k*1024, ' sc1')
        L.q.append((('n', i), 6))
    def p11():
        b.v('v_lshlrev_b32', A.VO, '4', LANE)
        L.ub('s58', 's40'); b.s(f's_mul_i32 s58, s58, {32*3*PT}'); b.s('s_add_u32 s58, s58, s78')
    tail(11, R_TO_P, 'p', {11: [p11], 12: [lambda: (L.need({'p'}), L.check(VP, None))]})
    b.s('s_endpgm')
    b.reset()
    b.label('L_gem')
    if cfg.prio & 1: b.s('s_setprio 2')
    if cfg.ivw is not None:
        b.s(f's_mov_b32 s86, {(-cfg.ivw) & 0xffffffff}'); b.v('v_mov_b32', 247, '0')
        ob = b.barrier; cnt = [0]
        def nb():
            ob(); cnt[0] += 1
            b.raw('s_cmp_lt_u32 s86, 64'); b.raw(f's_cbranch_scc0 L_iv{cnt[0]}')
            b.raw('s_memtime s[90:91]'); b.raw('s_mov_b32 m0, s86'); b.raw('s_waitcnt lgkmcnt(0)'); b.raw('v_writelane_b32 v247, s90, m0')
            b.raw(f'L_iv{cnt[0]}:'); b.raw('s_add_u32 s86, s86, 1')
        b.barrier = nb
    M = Loader(b, cfg, GB, GT)
    b.s('s_mov_b32 s77, 0')
    gemm_setup(b)
    loader_offsets(b, 2, GB, 2048, 8192, False, GT)
    b.v('v_and_b32', GT, '15', LANE); b.v('v_mul_u32_u24', VQW, str(QROW), GT)
    b.v('v_lshrrev_b32', GT, '4', LANE); b.v('v_lshlrev_b32', GT, '3', GT)
    b.s('s_lshl_b32 s39, s34, 6'); b.s(f's_add_u32 s39, s39, {XB}'); b.v('v_add3_u32', VQW, VQW, GT, 's39')
    b.s('s_add_u32 s39, s2, s34'); b.s('s_cmp_lg_u32 s39, 0'); b.s('s_cbranch_scc1 L_nononce')
    b.raw('s_memrealtime s[50:51]'); b.raw('s_waitcnt lgkmcnt(0)'); b.s('s_or_b32 s50, s50, 1')
    b.v('v_mov_b32', GF, 's50'); b.v('v_mov_b32', GF+1, 's51')
    b.s('s_mov_b64 exec, 1')
    b.emit(f'buffer_store_dwordx2 {vr(GF,2)}, off, s[64:67], 0 sc1', 'vmem', (), R(GF, 2))
    b.s('s_mov_b64 exec, -1')
    b.label('L_nononce')
    b.barrier()
    b.fence()
    b.label('L_gem_F')
    xq = [(None, cfg.kvpf)] if cfg.kvpf else []
    qf = [(('g', i), 7) for i in (1, 2)] + xq; qg = [(('g', i), 5) for i in range(1, 5)] + xq
    M.q = list(qf)
    g_main(b, cfg, True, M)
    b.s('s_branch L_gem_done')
    b.fence()
    b.label('L_gem_R')
    M.q = list(qg)
    g_main(b, cfg, False, M)
    b.label('L_gem_done')
    phase_stamp(b, cfg)
    sv = b.save()
    b.s('s_cmp_lg_u32 s40, 3'); b.s('s_cbranch_scc1 L_gem_nsw')
    for h in range(2): b.v('v_lshlrev_b32', VXB+h, '4', LANE)
    b.v('v_add_u32', VXB+1, '1024', VXB+1)
    b.label('L_gem_nsw'); b.restore(sv)
    b.s('s_cmp_ge_u32 s40, 4'); b.s('s_cbranch_scc1 L_gem_ot')
    b.s('s_bitcmp1_b32 s32, s40'); b.s('s_cbranch_scc0 L_gem_qg')
    b.s('s_add_u32 s40, s40, 1')
    g_tail(b, q_ops(b)); b.fence()
    b.s('s_branch L_gem_a')
    b.label('L_gem_qg'); b.restore(sv)
    b.s('s_add_u32 s40, s40, 1'); b.s('s_cmp_eq_u32 s40, 4'); b.s('s_cbranch_scc1 L_gem_qf')
    g_fused(b, q_ops(b), False)
    b.label('L_gem_qf'); b.restore(sv)
    g_fused(b, q_ops(b), True)
    b.label('L_gem_ot'); b.restore(sv)
    b.s('s_cmp_eq_u32 s40, 7'); b.s('s_cbranch_scc1 L_gem_fin')
    def pk_ops(qb, base):
        pk = base(qb); o = []
        for nt in range(2):
            a = acc(nt, qb)
            o += [lambda a=a, nt=nt: b.v('v_cvt_pk_bf16_f32', pk+2*nt, a, a+1), lambda a=a, nt=nt: b.v('v_cvt_pk_bf16_f32', pk+2*nt+1, a+2, a+3)]
        return o
    inpl = lambda qb: acc(0, qb)
    def pstore(qb): b.store(4, inpl(qb), VXB, 20, 's50' if qb < 4 else 's51', (qb % 4)*1024, cfg.opol)
    def paddr():
        M.ub('s39', 's40'); b.s(f's_mul_i32 s50, s39, {32*3*PT}'); b.s('s_add_u32 s50, s50, s78')
        b.s('s_lshl_b32 s83, s39, 12'); b.s('s_add_u32 s83, s83, s73')
        b.s('s_and_b32 s39, s40, 3'); b.s(f's_mul_i32 s51, s39, {PT}'); b.s('s_add_u32 s50, s50, s51'); b.s('s_add_u32 s51, s50, 4096')
        b.s('s_lshl_b32 s39, s39, 3'); b.s('s_add_u32 s83, s83, s39')
    paddr()
    b.s('s_bitcmp1_b32 s32, s40'); b.s('s_cbranch_scc1 L_gem_pa')
    if cfg.pdirect:
        b.s('s_cmp_eq_u32 s35, 4'); b.s('s_cselect_b32 s37, 1, 0'); b.s('s_add_u32 s40, s40, 1')
        for f in gemm_addr_ops(b, g_base(0, False)): f()
        po = [pk_ops(qb, inpl) + [lambda qb=qb: pstore(qb)] for qb in range(6)]
        x1 = {7+k: [po[0][k]] for k in range(5)}
        x0 = {}
        for qb in range(2, 6):
            x0[2*(qb-2)] = po[qb][:2]; x0[2*(qb-2)+1] = po[qb][2:]
        def mid():
            for f in po[1]: f()
        g_interval(b, RES, False, False, gemm_addr_ops(b, g_base(1, False)), lambda: None, zero=True, x1=x1, x0=x0, mid=mid)
        b.s('s_branch L_gem_R1')
    else:
        b.s('s_add_u32 s40, s40, 1'); b.s(f's_add_u32 s39, s79, {XB}')
        b.v('v_add_u32', GT, 's39', VXB)
        g_fused(b, sum([pk_ops(qb, inpl) + [lambda qb=qb: b.dsw('ds_write_b128', GT, inpl(qb), 4, qb*1024)] for qb in range(6)], []), False)
    b.label('L_gem_pa'); b.restore(sv)
    g_tail(b, sum([pk_ops(qb, inpl) for qb in range(6)], []))
    b.s('s_mov_b32 s77, 1'); b.s('s_add_u32 s40, s40, 1')
    b.fence()
    b.label('L_gem_a'); b.reset()
    M.q = []
    M.set_a()
    b.barrier()
    def a_loader(t0, t1, nxt):
        for t in range(t0, t1):
            if t == 1: M.nonce_load(GF)
            if t == 3: M.poll(GF, 0)
            for p in A_OWN.get(t, []): M.t(p, ('a', p))
            if t == 1 and cfg.pf:
                M.ub('s39', 's40'); b.s('s_mul_i32 s39, s39, 786432'); b.s('s_add_u32 s39, s39, s57')
                b.s('s_cmp_ge_u32 s40, 4'); b.s(f's_cselect_b32 s39, {OOB}, s39')
                b.load1(DUM, GB+3, 4, 's39'); M.other(1)
            if t == 2 and cfg.wl2 is not None:
                b.s('s_add_u32 s39, s41, s48'); b.s(f's_cmp_eq_u32 s39, {cfg.wl2}'); b.s(f's_cselect_b32 s39, s87, {OOB}')
                b.load1(DUM, GB+3, 24, 's39'); b.s('s_add_u32 s39, s39, 32768'); b.load1(DUM, GB+3, 24, 's39'); M.other(2)
            if t == 4: M.nonce_get(GF)
            if t == 5: M.begin(0, False)
            if t == cfg.pst and nxt == 'R':
                b.s('s_cmp_eq_u32 s77, 0'); b.s('s_cbranch_scc1 L_gem_nops')
                for qb in range(6): pstore(qb)
                b.s('s_mov_b32 s77, 0'); b.s('s_cmp_eq_u32 s35, 4'); b.s('s_cselect_b32 s37, 1, 0')
                b.label('L_gem_nops')
            if t == 6: M.check(GF, 0)
            if nxt:
                for i in (A_TO_R if nxt == 'R' else A_TO_F).get(t, []): M.g(i, nxt == 'F', ('g', i))
            if t == 8 and cfg.kvpf:
                M.ub('s39', 's41', 1); b.s('s_lshl_b32 s39, s39, 24'); b.s('s_add_u32 s39, s39, s46')
                b.s('s_lshl_b32 s58, s34, 13'); b.s('s_add_u32 s39, s39, s58')
                b.s('s_cmp_ge_u32 s41, 3'); b.s(f's_cselect_b32 s39, {OOB}, s39')
                if not cfg.kvpfall: b.s('s_bitcmp1_b32 s32, s40'); b.s(f's_cselect_b32 s39, s39, {OOB}')
                for k in range(cfg.kvpf):
                    if k == 2: b.s('s_add_u32 s39, s39, 32768')
                    b.load1(DUM, GB+3, 8 if k % 2 == 0 else 12, 's39', cfg.kvpfpol)
                M.other(cfg.kvpf)
            M.need(cons_tags('a', 'a', t+1) if t < 8 else {('g', 0)})
            b.barrier()
    a_loader(1, 6, None)
    q5 = list(M.q)
    if usesAF: b.s('s_cmp_eq_u32 s40, 4'); b.s('s_cbranch_scc1 L_gem_AF')
    a_loader(6, 9, 'R')
    assert M.q == qg, (M.q, qg)
    phase_stamp(b, cfg)
    b.s('s_add_u32 s41, s41, 1')
    b.s('s_branch L_gem_R')
    if usesAF:
        b.label('L_gem_AF'); M.q = list(q5)
        a_loader(6, 9, 'F')
        assert M.q == qf, (M.q, qf)
        phase_stamp(b, cfg)
        b.s('s_add_u32 s41, s41, 1')
        b.s('s_branch L_gem_F')
    b.label('L_gem_fin'); b.restore(sv)
    ID = RES; PF_ = RES + 8; t = GT
    b.v('v_add_u32', VX, 's79', VXB); b.v('v_add_u32', VX+1, str(XB), VX)
    rd = [lambda p=p, qb=qb: b.dsr('ds_read_b128', PF_ + 12*qb + 4*p, 4, VX+1 if p == 0 else VX, (PLDS[p] if p else 0) + qb*1024) for qb in range(6) for p in range(3)]
    u = RES + 84
    idops = [lambda: b.v('v_bfe_u32', u, LANE, '2', '2'), lambda: b.v('v_lshrrev_b32', u+1, '4', LANE),
             lambda: b.emit(f'v_cmp_eq_u32 vcc, {vr(u)}, {vr(u+1)}', 'valu', (), {u, u+1}),
             lambda: b.v('v_and_b32', u, '1', LANE), lambda: b.v('v_lshlrev_b32', u, '4', u), lambda: b.v('v_mov_b32', u+1, '0x3f80'), lambda: b.v('v_lshlrev_b32', u, u, u+1),
             lambda: b.emit(f'v_cndmask_b32 {vr(u)}, 0, {vr(u)}, vcc', 'valu', {u}, {u}),
             lambda: b.v('v_and_b32', u+1, '2', LANE),
             lambda: b.emit(f'v_cmp_eq_u32 vcc, 0, {vr(u+1)}', 'valu', (), {u+1})]
    idops += [lambda k=k: b.v('v_mov_b32', ID+k, '0') for k in (0, 1, 4, 5)]
    idops += [lambda: b.emit(f'v_cndmask_b32 {vr(ID+2)}, 0, {vr(u)}, vcc', 'valu', {ID+2}, {u}), lambda: b.v('v_sub_u32', ID+3, u, ID+2)]
    g_block(b, 1, A1, {k: [rd.pop(0), idops.pop(0)] for k in range(12)})
    for f in idops: f()
    fill = rd + [lambda: b.v('v_and_b32', t, '15', LANE), lambda: b.v('v_lshlrev_b32', t, '12', t),
                 lambda: b.v('v_bfe_u32', t+1, LANE, '4', '1'), lambda: b.v('v_lshl_add_u32', t, t+1, '5', t),
                 lambda: b.v('v_lshrrev_b32', t+1, '5', LANE), lambda: b.v('v_lshl_add_u32', t, t+1, '4', t)]
    def epi(qb):
        pk = BF[0] + 4*qb
        return pk_ops(qb, lambda qb: BF[0] + 4*qb) + [lambda: b.swap16(pk, pk+2), lambda: b.swap16(pk+1, pk+3),
                lambda: (b.store(4, pk, t, 28, 's76', 0, cfg.outpol), b.s(f's_add_u32 s76, s76, {16*4096}'))]
    for qb in range(6):
        if qb >= 2: fill += epi(qb-2)
        for p in range(3):
            for nt in range(2):
                b.mfma16(acc(nt, qb), ID + (2 if nt == 0 else 0), PF_ + 12*qb + 4*p, acc(nt, qb))
                if fill: fill.pop(0)()
    for f in fill + epi(4) + epi(5): f()
    stamp_dump(b, cfg)
    b.label('L_k1_end')
    b.s('s_endpgm')
    b.label('L_code_end')
    for task in A.rare: A.rare_block(task)
    return b

def desc(name, nv):
    return f'''.p2align 6
.amdhsa_kernel {name}
  .amdhsa_next_free_vgpr {nv}
  .amdhsa_next_free_sgpr 102
  .amdhsa_accum_offset {nv}
  .amdhsa_group_segment_fixed_size 0
  .amdhsa_kernarg_size 104
  .amdhsa_user_sgpr_count 2
  .amdhsa_user_sgpr_kernarg_segment_ptr 1
  .amdhsa_system_sgpr_workgroup_id_x 1
.end_amdhsa_kernel
'''
def build(path, cfg, which=None):
    B.nodma = cfg.nodma; B.skel = cfg.skel; G['cfg'] = cfg; B.guard = False
    a = k1(cfg)
    s = '; @launch grid=(256,1,1) block=(512,1,1) lds=163840\n.amdgcn_target "amdgcn-amd-amdhsa--gfx950"\n.text\n' + a.text()
    s += '.section .rodata,"a"\n' + desc(NAME + '_kernel', 256)
    open(path, 'w').write(s)
    return a, a
def mk(path, which=('k1', 'k2'), **kw):
    cfg = Cfg()
    for k, v in kw.items():
        assert hasattr(cfg, k), k
        setattr(cfg, k, v)
    return build(path, cfg, which)

if __name__ == '__main__':
    a, c = mk('v10.s')
    print('k1 lines', len(a.lines), 'nops', a.nnop, 'k2 lines', len(c.lines), 'nops', c.nnop)
```

```python
import gen10
gen10.mk('o_a.s')
gen10.mk('o_b.s', won=(0,18,4,22,10,28,14,32), won1=(0,)*8)
gen10.mk('o_c.s', won=(0,14,3,17,7,21,10,24), won1=(8,3,7,2,6,1,5,0))
gen10.mk('o_d.s', won=(0,14,3,17,7,21,10,24), won1=(0,5,1,6,2,7,3,8))
gen10.mk('o_e.s', won=(0,9,2,11,5,14,7,16), won1=(0,)*8)
gen10.mk('o_f.s', wopf=0)
```

```python
import math, struct, sys
from asmb import *
NAME = 'concat_heads__mha_block_cached__gqa_block_cached__near_ridge'
RING = 135168; XB = RING
HS = 16896; AS = 33792; GS = 22528; WG = 8448
QROW = 272; STAT = XB + 24576
def f2u(x): return struct.unpack('<I', struct.pack('<f', x))[0]
CEXP = math.log2(math.e) / math.sqrt(128.0)
LANE = 255; DUM = 254
OOB = 0x40000000

class Cfg:
    kvpol = ' nt'; opol = ' sc1'; xpol = ' sc1'; outpol = ''; pf = True; pf0 = 2; stamps = False; stagger = True
    wopf = 3; won = (0, 14, 3, 17, 7, 21, 10, 24); nodma = False; skel = False; codepf = True; nosig = False
    ivw = None; prio = 1; masks = (0x17, 0x2e); dropst = 0; allfast = True; pdirect = True; burst = True; hstamp = False; won1 = (8, 3, 7, 2, 6, 1, 5, 0); chain = False; wpol = ''; kvpf = 1; kvpfpol = ''; kvpfall = False; fast = False; pst = 7; sigat = 9; rrc = 12; wl2 = None

PB = 26 << 20; FB = 48 << 20; PT = 24576
G = {}
def srd(b, d, lo, size):
    b.s(f's_mov_b32 s{d}, s{lo}'); b.s(f's_mov_b32 s{d+1}, s{lo+1}'); b.s(f's_mov_b32 s{d+2}, {size}'); b.s(f's_mov_b32 s{d+3}, 0x20000')
def lane_id(b, d):
    b.v('v_mbcnt_lo_u32_b32', d, '-1', '0'); b.v('v_mbcnt_hi_u32_b32', d, '-1', d)

XO = 0; WO1 = 12288; WO0 = 12288 + WG
GMAP = [0,1,2,3,4,5,0,1,2,3,0,1,2,3,4,5]
HMAP = [p % 8 for p in range(16)]
def g_base(i, full, cls=0): return (i % 4)*AS if full else GMAP[i]*GS
TILES = [('K',0)] + sum([[('K',j+1), ('V',j)] for j in range(7)], []) + [('V',7)]
def t_base(p): return HMAP[p]*HS
KPOS = {j: TILES.index(('K', j)) for j in range(8)}
VPOS = {j: TILES.index(('V', j)) for j in range(8)}
def t_cons(p): k, j = TILES[p]; return j if k == 'K' else j + 1

def loader_offset_ops(b, kv, base, xstride, wstride, operm, t):
    lane = LANE
    vKV, vX, vW, vPF = base, base+1, base+2, base+3
    t0, t1 = t, t+1
    o = []
    def V(*a): o.append(lambda: b.v(*a))
    V('v_and_b32', t0, '15', lane); V('v_lshlrev_b32', t0, '4', t0)
    V('v_lshrrev_b32', t1, '4', lane)
    if kv:
        V('v_lshl_add_u32', vKV, t1, '3', 's34'); V('v_lshl_add_u32', vKV, vKV, '8', t0)
    sa, sb = (4, 3) if operm else (2, 4)
    V('v_and_b32', vW, '1', t1); V('v_lshl_add_u32', vW, vW, str(sa), 's34')
    V('v_lshrrev_b32', t1, '1', t1); V('v_lshl_add_u32', vW, t1, str(sb), vW)
    V('v_lshl_add_u32', vW, vW, str(int(math.log2(wstride))), t0)
    if operm:
        V('v_lshl_add_u32', vX, lane, '4', 's53')
    else:
        V('v_lshrrev_b32', t0, '3', lane); V('v_lshl_add_u32', t0, 's34', '3', t0)
        V('v_lshrrev_b32', t1, '1', t0); V('v_xor_b32', t1, t1, lane); V('v_and_b32', t1, '7', t1); V('v_lshlrev_b32', t1, '4', t1)
        V('v_lshl_add_u32', vX, t0, str(int(math.log2(xstride))), t1)
    if kv == 2: V('v_lshlrev_b32', vPF, '7', lane)
    return o
def loader_offsets(b, *a):
    for f in loader_offset_ops(b, *a): f()


class Loader:
    def __init__(self, b, cfg, base, t): self.b, self.cfg, self.base, self.tmp, self.q, self.fill, self.per, self.n = b, cfg, base, t, [], [], 0, 0
    def lab(self, s): self.n += 1; return f'L_{s}{self.base}_{self.n}'
    def setfill(self, ops, ndma):
        self.fill = list(ops); self.per = -(-len(self.fill) // max(ndma, 1))
    def _f(self):
        for _ in range(self.per):
            if self.fill: self.fill.pop(0)()
    def flush(self):
        while self.fill: self.fill.pop(0)()
    def g(self, i, full, tag):
        b = self.b; vX, vW = self.base+1, self.base+2; lds = g_base(i, full)
        b.s(f's_mul_i32 s58, s42, {i}'); b.s('s_add_u32 s58, s58, s36')
        b.s(f's_mul_i32 s59, s60, {i}'); b.s('s_add_u32 s59, s59, s45')
        for z in range(3):
            b.s(f's_add_u32 m0, s53, {lds + XO + z*4096}')
            if z: b.s('s_add_u32 s58, s58, s43')
            b.dma(vX, 4, 's58', 0, self.cfg.xpol); self.q.append((tag, 1)); self._f()
        for h in (0, 1):
            if h: b.s('s_add_u32 s59, s59, s61')
            if h == 0 and not full: continue
            for z in (0, 1):
                b.s(f's_add_u32 m0, s52, {lds + (WO1 if h else WO0) + z*4224}')
                if z: b.s('s_add_u32 s39, s59, s62')
                b.dma(vW, 16, 's39' if z else 's59', 0, self.cfg.wpol); self.q.append((tag, 1)); self._f()
        self.norm()
    def t(self, p, tag):
        b = self.b; k, j = TILES[p]; srd_ = 8 if k == 'K' else 12; lds = t_base(p); pol = self.cfg.kvpol
        for kh in range(2):
            b.s(f's_add_u32 m0, s52, {lds + kh*8448}'); b.s(f's_add_u32 s39, s38, {j*16384 + kh*8192}')
            b.dma(self.base, srd_, 's39', 0, pol)
            b.s('s_add_u32 m0, m0, 3200')
            b.dma(self.base, srd_, 's39', 1024, pol)
        self.q.append((tag, 4))
    def norm(self):
        q = []
        for t, n in self.q:
            if q and q[-1][0] == t: q[-1] = (t, q[-1][1] + n)
            else: q.append((t, n))
        self.q = q
    def items(self):
        t = Loader(self.b, self.cfg, 0, 0); t.q = [x for x in self.q if isinstance(x[0], tuple)]; t.norm(); return [n for _, n in t.q]
    def other(self, n): self.q.append((None, n))
    def need(self, tags):
        last = -1
        for i, (t, n) in enumerate(self.q):
            if t in tags: last = i
        if last >= 0:
            self.q = self.q[last+1:]
            self.b.vm(min(63, sum(n for _, n in self.q)))
    def ub(self, d, unit_sgpr, plus=0):
        self.b.s(f's_add_u32 {d}, {unit_sgpr}, s33')
        if plus: self.b.s(f's_add_u32 {d}, {d}, {plus & 3}')
        self.b.s(f's_and_b32 {d}, {d}, 3')
    def begin(self, plus, recompute):
        b = self.b; lo, le = self.lab('bo'), self.lab('be')
        b.fence()
        b.s(f's_cmp_ge_u32 s40, {4 - plus}'); b.s(f's_cbranch_scc1 {lo}')
        if recompute: loader_offsets(b, False, self.base, 2048, 8192, False, self.tmp)
        b.s(f's_branch {le}')
        b.label(lo)
        for k in range(3): b.s(f's_mov_b32 s{4+k}, s{20+k}')
        for k in range(2): b.s(f's_mov_b32 s{16+k}, s{24+k}')
        for r, v in ((42, 12288), (43, 4096), (60, 64*2048), (61, 32*2048), (62, 4*2048), (63, 3145728), (44, 's74'), (45, 's75')): b.s(f's_mov_b32 s{r}, {v}')
        loader_offsets(b, False, self.base, 128, 2048, True, self.tmp)
        b.label(le)
        self.ub('s36', 's40', plus); b.s('s_mul_i32 s36, s36, s63'); b.s('s_add_u32 s36, s36, s44')
        b.fence()
    def set_a(self):
        self.ub('s38', 's41'); self.b.s('s_lshl_b32 s38, s38, 24'); self.b.s('s_add_u32 s38, s38, s46')
    def set_ost(self):
        self.ub('s54', 's41', 3); self.b.s('s_mul_i32 s54, s54, 3145728'); self.b.s('s_add_u32 s54, s54, s47')
        if self.cfg.dropst: self.b.s(f's_cmp_le_u32 s41, {self.cfg.dropst}'); self.b.s(f's_cselect_b32 s54, {OOB}, s54')
    def nonce_load(self, v):
        self.b.emit(f'buffer_load_dwordx2 {vr(v+4,2)}, off, s[64:67], 0 sc1', 'vmem', R(v+4, 2)); self.q.append(('n', 1))
    def nonce_get(self, v):
        b = self.b; l0, l1 = self.lab('nc'), self.lab('nk')
        assert all(x[0] != 'n' for x in self.q)
        b.s('s_mov_b32 s49, 0x40000')
        b.label(l0)
        b.rfl(84, v+4); b.rfl(85, v+5); b.nop(1)
        b.s('s_cmp_lg_u32 s84, 0'); b.s(f's_cbranch_scc1 {l1}')
        b.s('s_sleep 4')
        b.emit(f'buffer_load_dwordx2 {vr(v+4,2)}, off, s[64:67], 0 sc1', 'vmem', R(v+4, 2)); b.vm(0)
        b.s('s_sub_u32 s49, s49, 1'); b.s('s_cmp_lg_u32 s49, 0'); b.s(f's_cbranch_scc1 {l0}')
        b.label(l1)
    def poll(self, v, plus):
        b = self.b
        self.ub('s82', 's40', plus); b.s('s_lshl_b32 s82, s82, 11'); b.s('s_add_u32 s82, s82, s72'); b.s('s_andn2_b32 s82, s82, 127')
        b.s(f's_cmp_lt_u32 s40, {4 - plus}'); b.s(f's_cselect_b32 s82, {OOB}, s82')
        if plus:
            b.s('s_bitcmp1_b32 s32, s40'); b.s(f's_cselect_b32 s82, {OOB}, s82')
            self.ub('s39', 's40'); b.s('s_lshl_b32 s39, s39, 12'); b.s('s_add_u32 s39, s39, s73')
            b.s('s_cmp_eq_u32 s40, 7'); b.s('s_cselect_b32 s82, s39, s82'); b.s('s_cselect_b32 s39, 2, 7')
            b.v('v_min_u32', v+2, 's39', LANE)
        else:
            b.v('v_min_u32', v+2, '7', LANE)
        b.v('v_lshlrev_b32', v+2, '3', v+2)
        b.emit(f'buffer_load_dwordx2 {vr(v,2)}, {vr(v+2)}, s[68:71], s82 offen sc1', 'vmem', R(v, 2), {v+2}); self.q.append(('p', 1))
    def check(self, v, plus):
        b = self.b; l0, l1 = self.lab('ck'), self.lab('ok')
        assert all(x[0] != 'p' for x in self.q)
        if self.cfg.nosig: return
        if plus is not None: b.s(f's_cmp_lt_u32 s40, {4 - plus}'); b.s(f's_cbranch_scc1 {l1}')
        b.s('s_mov_b32 s49, 0x40000')
        b.label(l0)
        b.emit(f'v_cmp_ne_u64 vcc, s[84:85], {vr(v,2)}', 'valu', (), R(v, 2))
        b.s(f's_cbranch_vccz {l1}')
        b.s('s_sleep 2')
        b.emit(f'buffer_load_dwordx2 {vr(v,2)}, {vr(v+2)}, s[68:71], s82 offen sc1', 'vmem', R(v, 2), {v+2}); b.vm(0)
        b.s('s_sub_u32 s49, s49, 1'); b.s('s_cmp_lg_u32 s49, 0'); b.s(f's_cbranch_scc1 {l0}')
        b.label(l1)
    def flag_store(self, v, soff):
        b = self.b
        b.v('v_mov_b32', v+4, 's84'); b.v('v_mov_b32', v+5, 's85')
        b.s('s_mov_b64 exec, 1')
        b.emit(f'buffer_store_dwordx2 {vr(v+4,2)}, off, s[68:71], {soff} sc1', 'vmem', (), R(v+4, 2))
        b.s('s_mov_b64 exec, -1')
    def signal(self, v):
        b = self.b
        assert all(x[0] != 'st' for x in self.q)
        self.ub('s39', 's41', 3); b.s('s_lshl_b32 s39, s39, 11'); b.s('s_add_u32 s39, s39, s72')
        b.s('s_cmp_eq_u32 s35, 0'); b.s(f's_cselect_b32 s39, s39, {OOB}')
        self.flag_store(v, 's39'); self.other(1)
    def psignal(self, v):
        b = self.b; l = self.lab('ps')
        b.s('s_cmp_eq_u32 s37, 0'); b.s(f's_cbranch_scc1 {l}')
        sv = b.save(); self.flag_store(v, 's83'); b.s('s_mov_b32 s37, 0'); b.restore(sv)
        b.label(l)

def cons_tags(ph, kind, t):
    if kind == 'g': return {(ph, t)}
    return {(ph, p) for p in range(16) if t_cons(p) == t}
R_OWN = {2: [5], 3: [6, 7], 4: [8], 5: [9], 6: [14], 7: [10], 8: [11], 9: [12], 10: [13], 11: [15]}
R_OWNP = {1: [5], 2: [6], 3: [7]}
R_TO_A = {11: [0], 12: [1], 13: [2, 3], 14: [4], 15: [5]}
R_TO_F = {12: [0], 13: [1], 15: [2]}
def r_to_r(c):
    d = {}
    for i in range(4): d.setdefault(max(c, 12 + i if i < 3 else 14), []).append(i)
    return d
F_TO_A = {13: [0, 1], 14: [2, 3], 15: [4, 5]}
F_TO_R = {13: [0], 14: [1, 2], 15: [3]}
A_OWN = {1: [8], 2: [9, 10], 3: [11, 12], 4: [13, 14], 5: [15]}
A_TO_R = {6: [0, 1], 7: [2], 8: [3, 4]}
A_TO_F = {6: [0], 7: [1], 8: [2]}
R_TO_P = {12: [0, 1], 13: [2]}
PLDS = [XB, 0, PT]
R_OWNS = {2: [], 3: [5, 6], 4: [7, 8]}
def prog_of(mask):
    p = []
    for gi in range(8):
        p.append('F' if gi % 4 == 0 else 'R')
        if mask >> gi & 1: p.append('A')
    return p
def verify_ring(cfg):
    for mask in cfg.masks:
        prog = prog_of(mask) + ['P']
        assert prog.count('A') == 4
        if mask & 1: assert cfg.pdirect or not (mask >> 5), 'Q3 would be clobbered in X'
        else: assert mask >> 3 & 3
        live = {}; issued = set()
        def rng(ph, i):
            k = prog[ph]
            if k == 'F': return (g_base(i, True), g_base(i, True) + 29184)
            if k == 'R': return (g_base(i, False), g_base(i, False) + 20736)
            if k == 'P': return (PLDS[i], PLDS[i] + PT)
            return (t_base(i), t_base(i) + HS)
        def iss(ph, i):
            lo, hi = rng(ph, i)
            for t, (a, c) in live.items(): assert hi <= a or c <= lo, (prog, ph, i, t)
            assert (ph, i) not in issued, (prog, ph, i)
            live[(ph, i)] = (lo, hi); issued.add((ph, i))
        for i in range(3): iss(0, i)
        for ph, k in enumerate(prog[:-1]):
            nx = prog[ph+1]; pv = prog[ph-1] if ph else None
            for t in range(9 if k == 'A' else 16):
                if k == 'F':
                    own = [t+3] if t <= 12 else []
                    if pv == 'A' and t < 2: own = [[], [3, 4]][t]
                    nxt = {'A': F_TO_A, 'R': F_TO_R}[nx].get(t, [])
                elif k == 'R':
                    own = R_OWN.get(t, []) if t else ([] if pv == 'A' else [4])
                    if pv != 'A' and t in R_OWNP: own = R_OWNP[t]
                    nxt = {'A': R_TO_A, 'F': R_TO_F, 'R': r_to_r(cfg.rrc), 'P': R_TO_P}[nx].get(t, [])
                else:
                    own = A_OWN.get(t, []) if t else [6, 7]
                    nxt = {'R': A_TO_R, 'F': A_TO_F}[nx].get(t, [])
                for i in own: iss(ph, i)
                for i in nxt: iss(ph+1, i)
                for tg in cons_tags(ph, 'a' if k == 'A' else 'g', t):
                    assert tg in live, (prog, tg); del live[tg]
        assert len(live) == 3 and len(issued) == 195

ACC = 0; RES = 48; BF = [176, 200]; A1 = 224; VW = 232; VX = 233; VWB = 235; VXB = 236; VQW = 238; GB = 240; GT = 244
def acc(nt, qb): return ACC + 8*qb + 4*nt
def gemm_setup(b):
    lane = LANE; t0, t1, t2 = GT, GT+1, GT+2
    b.v('v_bfe_u32', t0, lane, '2', '3'); b.v('v_mul_u32_u24', VWB, '1056', t0)
    b.v('v_lshrrev_b32', t0, '5', lane); b.v('v_lshlrev_b32', t0, '9', t0); b.v('v_add_u32', VWB, VWB, t0)
    b.v('v_and_b32', t0, '3', lane); b.v('v_lshlrev_b32', t0, '3', t0)
    b.s('s_lshl_b32 s39, s34, 6'); b.v('v_add3_u32', VWB, VWB, t0, 's39')
    b.v('v_and_b32', t0, '15', lane); b.v('v_lshrrev_b32', t2, '1', t0); b.v('v_lshrrev_b32', t1, '4', lane); b.v('v_xor_b32', t2, t2, t1)
    b.v('v_lshlrev_b32', t0, '7', t0)
    for h in range(2):
        b.v('v_xor_b32', VXB+h, str(4*h), t2); b.v('v_lshlrev_b32', VXB+h, '4', VXB+h); b.v('v_add_u32', VXB+h, VXB+h, t0)
def gemm_addr_ops(b, base):
    base = str(base)
    return [lambda: b.v('v_add_u32', VX, base, VXB), lambda: b.v('v_add_u32', VX+1, base, VXB+1), lambda: b.v('v_add_u32', VW, base, VWB)]
def rdA(b, h, areg):
    return [lambda nt=nt, e=e: b.dsr('ds_read_b64_tr_b16', areg+4*nt+2*e, 2, VW, (WO1 if h else WO0) + e*256 + nt*32) for nt in range(2) for e in range(2)]
def rdB(b, h):
    return [lambda qb=qb: b.dsr('ds_read_b128', BF[h]+4*qb, 4, VX+h, XO + qb*2048) for qb in range(6)]
def g_block(b, h, areg, gaps, zero=False, prewait=None):
    k = 0
    for qb in range(6):
        for nt in range(2):
            if prewait and k in prewait: b.wait_lgkm(prewait[k])
            b.mfma16(acc(nt, qb), areg+4*nt, BF[h]+4*qb, None if zero else acc(nt, qb))
            for f in gaps.get(k, []): f()
            k += 1
def g_interval(b, a0, load_a0, first, nxt_ops, endfn, defer=False, zero=None, x1=None, x0=None, mid=None):
    B0, B1, Aa = rdB(b, 0), rdB(b, 1), rdA(b, 1, A1)
    A0 = rdA(b, 0, a0) if load_a0 else []
    if first:
        for f in A0 + B0: f()
        rest = B1 + Aa
        pw = None
    else:
        seq = A0 + B0 + B1
        g1 = {k: [seq[k]] for k in range(12)}
        for k, fs in (x1 or {}).items(): g1[k] = fs + g1[k]
        rest = seq[12:] + Aa
        g_block(b, 1, A1, g1, prewait=({0: 0} if defer else None))
        if mid: mid()
        ny = 12 - len(A0) - 6
        pw = {0: ny} if not load_a0 else {0: ny + 3, 6: 6 + ny}
    g0 = {k: [f] for k, f in enumerate(rest)}
    for k, fs in (x0 or {}).items(): g0.setdefault(k, []).extend(fs)
    k = len(rest)
    for f in nxt_ops:
        g0.setdefault(min(k, 10), []).append(f); k += 1
    def tail():
        if not defer: b.wait_lgkm(0)
        endfn(); b.barrier()
    g0.setdefault(10, []).append(tail)
    g_block(b, 0, a0, g0, zero=(first if zero is None else zero), prewait=pw)
def q_ops(b):
    def cv(qb, nt):
        a = acc(nt, qb)
        return [lambda z=z: b.v('v_mul_f32', a+z, 's56', a+z) for z in range(4)] + \
               [lambda: b.v('v_cvt_pk_bf16_f32', a, a, a+1), lambda: b.v('v_cvt_pk_bf16_f32', a+1, a+2, a+3),
                lambda: b.dsw('ds_write_b64', VQW, a, 2, qb*16*QROW + nt*32)]
    return sum([cv(qb, nt) for qb in range(6) for nt in range(2)], [])
def g_tail(b, ops):
    gaps = {}
    for k in range(5, 12): gaps[k] = [ops.pop(0), ops.pop(0)]
    g_block(b, 1, A1, gaps)
    for f in ops: f()
    b.wait_lgkm(0)
def g_fused(b, ops, full):
    for f in gemm_addr_ops(b, g_base(0, full)): f()
    x1 = {k: [ops.pop(0)] for k in range(6, 12)}
    def mid():
        for f in ops: f()
    g_interval(b, RES, full, False, gemm_addr_ops(b, g_base(1, full)), lambda: None, zero=True, x1=x1, mid=mid)
    b.s('s_branch L_gem_F1' if full else 's_branch L_gem_R1')
def g_main(b, cfg, full, M):
    for f in gemm_addr_ops(b, g_base(0, full)): f()
    for c in range(16):
        x0 = {7: [lambda: M.psignal(GF)]} if (c == 5 and not full) else None
        if c == 1: b.label('L_gem_F1' if full else 'L_gem_R1')
        g_interval(b, RES + 8*c, full, c == 0, gemm_addr_ops(b, g_base(c+1, full)) if c < 15 else [], (lambda c=c: M.need({('g', c+1)}) if c != 4 else b.vm(0)), x0=x0)
GF = 248

O_ = 0; Q_ = 96; KF = 144; VF = 176; S_ = 208; P_ = 224; NM = 232; L_ = 244
VKA = 247; VVA = 248; VKB = 249; VVB = 250; T0 = 251; VVH = 253
LB = S_ + 8
def Oreg(c, dt): return O_ + 32*c + 4*dt
def att_setup(b):
    lane = LANE; t0 = T0
    b.s('s_mul_i32 s39, s55, 8448')
    b.v('v_and_b32', t0, '7', lane); b.v('v_mul_u32_u24', VKB, '1056', t0)
    b.v('v_bfe_u32', t0, lane, '3', '1'); b.v('v_lshlrev_b32', t0, '8', t0); b.v('v_add_u32', VKB, VKB, t0)
    b.v('v_lshrrev_b32', t0, '4', lane); b.v('v_lshlrev_b32', t0, '4', t0); b.v('v_add3_u32', VKB, VKB, t0, 's39')
    b.v('v_bfe_u32', t0, lane, '2', '3'); b.v('v_mul_u32_u24', VVB, '1056', t0)
    b.v('v_lshrrev_b32', t0, '5', lane); b.v('v_lshlrev_b32', t0, '8', t0); b.v('v_add_u32', VVB, VVB, t0)
    b.s('s_lshl_b32 s50, s55, 7'); b.s('s_add_u32 s39, s39, s50')
    b.v('v_and_b32', t0, '3', lane); b.v('v_lshlrev_b32', t0, '3', t0); b.v('v_add3_u32', VVB, VVB, t0, 's39')
    b.s('s_lshl_b32 s77, s55, 8'); b.s('s_sub_u32 s77, 128, s77')
def q_addr(b, t0, t1):
    b.s('s_and_b32 s39, s34, 1'); b.s(f's_mul_i32 s39, s39, {48*QROW}'); b.s(f's_add_u32 s39, s39, {XB}')
    b.v('v_and_b32', t0, '15', LANE); b.v('v_mul_u32_u24', t0, str(QROW), t0)
    b.v('v_lshrrev_b32', t1, '4', LANE); b.v('v_lshlrev_b32', t1, '4', t1); b.v('v_add3_u32', t0, t0, t1, 's39')
def q_reads(b, t0):
    for c in range(3):
        for m in range(4): b.dsr('ds_read_b128', Q_+16*c+4*m, 4, t0, c*16*QROW + m*64)
def crossred(b, t, u, op='v_max_f32'):
    b.v('v_mov_b32', u, t); b.swap32(t, u); b.v(op, t, t, u)
    b.v('v_mov_b32', u, t); b.swap16(t, u); b.v(op, t, t, u)

class Att:
    def __init__(self, b, cfg):
        self.b, self.cfg, self.rare = b, cfg, []
        self.order = [(m, t) for t in range(2) for m in range(4)] if cfg.chain else [(m, t) for m in range(4) for t in range(2)]
    def qk_list(self, task):
        b = self.b; i, c = divmod(task, 3); buf = task & 1; out = []
        for m, t in self.order:
            if True:
                d = S_ + 8*buf + 4*t
                cc = d if m else (None if i == 0 else NM + 4*c)
                out.append(lambda d=d, t=t, m=m, cc=cc: b.mfma16(d, KF+16*t+4*m, Q_+16*c+4*m, cc))
        return out
    def pv_list(self, task):
        b = self.b; i, c = divmod(task, 3); buf = task & 1
        return [lambda dt=dt: b.mfma16(Oreg(c, dt), VF+4*dt, P_+4*buf, None if i == 0 else Oreg(c, dt)) for dt in range(8)]
    def kread(self, k):
        m, t = self.order[k]
        return lambda: self.b.dsr('ds_read_b128', KF+16*t+4*m, 4, VKA, t*512+m*64)
    def vread(self, k):
        dt, t = divmod(k, 2)
        return lambda: self.b.dsr('ds_read_b64_tr_b16', VF+4*dt+2*t, 2, VVA if dt < 4 else VVH, t*512+(dt % 4)*32)
    def pre(self, task):
        b = self.b; i, c = divmod(task, 3); S = S_ + 8*(task & 1); t, u = T0, T0+1
        o = [(4, lambda: b.v('v_max3_f32', t, S, S+1, S+2)), (4, lambda: b.v('v_max3_f32', u, S+3, S+4, S+5)),
             (4, lambda: b.v('v_max3_f32', t, S+6, S+7, t)), (4, lambda: b.v('v_max_f32', t, t, u))]
        if i > 0: o.append((4, lambda: b.emit(f'v_cmp_lt_f32 vcc, 4.0, {vr(t)}', 'valu', (), {t})))
        return o
    def main(self, task):
        b = self.b; i, c = divmod(task, 3); buf = task & 1
        S = S_ + 8*buf; P = P_ + 4*buf; t, u = T0, T0+1
        o = []
        if i == 0:
            o += [(4, lambda: b.v('v_mov_b32', u, t)), (8, lambda: b.swap32(t, u)), (4, lambda: b.v('v_max_f32', t, t, u)),
                  (4, lambda: b.v('v_mov_b32', u, t)), (8, lambda: b.swap16(t, u)), (4, lambda: b.v('v_max_f32', t, t, u))]
            for k in range(8): o.append((4, lambda k=k: b.v('v_sub_f32', S+k, S+k, t)))
            for k in range(4): o.append((4, lambda k=k: b.v('v_sub_f32', NM+4*c+k, '0', t)))
        else:
            def br():
                b.s(f's_cbranch_vccnz L_rare{task}'); b.label(f'L_back{task}'); self.rare.append(task)
            o.append((6, br))
        for k in range(8):
            o.append((8, lambda k=k: b.exp(S+k, S+k)))
            if k >= 1:
                kk = k - 1
                if i == 0 and kk == 0: o.append((4, lambda: b.v('v_mov_b32', L_+c, S)))
                else: o.append((4, lambda kk=kk: b.v('v_add_f32', L_+c, L_+c, S+kk)))
            if k >= 2 and k % 2 == 0:
                h = k//2 - 1
                o.append((4, lambda h=h: b.v('v_cvt_pk_bf16_f32', P+h, S+2*h, S+2*h+1)))
        o.append((4, lambda: b.v('v_add_f32', L_+c, L_+c, S+7)))
        o.append((4, lambda: b.v('v_cvt_pk_bf16_f32', P+3, S+6, S+7)))
        return o
    def addr_k(self, j): self.b.v('v_add_u32', VKA, str(t_base(KPOS[j])), VKB)
    def addr_v(self, j): self.b.v('v_add_u32', VVA, str(t_base(VPOS[j])), VVB); self.b.v('v_add_u32', VVH, 's77', VVA)
    def step(self, s, endfn=None):
        b = self.b; mf = []; prew = {}
        i, c = divmod(s, 3)
        if s + 1 <= 23: mf += self.qk_list(s + 1)
        if s - 1 >= 0: mf += self.pv_list(s - 1)
        n = len(mf)
        post = [[] for _ in range(n)]
        hasK = i + 1 <= 7
        if c == 0:
            off = 8 if s else 0
            for k in range(8): post[off + k].append(self.vread(k))
        elif c == 1:
            for k in range(8): post[k].append(self.vread(8 + k))
            if hasK:
                for k in range(8): post[8 + k].append(self.kread(k))
            prew[8] = 8; prew[12] = 4 if hasK else 0
        elif hasK:
            prew[0] = 4; prew[4] = 0
        sm = self.main(s) + (self.pre(s + 1) if s + 1 <= 23 else [])
        if B.skel: sm = []
        ecost = 20
        tot = sum(x for x, _ in sm) + 4*sum(len(p) for p in post) + 4*len(prew) + (ecost if endfn else 0)
        acc_ = 0; k = 0
        for j in range(n):
            if j in prew: b.wait_lgkm(prew[j]); acc_ += 4
            mf[j]()
            for f in post[j]: f(); acc_ += 4
            if endfn and j == n - 4:
                endfn(); acc_ += ecost
                continue
            tgt = tot * (j + 1) / n
            while k < len(sm) and (acc_ + sm[k][0]/2 <= tgt or j == n - 1):
                sm[k][1](); acc_ += sm[k][0]; k += 1
    def start(self):
        for f in self.qk_list(0): f()
        for _, f in self.pre(0): f()
    def intervals(self, L):
        b, cfg = self.b, self.cfg
        for j in range(1, 9):
            for s in range(3*(j-1), 3*j):
                if s == 23:
                    b.wait_lgkm(0)
                    b.s('s_cmp_eq_u32 s48, 0'); b.s('s_cbranch_scc1 L_a_noq1')
                    b.s('s_cmp_ge_u32 s41, 3'); b.s('s_cbranch_scc1 L_a_noq1')
                    sv = b.save(); q_addr(b, KF, KF+1); q_reads(b, KF); b.restore(sv)
                    b.label('L_a_noq1')
                def endfn(j=j):
                    b.wait_lgkm(0)
                    if j == 8: b.raw('s_waitcnt lgkmcnt(0)')
                    else:
                        self.addr_v(j)
                        if j + 1 <= 7: self.addr_k(j + 1)
                    L.need(cons_tags('a', 'a', j + 1))
                    b.barrier()
                self.step(s, endfn if s == 3*j - 1 else None)
    XA = KF; SA = KF+1; XP = KF+2; OS = KF+4; FO = KF+10; FT = KF+13; PK = VF; UP = S_; VO = P_+2
    def pack(self, c, mp):
        b = self.b; pk = KF + 16 + 4*((2*c+mp) % 4); r = []
        for h in range(2):
            o = Oreg(c, 4 + 2*mp + h)
            r += [lambda o=o, h=h: b.v('v_cvt_pk_bf16_f32', pk+2*h, o, o+1), lambda o=o, h=h: b.v('v_cvt_pk_bf16_f32', pk+2*h+1, o+2, o+3)]
        return r + [lambda: b.dsw('ds_write_b128', self.XA, pk, 4, (2*c+mp)*1024)]
    def c0(self):
        b = self.b; XA = self.XA
        b.s('s_mul_i32 s50, s34, 6144'); b.s(f's_add_u32 s50, s50, {XB}')
        fill = [lambda: b.v('v_lshl_add_u32', XA, LANE, '4', 's50')]
        fill += self.pack(0, 0) + self.pack(0, 1) + self.pack(1, 0) + self.pack(1, 1)
        pv = self.pv_list(23)
        for dt in (4, 5, 6, 7, 0, 1, 2, 3):
            pv[dt]()
            for _ in range(2): fill.pop(0)()
        for f in fill: f()
    def c1(self):
        b = self.b; SA = self.SA
        red = []
        for c in range(3):
            Lr = L_ + c; uu = S_ + c
            red.append([lambda Lr=Lr, uu=uu: b.v('v_mov_b32', uu, Lr), lambda Lr=Lr, uu=uu: b.swap32(Lr, uu), lambda Lr=Lr, uu=uu: b.v('v_add_f32', Lr, Lr, uu),
                        lambda Lr=Lr, uu=uu: b.v('v_mov_b32', uu, Lr), lambda Lr=Lr, uu=uu: b.swap16(Lr, uu), lambda Lr=Lr, uu=uu, c=c: b.v('v_add_f32', NM+4*c+1, Lr, uu)])
        o = [lambda: (b.s('s_mul_i32 s50, s34, 384'), b.s(f's_add_u32 s50, s50, {STAT}'))]
        o += self.pack(2, 0) + self.pack(2, 1)
        o += [lambda: b.v('v_and_b32', SA, '15', LANE), lambda: b.v('v_mad_u32_u24', SA, SA, '24', 's50')]
        o += [red[c][k] for k in range(6) for c in range(3)]
        o += [lambda c=c: b.dsw('ds_write_b64', SA, NM+4*c, 2, 8*c) for c in range(3)]
        o += [lambda: (b.s('s_mul_i32 s51, s77, 96'), b.s('s_mul_i32 s50, s77, 6')), lambda: b.v('v_add_u32', self.XP, 's51', self.XA), lambda: b.v('v_add_u32', SA, 's50', SA)]
        return o
    def c2a(self):
        b = self.b
        return [lambda c=c: b.dsr('ds_read_b64', self.OS+2*c, 2, self.SA, 8*c) for c in range(3)] + \
               [lambda k=k: b.dsr('ds_read_b128', self.PK+4*k, 4, self.XP, k*1024) for k in range(6)]
    def c2b(self):
        b = self.b; ops = []
        for c in range(3):
            nm, lo = NM+4*c, NM+4*c+1; on, ol = self.OS+2*c, self.OS+2*c+1; fo, ft = self.FO+c, self.FT+c; t = NM+4*c+2
            ops.append([lambda t=t, nm=nm, on=on: b.v('v_min_f32', t, nm, on), lambda fo=fo, t=t, nm=nm: b.v('v_sub_f32', fo, t, nm), lambda ft=ft, t=t, on=on: b.v('v_sub_f32', ft, t, on),
                        lambda fo=fo: b.exp(fo, fo), lambda ft=ft: b.exp(ft, ft), lambda t=t, fo=fo, lo=lo: b.v('v_mul_f32', t, fo, lo), lambda t=t, ft=ft, ol=ol: b.v('v_fma_f32', t, ft, ol, t),
                        lambda t=t: b.v('v_rcp_f32', t, t, kind='trans'), lambda fo=fo, t=t: b.v('v_mul_f32', fo, fo, t), lambda ft=ft, t=t: b.v('v_mul_f32', ft, ft, t)])
        return [ops[c][k] for k in range(10) for c in range(3)] + [lambda: b.v('v_lshlrev_b32', self.VO, '4', LANE), lambda: b.s('s_add_u32 s51, s54, 4096')]
    def part(self, pi):
        b = self.b; o_ = []
        def V(*a, **k): o_.append(lambda: b.v(*a, **k))
        c, mp = divmod(pi, 2); fo, ft = self.FO+c, self.FT+c
        pk = self.PK + 4*pi
        for h in range(2):
            o = Oreg(c, 2*mp + h); up = self.UP + 4*h
            V('v_lshlrev_b32', up, '16', pk+2*h); V('v_and_b32', up+1, '0xffff0000', pk+2*h)
            V('v_lshlrev_b32', up+2, '16', pk+2*h+1); V('v_and_b32', up+3, '0xffff0000', pk+2*h+1)
            for z in range(4): V('v_mul_f32', o+z, o+z, fo)
            for z in range(4): V('v_fmac_f32', o+z, up+z, ft, extra_r={o+z})
            V('v_cvt_pk_bf16_f32', pk+2*h, o, o+1); V('v_cvt_pk_bf16_f32', pk+2*h+1, o+2, o+3)
        return o_
    def store(self, pi, L):
        def f():
            self.b.store(4, self.PK + 4*pi, self.VO, 20, 's54' if pi < 4 else 's51', (pi % 4)*1024, self.cfg.opol); L.q.append(('st', 1))
        return [f]
    def rare_block(self, task):
        b = self.b; i, c = divmod(task, 3); S = S_ + 8*(task & 1); t, u = T0, T0+1
        b.reset(); b.label(f'L_rare{task}'); b.nop(2)
        crossred(b, t, u)
        b.v('v_max_f32', t, '0', t)
        b.v('v_sub_f32', u, '0', t); b.exp(u, u)
        for k in range(8): b.v('v_sub_f32', S+k, S+k, t)
        for k in range(4): b.v('v_sub_f32', NM+4*c+k, NM+4*c+k, t)
        b.v('v_mul_f32', L_+c, L_+c, u)
        for k in range(32): b.v('v_mul_f32', O_+32*c+k, O_+32*c+k, u)
        b.nop(2); b.s(f's_branch L_back{task}')

def phase_stamp(b, cfg):
    if cfg.stamps:
        b.raw('s_memrealtime s[90:91]'); b.raw('s_waitcnt lgkmcnt(0)'); b.raw('s_sub_u32 s90, s90, s88')
        b.raw('s_add_u32 s91, s40, s41'); b.raw('s_max_u32 s91, s91, 3'); b.raw('s_sub_u32 s91, s91, 3'); b.raw('s_mov_b32 m0, s91'); b.raw('s_nop 0'); b.raw('s_movreld_b32 s91, s90')
def stamp_dump(b, cfg):
    if cfg.stamps:
        b.raw('s_memrealtime s[90:91]'); b.raw('s_waitcnt lgkmcnt(0)'); b.raw('s_sub_u32 s99, s90, s88')
        b.raw('s_cmp_lg_u32 s35, 4'); b.raw('s_cbranch_scc1 L_k1_end')
        b.raw('s_lshl_b32 s91, s2, 5'); b.raw(f's_add_u32 s80, s20, {64 << 20}'); b.raw('s_addc_u32 s81, s21, 0')
        b.raw(f'v_mov_b32 v{GT+1}, s91')
        for k in range(8):
            b.raw(f'v_mov_b32 v{GT}, s{92+k}'); b.raw(f'global_store_dword v{GT+1}, v{GT}, s[80:81] offset:{4*k}')
    if cfg.ivw is not None:
        b.raw('s_cmp_lg_u32 s35, 4'); b.raw('s_cbranch_scc1 L_k1_end')
        b.raw(f's_add_u32 s80, s20, {66 << 20}'); b.raw('s_addc_u32 s81, s21, 0'); b.raw('s_lshl_b32 s91, s2, 8')
        b.raw(f'v_lshlrev_b32 v{GT}, 2, v{LANE}'); b.raw(f'v_add_u32 v{GT}, s91, v{GT}'); b.raw(f'global_store_dword v{GT}, v247, s[80:81]')

def k1(cfg):
    verify_ring(cfg)
    b = B()
    KN = NAME + '_kernel'
    b.raw(f'.globl {KN}'); b.raw('.p2align 8'); b.raw(f'.type {KN},@function'); b.label(KN)
    b.s('s_cmp_ge_u32 s2, 256'); b.s('s_cbranch_scc1 L_k1_end')
    if cfg.stamps or cfg.hstamp: b.raw('s_memrealtime s[88:89]')
    def hs(k):
        if cfg.hstamp: b.raw('s_memrealtime s[90:91]'); b.raw('s_waitcnt lgkmcnt(0)'); b.raw(f's_sub_u32 s90, s90, s88'); b.raw(f'v_mov_b32 v{10+k}, s90')
    b.s('s_and_b32 s60, s2, 7'); b.s('s_lshr_b32 s61, s2, 3'); b.s('s_lshr_b32 s62, s60, 2')
    b.s('s_mul_i32 s63, s62, 40'); b.s('s_add_u32 s64, s0, s63'); b.s('s_addc_u32 s65, s1, 0')
    b.s('s_load_dwordx4 s[68:71], s[64:65], 0'); b.s('s_load_dwordx4 s[72:75], s[64:65], 16')
    b.s('s_load_dwordx2 s[76:77], s[64:65], 32'); b.s('s_load_dwordx2 s[78:79], s[0:1], 96'); b.s('s_load_dwordx4 s[28:31], s[0:1], 80')
    if cfg.wopf == 3: b.s('s_load_dwordx2 s[92:93], s[0:1], 32'); b.s('s_load_dwordx2 s[96:97], s[0:1], 72')
    if cfg.codepf:
        b.s('s_and_b32 s39, s61, 15'); b.s('s_cmp_lg_u32 s39, 0'); b.s('s_cbranch_scc1 L_nocpf')
        b.raw('s_getpc_b64 s[82:83]')
        b.label('L_pc')
        b.v('v_lshlrev_b32', 2, '7', 0)
        b.v('v_min_u32', 2, 'L_code_end-L_pc-4', 2)
        b.v('v_mov_b32', 3, 's83')
        b.emit('v_add_co_u32 v2, vcc, s82, v2', 'valu', {2}, {2}); b.nop(2)
        b.emit('v_addc_co_u32 v3, vcc, 0, v3, vcc', 'valu', {3}, {3})
        b.emit(f'global_load_dword v{DUM}, v[2:3], off', 'vmem', {DUM}, {2, 3})
        b.label('L_nocpf')
    b.v('v_lshrrev_b32', 1, '6', 0); b.rfl(35, 1)
    lane_id(b, LANE)
    b.s('s_and_b32 s34, s35, 3'); b.s('s_lshr_b32 s55, s34, 1')
    b.s('s_and_b32 s33, s60, 3'); b.s('s_lshl_b32 s66, s33, 3'); b.s('s_and_b32 s67, s61, 7'); b.s('s_add_u32 s66, s66, s67')
    b.s('s_lshr_b32 s63, s61, 3')
    b.s('s_and_b32 s48, s63, 1' if cfg.stagger else 's_mov_b32 s48, 0')
    b.s('s_mov_b32 s40, 0'); b.s('s_mov_b32 s41, 0'); b.s('s_mov_b32 s37, 0')
    b.s(f's_mov_b32 s32, {cfg.masks[1]}'); b.s('s_cmp_eq_u32 s48, 0'); b.s(f's_cselect_b32 s32, {cfg.masks[0]}, s32')
    b.s('s_mul_i32 s44, s63, 196608'); b.s('s_lshl_b32 s45, s66, 8')
    b.s('s_lshl_b32 s46, s63, 5'); b.s('s_add_u32 s46, s46, s66'); b.s('s_lshl_b32 s46, s46, 17')
    b.s('s_lshl_b32 s80, s62, 4'); b.s('s_add_u32 s80, s80, s63')
    b.s('s_lshl_b32 s47, s80, 6')
    b.s('s_lshl_b32 s39, s66, 1'); b.s('s_add_u32 s47, s47, s39'); b.s('s_add_u32 s47, s47, s55'); b.s('s_mul_i32 s47, s47, 12288')
    b.s('s_and_b32 s39, s34, 1'); b.s('s_mul_i32 s39, s39, 6144'); b.s('s_add_u32 s47, s47, s39')
    b.s('s_mul_i32 s52, s34, 1056'); b.s('s_lshl_b32 s53, s34, 10')
    b.s(f's_mov_b32 s56, {f2u(CEXP):#x}')
    b.s('s_mul_i32 s57, s67, 24576'); b.s('s_lshl_b32 s39, s34, 13'); b.s('s_add_u32 s57, s57, s39'); b.s('s_add_u32 s57, s57, s44')
    b.s('s_cmp_eq_u32 s34, 3'); b.s(f's_cselect_b32 s57, {OOB}, s57')
    hs(0)
    b.raw('s_waitcnt lgkmcnt(0)')
    srd(b, 4, 68, 16*96*1024*2); srd(b, 8, 70, 1 << 26); srd(b, 12, 72, 1 << 26); srd(b, 16, 74, 1 << 23)
    srd(b, 20, 78, FB); srd(b, 24, 76, 1 << 23)
    b.s(f's_add_u32 s68, s78, {FB}'); b.s('s_addc_u32 s69, s79, 0'); b.s('s_mov_b32 s70, 49152'); b.s('s_mov_b32 s71, 0x20000')
    b.s('s_mov_b32 s64, s30'); b.s('s_mov_b32 s65, s31')
    b.s(f's_mov_b32 s30, {16*96*2048*2}'); b.s('s_mov_b32 s31, 0x20000')
    b.s('s_lshl_b32 s72, s80, 9'); b.s('s_lshl_b32 s50, s33, 7'); b.s('s_add_u32 s72, s72, s50'); b.s('s_lshl_b32 s50, s67, 3'); b.s('s_add_u32 s72, s72, s50')
    b.s('s_lshl_b32 s81, s80, 3'); b.s('s_add_u32 s81, s81, s67')
    b.s('s_lshl_b32 s73, s81, 7'); b.s('s_add_u32 s73, s73, 16384')
    b.s(f's_mul_i32 s78, s81, {3*PT}'); b.s('s_mul_i32 s79, s34, 6144'); b.s('s_add_u32 s78, s78, s79'); b.s(f's_add_u32 s78, s78, {PB}')
    b.s('s_lshl_b32 s74, s80, 2'); b.s('s_add_u32 s74, s74, s33'); b.s(f's_mul_i32 s74, s74, {16*12288}')
    b.s('s_lshl_b32 s75, s33, 21'); b.s('s_lshl_b32 s50, s67, 8'); b.s('s_add_u32 s75, s75, s50')
    b.s('s_add_u32 s39, s33, 3'); b.s('s_and_b32 s39, s39, 3'); b.s('s_lshl_b32 s39, s39, 2'); b.s('s_add_u32 s39, s39, s63'); b.s(f's_mul_i32 s76, s39, {96*4096}')
    b.s('s_add_u32 s76, s76, s50'); b.s('s_lshl_b32 s50, s62, 11'); b.s('s_add_u32 s76, s76, s50'); b.s('s_lshl_b32 s50, s34, 6'); b.s('s_add_u32 s76, s76, s50')
    b.s('s_lshl_b32 s87, s33, 21'); b.s('s_lshl_b32 s50, s61, 16'); b.s('s_add_u32 s87, s87, s50'); b.s('s_lshl_b32 s50, s34, 13'); b.s('s_add_u32 s87, s87, s50')
    if cfg.pf0 == 2:
        b.s('s_cmp_eq_u32 s48, 0'); b.s('s_cbranch_scc1 L_nopf0')
        b.v('v_lshlrev_b32', 3, '7', LANE)
        b.s('s_mul_i32 s39, s33, 786432'); b.s('s_add_u32 s39, s39, s57'); b.s('s_sub_u32 s39, s39, 196608'); b.s('s_cmp_ge_u32 s35, 3'); b.s(f's_cselect_b32 s39, {OOB}, s39')
        b.load1(DUM, 3, 4, 's39')
        b.v('v_lshrrev_b32', 2, '1', LANE); b.v('v_lshlrev_b32', 2, '13', 2); b.v('v_and_b32', 4, '1', LANE); b.v('v_lshlrev_b32', 4, '7', 4); b.v('v_add_u32', 2, 2, 4)
        b.s('s_lshl_b32 s39, s35, 1'); b.s('s_lshr_b32 s50, s63, 1'); b.s('s_add_u32 s39, s39, s50'); b.s('s_lshl_b32 s39, s39, 18'); b.s('s_add_u32 s39, s39, s45')
        b.load1(DUM, 2, 16, 's39')
        b.s(f's_add_u32 s39, s39, {16 << 18}')
        b.load1(DUM, 2, 16, 's39')
        b.s('s_lshr_b32 s39, s35, 2'); b.s('s_add_u32 s39, s39, s33'); b.s('s_and_b32 s39, s39, 3'); b.s('s_mul_i32 s39, s39, 786432'); b.s('s_add_u32 s39, s39, s57')
        b.load1(DUM, 3, 4, 's39')
        b.label('L_nopf0')
    if cfg.wopf == 3:
        n = list(cfg.won) + list(cfg.won1 if cfg.won1 is not None else cfg.won); assert sum(n) <= 128
        base = [16*sum(n[:i]) for i in range(16)]
        b.s('s_mov_b32 s94, 0x800000'); b.s('s_mov_b32 s95, 0x20000'); b.s('s_mov_b32 s98, 0x800000'); b.s('s_mov_b32 s99, 0x20000')
        b.s('s_and_b32 s58, s63, 1'); b.s('s_lshl_b32 s58, s58, 3'); b.s('s_add_u32 s58, s58, s60')
        b.s('s_mov_b32 s50, 0')
        for i in range(16):
            b.s(f's_cmp_eq_u32 s58, {i}'); b.s(f's_cselect_b32 s50, {n[i] | base[i] << 8}, s50')
        b.s('s_lshr_b32 s51, s50, 8'); b.s('s_and_b32 s50, s50, 255')
        b.s('s_lshr_b32 s39, s63, 1'); b.s('s_lshl_b32 s39, s39, 3'); b.s('s_add_u32 s39, s39, s67')
        b.s('s_mul_i32 s39, s39, s50'); b.s('s_add_u32 s51, s51, s39'); b.s('s_add_u32 s51, s51, s35'); b.s('s_lshl_b32 s51, s51, 13')
        b.v('v_lshlrev_b32', 3, '7', LANE)
        for r in range((max(n) + 7) // 8):
            b.s(f's_add_u32 s39, s35, {8*r}'); b.s('s_cmp_lt_u32 s39, s50'); b.s('s_cbranch_scc0 L_wo_done')
            b.s(f's_add_u32 s39, s51, {r << 16}')
            b.load1(DUM, 3, 92, 's39')
            b.s('s_sub_u32 s39, s39, 0x800000')
            b.load1(DUM, 3, 96, 's39')
        b.label('L_wo_done')
    b.s('s_mov_b32 s66, 256'); b.s('s_mov_b32 s67, 0x20000')
    for r, v in ((42, 128), (43, 32*2048), (60, 64*8192), (61, 32*8192), (62, 8*8192), (63, 786432)): b.s(f's_mov_b32 s{r}, {v}')
    hs(1)
    b.s('s_cmp_ge_u32 s35, 4'); b.s('s_cbranch_scc1 L_gem')
    A = Att(b, cfg)
    L = Loader(b, cfg, LB, T0)
    VP = KF + 20
    b.fence()
    loader_offsets(b, True, LB, 2048, 8192, False, T0)
    L.begin(0, False)
    hs(2)
    for i in range(3): L.g(i, True, ('g', i))
    hs(3)
    att_setup(b)
    L.need({('g', 0)}); hs(4); b.barrier(); hs(5)
    if cfg.hstamp:
        b.raw('v_mov_b32 v16, s88'); b.raw('v_mov_b32 v17, 0')
        b.raw('s_cmp_lg_u32 s35, 0'); b.raw('s_cbranch_scc1 L_nohs')
        b.raw('s_lshl_b32 s91, s2, 5'); b.raw(f's_add_u32 s92, s20, {64 << 20}'); b.raw('s_addc_u32 s93, s21, 0')
        b.raw('v_mov_b32 v9, s91'); b.raw('global_store_dwordx4 v9, v[10:13], s[92:93]'); b.raw('global_store_dwordx4 v9, v[14:17], s[92:93] offset:16')
        b.label('L_nohs')
    b.fence()
    def f_loader(t0, t1, extra={}, fills={}):
        for t in range(t0, t1):
            L.setfill(fills.get(t, []), 7)
            L.g(t + 3, True, ('g', t+3))
            L.flush(); b.wait_lgkm(0)
            for f in extra.get(t, []): f()
            L.need({('g', t+1)} | ({'p', 'n'} if t == 12 else set())); b.barrier()
    def r_loader(t0, t1, extra={}, fills={}, over={}):
        for t in range(t0, t1):
            own = over[t] if t in over else R_OWN.get(t, [])
            L.setfill(fills.get(t, []), 5*len(own))
            for i in own: L.g(i, False, ('g', i))
            L.flush(); b.wait_lgkm(0)
            for f in extra.get(t, []): f()
            L.need({('g', t+1)}); b.barrier()
    def tail(t0, table, kind, pre={}, t1=16):
        for t in range(t0, t1):
            for f in pre.get(t, []): f()
            if t == 15 and t0 != 13:
                assert all(x[0] != ('g', 15) for x in L.q)
                L.psignal(VP)
            for i in table.get(t, []):
                if kind == 'a': L.t(i, ('n', i))
                elif kind == 'p': pdma(i)
                else: L.g(i, kind == 'f', ('n', i))
            L.need({('g', t+1)} if t < 15 else ({('n', 0)} if kind != 'p' else {('n', 2)})); b.barrier()
        if t1 < 16: return
        b.s('s_add_u32 s40, s40, 1')
        L.q = [((('a' if kind == 'a' else 'g'), t[1]) if isinstance(t, tuple) else t, n) for t, n in L.q]
    FJ = 9
    b.label('L_att_F')
    qF = list(L.q)
    f_loader(0, FJ)
    qFj = list(L.q)
    b.label('L_att_Fj')
    f_loader(FJ, 13, {10: [lambda: L.nonce_load(VP), lambda: L.poll(VP, 1)]})
    L.nonce_get(VP)
    q13 = list(L.q)
    b.s('s_bitcmp1_b32 s32, s40'); b.s('s_cbranch_scc0 L_att_FR')
    L.set_a(); tail(13, F_TO_A, 'a')
    qa = list(L.q)
    b.s('s_branch L_att_a')
    b.label('L_att_FR'); L.q = list(q13)
    L.begin(1, False); L.check(VP, 1)
    tail(13, F_TO_R, 'r')
    b.fence()
    b.label('L_att_R')
    qR = list(L.q)
    pollx = lambda: L.poll(VP, 1)
    L.g(4, False, ('g', 4)); L.need({('g', 1)}); b.barrier()
    q1 = list(L.q)
    if not cfg.pdirect: b.s('s_cmp_ge_u32 s40, 4'); b.s('s_cbranch_scc1 L_att_RO')
    def rq():
        if cfg.pdirect: b.s('s_cmp_eq_u32 s41, 0'); b.s('s_cbranch_scc0 L_att_norq')
        sv = b.save(); q_addr(b, T0, T0+1); q_reads(b, T0); b.wait_lgkm(0); b.restore(sv)
        b.label('L_att_norq')
    r_loader(1, 11, {1: [rq], 9: [pollx]}, {}, R_OWNP)
    qj = list(L.q); nj = L.items()
    b.fence()
    if not cfg.pdirect:
        b.s('s_branch L_att_Rj')
        b.label('L_att_RO'); L.q = list(q1)
        L.ub('s39', 's40', 3); b.s(f's_mul_i32 s54, s39, {32*3*PT}'); b.s('s_add_u32 s54, s54, s78')
        b.s('s_lshl_b32 s83, s39, 12'); b.s('s_add_u32 s83, s83, s73')
        b.s('s_sub_u32 s39, s40, 5'); b.s(f's_mul_i32 s51, s39, {PT}'); b.s('s_add_u32 s54, s54, s51'); b.s('s_add_u32 s51, s54, 4096')
        b.s('s_lshl_b32 s39, s39, 3'); b.s('s_add_u32 s83, s83, s39')
        b.s('s_cmp_eq_u32 s35, 0'); b.s('s_cselect_b32 s37, 1, 0')
        b.s(f's_add_u32 s50, s79, {XB}')
        b.v('v_lshlrev_b32', A.VO, '4', LANE); b.v('v_add_u32', A.XP, 's50', A.VO)
        fi = {1: A.c2a()[3:]}
        for k in range(3): fi[2+k] = A.store(2*k, L) + A.store(2*k+1, L)
        r_loader(1, 11, {7: [lambda: L.need({'st'})], 8: [lambda: L.psignal(VP)], 9: [pollx]}, fi, R_OWNP)
        assert L.q == qj, (L.q, qj)
        b.fence()
    b.label('L_att_Rj')
    L.g(15, False, ('g', 15))
    qj = list(L.q)
    b.s('s_bitcmp1_b32 s32, s40'); b.s('s_cbranch_scc0 L_att_RG')
    L.set_a(); tail(11, R_TO_A, 'a')
    assert L.q == qa, (L.q, qa)
    b.fence()
    b.label('L_att_a')
    A.addr_k(0)
    for k in range(8): A.kread(k)()
    b.s('s_cmp_eq_u32 s48, 0'); b.s('s_cbranch_scc1 L_a_c0a')
    sv = b.save()
    A.start(); b.fence()
    b.label('L_a_c0a'); b.restore(sv)
    L.t(6, ('a', 6)); L.t(7, ('a', 7))
    q_addr(b, P_+4, P_+5)
    b.raw('s_waitcnt lgkmcnt(0)'); b.lds = []
    A.addr_v(0); A.addr_k(1)
    L.need(cons_tags('a', 'a', 1)); b.barrier()
    b.s('s_cmp_eq_u32 s48, 0'); b.s('s_cbranch_scc0 L_a_i1')
    q_reads(b, P_+4)
    A.start()
    b.fence()
    b.label('L_a_i1')
    A.intervals(L)
    b.s('s_add_u32 s41, s41, 1')
    A.c0()
    kvo = lambda: loader_offset_ops(b, True, LB, 2048, 8192, False, T0)[:5]
    usesAF = any(m >> 3 & 1 for m in cfg.masks)
    if usesAF:
        b.s('s_cmp_eq_u32 s40, 4'); b.s('s_cbranch_scc1 L_att_AF')
    sv = b.save()
    b.barrier()
    for f in A.c1(): f()
    b.wait_lgkm(0)
    if not cfg.allfast:
        b.s('s_add_u32 s39, s41, 2'); b.s('s_cmp_eq_u32 s39, s40'); b.s('s_cbranch_scc1 L_att_AU')
        sv3 = b.save()
        b.barrier()
        L.q = []
        for f in A.c2a(): f()
        L.begin(0, True); L.set_ost()
        L.ub('s83', 's41', 3); b.s('s_lshl_b32 s83, s83, 11'); b.s('s_add_u32 s83, s83, s72')
        b.s('s_cmp_eq_u32 s35, 0'); b.s('s_cselect_b32 s37, 1, 0')
        b.barrier()
        fi = {3: A.c2b() + kvo()}
        if cfg.burst:
            for pi in range(6): fi[4+pi] = A.part(pi)
            fi[10] = [lambda: None]*30 + sum([A.store(k, L) for k in range(6)], [])
        else:
            for pi in range(6): fi[4+pi] = A.part(pi) + (A.store(pi-1, L) if pi else [])
            fi[10] = A.store(5, L)
        r_loader(3, 11, {9: [pollx]}, fi, R_OWNS)
        assert L.items() == nj, (L.q, qj)
        b.fence()
        b.s('s_branch L_att_Rj')
        b.label('L_att_AU'); b.restore(sv3)
    L.begin(0, True); L.set_ost()
    b.barrier()
    L.q = []
    fi = {2: A.c2a() + kvo(), 3: A.c2b()}
    if cfg.burst:
        for k in range(3): fi[4+k] = A.part(2*k) + A.part(2*k+1)
        fi[6] = fi[6] + sum([A.store(k, L) for k in range(6)], [])
    else:
        for k in range(3): fi[4+k] = A.part(2*k) + A.store(2*k, L) + A.part(2*k+1) + A.store(2*k+1, L)
    ex = {9: [pollx]}; ex.setdefault(cfg.sigat-1, []).append(lambda: L.need({'st'})); ex.setdefault(cfg.sigat, []).append(lambda: L.signal(VP))
    r_loader(2, 11, ex, fi)
    got = L.items(); assert got == nj[len(nj)-len(got):], (L.q, qj)
    b.fence()
    b.s('s_branch L_att_Rj')
    if usesAF:
        b.label('L_att_AF'); b.restore(sv)
        L.begin(0, True); L.set_ost()
        b.barrier()
        L.q = []
        L.setfill(A.c1(), 14); L.g(3, True, ('g', 3)); L.g(4, True, ('g', 4)); L.flush()
        b.wait_lgkm(0); b.barrier()
        fi = {2: A.c2a() + kvo() + A.c2b()}
        if cfg.burst:
            for k in range(3): fi[3+k] = A.part(2*k) + A.part(2*k+1)
            fi[5] = fi[5] + sum([A.store(k, L) for k in range(6)], [])
        else:
            for k in range(3): fi[3+k] = A.part(2*k) + A.store(2*k, L) + A.part(2*k+1) + A.store(2*k+1, L)
        f_loader(2, FJ, {FJ-2: [lambda: L.need({'st'})], FJ-1: [lambda: L.signal(VP)]}, fi)
        assert L.items() == [n for _, n in qFj]
        b.fence()
        b.s('s_branch L_att_Fj')
    b.label('L_att_RG'); b.reset()
    b.s('s_cmp_eq_u32 s40, 7'); b.s('s_cbranch_scc1 L_att_RP')
    b.s('s_cmp_eq_u32 s40, 3'); b.s('s_cbranch_scc1 L_att_RF')
    L.q = list(qj)
    tail(11, {}, 'r', {11: [lambda: L.begin(1, False)]}, 12)
    L.need({'p'})
    q12 = list(L.q)
    b.emit(f'v_cmp_ne_u64 vcc, s[84:85], {vr(VP,2)}', 'valu', (), R(VP, 2))
    b.s('s_cbranch_vccnz L_att_RRl')
    tail(12, r_to_r(12), 'r')
    assert L.q == qR, (L.q, qR)
    b.s('s_branch L_att_R')
    b.label('L_att_RRl'); L.q = list(q12)
    tail(12, r_to_r(14), 'r', {12: [pollx], 14: [lambda: (L.need({'p'}), L.check(VP, None))]})
    assert L.q == qR, (L.q, qR)
    b.s('s_branch L_att_R')
    b.label('L_att_RF'); L.q = list(qj)
    tail(11, R_TO_F, 'f', {11: [lambda: L.begin(1, False)], 12: [lambda: (L.need({'p'}), L.check(VP, None))]})
    assert L.q == qF, (L.q, qF)
    b.s('s_branch L_att_F')
    b.label('L_att_RP'); L.q = list(qj)
    def pdma(i):
        for hlf, n in ((0, 4), (1, 2)):
            b.s(f's_add_u32 m0, s79, {PLDS[i] + hlf*4096}'); b.s(f's_add_u32 s39, s58, {i*PT + hlf*4096}')
            for k in range(n): b.dma(A.VO, 20, 's39', k*1024, ' sc1')
        L.q.append((('n', i), 6))
    def p11():
        b.v('v_lshlrev_b32', A.VO, '4', LANE)
        L.ub('s58', 's40'); b.s(f's_mul_i32 s58, s58, {32*3*PT}'); b.s('s_add_u32 s58, s58, s78')
    tail(11, R_TO_P, 'p', {11: [p11], 12: [lambda: (L.need({'p'}), L.check(VP, None))]})
    b.s('s_endpgm')
    b.reset()
    b.label('L_gem')
    if cfg.prio & 1: b.s('s_setprio 2')
    if cfg.ivw is not None:
        b.s(f's_mov_b32 s86, {(-cfg.ivw) & 0xffffffff}'); b.v('v_mov_b32', 247, '0')
        ob = b.barrier; cnt = [0]
        def nb():
            ob(); cnt[0] += 1
            b.raw('s_cmp_lt_u32 s86, 64'); b.raw(f's_cbranch_scc0 L_iv{cnt[0]}')
            b.raw('s_memtime s[90:91]'); b.raw('s_mov_b32 m0, s86'); b.raw('s_waitcnt lgkmcnt(0)'); b.raw('v_writelane_b32 v247, s90, m0')
            b.raw(f'L_iv{cnt[0]}:'); b.raw('s_add_u32 s86, s86, 1')
        b.barrier = nb
    M = Loader(b, cfg, GB, GT)
    b.s('s_mov_b32 s77, 0')
    gemm_setup(b)
    loader_offsets(b, 2, GB, 2048, 8192, False, GT)
    b.v('v_and_b32', GT, '15', LANE); b.v('v_mul_u32_u24', VQW, str(QROW), GT)
    b.v('v_lshrrev_b32', GT, '4', LANE); b.v('v_lshlrev_b32', GT, '3', GT)
    b.s('s_lshl_b32 s39, s34, 6'); b.s(f's_add_u32 s39, s39, {XB}'); b.v('v_add3_u32', VQW, VQW, GT, 's39')
    b.s('s_add_u32 s39, s2, s34'); b.s('s_cmp_lg_u32 s39, 0'); b.s('s_cbranch_scc1 L_nononce')
    b.raw('s_memrealtime s[50:51]'); b.raw('s_waitcnt lgkmcnt(0)'); b.s('s_or_b32 s50, s50, 1')
    b.v('v_mov_b32', GF, 's50'); b.v('v_mov_b32', GF+1, 's51')
    b.s('s_mov_b64 exec, 1')
    b.emit(f'buffer_store_dwordx2 {vr(GF,2)}, off, s[64:67], 0 sc1', 'vmem', (), R(GF, 2))
    b.s('s_mov_b64 exec, -1')
    b.label('L_nononce')
    b.barrier()
    b.fence()
    b.label('L_gem_F')
    xq = [(None, cfg.kvpf)] if cfg.kvpf else []
    qf = [(('g', i), 7) for i in (1, 2)] + xq; qg = [(('g', i), 5) for i in range(1, 5)] + xq
    M.q = list(qf)
    g_main(b, cfg, True, M)
    b.s('s_branch L_gem_done')
    b.fence()
    b.label('L_gem_R')
    M.q = list(qg)
    g_main(b, cfg, False, M)
    b.label('L_gem_done')
    phase_stamp(b, cfg)
    sv = b.save()
    b.s('s_cmp_lg_u32 s40, 3'); b.s('s_cbranch_scc1 L_gem_nsw')
    for h in range(2): b.v('v_lshlrev_b32', VXB+h, '4', LANE)
    b.v('v_add_u32', VXB+1, '1024', VXB+1)
    b.label('L_gem_nsw'); b.restore(sv)
    b.s('s_cmp_ge_u32 s40, 4'); b.s('s_cbranch_scc1 L_gem_ot')
    b.s('s_bitcmp1_b32 s32, s40'); b.s('s_cbranch_scc0 L_gem_qg')
    b.s('s_add_u32 s40, s40, 1')
    g_tail(b, q_ops(b)); b.fence()
    b.s('s_branch L_gem_a')
    b.label('L_gem_qg'); b.restore(sv)
    b.s('s_add_u32 s40, s40, 1'); b.s('s_cmp_eq_u32 s40, 4'); b.s('s_cbranch_scc1 L_gem_qf')
    g_fused(b, q_ops(b), False)
    b.label('L_gem_qf'); b.restore(sv)
    g_fused(b, q_ops(b), True)
    b.label('L_gem_ot'); b.restore(sv)
    b.s('s_cmp_eq_u32 s40, 7'); b.s('s_cbranch_scc1 L_gem_fin')
    def pk_ops(qb, base):
        pk = base(qb); o = []
        for nt in range(2):
            a = acc(nt, qb)
            o += [lambda a=a, nt=nt: b.v('v_cvt_pk_bf16_f32', pk+2*nt, a, a+1), lambda a=a, nt=nt: b.v('v_cvt_pk_bf16_f32', pk+2*nt+1, a+2, a+3)]
        return o
    inpl = lambda qb: acc(0, qb)
    def pstore(qb): b.store(4, inpl(qb), VXB, 20, 's50' if qb < 4 else 's51', (qb % 4)*1024, cfg.opol)
    def paddr():
        M.ub('s39', 's40'); b.s(f's_mul_i32 s50, s39, {32*3*PT}'); b.s('s_add_u32 s50, s50, s78')
        b.s('s_lshl_b32 s83, s39, 12'); b.s('s_add_u32 s83, s83, s73')
        b.s('s_and_b32 s39, s40, 3'); b.s(f's_mul_i32 s51, s39, {PT}'); b.s('s_add_u32 s50, s50, s51'); b.s('s_add_u32 s51, s50, 4096')
        b.s('s_lshl_b32 s39, s39, 3'); b.s('s_add_u32 s83, s83, s39')
    paddr()
    b.s('s_bitcmp1_b32 s32, s40'); b.s('s_cbranch_scc1 L_gem_pa')
    if cfg.pdirect:
        b.s('s_cmp_eq_u32 s35, 4'); b.s('s_cselect_b32 s37, 1, 0'); b.s('s_add_u32 s40, s40, 1')
        for f in gemm_addr_ops(b, g_base(0, False)): f()
        po = [pk_ops(qb, inpl) + [lambda qb=qb: pstore(qb)] for qb in range(6)]
        x1 = {7+k: [po[0][k]] for k in range(5)}
        x0 = {}
        for qb in range(2, 6):
            x0[2*(qb-2)] = po[qb][:2]; x0[2*(qb-2)+1] = po[qb][2:]
        def mid():
            for f in po[1]: f()
        g_interval(b, RES, False, False, gemm_addr_ops(b, g_base(1, False)), lambda: None, zero=True, x1=x1, x0=x0, mid=mid)
        b.s('s_branch L_gem_R1')
    else:
        b.s('s_add_u32 s40, s40, 1'); b.s(f's_add_u32 s39, s79, {XB}')
        b.v('v_add_u32', GT, 's39', VXB)
        g_fused(b, sum([pk_ops(qb, inpl) + [lambda qb=qb: b.dsw('ds_write_b128', GT, inpl(qb), 4, qb*1024)] for qb in range(6)], []), False)
    b.label('L_gem_pa'); b.restore(sv)
    g_tail(b, sum([pk_ops(qb, inpl) for qb in range(6)], []))
    b.s('s_mov_b32 s77, 1'); b.s('s_add_u32 s40, s40, 1')
    b.fence()
    b.label('L_gem_a'); b.reset()
    M.q = []
    M.set_a()
    b.barrier()
    def a_loader(t0, t1, nxt):
        for t in range(t0, t1):
            if t == 1: M.nonce_load(GF)
            if t == 3: M.poll(GF, 0)
            for p in A_OWN.get(t, []): M.t(p, ('a', p))
            if t == 1 and cfg.pf:
                M.ub('s39', 's40'); b.s('s_mul_i32 s39, s39, 786432'); b.s('s_add_u32 s39, s39, s57')
                b.s('s_cmp_ge_u32 s40, 4'); b.s(f's_cselect_b32 s39, {OOB}, s39')
                b.load1(DUM, GB+3, 4, 's39'); M.other(1)
            if t == 2 and cfg.wl2 is not None:
                b.s('s_add_u32 s39, s41, s48'); b.s(f's_cmp_eq_u32 s39, {cfg.wl2}'); b.s(f's_cselect_b32 s39, s87, {OOB}')
                b.load1(DUM, GB+3, 24, 's39'); b.s('s_add_u32 s39, s39, 32768'); b.load1(DUM, GB+3, 24, 's39'); M.other(2)
            if t == 4: M.nonce_get(GF)
            if t == 5: M.begin(0, False)
            if t == cfg.pst and nxt == 'R':
                b.s('s_cmp_eq_u32 s77, 0'); b.s('s_cbranch_scc1 L_gem_nops')
                for qb in range(6): pstore(qb)
                b.s('s_mov_b32 s77, 0'); b.s('s_cmp_eq_u32 s35, 4'); b.s('s_cselect_b32 s37, 1, 0')
                b.label('L_gem_nops')
            if t == 6: M.check(GF, 0)
            if nxt:
                for i in (A_TO_R if nxt == 'R' else A_TO_F).get(t, []): M.g(i, nxt == 'F', ('g', i))
            if t == 8 and cfg.kvpf:
                M.ub('s39', 's41', 1); b.s('s_lshl_b32 s39, s39, 24'); b.s('s_add_u32 s39, s39, s46')
                b.s('s_lshl_b32 s58, s34, 13'); b.s('s_add_u32 s39, s39, s58')
                b.s('s_cmp_ge_u32 s41, 3'); b.s(f's_cselect_b32 s39, {OOB}, s39')
                if not cfg.kvpfall: b.s('s_bitcmp1_b32 s32, s40'); b.s(f's_cselect_b32 s39, s39, {OOB}')
                for k in range(cfg.kvpf):
                    if k == 2: b.s('s_add_u32 s39, s39, 32768')
                    b.load1(DUM, GB+3, 8 if k % 2 == 0 else 12, 's39', cfg.kvpfpol)
                M.other(cfg.kvpf)
            M.need(cons_tags('a', 'a', t+1) if t < 8 else {('g', 0)})
            b.barrier()
    a_loader(1, 6, None)
    q5 = list(M.q)
    if usesAF: b.s('s_cmp_eq_u32 s40, 4'); b.s('s_cbranch_scc1 L_gem_AF')
    a_loader(6, 9, 'R')
    assert M.q == qg, (M.q, qg)
    phase_stamp(b, cfg)
    b.s('s_add_u32 s41, s41, 1')
    b.s('s_branch L_gem_R')
    if usesAF:
        b.label('L_gem_AF'); M.q = list(q5)
        a_loader(6, 9, 'F')
        assert M.q == qf, (M.q, qf)
        phase_stamp(b, cfg)
        b.s('s_add_u32 s41, s41, 1')
        b.s('s_branch L_gem_F')
    b.label('L_gem_fin'); b.restore(sv)
    ID = RES; PF_ = RES + 8; t = GT
    b.v('v_add_u32', VX, 's79', VXB); b.v('v_add_u32', VX+1, str(XB), VX)
    rd = [lambda p=p, qb=qb: b.dsr('ds_read_b128', PF_ + 12*qb + 4*p, 4, VX+1 if p == 0 else VX, (PLDS[p] if p else 0) + qb*1024) for qb in range(6) for p in range(3)]
    u = RES + 84
    idops = [lambda: b.v('v_bfe_u32', u, LANE, '2', '2'), lambda: b.v('v_lshrrev_b32', u+1, '4', LANE),
             lambda: b.emit(f'v_cmp_eq_u32 vcc, {vr(u)}, {vr(u+1)}', 'valu', (), {u, u+1}),
             lambda: b.v('v_and_b32', u, '1', LANE), lambda: b.v('v_lshlrev_b32', u, '4', u), lambda: b.v('v_mov_b32', u+1, '0x3f80'), lambda: b.v('v_lshlrev_b32', u, u, u+1),
             lambda: b.emit(f'v_cndmask_b32 {vr(u)}, 0, {vr(u)}, vcc', 'valu', {u}, {u}),
             lambda: b.v('v_and_b32', u+1, '2', LANE),
             lambda: b.emit(f'v_cmp_eq_u32 vcc, 0, {vr(u+1)}', 'valu', (), {u+1})]
    idops += [lambda k=k: b.v('v_mov_b32', ID+k, '0') for k in (0, 1, 4, 5)]
    idops += [lambda: b.emit(f'v_cndmask_b32 {vr(ID+2)}, 0, {vr(u)}, vcc', 'valu', {ID+2}, {u}), lambda: b.v('v_sub_u32', ID+3, u, ID+2)]
    g_block(b, 1, A1, {k: [rd.pop(0), idops.pop(0)] for k in range(12)})
    for f in idops: f()
    fill = rd + [lambda: b.v('v_and_b32', t, '15', LANE), lambda: b.v('v_lshlrev_b32', t, '12', t),
                 lambda: b.v('v_bfe_u32', t+1, LANE, '4', '1'), lambda: b.v('v_lshl_add_u32', t, t+1, '5', t),
                 lambda: b.v('v_lshrrev_b32', t+1, '5', LANE), lambda: b.v('v_lshl_add_u32', t, t+1, '4', t)]
    def epi(qb):
        pk = BF[0] + 4*qb
        return pk_ops(qb, lambda qb: BF[0] + 4*qb) + [lambda: b.swap16(pk, pk+2), lambda: b.swap16(pk+1, pk+3),
                lambda: (b.store(4, pk, t, 28, 's76', 0, cfg.outpol), b.s(f's_add_u32 s76, s76, {16*4096}'))]
    for qb in range(6):
        if qb >= 2: fill += epi(qb-2)
        for p in range(3):
            for nt in range(2):
                b.mfma16(acc(nt, qb), ID + (2 if nt == 0 else 0), PF_ + 12*qb + 4*p, acc(nt, qb))
                if fill: fill.pop(0)()
    for f in fill + epi(4) + epi(5): f()
    stamp_dump(b, cfg)
    b.label('L_k1_end')
    b.s('s_endpgm')
    b.label('L_code_end')
    for task in A.rare: A.rare_block(task)
    return b

def desc(name, nv):
    return f'''.p2align 6
.amdhsa_kernel {name}
  .amdhsa_next_free_vgpr {nv}
  .amdhsa_next_free_sgpr 102
  .amdhsa_accum_offset {nv}
  .amdhsa_group_segment_fixed_size 0
  .amdhsa_kernarg_size 104
  .amdhsa_user_sgpr_count 2
  .amdhsa_user_sgpr_kernarg_segment_ptr 1
  .amdhsa_system_sgpr_workgroup_id_x 1
.end_amdhsa_kernel
'''
def build(path, cfg, which=None):
    B.nodma = cfg.nodma; B.skel = cfg.skel; G['cfg'] = cfg; B.guard = False
    a = k1(cfg)
    s = '; @launch grid=(256,1,1) block=(512,1,1) lds=163840\n.amdgcn_target "amdgcn-amd-amdhsa--gfx950"\n.text\n' + a.text()
    s += '.section .rodata,"a"\n' + desc(NAME + '_kernel', 256)
    open(path, 'w').write(s)
    return a, a
def mk(path, which=('k1', 'k2'), **kw):
    cfg = Cfg()
    for k, v in kw.items():
        assert hasattr(cfg, k), k
        setattr(cfg, k, v)
    return build(path, cfg, which)

if __name__ == '__main__':
    a, c = mk('v10.s')
    print('k1 lines', len(a.lines), 'nops', a.nnop, 'k2 lines', len(c.lines), 'nops', c.nnop)
```

```python
import math, struct, sys
from asmb import *
NAME = 'concat_heads__mha_block_cached__gqa_block_cached__near_ridge'
RING = 135168; XB = RING
HS = 16896; AS = 33792; GS = 22528; WG = 8448
QROW = 272; STAT = XB + 24576
def f2u(x): return struct.unpack('<I', struct.pack('<f', x))[0]
CEXP = math.log2(math.e) / math.sqrt(128.0)
LANE = 255; DUM = 254
OOB = 0x40000000

class Cfg:
    kvpol = ' nt'; opol = ' sc1'; xpol = ' sc1'; outpol = ''; pf = True; pf0 = 2; stamps = False; stagger = True
    wopf = 3; won = (0, 14, 3, 17, 7, 21, 10, 24); nodma = False; skel = False; codepf = True; nosig = False
    ivw = None; prio = 1; masks = (0x17, 0x2e); dropst = 0; allfast = True; pdirect = True; burst = True; hstamp = False; won1 = (8, 3, 7, 2, 6, 1, 5, 0); chain = False; wpol = ''; kvpf = 1; kvpfpol = ''; kvpfall = False; fast = False; pst = 7; sigat = 9; rrc = 12; wl2 = None

PB = 26 << 20; FB = 48 << 20; PT = 24576
G = {}
def srd(b, d, lo, size):
    b.s(f's_mov_b32 s{d}, s{lo}'); b.s(f's_mov_b32 s{d+1}, s{lo+1}'); b.s(f's_mov_b32 s{d+2}, {size}'); b.s(f's_mov_b32 s{d+3}, 0x20000')
def lane_id(b, d):
    b.v('v_mbcnt_lo_u32_b32', d, '-1', '0'); b.v('v_mbcnt_hi_u32_b32', d, '-1', d)

XO = 0; WO1 = 12288; WO0 = 12288 + WG
GMAP = [0,1,2,3,4,5,0,1,2,3,0,1,2,3,4,5]
HMAP = [p % 8 for p in range(16)]
def g_base(i, full, cls=0): return (i % 4)*AS if full else GMAP[i]*GS
TILES = [('K',0)] + sum([[('K',j+1), ('V',j)] for j in range(7)], []) + [('V',7)]
def t_base(p): return HMAP[p]*HS
KPOS = {j: TILES.index(('K', j)) for j in range(8)}
VPOS = {j: TILES.index(('V', j)) for j in range(8)}
def t_cons(p): k, j = TILES[p]; return j if k == 'K' else j + 1

def loader_offset_ops(b, kv, base, xstride, wstride, operm, t):
    lane = LANE
    vKV, vX, vW, vPF = base, base+1, base+2, base+3
    t0, t1 = t, t+1
    o = []
    def V(*a): o.append(lambda: b.v(*a))
    V('v_and_b32', t0, '15', lane); V('v_lshlrev_b32', t0, '4', t0)
    V('v_lshrrev_b32', t1, '4', lane)
    if kv:
        V('v_lshl_add_u32', vKV, t1, '3', 's34'); V('v_lshl_add_u32', vKV, vKV, '8', t0)
    sa, sb = (4, 3) if operm else (2, 4)
    V('v_and_b32', vW, '1', t1); V('v_lshl_add_u32', vW, vW, str(sa), 's34')
    V('v_lshrrev_b32', t1, '1', t1); V('v_lshl_add_u32', vW, t1, str(sb), vW)
    V('v_lshl_add_u32', vW, vW, str(int(math.log2(wstride))), t0)
    if operm:
        V('v_lshl_add_u32', vX, lane, '4', 's53')
    else:
        V('v_lshrrev_b32', t0, '3', lane); V('v_lshl_add_u32', t0, 's34', '3', t0)
        V('v_lshrrev_b32', t1, '1', t0); V('v_xor_b32', t1, t1, lane); V('v_and_b32', t1, '7', t1); V('v_lshlrev_b32', t1, '4', t1)
        V('v_lshl_add_u32', vX, t0, str(int(math.log2(xstride))), t1)
    if kv == 2: V('v_lshlrev_b32', vPF, '7', lane)
    return o
def loader_offsets(b, *a):
    for f in loader_offset_ops(b, *a): f()


class Loader:
    def __init__(self, b, cfg, base, t): self.b, self.cfg, self.base, self.tmp, self.q, self.fill, self.per, self.n = b, cfg, base, t, [], [], 0, 0
    def lab(self, s): self.n += 1; return f'L_{s}{self.base}_{self.n}'
    def setfill(self, ops, ndma):
        self.fill = list(ops); self.per = -(-len(self.fill) // max(ndma, 1))
    def _f(self):
        for _ in range(self.per):
            if self.fill: self.fill.pop(0)()
    def flush(self):
        while self.fill: self.fill.pop(0)()
    def g(self, i, full, tag):
        b = self.b; vX, vW = self.base+1, self.base+2; lds = g_base(i, full)
        b.s(f's_mul_i32 s58, s42, {i}'); b.s('s_add_u32 s58, s58, s36')
        b.s(f's_mul_i32 s59, s60, {i}'); b.s('s_add_u32 s59, s59, s45')
        for z in range(3):
            b.s(f's_add_u32 m0, s53, {lds + XO + z*4096}')
            if z: b.s('s_add_u32 s58, s58, s43')
            b.dma(vX, 4, 's58', 0, self.cfg.xpol); self.q.append((tag, 1)); self._f()
        for h in (0, 1):
            if h: b.s('s_add_u32 s59, s59, s61')
            if h == 0 and not full: continue
            for z in (0, 1):
                b.s(f's_add_u32 m0, s52, {lds + (WO1 if h else WO0) + z*4224}')
                if z: b.s('s_add_u32 s39, s59, s62')
                b.dma(vW, 16, 's39' if z else 's59', 0, self.cfg.wpol); self.q.append((tag, 1)); self._f()
        self.norm()
    def t(self, p, tag):
        b = self.b; k, j = TILES[p]; srd_ = 8 if k == 'K' else 12; lds = t_base(p); pol = self.cfg.kvpol
        for kh in range(2):
            b.s(f's_add_u32 m0, s52, {lds + kh*8448}'); b.s(f's_add_u32 s39, s38, {j*16384 + kh*8192}')
            b.dma(self.base, srd_, 's39', 0, pol)
            b.s('s_add_u32 m0, m0, 3200')
            b.dma(self.base, srd_, 's39', 1024, pol)
        self.q.append((tag, 4))
    def norm(self):
        q = []
        for t, n in self.q:
            if q and q[-1][0] == t: q[-1] = (t, q[-1][1] + n)
            else: q.append((t, n))
        self.q = q
    def items(self):
        t = Loader(self.b, self.cfg, 0, 0); t.q = [x for x in self.q if isinstance(x[0], tuple)]; t.norm(); return [n for _, n in t.q]
    def other(self, n): self.q.append((None, n))
    def need(self, tags):
        last = -1
        for i, (t, n) in enumerate(self.q):
            if t in tags: last = i
        if last >= 0:
            self.q = self.q[last+1:]
            self.b.vm(min(63, sum(n for _, n in self.q)))
    def ub(self, d, unit_sgpr, plus=0):
        self.b.s(f's_add_u32 {d}, {unit_sgpr}, s33')
        if plus: self.b.s(f's_add_u32 {d}, {d}, {plus & 3}')
        self.b.s(f's_and_b32 {d}, {d}, 3')
    def begin(self, plus, recompute):
        b = self.b; lo, le = self.lab('bo'), self.lab('be')
        b.fence()
        b.s(f's_cmp_ge_u32 s40, {4 - plus}'); b.s(f's_cbranch_scc1 {lo}')
        if recompute: loader_offsets(b, False, self.base, 2048, 8192, False, self.tmp)
        b.s(f's_branch {le}')
        b.label(lo)
        for k in range(3): b.s(f's_mov_b32 s{4+k}, s{20+k}')
        for k in range(2): b.s(f's_mov_b32 s{16+k}, s{24+k}')
        for r, v in ((42, 12288), (43, 4096), (60, 64*2048), (61, 32*2048), (62, 4*2048), (63, 3145728), (44, 's74'), (45, 's75')): b.s(f's_mov_b32 s{r}, {v}')
        loader_offsets(b, False, self.base, 128, 2048, True, self.tmp)
        b.label(le)
        self.ub('s36', 's40', plus); b.s('s_mul_i32 s36, s36, s63'); b.s('s_add_u32 s36, s36, s44')
        b.fence()
    def set_a(self):
        self.ub('s38', 's41'); self.b.s('s_lshl_b32 s38, s38, 24'); self.b.s('s_add_u32 s38, s38, s46')
    def set_ost(self):
        self.ub('s54', 's41', 3); self.b.s('s_mul_i32 s54, s54, 3145728'); self.b.s('s_add_u32 s54, s54, s47')
        if self.cfg.dropst: self.b.s(f's_cmp_le_u32 s41, {self.cfg.dropst}'); self.b.s(f's_cselect_b32 s54, {OOB}, s54')
    def nonce_load(self, v):
        self.b.emit(f'buffer_load_dwordx2 {vr(v+4,2)}, off, s[64:67], 0 sc1', 'vmem', R(v+4, 2)); self.q.append(('n', 1))
    def nonce_get(self, v):
        b = self.b; l0, l1 = self.lab('nc'), self.lab('nk')
        assert all(x[0] != 'n' for x in self.q)
        b.s('s_mov_b32 s49, 0x40000')
        b.label(l0)
        b.rfl(84, v+4); b.rfl(85, v+5); b.nop(1)
        b.s('s_cmp_lg_u32 s84, 0'); b.s(f's_cbranch_scc1 {l1}')
        b.s('s_sleep 4')
        b.emit(f'buffer_load_dwordx2 {vr(v+4,2)}, off, s[64:67], 0 sc1', 'vmem', R(v+4, 2)); b.vm(0)
        b.s('s_sub_u32 s49, s49, 1'); b.s('s_cmp_lg_u32 s49, 0'); b.s(f's_cbranch_scc1 {l0}')
        b.label(l1)
    def poll(self, v, plus):
        b = self.b
        self.ub('s82', 's40', plus); b.s('s_lshl_b32 s82, s82, 11'); b.s('s_add_u32 s82, s82, s72'); b.s('s_andn2_b32 s82, s82, 127')
        b.s(f's_cmp_lt_u32 s40, {4 - plus}'); b.s(f's_cselect_b32 s82, {OOB}, s82')
        if plus:
            b.s('s_bitcmp1_b32 s32, s40'); b.s(f's_cselect_b32 s82, {OOB}, s82')
            self.ub('s39', 's40'); b.s('s_lshl_b32 s39, s39, 12'); b.s('s_add_u32 s39, s39, s73')
            b.s('s_cmp_eq_u32 s40, 7'); b.s('s_cselect_b32 s82, s39, s82'); b.s('s_cselect_b32 s39, 2, 7')
            b.v('v_min_u32', v+2, 's39', LANE)
        else:
            b.v('v_min_u32', v+2, '7', LANE)
        b.v('v_lshlrev_b32', v+2, '3', v+2)
        b.emit(f'buffer_load_dwordx2 {vr(v,2)}, {vr(v+2)}, s[68:71], s82 offen sc1', 'vmem', R(v, 2), {v+2}); self.q.append(('p', 1))
    def check(self, v, plus):
        b = self.b; l0, l1 = self.lab('ck'), self.lab('ok')
        assert all(x[0] != 'p' for x in self.q)
        if self.cfg.nosig: return
        if plus is not None: b.s(f's_cmp_lt_u32 s40, {4 - plus}'); b.s(f's_cbranch_scc1 {l1}')
        b.s('s_mov_b32 s49, 0x40000')
        b.label(l0)
        b.emit(f'v_cmp_ne_u64 vcc, s[84:85], {vr(v,2)}', 'valu', (), R(v, 2))
        b.s(f's_cbranch_vccz {l1}')
        b.s('s_sleep 2')
        b.emit(f'buffer_load_dwordx2 {vr(v,2)}, {vr(v+2)}, s[68:71], s82 offen sc1', 'vmem', R(v, 2), {v+2}); b.vm(0)
        b.s('s_sub_u32 s49, s49, 1'); b.s('s_cmp_lg_u32 s49, 0'); b.s(f's_cbranch_scc1 {l0}')
        b.label(l1)
    def flag_store(self, v, soff):
        b = self.b
        b.v('v_mov_b32', v+4, 's84'); b.v('v_mov_b32', v+5, 's85')
        b.s('s_mov_b64 exec, 1')
        b.emit(f'buffer_store_dwordx2 {vr(v+4,2)}, off, s[68:71], {soff} sc1', 'vmem', (), R(v+4, 2))
        b.s('s_mov_b64 exec, -1')
    def signal(self, v):
        b = self.b
        assert all(x[0] != 'st' for x in self.q)
        self.ub('s39', 's41', 3); b.s('s_lshl_b32 s39, s39, 11'); b.s('s_add_u32 s39, s39, s72')
        b.s('s_cmp_eq_u32 s35, 0'); b.s(f's_cselect_b32 s39, s39, {OOB}')
        self.flag_store(v, 's39'); self.other(1)
    def psignal(self, v):
        b = self.b; l = self.lab('ps')
        b.s('s_cmp_eq_u32 s37, 0'); b.s(f's_cbranch_scc1 {l}')
        sv = b.save(); self.flag_store(v, 's83'); b.s('s_mov_b32 s37, 0'); b.restore(sv)
        b.label(l)

def cons_tags(ph, kind, t):
    if kind == 'g': return {(ph, t)}
    return {(ph, p) for p in range(16) if t_cons(p) == t}
R_OWN = {2: [5], 3: [6, 7], 4: [8], 5: [9], 6: [14], 7: [10], 8: [11], 9: [12], 10: [13], 11: [15]}
R_OWNP = {1: [5], 2: [6], 3: [7]}
R_TO_A = {11: [0], 12: [1], 13: [2, 3], 14: [4], 15: [5]}
R_TO_F = {12: [0], 13: [1], 15: [2]}
def r_to_r(c):
    d = {}
    for i in range(4): d.setdefault(max(c, 12 + i if i < 3 else 14), []).append(i)
    return d
F_TO_A = {13: [0, 1], 14: [2, 3], 15: [4, 5]}
F_TO_R = {13: [0], 14: [1, 2], 15: [3]}
A_OWN = {1: [8], 2: [9, 10], 3: [11, 12], 4: [13, 14], 5: [15]}
A_TO_R = {6: [0, 1], 7: [2], 8: [3, 4]}
A_TO_F = {6: [0], 7: [1], 8: [2]}
R_TO_P = {12: [0, 1], 13: [2]}
PLDS = [XB, 0, PT]
R_OWNS = {2: [], 3: [5, 6], 4: [7, 8]}
def prog_of(mask):
    p = []
    for gi in range(8):
        p.append('F' if gi % 4 == 0 else 'R')
        if mask >> gi & 1: p.append('A')
    return p
def verify_ring(cfg):
    for mask in cfg.masks:
        prog = prog_of(mask) + ['P']
        assert prog.count('A') == 4
        n = [gi + 1 for gi in range(8) if mask >> gi & 1]
        assert cfg.pdirect and n[0] <= 2 and n[1] <= 3 and all(n[k] >= k + 1 and n[k] <= k + 3 for k in range(4)), n
        live = {}; issued = set()
        def rng(ph, i):
            k = prog[ph]
            if k == 'F': return (g_base(i, True), g_base(i, True) + 29184)
            if k == 'R': return (g_base(i, False), g_base(i, False) + 20736)
            if k == 'P': return (PLDS[i], PLDS[i] + PT)
            return (t_base(i), t_base(i) + HS)
        def iss(ph, i):
            lo, hi = rng(ph, i)
            for t, (a, c) in live.items(): assert hi <= a or c <= lo, (prog, ph, i, t)
            assert (ph, i) not in issued, (prog, ph, i)
            live[(ph, i)] = (lo, hi); issued.add((ph, i))
        for i in range(3): iss(0, i)
        for ph, k in enumerate(prog[:-1]):
            nx = prog[ph+1]; pv = prog[ph-1] if ph else None
            for t in range(9 if k == 'A' else 16):
                if k == 'F':
                    own = [t+3] if t <= 12 else []
                    if pv == 'A' and t < 2: own = [[], [3, 4]][t]
                    nxt = {'A': F_TO_A, 'R': F_TO_R}[nx].get(t, [])
                elif k == 'R':
                    own = R_OWN.get(t, []) if t else ([] if pv == 'A' else [4])
                    if pv != 'A' and t in R_OWNP: own = R_OWNP[t]
                    nxt = {'A': R_TO_A, 'F': R_TO_F, 'R': r_to_r(cfg.rrc), 'P': R_TO_P}[nx].get(t, [])
                else:
                    own = A_OWN.get(t, []) if t else [6, 7]
                    nxt = {'R': A_TO_R, 'F': A_TO_F}[nx].get(t, [])
                for i in own: iss(ph, i)
                for i in nxt: iss(ph+1, i)
                for tg in cons_tags(ph, 'a' if k == 'A' else 'g', t):
                    assert tg in live, (prog, tg); del live[tg]
        assert len(live) == 3 and len(issued) == 195

ACC = 0; RES = 48; BF = [176, 200]; A1 = 224; VW = 232; VX = 233; VWB = 235; VXB = 236; VQW = 238; GB = 240; GT = 244
def acc(nt, qb): return ACC + 8*qb + 4*nt
def gemm_setup(b):
    lane = LANE; t0, t1, t2 = GT, GT+1, GT+2
    b.v('v_bfe_u32', t0, lane, '2', '3'); b.v('v_mul_u32_u24', VWB, '1056', t0)
    b.v('v_lshrrev_b32', t0, '5', lane); b.v('v_lshlrev_b32', t0, '9', t0); b.v('v_add_u32', VWB, VWB, t0)
    b.v('v_and_b32', t0, '3', lane); b.v('v_lshlrev_b32', t0, '3', t0)
    b.s('s_lshl_b32 s39, s34, 6'); b.v('v_add3_u32', VWB, VWB, t0, 's39')
    b.v('v_and_b32', t0, '15', lane); b.v('v_lshrrev_b32', t2, '1', t0); b.v('v_lshrrev_b32', t1, '4', lane); b.v('v_xor_b32', t2, t2, t1)
    b.v('v_lshlrev_b32', t0, '7', t0)
    for h in range(2):
        b.v('v_xor_b32', VXB+h, str(4*h), t2); b.v('v_lshlrev_b32', VXB+h, '4', VXB+h); b.v('v_add_u32', VXB+h, VXB+h, t0)
def gemm_addr_ops(b, base):
    base = str(base)
    return [lambda: b.v('v_add_u32', VX, base, VXB), lambda: b.v('v_add_u32', VX+1, base, VXB+1), lambda: b.v('v_add_u32', VW, base, VWB)]
def rdA(b, h, areg):
    return [lambda nt=nt, e=e: b.dsr('ds_read_b64_tr_b16', areg+4*nt+2*e, 2, VW, (WO1 if h else WO0) + e*256 + nt*32) for nt in range(2) for e in range(2)]
def rdB(b, h):
    return [lambda qb=qb: b.dsr('ds_read_b128', BF[h]+4*qb, 4, VX+h, XO + qb*2048) for qb in range(6)]
def g_block(b, h, areg, gaps, zero=False, prewait=None):
    k = 0
    for qb in range(6):
        for nt in range(2):
            if prewait and k in prewait: b.wait_lgkm(prewait[k])
            b.mfma16(acc(nt, qb), areg+4*nt, BF[h]+4*qb, None if zero else acc(nt, qb))
            for f in gaps.get(k, []): f()
            k += 1
def g_interval(b, a0, load_a0, first, nxt_ops, endfn, defer=False, zero=None, x1=None, x0=None, mid=None):
    B0, B1, Aa = rdB(b, 0), rdB(b, 1), rdA(b, 1, A1)
    A0 = rdA(b, 0, a0) if load_a0 else []
    if first:
        for f in A0 + B0: f()
        rest = B1 + Aa
        pw = None
    else:
        seq = A0 + B0 + B1
        g1 = {k: [seq[k]] for k in range(12)}
        for k, fs in (x1 or {}).items(): g1[k] = fs + g1[k]
        rest = seq[12:] + Aa
        g_block(b, 1, A1, g1, prewait=({0: 0} if defer else None))
        if mid: mid()
        ny = 12 - len(A0) - 6
        pw = {0: ny} if not load_a0 else {0: ny + 3, 6: 6 + ny}
    g0 = {k: [f] for k, f in enumerate(rest)}
    for k, fs in (x0 or {}).items(): g0.setdefault(k, []).extend(fs)
    k = len(rest)
    for f in nxt_ops:
        g0.setdefault(min(k, 10), []).append(f); k += 1
    def tail():
        if not defer: b.wait_lgkm(0)
        endfn(); b.barrier()
    g0.setdefault(10, []).append(tail)
    g_block(b, 0, a0, g0, zero=(first if zero is None else zero), prewait=pw)
def q_ops(b):
    def cv(qb, nt):
        a = acc(nt, qb)
        return [lambda z=z: b.v('v_mul_f32', a+z, 's56', a+z) for z in range(4)] + \
               [lambda: b.v('v_cvt_pk_bf16_f32', a, a, a+1), lambda: b.v('v_cvt_pk_bf16_f32', a+1, a+2, a+3),
                lambda: b.dsw('ds_write_b64', VQW, a, 2, qb*16*QROW + nt*32)]
    return sum([cv(qb, nt) for qb in range(6) for nt in range(2)], [])
def g_tail(b, ops):
    gaps = {}
    for k in range(5, 12): gaps[k] = [ops.pop(0), ops.pop(0)]
    g_block(b, 1, A1, gaps)
    for f in ops: f()
    b.wait_lgkm(0)
def g_fused(b, ops, full):
    for f in gemm_addr_ops(b, g_base(0, full)): f()
    x1 = {k: [ops.pop(0)] for k in range(6, 12)}
    def mid():
        for f in ops: f()
    g_interval(b, RES, full, False, gemm_addr_ops(b, g_base(1, full)), lambda: None, zero=True, x1=x1, mid=mid)
    b.s('s_branch L_gem_F1' if full else 's_branch L_gem_R1')
def g_main(b, cfg, full, M):
    for f in gemm_addr_ops(b, g_base(0, full)): f()
    for c in range(16):
        x0 = {7: [lambda: M.psignal(GF)]} if (c == 5 and not full) else None
        if c == 1: b.label('L_gem_F1' if full else 'L_gem_R1')
        g_interval(b, RES + 8*c, full, c == 0, gemm_addr_ops(b, g_base(c+1, full)) if c < 15 else [], (lambda c=c: M.need({('g', c+1)}) if c != 4 else b.vm(0)), x0=x0)
GF = 248

O_ = 0; Q_ = 96; KF = 144; VF = 176; S_ = 208; P_ = 224; NM = 232; L_ = 244
VKA = 247; VVA = 248; VKB = 249; VVB = 250; T0 = 251; VVH = 253
LB = S_ + 8
def Oreg(c, dt): return O_ + 32*c + 4*dt
def att_setup(b):
    lane = LANE; t0 = T0
    b.s('s_mul_i32 s39, s55, 8448')
    b.v('v_and_b32', t0, '7', lane); b.v('v_mul_u32_u24', VKB, '1056', t0)
    b.v('v_bfe_u32', t0, lane, '3', '1'); b.v('v_lshlrev_b32', t0, '8', t0); b.v('v_add_u32', VKB, VKB, t0)
    b.v('v_lshrrev_b32', t0, '4', lane); b.v('v_lshlrev_b32', t0, '4', t0); b.v('v_add3_u32', VKB, VKB, t0, 's39')
    b.v('v_bfe_u32', t0, lane, '2', '3'); b.v('v_mul_u32_u24', VVB, '1056', t0)
    b.v('v_lshrrev_b32', t0, '5', lane); b.v('v_lshlrev_b32', t0, '8', t0); b.v('v_add_u32', VVB, VVB, t0)
    b.s('s_lshl_b32 s50, s55, 7'); b.s('s_add_u32 s39, s39, s50')
    b.v('v_and_b32', t0, '3', lane); b.v('v_lshlrev_b32', t0, '3', t0); b.v('v_add3_u32', VVB, VVB, t0, 's39')
    b.s('s_lshl_b32 s77, s55, 8'); b.s('s_sub_u32 s77, 128, s77')
def q_addr(b, t0, t1):
    b.s('s_and_b32 s39, s34, 1'); b.s(f's_mul_i32 s39, s39, {48*QROW}'); b.s(f's_add_u32 s39, s39, {XB}')
    b.v('v_and_b32', t0, '15', LANE); b.v('v_mul_u32_u24', t0, str(QROW), t0)
    b.v('v_lshrrev_b32', t1, '4', LANE); b.v('v_lshlrev_b32', t1, '4', t1); b.v('v_add3_u32', t0, t0, t1, 's39')
def q_reads(b, t0):
    for c in range(3):
        for m in range(4): b.dsr('ds_read_b128', Q_+16*c+4*m, 4, t0, c*16*QROW + m*64)
def crossred(b, t, u, op='v_max_f32'):
    b.v('v_mov_b32', u, t); b.swap32(t, u); b.v(op, t, t, u)
    b.v('v_mov_b32', u, t); b.swap16(t, u); b.v(op, t, t, u)

class Att:
    def __init__(self, b, cfg):
        self.b, self.cfg, self.rare = b, cfg, []
        self.order = [(m, t) for t in range(2) for m in range(4)] if cfg.chain else [(m, t) for m in range(4) for t in range(2)]
    def qk_list(self, task):
        b = self.b; i, c = divmod(task, 3); buf = task & 1; out = []
        for m, t in self.order:
            if True:
                d = S_ + 8*buf + 4*t
                cc = d if m else (None if i == 0 else NM + 4*c)
                out.append(lambda d=d, t=t, m=m, cc=cc: b.mfma16(d, KF+16*t+4*m, Q_+16*c+4*m, cc))
        return out
    def pv_list(self, task):
        b = self.b; i, c = divmod(task, 3); buf = task & 1
        return [lambda dt=dt: b.mfma16(Oreg(c, dt), VF+4*dt, P_+4*buf, None if i == 0 else Oreg(c, dt)) for dt in range(8)]
    def kread(self, k):
        m, t = self.order[k]
        return lambda: self.b.dsr('ds_read_b128', KF+16*t+4*m, 4, VKA, t*512+m*64)
    def vread(self, k):
        dt, t = divmod(k, 2)
        return lambda: self.b.dsr('ds_read_b64_tr_b16', VF+4*dt+2*t, 2, VVA if dt < 4 else VVH, t*512+(dt % 4)*32)
    def pre(self, task):
        b = self.b; i, c = divmod(task, 3); S = S_ + 8*(task & 1); t, u = T0, T0+1
        o = [(4, lambda: b.v('v_max3_f32', t, S, S+1, S+2)), (4, lambda: b.v('v_max3_f32', u, S+3, S+4, S+5)),
             (4, lambda: b.v('v_max3_f32', t, S+6, S+7, t)), (4, lambda: b.v('v_max_f32', t, t, u))]
        if i > 0: o.append((4, lambda: b.emit(f'v_cmp_lt_f32 vcc, 4.0, {vr(t)}', 'valu', (), {t})))
        return o
    def main(self, task):
        b = self.b; i, c = divmod(task, 3); buf = task & 1
        S = S_ + 8*buf; P = P_ + 4*buf; t, u = T0, T0+1
        o = []
        if i == 0:
            o += [(4, lambda: b.v('v_mov_b32', u, t)), (8, lambda: b.swap32(t, u)), (4, lambda: b.v('v_max_f32', t, t, u)),
                  (4, lambda: b.v('v_mov_b32', u, t)), (8, lambda: b.swap16(t, u)), (4, lambda: b.v('v_max_f32', t, t, u))]
            for k in range(8): o.append((4, lambda k=k: b.v('v_sub_f32', S+k, S+k, t)))
            for k in range(4): o.append((4, lambda k=k: b.v('v_sub_f32', NM+4*c+k, '0', t)))
        else:
            def br():
                b.s(f's_cbranch_vccnz L_rare{task}'); b.label(f'L_back{task}'); self.rare.append(task)
            o.append((6, br))
        for k in range(8):
            o.append((8, lambda k=k: b.exp(S+k, S+k)))
            if k >= 1:
                kk = k - 1
                if i == 0 and kk == 0: o.append((4, lambda: b.v('v_mov_b32', L_+c, S)))
                else: o.append((4, lambda kk=kk: b.v('v_add_f32', L_+c, L_+c, S+kk)))
            if k >= 2 and k % 2 == 0:
                h = k//2 - 1
                o.append((4, lambda h=h: b.v('v_cvt_pk_bf16_f32', P+h, S+2*h, S+2*h+1)))
        o.append((4, lambda: b.v('v_add_f32', L_+c, L_+c, S+7)))
        o.append((4, lambda: b.v('v_cvt_pk_bf16_f32', P+3, S+6, S+7)))
        return o
    def addr_k(self, j): self.b.v('v_add_u32', VKA, str(t_base(KPOS[j])), VKB)
    def addr_v(self, j): self.b.v('v_add_u32', VVA, str(t_base(VPOS[j])), VVB); self.b.v('v_add_u32', VVH, 's77', VVA)
    def step(self, s, endfn=None):
        b = self.b; mf = []; prew = {}
        i, c = divmod(s, 3)
        if s + 1 <= 23: mf += self.qk_list(s + 1)
        if s - 1 >= 0: mf += self.pv_list(s - 1)
        n = len(mf)
        post = [[] for _ in range(n)]
        hasK = i + 1 <= 7
        if c == 0:
            off = 8 if s else 0
            for k in range(8): post[off + k].append(self.vread(k))
        elif c == 1:
            for k in range(8): post[k].append(self.vread(8 + k))
            if hasK:
                for k in range(8): post[8 + k].append(self.kread(k))
            prew[8] = 8; prew[12] = 4 if hasK else 0
        elif hasK:
            prew[0] = 4; prew[4] = 0
        sm = self.main(s) + (self.pre(s + 1) if s + 1 <= 23 else [])
        if B.skel: sm = []
        ecost = 20
        tot = sum(x for x, _ in sm) + 4*sum(len(p) for p in post) + 4*len(prew) + (ecost if endfn else 0)
        acc_ = 0; k = 0
        for j in range(n):
            if j in prew: b.wait_lgkm(prew[j]); acc_ += 4
            mf[j]()
            for f in post[j]: f(); acc_ += 4
            if endfn and j == n - 4:
                endfn(); acc_ += ecost
                continue
            tgt = tot * (j + 1) / n
            while k < len(sm) and (acc_ + sm[k][0]/2 <= tgt or j == n - 1):
                sm[k][1](); acc_ += sm[k][0]; k += 1
    def start(self):
        for f in self.qk_list(0): f()
        for _, f in self.pre(0): f()
    def intervals(self, L):
        b, cfg = self.b, self.cfg
        for j in range(1, 9):
            for s in range(3*(j-1), 3*j):
                if s == 23:
                    b.wait_lgkm(0)
                    b.s('s_cmp_eq_u32 s48, 0'); b.s('s_cbranch_scc1 L_a_noq1')
                    b.s('s_cmp_ge_u32 s41, 3'); b.s('s_cbranch_scc1 L_a_noq1')
                    sv = b.save(); q_addr(b, KF, KF+1); q_reads(b, KF); b.restore(sv)
                    b.label('L_a_noq1')
                def endfn(j=j):
                    b.wait_lgkm(0)
                    if j == 8: b.raw('s_waitcnt lgkmcnt(0)')
                    else:
                        self.addr_v(j)
                        if j + 1 <= 7: self.addr_k(j + 1)
                    L.need(cons_tags('a', 'a', j + 1))
                    b.barrier()
                self.step(s, endfn if s == 3*j - 1 else None)
    XA = KF; SA = KF+1; XP = KF+2; OS = KF+4; FO = KF+10; FT = KF+13; PK = VF; UP = S_; VO = P_+2
    def pack(self, c, mp):
        b = self.b; pk = KF + 16 + 4*((2*c+mp) % 4); r = []
        for h in range(2):
            o = Oreg(c, 4 + 2*mp + h)
            r += [lambda o=o, h=h: b.v('v_cvt_pk_bf16_f32', pk+2*h, o, o+1), lambda o=o, h=h: b.v('v_cvt_pk_bf16_f32', pk+2*h+1, o+2, o+3)]
        return r + [lambda: b.dsw('ds_write_b128', self.XA, pk, 4, (2*c+mp)*1024)]
    def c0(self):
        b = self.b; XA = self.XA
        b.s('s_mul_i32 s50, s34, 6144'); b.s(f's_add_u32 s50, s50, {XB}')
        fill = [lambda: b.v('v_lshl_add_u32', XA, LANE, '4', 's50')]
        fill += self.pack(0, 0) + self.pack(0, 1) + self.pack(1, 0) + self.pack(1, 1)
        pv = self.pv_list(23)
        for dt in (4, 5, 6, 7, 0, 1, 2, 3):
            pv[dt]()
            for _ in range(2): fill.pop(0)()
        for f in fill: f()
    def c1(self):
        b = self.b; SA = self.SA
        red = []
        for c in range(3):
            Lr = L_ + c; uu = S_ + c
            red.append([lambda Lr=Lr, uu=uu: b.v('v_mov_b32', uu, Lr), lambda Lr=Lr, uu=uu: b.swap32(Lr, uu), lambda Lr=Lr, uu=uu: b.v('v_add_f32', Lr, Lr, uu),
                        lambda Lr=Lr, uu=uu: b.v('v_mov_b32', uu, Lr), lambda Lr=Lr, uu=uu: b.swap16(Lr, uu), lambda Lr=Lr, uu=uu, c=c: b.v('v_add_f32', NM+4*c+1, Lr, uu)])
        o = [lambda: (b.s('s_mul_i32 s50, s34, 384'), b.s(f's_add_u32 s50, s50, {STAT}'))]
        o += self.pack(2, 0) + self.pack(2, 1)
        o += [lambda: b.v('v_and_b32', SA, '15', LANE), lambda: b.v('v_mad_u32_u24', SA, SA, '24', 's50')]
        o += [red[c][k] for k in range(6) for c in range(3)]
        o += [lambda c=c: b.dsw('ds_write_b64', SA, NM+4*c, 2, 8*c) for c in range(3)]
        o += [lambda: (b.s('s_mul_i32 s51, s77, 96'), b.s('s_mul_i32 s50, s77, 6')), lambda: b.v('v_add_u32', self.XP, 's51', self.XA), lambda: b.v('v_add_u32', SA, 's50', SA)]
        return o
    def c2a(self):
        b = self.b
        return [lambda c=c: b.dsr('ds_read_b64', self.OS+2*c, 2, self.SA, 8*c) for c in range(3)] + \
               [lambda k=k: b.dsr('ds_read_b128', self.PK+4*k, 4, self.XP, k*1024) for k in range(6)]
    def c2b(self):
        b = self.b; ops = []
        for c in range(3):
            nm, lo = NM+4*c, NM+4*c+1; on, ol = self.OS+2*c, self.OS+2*c+1; fo, ft = self.FO+c, self.FT+c; t = NM+4*c+2
            ops.append([lambda t=t, nm=nm, on=on: b.v('v_min_f32', t, nm, on), lambda fo=fo, t=t, nm=nm: b.v('v_sub_f32', fo, t, nm), lambda ft=ft, t=t, on=on: b.v('v_sub_f32', ft, t, on),
                        lambda fo=fo: b.exp(fo, fo), lambda ft=ft: b.exp(ft, ft), lambda t=t, fo=fo, lo=lo: b.v('v_mul_f32', t, fo, lo), lambda t=t, ft=ft, ol=ol: b.v('v_fma_f32', t, ft, ol, t),
                        lambda t=t: b.v('v_rcp_f32', t, t, kind='trans'), lambda fo=fo, t=t: b.v('v_mul_f32', fo, fo, t), lambda ft=ft, t=t: b.v('v_mul_f32', ft, ft, t)])
        return [ops[c][k] for k in range(10) for c in range(3)] + [lambda: b.v('v_lshlrev_b32', self.VO, '4', LANE), lambda: b.s('s_add_u32 s51, s54, 4096')]
    def part(self, pi):
        b = self.b; o_ = []
        def V(*a, **k): o_.append(lambda: b.v(*a, **k))
        c, mp = divmod(pi, 2); fo, ft = self.FO+c, self.FT+c
        pk = self.PK + 4*pi
        for h in range(2):
            o = Oreg(c, 2*mp + h); up = self.UP + 4*h
            V('v_lshlrev_b32', up, '16', pk+2*h); V('v_and_b32', up+1, '0xffff0000', pk+2*h)
            V('v_lshlrev_b32', up+2, '16', pk+2*h+1); V('v_and_b32', up+3, '0xffff0000', pk+2*h+1)
            for z in range(4): V('v_mul_f32', o+z, o+z, fo)
            for z in range(4): V('v_fmac_f32', o+z, up+z, ft, extra_r={o+z})
            V('v_cvt_pk_bf16_f32', pk+2*h, o, o+1); V('v_cvt_pk_bf16_f32', pk+2*h+1, o+2, o+3)
        return o_
    def store(self, pi, L):
        def f():
            self.b.store(4, self.PK + 4*pi, self.VO, 20, 's54' if pi < 4 else 's51', (pi % 4)*1024, self.cfg.opol); L.q.append(('st', 1))
        return [f]
    def rare_block(self, task):
        b = self.b; i, c = divmod(task, 3); S = S_ + 8*(task & 1); t, u = T0, T0+1
        b.reset(); b.label(f'L_rare{task}'); b.nop(2)
        crossred(b, t, u)
        b.v('v_max_f32', t, '0', t)
        b.v('v_sub_f32', u, '0', t); b.exp(u, u)
        for k in range(8): b.v('v_sub_f32', S+k, S+k, t)
        for k in range(4): b.v('v_sub_f32', NM+4*c+k, NM+4*c+k, t)
        b.v('v_mul_f32', L_+c, L_+c, u)
        for k in range(32): b.v('v_mul_f32', O_+32*c+k, O_+32*c+k, u)
        b.nop(2); b.s(f's_branch L_back{task}')

def phase_stamp(b, cfg):
    if cfg.stamps:
        b.raw('s_memrealtime s[90:91]'); b.raw('s_waitcnt lgkmcnt(0)'); b.raw('s_sub_u32 s90, s90, s88')
        b.raw('s_add_u32 s91, s40, s41'); b.raw('s_max_u32 s91, s91, 3'); b.raw('s_sub_u32 s91, s91, 3'); b.raw('s_mov_b32 m0, s91'); b.raw('s_nop 0'); b.raw('s_movreld_b32 s91, s90')
def stamp_dump(b, cfg):
    if cfg.stamps:
        b.raw('s_memrealtime s[90:91]'); b.raw('s_waitcnt lgkmcnt(0)'); b.raw('s_sub_u32 s99, s90, s88')
        b.raw('s_cmp_lg_u32 s35, 4'); b.raw('s_cbranch_scc1 L_k1_end')
        b.raw('s_lshl_b32 s91, s2, 5'); b.raw(f's_add_u32 s80, s20, {64 << 20}'); b.raw('s_addc_u32 s81, s21, 0')
        b.raw(f'v_mov_b32 v{GT+1}, s91')
        for k in range(8):
            b.raw(f'v_mov_b32 v{GT}, s{92+k}'); b.raw(f'global_store_dword v{GT+1}, v{GT}, s[80:81] offset:{4*k}')
    if cfg.ivw is not None:
        b.raw('s_cmp_lg_u32 s35, 4'); b.raw('s_cbranch_scc1 L_k1_end')
        b.raw(f's_add_u32 s80, s20, {66 << 20}'); b.raw('s_addc_u32 s81, s21, 0'); b.raw('s_lshl_b32 s91, s2, 8')
        b.raw(f'v_lshlrev_b32 v{GT}, 2, v{LANE}'); b.raw(f'v_add_u32 v{GT}, s91, v{GT}'); b.raw(f'global_store_dword v{GT}, v247, s[80:81]')

def k1(cfg):
    verify_ring(cfg)
    b = B()
    KN = NAME + '_kernel'
    b.raw(f'.globl {KN}'); b.raw('.p2align 8'); b.raw(f'.type {KN},@function'); b.label(KN)
    b.s('s_cmp_ge_u32 s2, 256'); b.s('s_cbranch_scc1 L_k1_end')
    if cfg.stamps or cfg.hstamp: b.raw('s_memrealtime s[88:89]')
    def hs(k):
        if cfg.hstamp: b.raw('s_memrealtime s[90:91]'); b.raw('s_waitcnt lgkmcnt(0)'); b.raw(f's_sub_u32 s90, s90, s88'); b.raw(f'v_mov_b32 v{10+k}, s90')
    b.s('s_and_b32 s60, s2, 7'); b.s('s_lshr_b32 s61, s2, 3'); b.s('s_lshr_b32 s62, s60, 2')
    b.s('s_mul_i32 s63, s62, 40'); b.s('s_add_u32 s64, s0, s63'); b.s('s_addc_u32 s65, s1, 0')
    b.s('s_load_dwordx4 s[68:71], s[64:65], 0'); b.s('s_load_dwordx4 s[72:75], s[64:65], 16')
    b.s('s_load_dwordx2 s[76:77], s[64:65], 32'); b.s('s_load_dwordx2 s[78:79], s[0:1], 96'); b.s('s_load_dwordx4 s[28:31], s[0:1], 80')
    if cfg.wopf == 3: b.s('s_load_dwordx2 s[92:93], s[0:1], 32'); b.s('s_load_dwordx2 s[96:97], s[0:1], 72')
    if cfg.codepf:
        b.s('s_and_b32 s39, s61, 15'); b.s('s_cmp_lg_u32 s39, 0'); b.s('s_cbranch_scc1 L_nocpf')
        b.raw('s_getpc_b64 s[82:83]')
        b.label('L_pc')
        b.v('v_lshlrev_b32', 2, '7', 0)
        b.v('v_min_u32', 2, 'L_code_end-L_pc-4', 2)
        b.v('v_mov_b32', 3, 's83')
        b.emit('v_add_co_u32 v2, vcc, s82, v2', 'valu', {2}, {2}); b.nop(2)
        b.emit('v_addc_co_u32 v3, vcc, 0, v3, vcc', 'valu', {3}, {3})
        b.emit(f'global_load_dword v{DUM}, v[2:3], off', 'vmem', {DUM}, {2, 3})
        b.label('L_nocpf')
    b.v('v_lshrrev_b32', 1, '6', 0); b.rfl(35, 1)
    lane_id(b, LANE)
    b.s('s_and_b32 s34, s35, 3'); b.s('s_lshr_b32 s55, s34, 1')
    b.s('s_and_b32 s33, s60, 3'); b.s('s_lshl_b32 s66, s33, 3'); b.s('s_and_b32 s67, s61, 7'); b.s('s_add_u32 s66, s66, s67')
    b.s('s_lshr_b32 s63, s61, 3')
    b.s('s_and_b32 s48, s63, 1' if cfg.stagger else 's_mov_b32 s48, 0')
    b.s('s_mov_b32 s40, 0'); b.s('s_mov_b32 s41, 0'); b.s('s_mov_b32 s37, 0')
    m4 = list(cfg.masks) * (4 // len(cfg.masks))
    b.s('s_lshl_b32 s39, s63, 3'); b.s(f's_lshr_b32 s32, {sum(m << 8*i for i, m in enumerate(m4)):#x}, s39'); b.s('s_and_b32 s32, s32, 255')
    b.s('s_mul_i32 s44, s63, 196608'); b.s('s_lshl_b32 s45, s66, 8')
    b.s('s_lshl_b32 s46, s63, 5'); b.s('s_add_u32 s46, s46, s66'); b.s('s_lshl_b32 s46, s46, 17')
    b.s('s_lshl_b32 s80, s62, 4'); b.s('s_add_u32 s80, s80, s63')
    b.s('s_lshl_b32 s47, s80, 6')
    b.s('s_lshl_b32 s39, s66, 1'); b.s('s_add_u32 s47, s47, s39'); b.s('s_add_u32 s47, s47, s55'); b.s('s_mul_i32 s47, s47, 12288')
    b.s('s_and_b32 s39, s34, 1'); b.s('s_mul_i32 s39, s39, 6144'); b.s('s_add_u32 s47, s47, s39')
    b.s('s_mul_i32 s52, s34, 1056'); b.s('s_lshl_b32 s53, s34, 10')
    b.s(f's_mov_b32 s56, {f2u(CEXP):#x}')
    b.s('s_mul_i32 s57, s67, 24576'); b.s('s_lshl_b32 s39, s34, 13'); b.s('s_add_u32 s57, s57, s39'); b.s('s_add_u32 s57, s57, s44')
    b.s('s_cmp_eq_u32 s34, 3'); b.s(f's_cselect_b32 s57, {OOB}, s57')
    hs(0)
    b.raw('s_waitcnt lgkmcnt(0)')
    srd(b, 4, 68, 16*96*1024*2); srd(b, 8, 70, 1 << 26); srd(b, 12, 72, 1 << 26); srd(b, 16, 74, 1 << 23)
    srd(b, 20, 78, FB); srd(b, 24, 76, 1 << 23)
    b.s(f's_add_u32 s68, s78, {FB}'); b.s('s_addc_u32 s69, s79, 0'); b.s('s_mov_b32 s70, 49152'); b.s('s_mov_b32 s71, 0x20000')
    b.s('s_mov_b32 s64, s30'); b.s('s_mov_b32 s65, s31')
    b.s(f's_mov_b32 s30, {16*96*2048*2}'); b.s('s_mov_b32 s31, 0x20000')
    b.s('s_lshl_b32 s72, s80, 9'); b.s('s_lshl_b32 s50, s33, 7'); b.s('s_add_u32 s72, s72, s50'); b.s('s_lshl_b32 s50, s67, 3'); b.s('s_add_u32 s72, s72, s50')
    b.s('s_lshl_b32 s81, s80, 3'); b.s('s_add_u32 s81, s81, s67')
    b.s('s_lshl_b32 s73, s81, 7'); b.s('s_add_u32 s73, s73, 16384')
    b.s(f's_mul_i32 s78, s81, {3*PT}'); b.s('s_mul_i32 s79, s34, 6144'); b.s('s_add_u32 s78, s78, s79'); b.s(f's_add_u32 s78, s78, {PB}')
    b.s('s_lshl_b32 s74, s80, 2'); b.s('s_add_u32 s74, s74, s33'); b.s(f's_mul_i32 s74, s74, {16*12288}')
    b.s('s_lshl_b32 s75, s33, 21'); b.s('s_lshl_b32 s50, s67, 8'); b.s('s_add_u32 s75, s75, s50')
    b.s('s_add_u32 s39, s33, 3'); b.s('s_and_b32 s39, s39, 3'); b.s('s_lshl_b32 s39, s39, 2'); b.s('s_add_u32 s39, s39, s63'); b.s(f's_mul_i32 s76, s39, {96*4096}')
    b.s('s_add_u32 s76, s76, s50'); b.s('s_lshl_b32 s50, s62, 11'); b.s('s_add_u32 s76, s76, s50'); b.s('s_lshl_b32 s50, s34, 6'); b.s('s_add_u32 s76, s76, s50')
    b.s('s_lshl_b32 s87, s33, 21'); b.s('s_lshl_b32 s50, s61, 16'); b.s('s_add_u32 s87, s87, s50'); b.s('s_lshl_b32 s50, s34, 13'); b.s('s_add_u32 s87, s87, s50')
    if cfg.pf0 == 2:
        b.s('s_cmp_eq_u32 s48, 0'); b.s('s_cbranch_scc1 L_nopf0')
        b.v('v_lshlrev_b32', 3, '7', LANE)
        b.s('s_mul_i32 s39, s33, 786432'); b.s('s_add_u32 s39, s39, s57'); b.s('s_sub_u32 s39, s39, 196608'); b.s('s_cmp_ge_u32 s35, 3'); b.s(f's_cselect_b32 s39, {OOB}, s39')
        b.load1(DUM, 3, 4, 's39')
        b.v('v_lshrrev_b32', 2, '1', LANE); b.v('v_lshlrev_b32', 2, '13', 2); b.v('v_and_b32', 4, '1', LANE); b.v('v_lshlrev_b32', 4, '7', 4); b.v('v_add_u32', 2, 2, 4)
        b.s('s_lshl_b32 s39, s35, 1'); b.s('s_lshr_b32 s50, s63, 1'); b.s('s_add_u32 s39, s39, s50'); b.s('s_lshl_b32 s39, s39, 18'); b.s('s_add_u32 s39, s39, s45')
        b.load1(DUM, 2, 16, 's39')
        b.s(f's_add_u32 s39, s39, {16 << 18}')
        b.load1(DUM, 2, 16, 's39')
        b.s('s_lshr_b32 s39, s35, 2'); b.s('s_add_u32 s39, s39, s33'); b.s('s_and_b32 s39, s39, 3'); b.s('s_mul_i32 s39, s39, 786432'); b.s('s_add_u32 s39, s39, s57')
        b.load1(DUM, 3, 4, 's39')
        b.label('L_nopf0')
    if cfg.wopf == 3:
        n = list(cfg.won) + list(cfg.won1 if cfg.won1 is not None else cfg.won); assert sum(n) <= 128
        base = [16*sum(n[:i]) for i in range(16)]
        b.s('s_mov_b32 s94, 0x800000'); b.s('s_mov_b32 s95, 0x20000'); b.s('s_mov_b32 s98, 0x800000'); b.s('s_mov_b32 s99, 0x20000')
        b.s('s_and_b32 s58, s63, 1'); b.s('s_lshl_b32 s58, s58, 3'); b.s('s_add_u32 s58, s58, s60')
        b.s('s_mov_b32 s50, 0')
        for i in range(16):
            b.s(f's_cmp_eq_u32 s58, {i}'); b.s(f's_cselect_b32 s50, {n[i] | base[i] << 8}, s50')
        b.s('s_lshr_b32 s51, s50, 8'); b.s('s_and_b32 s50, s50, 255')
        b.s('s_lshr_b32 s39, s63, 1'); b.s('s_lshl_b32 s39, s39, 3'); b.s('s_add_u32 s39, s39, s67')
        b.s('s_mul_i32 s39, s39, s50'); b.s('s_add_u32 s51, s51, s39'); b.s('s_add_u32 s51, s51, s35'); b.s('s_lshl_b32 s51, s51, 13')
        b.v('v_lshlrev_b32', 3, '7', LANE)
        for r in range((max(n) + 7) // 8):
            b.s(f's_add_u32 s39, s35, {8*r}'); b.s('s_cmp_lt_u32 s39, s50'); b.s('s_cbranch_scc0 L_wo_done')
            b.s(f's_add_u32 s39, s51, {r << 16}')
            b.load1(DUM, 3, 92, 's39')
            b.s('s_sub_u32 s39, s39, 0x800000')
            b.load1(DUM, 3, 96, 's39')
        b.label('L_wo_done')
    b.s('s_mov_b32 s66, 256'); b.s('s_mov_b32 s67, 0x20000')
    for r, v in ((42, 128), (43, 32*2048), (60, 64*8192), (61, 32*8192), (62, 8*8192), (63, 786432)): b.s(f's_mov_b32 s{r}, {v}')
    hs(1)
    b.s('s_cmp_ge_u32 s35, 4'); b.s('s_cbranch_scc1 L_gem')
    b.s('s_mov_b32 s48, 0')
    A = Att(b, cfg)
    L = Loader(b, cfg, LB, T0)
    VP = KF + 20
    b.fence()
    loader_offsets(b, True, LB, 2048, 8192, False, T0)
    L.begin(0, False)
    hs(2)
    for i in range(3): L.g(i, True, ('g', i))
    hs(3)
    att_setup(b)
    L.need({('g', 0)}); hs(4); b.barrier(); hs(5)
    if cfg.hstamp:
        b.raw('v_mov_b32 v16, s88'); b.raw('v_mov_b32 v17, 0')
        b.raw('s_cmp_lg_u32 s35, 0'); b.raw('s_cbranch_scc1 L_nohs')
        b.raw('s_lshl_b32 s91, s2, 5'); b.raw(f's_add_u32 s92, s20, {64 << 20}'); b.raw('s_addc_u32 s93, s21, 0')
        b.raw('v_mov_b32 v9, s91'); b.raw('global_store_dwordx4 v9, v[10:13], s[92:93]'); b.raw('global_store_dwordx4 v9, v[14:17], s[92:93] offset:16')
        b.label('L_nohs')
    b.fence()
    def f_loader(t0, t1, extra={}, fills={}):
        for t in range(t0, t1):
            L.setfill(fills.get(t, []), 7)
            L.g(t + 3, True, ('g', t+3))
            L.flush(); b.wait_lgkm(0)
            for f in extra.get(t, []): f()
            L.need({('g', t+1)} | ({'p', 'n'} if t == 12 else set())); b.barrier()
    def r_loader(t0, t1, extra={}, fills={}, over={}):
        for t in range(t0, t1):
            own = over[t] if t in over else R_OWN.get(t, [])
            L.setfill(fills.get(t, []), 5*len(own))
            for i in own: L.g(i, False, ('g', i))
            L.flush(); b.wait_lgkm(0)
            for f in extra.get(t, []): f()
            L.need({('g', t+1)}); b.barrier()
    def tail(t0, table, kind, pre={}, t1=16):
        for t in range(t0, t1):
            for f in pre.get(t, []): f()
            if t == 15 and t0 != 13:
                assert all(x[0] != ('g', 15) for x in L.q)
                L.psignal(VP)
            for i in table.get(t, []):
                if kind == 'a': L.t(i, ('n', i))
                elif kind == 'p': pdma(i)
                else: L.g(i, kind == 'f', ('n', i))
            L.need({('g', t+1)} if t < 15 else ({('n', 0)} if kind != 'p' else {('n', 2)})); b.barrier()
        if t1 < 16: return
        b.s('s_add_u32 s40, s40, 1')
        L.q = [((('a' if kind == 'a' else 'g'), t[1]) if isinstance(t, tuple) else t, n) for t, n in L.q]
    FJ = 9
    b.label('L_att_F')
    qF = list(L.q)
    f_loader(0, FJ)
    qFj = list(L.q)
    b.label('L_att_Fj')
    f_loader(FJ, 13, {10: [lambda: L.nonce_load(VP), lambda: L.poll(VP, 1)]})
    L.nonce_get(VP)
    q13 = list(L.q)
    b.s('s_bitcmp1_b32 s32, s40'); b.s('s_cbranch_scc0 L_att_FR')
    L.set_a(); tail(13, F_TO_A, 'a')
    qa = list(L.q)
    b.s('s_branch L_att_a')
    b.label('L_att_FR'); L.q = list(q13)
    L.begin(1, False); L.check(VP, 1)
    tail(13, F_TO_R, 'r')
    b.fence()
    b.label('L_att_R')
    qR = list(L.q)
    pollx = lambda: L.poll(VP, 1)
    L.g(4, False, ('g', 4)); L.need({('g', 1)}); b.barrier()
    q1 = list(L.q)
    if not cfg.pdirect: b.s('s_cmp_ge_u32 s40, 4'); b.s('s_cbranch_scc1 L_att_RO')
    def rq():
        if cfg.pdirect: b.s('s_cmp_lt_u32 s40, 4'); b.s('s_cbranch_scc0 L_att_norq')
        b.s('s_mov_b32 s48, 1')
        sv = b.save(); q_addr(b, T0, T0+1); q_reads(b, T0); b.wait_lgkm(0); b.restore(sv)
        b.label('L_att_norq')
    r_loader(1, 11, {1: [rq], 9: [pollx]}, {}, R_OWNP)
    qj = list(L.q); nj = L.items()
    b.fence()
    if not cfg.pdirect:
        b.s('s_branch L_att_Rj')
        b.label('L_att_RO'); L.q = list(q1)
        L.ub('s39', 's40', 3); b.s(f's_mul_i32 s54, s39, {32*3*PT}'); b.s('s_add_u32 s54, s54, s78')
        b.s('s_lshl_b32 s83, s39, 12'); b.s('s_add_u32 s83, s83, s73')
        b.s('s_sub_u32 s39, s40, 5'); b.s(f's_mul_i32 s51, s39, {PT}'); b.s('s_add_u32 s54, s54, s51'); b.s('s_add_u32 s51, s54, 4096')
        b.s('s_lshl_b32 s39, s39, 3'); b.s('s_add_u32 s83, s83, s39')
        b.s('s_cmp_eq_u32 s35, 0'); b.s('s_cselect_b32 s37, 1, 0')
        b.s(f's_add_u32 s50, s79, {XB}')
        b.v('v_lshlrev_b32', A.VO, '4', LANE); b.v('v_add_u32', A.XP, 's50', A.VO)
        fi = {1: A.c2a()[3:]}
        for k in range(3): fi[2+k] = A.store(2*k, L) + A.store(2*k+1, L)
        r_loader(1, 11, {7: [lambda: L.need({'st'})], 8: [lambda: L.psignal(VP)], 9: [pollx]}, fi, R_OWNP)
        assert L.q == qj, (L.q, qj)
        b.fence()
    b.label('L_att_Rj')
    L.g(15, False, ('g', 15))
    qj = list(L.q)
    b.s('s_bitcmp1_b32 s32, s40'); b.s('s_cbranch_scc0 L_att_RG')
    L.set_a(); tail(11, R_TO_A, 'a')
    assert L.q == qa, (L.q, qa)
    b.fence()
    b.label('L_att_a')
    A.addr_k(0)
    for k in range(8): A.kread(k)()
    b.s('s_cmp_eq_u32 s48, 0'); b.s('s_cbranch_scc1 L_a_c0a')
    sv = b.save()
    A.start(); b.fence()
    b.label('L_a_c0a'); b.restore(sv)
    L.t(6, ('a', 6)); L.t(7, ('a', 7))
    q_addr(b, P_+4, P_+5)
    b.raw('s_waitcnt lgkmcnt(0)'); b.lds = []
    A.addr_v(0); A.addr_k(1)
    L.need(cons_tags('a', 'a', 1)); b.barrier()
    b.s('s_cmp_eq_u32 s48, 0'); b.s('s_cbranch_scc0 L_a_i1')
    q_reads(b, P_+4)
    A.start()
    b.fence()
    b.label('L_a_i1')
    A.intervals(L)
    b.s('s_add_u32 s41, s41, 1')
    A.c0()
    kvo = lambda: loader_offset_ops(b, True, LB, 2048, 8192, False, T0)[:5]
    usesAF = any(m >> 3 & 1 for m in cfg.masks)
    if usesAF:
        b.s('s_cmp_eq_u32 s40, 4'); b.s('s_cbranch_scc1 L_att_AF')
    sv = b.save()
    b.barrier()
    for f in A.c1(): f()
    b.wait_lgkm(0)
    if not cfg.allfast:
        b.s('s_add_u32 s39, s41, 2'); b.s('s_cmp_eq_u32 s39, s40'); b.s('s_cbranch_scc1 L_att_AU')
        sv3 = b.save()
        b.barrier()
        L.q = []
        for f in A.c2a(): f()
        L.begin(0, True); L.set_ost()
        L.ub('s83', 's41', 3); b.s('s_lshl_b32 s83, s83, 11'); b.s('s_add_u32 s83, s83, s72')
        b.s('s_cmp_eq_u32 s35, 0'); b.s('s_cselect_b32 s37, 1, 0')
        b.barrier()
        fi = {3: A.c2b() + kvo()}
        if cfg.burst:
            for pi in range(6): fi[4+pi] = A.part(pi)
            fi[10] = [lambda: None]*30 + sum([A.store(k, L) for k in range(6)], [])
        else:
            for pi in range(6): fi[4+pi] = A.part(pi) + (A.store(pi-1, L) if pi else [])
            fi[10] = A.store(5, L)
        r_loader(3, 11, {9: [pollx]}, fi, R_OWNS)
        assert L.items() == nj, (L.q, qj)
        b.fence()
        b.s('s_branch L_att_Rj')
        b.label('L_att_AU'); b.restore(sv3)
    L.begin(0, True); L.set_ost()
    b.barrier()
    L.q = []
    fi = {2: A.c2a() + kvo(), 3: A.c2b()}
    if cfg.burst:
        for k in range(3): fi[4+k] = A.part(2*k) + A.part(2*k+1)
        fi[6] = fi[6] + sum([A.store(k, L) for k in range(6)], [])
    else:
        for k in range(3): fi[4+k] = A.part(2*k) + A.store(2*k, L) + A.part(2*k+1) + A.store(2*k+1, L)
    ex = {9: [pollx]}; ex.setdefault(cfg.sigat-1, []).append(lambda: L.need({'st'})); ex.setdefault(cfg.sigat, []).append(lambda: L.signal(VP))
    r_loader(2, 11, ex, fi)
    got = L.items(); assert got == nj[len(nj)-len(got):], (L.q, qj)
    b.fence()
    b.s('s_branch L_att_Rj')
    if usesAF:
        b.label('L_att_AF'); b.restore(sv)
        L.begin(0, True); L.set_ost()
        b.barrier()
        L.q = []
        L.setfill(A.c1(), 14); L.g(3, True, ('g', 3)); L.g(4, True, ('g', 4)); L.flush()
        b.wait_lgkm(0); b.barrier()
        fi = {2: A.c2a() + kvo() + A.c2b()}
        if cfg.burst:
            for k in range(3): fi[3+k] = A.part(2*k) + A.part(2*k+1)
            fi[5] = fi[5] + sum([A.store(k, L) for k in range(6)], [])
        else:
            for k in range(3): fi[3+k] = A.part(2*k) + A.store(2*k, L) + A.part(2*k+1) + A.store(2*k+1, L)
        f_loader(2, FJ, {FJ-2: [lambda: L.need({'st'})], FJ-1: [lambda: L.signal(VP)]}, fi)
        assert L.items() == [n for _, n in qFj]
        b.fence()
        b.s('s_branch L_att_Fj')
    b.label('L_att_RG'); b.reset()
    b.s('s_cmp_eq_u32 s40, 7'); b.s('s_cbranch_scc1 L_att_RP')
    b.s('s_cmp_eq_u32 s40, 3'); b.s('s_cbranch_scc1 L_att_RF')
    L.q = list(qj)
    tail(11, {}, 'r', {11: [lambda: L.begin(1, False)]}, 12)
    L.need({'p'})
    q12 = list(L.q)
    b.s('s_cmp_lt_u32 s40, 3'); b.s('s_cbranch_scc1 L_att_RRe')
    b.emit(f'v_cmp_ne_u64 vcc, s[84:85], {vr(VP,2)}', 'valu', (), R(VP, 2))
    b.s('s_cbranch_vccnz L_att_RRl')
    b.label('L_att_RRe')
    tail(12, r_to_r(12), 'r')
    assert L.q == qR, (L.q, qR)
    b.s('s_branch L_att_R')
    b.label('L_att_RRl'); L.q = list(q12)
    tail(12, r_to_r(14), 'r', {12: [pollx], 14: [lambda: (L.need({'p'}), L.check(VP, None))]})
    assert L.q == qR, (L.q, qR)
    b.s('s_branch L_att_R')
    b.label('L_att_RF'); L.q = list(qj)
    tail(11, R_TO_F, 'f', {11: [lambda: L.begin(1, False)], 12: [lambda: (L.need({'p'}), L.check(VP, None))]})
    assert L.q == qF, (L.q, qF)
    b.s('s_branch L_att_F')
    b.label('L_att_RP'); L.q = list(qj)
    def pdma(i):
        for hlf, n in ((0, 4), (1, 2)):
            b.s(f's_add_u32 m0, s79, {PLDS[i] + hlf*4096}'); b.s(f's_add_u32 s39, s58, {i*PT + hlf*4096}')
            for k in range(n): b.dma(A.VO, 20, 's39', k*1024, ' sc1')
        L.q.append((('n', i), 6))
    def p11():
        b.v('v_lshlrev_b32', A.VO, '4', LANE)
        L.ub('s58', 's40'); b.s(f's_mul_i32 s58, s58, {32*3*PT}'); b.s('s_add_u32 s58, s58, s78')
    tail(11, R_TO_P, 'p', {11: [p11], 12: [lambda: (L.need({'p'}), L.check(VP, None))]})
    b.s('s_endpgm')
    b.reset()
    b.label('L_gem')
    if cfg.prio & 1: b.s('s_setprio 2')
    if cfg.ivw is not None:
        b.s(f's_mov_b32 s86, {(-cfg.ivw) & 0xffffffff}'); b.v('v_mov_b32', 247, '0')
        ob = b.barrier; cnt = [0]
        def nb():
            ob(); cnt[0] += 1
            b.raw('s_cmp_lt_u32 s86, 64'); b.raw(f's_cbranch_scc0 L_iv{cnt[0]}')
            b.raw('s_memtime s[90:91]'); b.raw('s_mov_b32 m0, s86'); b.raw('s_waitcnt lgkmcnt(0)'); b.raw('v_writelane_b32 v247, s90, m0')
            b.raw(f'L_iv{cnt[0]}:'); b.raw('s_add_u32 s86, s86, 1')
        b.barrier = nb
    M = Loader(b, cfg, GB, GT)
    b.s('s_mov_b32 s77, 0')
    gemm_setup(b)
    loader_offsets(b, 2, GB, 2048, 8192, False, GT)
    b.v('v_and_b32', GT, '15', LANE); b.v('v_mul_u32_u24', VQW, str(QROW), GT)
    b.v('v_lshrrev_b32', GT, '4', LANE); b.v('v_lshlrev_b32', GT, '3', GT)
    b.s('s_lshl_b32 s39, s34, 6'); b.s(f's_add_u32 s39, s39, {XB}'); b.v('v_add3_u32', VQW, VQW, GT, 's39')
    b.s('s_add_u32 s39, s2, s34'); b.s('s_cmp_lg_u32 s39, 0'); b.s('s_cbranch_scc1 L_nononce')
    b.raw('s_memrealtime s[50:51]'); b.raw('s_waitcnt lgkmcnt(0)'); b.s('s_or_b32 s50, s50, 1')
    b.v('v_mov_b32', GF, 's50'); b.v('v_mov_b32', GF+1, 's51')
    b.s('s_mov_b64 exec, 1')
    b.emit(f'buffer_store_dwordx2 {vr(GF,2)}, off, s[64:67], 0 sc1', 'vmem', (), R(GF, 2))
    b.s('s_mov_b64 exec, -1')
    b.label('L_nononce')
    b.barrier()
    b.fence()
    b.label('L_gem_F')
    xq = [(None, cfg.kvpf)] if cfg.kvpf else []
    qf = [(('g', i), 7) for i in (1, 2)] + xq; qg = [(('g', i), 5) for i in range(1, 5)] + xq
    M.q = list(qf)
    g_main(b, cfg, True, M)
    b.s('s_branch L_gem_done')
    b.fence()
    b.label('L_gem_R')
    M.q = list(qg)
    g_main(b, cfg, False, M)
    b.label('L_gem_done')
    phase_stamp(b, cfg)
    sv = b.save()
    b.s('s_cmp_lg_u32 s40, 3'); b.s('s_cbranch_scc1 L_gem_nsw')
    for h in range(2): b.v('v_lshlrev_b32', VXB+h, '4', LANE)
    b.v('v_add_u32', VXB+1, '1024', VXB+1)
    b.label('L_gem_nsw'); b.restore(sv)
    b.s('s_cmp_ge_u32 s40, 4'); b.s('s_cbranch_scc1 L_gem_ot')
    b.s('s_bitcmp1_b32 s32, s40'); b.s('s_cbranch_scc0 L_gem_qg')
    b.s('s_add_u32 s40, s40, 1')
    g_tail(b, q_ops(b)); b.fence()
    b.s('s_branch L_gem_a')
    b.label('L_gem_qg'); b.restore(sv)
    b.s('s_add_u32 s40, s40, 1'); b.s('s_cmp_eq_u32 s40, 4'); b.s('s_cbranch_scc1 L_gem_qf')
    g_fused(b, q_ops(b), False)
    b.label('L_gem_qf'); b.restore(sv)
    g_fused(b, q_ops(b), True)
    b.label('L_gem_ot'); b.restore(sv)
    b.s('s_cmp_eq_u32 s40, 7'); b.s('s_cbranch_scc1 L_gem_fin')
    def pk_ops(qb, base):
        pk = base(qb); o = []
        for nt in range(2):
            a = acc(nt, qb)
            o += [lambda a=a, nt=nt: b.v('v_cvt_pk_bf16_f32', pk+2*nt, a, a+1), lambda a=a, nt=nt: b.v('v_cvt_pk_bf16_f32', pk+2*nt+1, a+2, a+3)]
        return o
    inpl = lambda qb: acc(0, qb)
    def pstore(qb): b.store(4, inpl(qb), VXB, 20, 's50' if qb < 4 else 's51', (qb % 4)*1024, cfg.opol)
    def paddr():
        M.ub('s39', 's40'); b.s(f's_mul_i32 s50, s39, {32*3*PT}'); b.s('s_add_u32 s50, s50, s78')
        b.s('s_lshl_b32 s83, s39, 12'); b.s('s_add_u32 s83, s83, s73')
        b.s('s_and_b32 s39, s40, 3'); b.s(f's_mul_i32 s51, s39, {PT}'); b.s('s_add_u32 s50, s50, s51'); b.s('s_add_u32 s51, s50, 4096')
        b.s('s_lshl_b32 s39, s39, 3'); b.s('s_add_u32 s83, s83, s39')
    paddr()
    b.s('s_bitcmp1_b32 s32, s40'); b.s('s_cbranch_scc1 L_gem_pa')
    if cfg.pdirect:
        b.s('s_cmp_eq_u32 s35, 4'); b.s('s_cselect_b32 s37, 1, 0'); b.s('s_add_u32 s40, s40, 1')
        for f in gemm_addr_ops(b, g_base(0, False)): f()
        po = [pk_ops(qb, inpl) + [lambda qb=qb: pstore(qb)] for qb in range(6)]
        x1 = {7+k: [po[0][k]] for k in range(5)}
        x0 = {}
        for qb in range(2, 6):
            x0[2*(qb-2)] = po[qb][:2]; x0[2*(qb-2)+1] = po[qb][2:]
        def mid():
            for f in po[1]: f()
        g_interval(b, RES, False, False, gemm_addr_ops(b, g_base(1, False)), lambda: None, zero=True, x1=x1, x0=x0, mid=mid)
        b.s('s_branch L_gem_R1')
    else:
        b.s('s_add_u32 s40, s40, 1'); b.s(f's_add_u32 s39, s79, {XB}')
        b.v('v_add_u32', GT, 's39', VXB)
        g_fused(b, sum([pk_ops(qb, inpl) + [lambda qb=qb: b.dsw('ds_write_b128', GT, inpl(qb), 4, qb*1024)] for qb in range(6)], []), False)
    b.label('L_gem_pa'); b.restore(sv)
    g_tail(b, sum([pk_ops(qb, inpl) for qb in range(6)], []))
    b.s('s_mov_b32 s77, 1'); b.s('s_add_u32 s40, s40, 1')
    b.fence()
    b.label('L_gem_a'); b.reset()
    M.q = []
    M.set_a()
    b.barrier()
    def a_loader(t0, t1, nxt):
        for t in range(t0, t1):
            if t == 1: M.nonce_load(GF)
            if t == 3: M.poll(GF, 0)
            for p in A_OWN.get(t, []): M.t(p, ('a', p))
            if t == 1 and cfg.pf:
                M.ub('s39', 's40'); b.s('s_mul_i32 s39, s39, 786432'); b.s('s_add_u32 s39, s39, s57')
                b.s('s_cmp_ge_u32 s40, 4'); b.s(f's_cselect_b32 s39, {OOB}, s39')
                b.load1(DUM, GB+3, 4, 's39'); M.other(1)
            if t == 2 and cfg.wl2 is not None:
                b.s('s_add_u32 s39, s41, s48'); b.s(f's_cmp_eq_u32 s39, {cfg.wl2}'); b.s(f's_cselect_b32 s39, s87, {OOB}')
                b.load1(DUM, GB+3, 24, 's39'); b.s('s_add_u32 s39, s39, 32768'); b.load1(DUM, GB+3, 24, 's39'); M.other(2)
            if t == 4: M.nonce_get(GF)
            if t == 5: M.begin(0, False)
            if t == cfg.pst and nxt == 'R':
                b.s('s_cmp_eq_u32 s77, 0'); b.s('s_cbranch_scc1 L_gem_nops')
                for qb in range(6): pstore(qb)
                b.s('s_mov_b32 s77, 0'); b.s('s_cmp_eq_u32 s35, 4'); b.s('s_cselect_b32 s37, 1, 0')
                b.label('L_gem_nops')
            if t == 6: M.check(GF, 0)
            if nxt:
                for i in (A_TO_R if nxt == 'R' else A_TO_F).get(t, []): M.g(i, nxt == 'F', ('g', i))
            if t == 8 and cfg.kvpf:
                M.ub('s39', 's41', 1); b.s('s_lshl_b32 s39, s39, 24'); b.s('s_add_u32 s39, s39, s46')
                b.s('s_lshl_b32 s58, s34, 13'); b.s('s_add_u32 s39, s39, s58')
                b.s('s_cmp_ge_u32 s41, 3'); b.s(f's_cselect_b32 s39, {OOB}, s39')
                if not cfg.kvpfall: b.s('s_bitcmp1_b32 s32, s40'); b.s(f's_cselect_b32 s39, s39, {OOB}')
                for k in range(cfg.kvpf):
                    if k == 2: b.s('s_add_u32 s39, s39, 32768')
                    b.load1(DUM, GB+3, 8 if k % 2 == 0 else 12, 's39', cfg.kvpfpol)
                M.other(cfg.kvpf)
            M.need(cons_tags('a', 'a', t+1) if t < 8 else {('g', 0)})
            b.barrier()
    a_loader(1, 6, None)
    q5 = list(M.q)
    if usesAF: b.s('s_cmp_eq_u32 s40, 4'); b.s('s_cbranch_scc1 L_gem_AF')
    a_loader(6, 9, 'R')
    assert M.q == qg, (M.q, qg)
    phase_stamp(b, cfg)
    b.s('s_add_u32 s41, s41, 1')
    b.s('s_branch L_gem_R')
    if usesAF:
        b.label('L_gem_AF'); M.q = list(q5)
        a_loader(6, 9, 'F')
        assert M.q == qf, (M.q, qf)
        phase_stamp(b, cfg)
        b.s('s_add_u32 s41, s41, 1')
        b.s('s_branch L_gem_F')
    b.label('L_gem_fin'); b.restore(sv)
    ID = RES; PF_ = RES + 8; t = GT
    b.v('v_add_u32', VX, 's79', VXB); b.v('v_add_u32', VX+1, str(XB), VX)
    rd = [lambda p=p, qb=qb: b.dsr('ds_read_b128', PF_ + 12*qb + 4*p, 4, VX+1 if p == 0 else VX, (PLDS[p] if p else 0) + qb*1024) for qb in range(6) for p in range(3)]
    u = RES + 84
    idops = [lambda: b.v('v_bfe_u32', u, LANE, '2', '2'), lambda: b.v('v_lshrrev_b32', u+1, '4', LANE),
             lambda: b.emit(f'v_cmp_eq_u32 vcc, {vr(u)}, {vr(u+1)}', 'valu', (), {u, u+1}),
             lambda: b.v('v_and_b32', u, '1', LANE), lambda: b.v('v_lshlrev_b32', u, '4', u), lambda: b.v('v_mov_b32', u+1, '0x3f80'), lambda: b.v('v_lshlrev_b32', u, u, u+1),
             lambda: b.emit(f'v_cndmask_b32 {vr(u)}, 0, {vr(u)}, vcc', 'valu', {u}, {u}),
             lambda: b.v('v_and_b32', u+1, '2', LANE),
             lambda: b.emit(f'v_cmp_eq_u32 vcc, 0, {vr(u+1)}', 'valu', (), {u+1})]
    idops += [lambda k=k: b.v('v_mov_b32', ID+k, '0') for k in (0, 1, 4, 5)]
    idops += [lambda: b.emit(f'v_cndmask_b32 {vr(ID+2)}, 0, {vr(u)}, vcc', 'valu', {ID+2}, {u}), lambda: b.v('v_sub_u32', ID+3, u, ID+2)]
    g_block(b, 1, A1, {k: [rd.pop(0), idops.pop(0)] for k in range(12)})
    for f in idops: f()
    fill = rd + [lambda: b.v('v_and_b32', t, '15', LANE), lambda: b.v('v_lshlrev_b32', t, '12', t),
                 lambda: b.v('v_bfe_u32', t+1, LANE, '4', '1'), lambda: b.v('v_lshl_add_u32', t, t+1, '5', t),
                 lambda: b.v('v_lshrrev_b32', t+1, '5', LANE), lambda: b.v('v_lshl_add_u32', t, t+1, '4', t)]
    def epi(qb):
        pk = BF[0] + 4*qb
        return pk_ops(qb, lambda qb: BF[0] + 4*qb) + [lambda: b.swap16(pk, pk+2), lambda: b.swap16(pk+1, pk+3),
                lambda: (b.store(4, pk, t, 28, 's76', 0, cfg.outpol), b.s(f's_add_u32 s76, s76, {16*4096}'))]
    for qb in range(6):
        if qb >= 2: fill += epi(qb-2)
        for p in range(3):
            for nt in range(2):
                b.mfma16(acc(nt, qb), ID + (2 if nt == 0 else 0), PF_ + 12*qb + 4*p, acc(nt, qb))
                if fill: fill.pop(0)()
    for f in fill + epi(4) + epi(5): f()
    stamp_dump(b, cfg)
    b.label('L_k1_end')
    b.s('s_endpgm')
    b.label('L_code_end')
    for task in A.rare: A.rare_block(task)
    return b

def desc(name, nv):
    return f'''.p2align 6
.amdhsa_kernel {name}
  .amdhsa_next_free_vgpr {nv}
  .amdhsa_next_free_sgpr 102
  .amdhsa_accum_offset {nv}
  .amdhsa_group_segment_fixed_size 0
  .amdhsa_kernarg_size 104
  .amdhsa_user_sgpr_count 2
  .amdhsa_user_sgpr_kernarg_segment_ptr 1
  .amdhsa_system_sgpr_workgroup_id_x 1
.end_amdhsa_kernel
'''
def build(path, cfg, which=None):
    B.nodma = cfg.nodma; B.skel = cfg.skel; G['cfg'] = cfg; B.guard = False
    a = k1(cfg)
    s = '; @launch grid=(256,1,1) block=(512,1,1) lds=163840\n.amdgcn_target "amdgcn-amd-amdhsa--gfx950"\n.text\n' + a.text()
    s += '.section .rodata,"a"\n' + desc(NAME + '_kernel', 256)
    open(path, 'w').write(s)
    return a, a
def mk(path, which=('k1', 'k2'), **kw):
    cfg = Cfg()
    for k, v in kw.items():
        assert hasattr(cfg, k), k
        setattr(cfg, k, v)
    return build(path, cfg, which)

if __name__ == '__main__':
    a, c = mk('v10.s')
    print('k1 lines', len(a.lines), 'nops', a.nnop, 'k2 lines', len(c.lines), 'nops', c.nnop)

def M(*n): return sum(1 << (x - 1) for x in n)
```

```python
import gen10
from gen10 import M
gen10.mk('o_a.s')
gen10.mk('o_b.s', masks=(M(1,2,4,5), M(2,3,5,6)))
gen10.mk('o_c.s', masks=(M(1,2,3,5), M(2,3,4,6), M(1,3,5,6), M(2,3,4,5)))
gen10.mk('o_d.s', masks=(M(1,2,4,6), M(2,3,4,5), M(1,3,4,6), M(2,3,5,6)))
gen10.mk('o_e.s', masks=(M(1,2,4,6), M(2,3,5,6), M(1,2,3,5), M(2,3,4,5)))
gen10.mk('o_f.s', masks=(M(1,2,3,5), M(2,3,4,6), M(1,2,4,5), M(2,3,5,6)))
```

```python
import math, struct, sys
from asmb import *
NAME = 'concat_heads__mha_block_cached__gqa_block_cached__near_ridge'
RING = 135168; XB = RING
HS = 16896; AS = 33792; GS = 22528; WG = 8448
QROW = 272; STAT = XB + 24576
def f2u(x): return struct.unpack('<I', struct.pack('<f', x))[0]
CEXP = math.log2(math.e) / math.sqrt(128.0)
LANE = 255; DUM = 254
OOB = 0x40000000

class Cfg:
    kvpol = ' nt'; opol = ' sc1'; xpol = ' sc1'; outpol = ''; pf = False; pf0 = 2; stamps = False; stagger = True
    wopf = 3; won = (0, 2, 14, 16, 0, 2, 14, 16); nodma = False; skel = False; codepf = False; nosig = False
    ivw = None; prio = 1; masks = (0x17, 0x2e); dropst = 0; allfast = True; pdirect = True; burst = True; hstamp = False; rot = 0; cpf2 = False; lastv = 0; p11 = False; lsig = 9; w8 = False; pfx = 0; kvmask = None; wqrow = False; kvlin = True; ilv = True; tlay = 3; look = 4; help = 0; helpo = 65536; helpat = 8; drain0 = True; ppol = ' sc1'; kvsplit = 0; lat = 13; cut = ''; tlb0 = False; w32 = None; half = None; padto = 0; kvrmin = 1; kvr = 0; afself = False; otr = True; nox1 = True; both = False; wn = 2; w0 = 0; wat = 2; early = False; won1 = None; chain = False; wpol = ''; kvpf = 0; kvpfpol = ''; kvpfall = True; fast = False; pst = 7; sigat = 9; rrc = 12; wl2 = None

PB = 26 << 20; FB = 48 << 20; PT = 24576
G = {}
def srd(b, d, lo, size):
    b.s(f's_mov_b32 s{d}, s{lo}'); b.s(f's_mov_b32 s{d+1}, s{lo+1}'); b.s(f's_mov_b32 s{d+2}, {size}'); b.s(f's_mov_b32 s{d+3}, 0x20000')
def lane_id(b, d):
    b.v('v_mbcnt_lo_u32_b32', d, '-1', '0'); b.v('v_mbcnt_hi_u32_b32', d, '-1', d)

XO = 0; WO1 = 12288; WO0 = 12288 + WG
GMAP = [0,1,2,3,4,5,0,1,2,3,0,1,2,3,4,5]
HMAP = [p % 8 for p in range(16)]
def g_base(i, full, cls=0): return (i % 4)*AS if full else GMAP[i]*GS
TILES = [('K',0)] + sum([[('K',j+1), ('V',j)] for j in range(7)], []) + [('V',7)]
def t_base(p): return HMAP[p]*HS
KPOS = {j: TILES.index(('K', j)) for j in range(8)}
VPOS = {j: TILES.index(('V', j)) for j in range(8)}
def t_cons(p): k, j = TILES[p]; return j if k == 'K' else j + 1

def loader_offset_ops(b, kv, base, xstride, wstride, operm, t):
    lane = LANE
    vKV, vX, vW, vPF = base, base+1, base+2, base+3
    t0, t1 = t, t+1
    o = []
    def V(*a): o.append(lambda: b.v(*a))
    V('v_and_b32', t0, '15', lane); V('v_lshlrev_b32', t0, '4', t0)
    V('v_lshrrev_b32', t1, '4', lane)
    if kv:
        if G['cfg'].kvlin: V('v_lshlrev_b32', vKV, '4', lane); V('v_lshl_add_u32', vKV, 's34', '11', vKV)
        else: V('v_lshl_add_u32', vKV, t1, '3', 's34'); V('v_lshl_add_u32', vKV, vKV, '8', t0)
    sa, sb = (4, 3) if operm else (2, 4)
    V('v_and_b32', vW, '1', t1); V('v_lshl_add_u32', vW, vW, str(sa), 's34')
    V('v_lshrrev_b32', t1, '1', t1); V('v_lshl_add_u32', vW, t1, str(sb), vW)
    V('v_lshl_add_u32', vW, vW, str(int(math.log2(wstride))), t0)
    if operm:
        V('v_lshl_add_u32', vX, lane, '4', 's53')
    else:
        V('v_lshrrev_b32', t0, '3', lane); V('v_lshl_add_u32', t0, 's34', '3', t0)
        V('v_lshrrev_b32', t1, '1', t0); V('v_xor_b32', t1, t1, lane); V('v_and_b32', t1, '7', t1); V('v_lshlrev_b32', t1, '4', t1)
        V('v_lshl_add_u32', vX, t0, str(int(math.log2(xstride))), t1)
    if kv == 2: V('v_lshlrev_b32', vPF, '7', lane)
    return o
def loader_offsets(b, *a):
    for f in loader_offset_ops(b, *a): f()


def pair_off(b, base, k, tmp):
    t = k >> 1
    if t == 0: return base, (k & 1)*1024
    b.s(f's_add_u32 {tmp}, {base}, ' + ('s0' if t == 1 else str(32768 if G['cfg'].ilv else 4096)))
    return tmp, (k & 1)*1024

class Loader:
    def __init__(self, b, cfg, base, t): self.b, self.cfg, self.base, self.tmp, self.q, self.fill, self.per, self.n = b, cfg, base, t, [], [], 0, 0
    def lab(self, s): self.n += 1; return f'L_{s}{self.base}_{self.n}'
    def setfill(self, ops, ndma):
        self.fill = list(ops); self.per = -(-len(self.fill) // max(ndma, 1))
    def _f(self):
        for _ in range(self.per):
            if self.fill: self.fill.pop(0)()
    def flush(self):
        while self.fill: self.fill.pop(0)()
    def g(self, i, full, tag):
        b = self.b; vX, vW = self.base+1, self.base+2; lds = g_base(i, full)
        b.s(f's_mul_i32 s58, s42, {i >> 1}'); b.s('s_add_u32 s58, s58, s36')
        if i & 1: b.s('s_add_u32 s58, s58, s3')
        b.s(f's_mul_i32 s59, s60, {i}'); b.s('s_add_u32 s59, s59, s45')
        for z in range(3):
            b.s(f's_add_u32 m0, s53, {lds + XO + z*4096}')
            if z: b.s('s_add_u32 s58, s58, s43')
            b.dma(vX, 4, 's58', 0, self.cfg.xpol); self.q.append((tag, 1)); self._f()
        for h in (0, 1):
            if h: b.s('s_add_u32 s59, s59, s61')
            if h == 0 and not full: continue
            for z in (0, 1):
                b.s(f's_add_u32 m0, s52, {lds + (WO1 if h else WO0) + z*4224}')
                if z: b.s('s_add_u32 s39, s59, s62')
                b.dma(vW, 16, 's39' if z else 's59', 0, self.cfg.wpol); self.q.append((tag, 1)); self._f()
        self.norm()
    def t(self, p, tag):
        b = self.b; k, j = TILES[p]; srd_ = 8 if k == 'K' else 12; lds = t_base(p); pol = self.cfg.kvpol
        for kh in range(2):
            b.s(f's_add_u32 m0, s52, {lds + kh*8448}')
            if self.cfg.rot: b.s(f's_xor_b32 s39, s1, {j*16384 + kh*8192}'); b.s('s_add_u32 s39, s39, s38')
            else: b.s(f's_add_u32 s39, s38, {j*16384 + kh*8192}')
            b.dma(self.base, srd_, 's39', 0, pol)
            b.s('s_add_u32 m0, m0, 3200')
            b.dma(self.base, srd_, 's39', 1024, pol)
        self.q.append((tag, 4))
    def norm(self):
        q = []
        for t, n in self.q:
            if q and q[-1][0] == t: q[-1] = (t, q[-1][1] + n)
            else: q.append((t, n))
        self.q = q
    def items(self):
        t = Loader(self.b, self.cfg, 0, 0); t.q = [x for x in self.q if isinstance(x[0], tuple)]; t.norm(); return [n for _, n in t.q]
    def other(self, n): self.q.append((None, n))
    def need(self, tags):
        last = -1
        for i, (t, n) in enumerate(self.q):
            if t in tags: last = i
        if last >= 0:
            self.q = self.q[last+1:]
            self.b.vm(min(63, sum(n for _, n in self.q)))
    def ub(self, d, unit_sgpr, plus=0):
        self.b.s(f's_add_u32 {d}, {unit_sgpr}, s33')
        if plus: self.b.s(f's_add_u32 {d}, {d}, {plus & 3}')
        self.b.s(f's_and_b32 {d}, {d}, 3')
    def begin(self, plus, recompute):
        b = self.b; lo, le = self.lab('bo'), self.lab('be')
        b.fence()
        b.s(f's_cmp_ge_u32 s40, {4 - plus}'); b.s(f's_cbranch_scc1 {lo}')
        if recompute: loader_offsets(b, False, self.base, 2048, 8192, False, self.tmp)
        b.s(f's_branch {le}')
        b.label(lo)
        for k in range(3): b.s(f's_mov_b32 s{4+k}, s{20+k}')
        for k in range(2): b.s(f's_mov_b32 s{16+k}, s{24+k}')
        for r, v in (((42, 4096), (3, 98304), (43, 32768)) if self.cfg.ilv else ((42, 24576), (3, 12288), (43, 4096))) + ( (60, 64*2048), (61, 32*2048), (62, 4*2048), (63, 6291456 if self.cfg.tlay & 1 else 3145728), (44, 's74'), (45, 's75')): b.s(f's_mov_b32 s{r}, {v}')
        if self.cfg.tlay & 1: b.s('s_mov_b32 s100, 0')
        loader_offsets(b, False, self.base, 128, 2048, True, self.tmp)
        b.label(le)
        b.s('s_add_u32 s36, s40, s100'); b.s(f's_add_u32 s36, s36, {plus}'); b.s('s_and_b32 s36, s36, 3'); b.s('s_mul_i32 s36, s36, s63'); b.s('s_add_u32 s36, s36, s44')
        b.fence()
    def set_a(self):
        self.ub('s38', 's41'); self.b.s('s_lshl_b32 s38, s38, 24'); self.b.s('s_add_u32 s38, s38, s46')
    def set_ost(self):
        if self.cfg.tlay & 1: self.b.s('s_sub_u32 s54, s41, 1'); self.b.s('s_mul_i32 s54, s54, 6291456')
        else: self.ub('s54', 's41', 3); self.b.s('s_mul_i32 s54, s54, 3145728')
        self.b.s('s_add_u32 s54, s54, s47')
        if self.cfg.dropst: self.b.s(f's_cmp_le_u32 s41, {self.cfg.dropst}'); self.b.s(f's_cselect_b32 s54, {OOB}, s54')
    def nonce_load(self, v):
        self.b.emit(f'buffer_load_dwordx2 {vr(v+4,2)}, off, s[64:67], 0 sc1', 'vmem', R(v+4, 2)); self.q.append(('n', 1))
    def nonce_get(self, v):
        b = self.b; l0, l1 = self.lab('nc'), self.lab('nk')
        assert all(x[0] != 'n' for x in self.q)
        b.s('s_mov_b32 s49, 0x40000')
        b.label(l0)
        b.rfl(84, v+4); b.rfl(85, v+5); b.nop(1)
        b.s('s_cmp_lg_u32 s84, 0'); b.s(f's_cbranch_scc1 {l1}')
        b.s('s_sleep 4')
        b.emit(f'buffer_load_dwordx2 {vr(v+4,2)}, off, s[64:67], 0 sc1', 'vmem', R(v+4, 2)); b.vm(0)
        b.s('s_sub_u32 s49, s49, 1'); b.s('s_cmp_lg_u32 s49, 0'); b.s(f's_cbranch_scc1 {l0}')
        b.label(l1)
    def poll(self, v, plus):
        b = self.b
        self.ub('s82', 's40', plus); b.s('s_lshl_b32 s82, s82, 11'); b.s('s_add_u32 s82, s82, s72'); b.s('s_andn2_b32 s82, s82, 127')
        b.s(f's_cmp_lt_u32 s40, {4 - plus}'); b.s(f's_cselect_b32 s82, {OOB}, s82')
        if plus:
            b.s('s_bitcmp1_b32 s32, s40'); b.s(f's_cselect_b32 s82, {OOB}, s82')
            self.ub('s39', 's40'); b.s('s_lshl_b32 s39, s39, 12'); b.s('s_add_u32 s39, s39, s73')
            b.s('s_cmp_eq_u32 s40, 7'); b.s('s_cselect_b32 s82, s39, s82'); b.s('s_cselect_b32 s39, 2, 7')
            b.v('v_min_u32', v+2, 's39', LANE)
        else:
            b.v('v_min_u32', v+2, '7', LANE)
        b.v('v_lshlrev_b32', v+2, '3', v+2)
        b.emit(f'buffer_load_dwordx2 {vr(v,2)}, {vr(v+2)}, s[68:71], s82 offen sc1', 'vmem', R(v, 2), {v+2}); self.q.append(('p', 1))
    def check(self, v, plus):
        b = self.b; l0, l1 = self.lab('ck'), self.lab('ok')
        assert all(x[0] != 'p' for x in self.q)
        if self.cfg.nosig: return
        if plus is not None: b.s(f's_cmp_lt_u32 s40, {4 - plus}'); b.s(f's_cbranch_scc1 {l1}')
        b.s('s_mov_b32 s49, 0x40000')
        b.label(l0)
        b.emit(f'v_cmp_ne_u64 vcc, s[84:85], {vr(v,2)}', 'valu', (), R(v, 2))
        b.s(f's_cbranch_vccz {l1}')
        b.s('s_sleep 2')
        b.emit(f'buffer_load_dwordx2 {vr(v,2)}, {vr(v+2)}, s[68:71], s82 offen sc1', 'vmem', R(v, 2), {v+2}); b.vm(0)
        b.s('s_sub_u32 s49, s49, 1'); b.s('s_cmp_lg_u32 s49, 0'); b.s(f's_cbranch_scc1 {l0}')
        b.label(l1)
    def flag_store(self, v, soff):
        b = self.b
        b.v('v_mov_b32', v+4, 's84'); b.v('v_mov_b32', v+5, 's85')
        b.s('s_mov_b64 exec, 1')
        b.emit(f'buffer_store_dwordx2 {vr(v+4,2)}, off, s[68:71], {soff} sc1', 'vmem', (), R(v+4, 2))
        b.s('s_mov_b64 exec, -1')
    def signal(self, v):
        b = self.b
        assert all(x[0] != 'st' for x in self.q)
        self.ub('s39', 's41', 3); b.s('s_lshl_b32 s39, s39, 11'); b.s('s_add_u32 s39, s39, s72')
        b.s('s_cmp_eq_u32 s35, 0'); b.s(f's_cselect_b32 s39, s39, {OOB}')
        self.flag_store(v, 's39'); self.other(1)
    def psignal(self, v):
        b = self.b; l = self.lab('ps')
        b.s('s_cmp_eq_u32 s37, 0'); b.s(f's_cbranch_scc1 {l}')
        sv = b.save(); self.flag_store(v, 's83'); b.s('s_mov_b32 s37, 0'); b.restore(sv)
        b.label(l)

def cons_tags(ph, kind, t):
    if kind == 'g': return {(ph, t)}
    return {(ph, p) for p in range(16) if t_cons(p) == t}
R_OWN = {2: [5], 3: [6, 7], 4: [8], 5: [9], 6: [14], 7: [10], 8: [11], 9: [12], 10: [13], 11: [15]}
R_OWNP = {1: [5], 2: [6], 3: [7]}
R_TO_A = {11: [0], 12: [1], 13: [2, 3], 14: [4], 15: [5]}
R_TO_F = {12: [0], 13: [1], 15: [2]}
def r_to_r(c):
    d = {}
    for i in range(4): d.setdefault(max(c, 12 + i if i < 3 else 14), []).append(i)
    return d
F_TO_A = {13: [0, 1], 14: [2, 3], 15: [4, 5]}
F_TO_R = {13: [0], 14: [1, 2], 15: [3]}
A_OWN = {1: [8], 2: [9, 10], 3: [11, 12], 4: [13, 14], 5: [15]}
A_TO_R = {6: [0, 1], 7: [2], 8: [3, 4]}
A_TO_F = {6: [0], 7: [1], 8: [2]}
R_TO_P = {12: [0, 1], 13: [2]}
PLDS = [XB, 0, PT]
R_OWNS = {2: [], 3: [5, 6], 4: [7, 8]}
def prog_of(mask):
    p = []
    for gi in range(8):
        p.append('F' if gi % 4 == 0 else 'R')
        if mask >> gi & 1: p.append('A')
    return p
A0_OWN = [6, 7]
def set_tables(cfg):
    global R_TO_A, F_TO_A, A_OWN, A0_OWN
    T = {0: ({11: [0], 12: [1], 13: [2, 3], 14: [4], 15: [5]}, {13: [0, 1], 14: [2, 3], 15: [4, 5]}, [6, 7], {1: [8], 2: [9, 10], 3: [11, 12], 4: [13, 14], 5: [15]}),
         1: ({11: [0], 12: [1], 13: [2], 14: [3], 15: [4]}, {13: [0, 1], 14: [2, 3], 15: [4]}, [5], {1: [6, 7], 2: [8, 9], 3: [10, 11], 4: [12, 13], 5: [14, 15]}),
         2: ({11: [0], 12: [1], 13: [2], 14: [3], 15: [4]}, {13: [0, 1], 14: [2, 3], 15: [4]}, [], {1: [5, 6], 2: [7, 8], 3: [9, 10], 4: [11, 12], 5: [13, 14], 6: [15]}),
         3: ({11: [0], 12: [1], 13: [2], 14: [3], 15: [4]}, {13: [0, 1], 14: [2, 3], 15: [4]}, [5, 6], {1: [7, 8], 2: [9, 10], 3: [11, 12], 4: [13, 14], 5: [15]}),
         4: ({11: [0], 12: [1], 13: [2], 15: [3]}, {13: [0, 1], 14: [2], 15: [3]}, [4], {1: [5, 6], 2: [7, 8], 3: [9, 10], 4: [11, 12], 5: [13, 14], 6: [15]}),
         5: ({11: [0], 12: [1], 13: [2, 3], 14: [4], 15: [5]}, {13: [0, 1], 14: [2, 3], 15: [4, 5]}, [], {1: [6, 7], 2: [8, 9], 3: [10, 11], 4: [12, 13], 5: [14, 15]}),
         6: ({11: [0], 12: [1], 13: [2], 15: [3]}, {13: [0, 1], 14: [2], 15: [3]}, [4, 5], {1: [6, 7], 2: [8, 9], 3: [10, 11], 4: [12, 13], 5: [14, 15]}),
         7: ({11: [0], 13: [1], 15: [2]}, {13: [0], 14: [1], 15: [2]}, [3, 4], {1: [5, 6], 2: [7, 8], 3: [9, 10], 4: [11, 12], 5: [13, 14], 6: [15]}),
         8: ({11: [0], 12: [1], 14: [2]}, {13: [0, 1], 15: [2]}, [3, 4], {1: [5, 6], 2: [7, 8], 3: [9, 10], 4: [11, 12], 5: [13, 14], 6: [15]}),
         }[cfg.look]
    R_TO_A, F_TO_A, A0_OWN, A_OWN = T
def verify_ring(cfg):
    set_tables(cfg)
    for mask in cfg.masks:
        prog = prog_of(mask) + ['P']
        assert prog.count('A') == 4
        n = [gi + 1 for gi in range(8) if mask >> gi & 1]
        assert cfg.pdirect and n[0] <= 2 and n[1] <= 3 and all(n[k] >= k + 1 and n[k] <= k + 3 for k in range(4)), n
        live = {}; issued = set()
        def rng(ph, i):
            k = prog[ph]
            if k == 'F': return (g_base(i, True), g_base(i, True) + 29184)
            if k == 'R': return (g_base(i, False), g_base(i, False) + 20736)
            if k == 'P': return (PLDS[i], PLDS[i] + PT)
            return (t_base(i), t_base(i) + HS)
        def iss(ph, i):
            lo, hi = rng(ph, i)
            for t, (a, c) in live.items(): assert hi <= a or c <= lo, (prog, ph, i, t)
            assert (ph, i) not in issued, (prog, ph, i)
            live[(ph, i)] = (lo, hi); issued.add((ph, i))
        for i in range(3): iss(0, i)
        for ph, k in enumerate(prog[:-1]):
            nx = prog[ph+1]; pv = prog[ph-1] if ph else None
            for t in range(9 if k == 'A' else 16):
                if k == 'F':
                    own = [t+3] if t <= 12 else []
                    if pv == 'A' and t < 2: own = [[], [3, 4]][t]
                    nxt = {'A': F_TO_A, 'R': F_TO_R}[nx].get(t, [])
                elif k == 'R':
                    own = R_OWN.get(t, []) if t else ([] if pv == 'A' else [4])
                    if pv != 'A' and t in R_OWNP: own = R_OWNP[t]
                    nxt = {'A': R_TO_A, 'F': R_TO_F, 'R': r_to_r(cfg.rrc), 'P': R_TO_P}[nx].get(t, [])
                else:
                    own = A_OWN.get(t, []) if t else A0_OWN
                    nxt = {'R': A_TO_R, 'F': A_TO_F}[nx].get(t, [])
                for i in own: iss(ph, i)
                for i in nxt: iss(ph+1, i)
                for tg in cons_tags(ph, 'a' if k == 'A' else 'g', t):
                    assert tg in live, (prog, tg); del live[tg]
        assert len(live) == 3 and len(issued) == 195

ACC = 0; RES = 48; BF = [176, 200]; A1 = 224; VW = 232; VX = 233; VWB = 235; VXB = 236; VQW = 238; GB = 240; GT = 244
def acc(nt, qb): return ACC + 8*qb + 4*nt
def gemm_setup(b):
    lane = LANE; t0, t1, t2 = GT, GT+1, GT+2
    b.v('v_bfe_u32', t0, lane, '2', '3'); b.v('v_mul_u32_u24', VWB, '1056', t0)
    b.v('v_lshrrev_b32', t0, '5', lane); b.v('v_lshlrev_b32', t0, '9', t0); b.v('v_add_u32', VWB, VWB, t0)
    b.v('v_and_b32', t0, '3', lane); b.v('v_lshlrev_b32', t0, '3', t0)
    b.s('s_lshl_b32 s39, s34, 6'); b.v('v_add3_u32', VWB, VWB, t0, 's39')
    b.v('v_and_b32', t0, '15', lane); b.v('v_lshrrev_b32', t2, '1', t0); b.v('v_lshrrev_b32', t1, '4', lane); b.v('v_xor_b32', t2, t2, t1)
    b.v('v_lshlrev_b32', t0, '7', t0)
    for h in range(2):
        b.v('v_xor_b32', VXB+h, str(4*h), t2); b.v('v_lshlrev_b32', VXB+h, '4', VXB+h); b.v('v_add_u32', VXB+h, VXB+h, t0)
def gemm_addr_ops(b, base):
    base = str(base)
    return [lambda: b.v('v_add_u32', VX, base, VXB), lambda: b.v('v_add_u32', VX+1, base, VXB+1), lambda: b.v('v_add_u32', VW, base, VWB)]
def rdA(b, h, areg):
    return [lambda nt=nt, e=e: b.dsr('ds_read_b64_tr_b16', areg+4*nt+2*e, 2, VW, (WO1 if h else WO0) + e*256 + nt*32) for nt in range(2) for e in range(2)]
def rdB(b, h):
    return [(lambda: None) if ('L' in G['cfg'].cut and qb % 2) else (lambda qb=qb: b.dsr('ds_read_b128', BF[h]+4*qb, 4, VX+h, XO + qb*2048)) for qb in range(6)]
def g_block(b, h, areg, gaps, zero=False, prewait=None):
    k = 0
    for qb in range(6):
        for nt in range(2):
            if prewait and k in prewait: b.wait_lgkm(prewait[k])
            b.mfma16(acc(nt, qb), areg+4*nt, BF[h]+4*qb, None if zero else acc(nt, qb))
            for f in gaps.get(k, []): f()
            k += 1
def g_interval(b, a0, load_a0, first, nxt_ops, endfn, defer=False, zero=None, x1=None, x0=None, mid=None):
    B0, B1, Aa = rdB(b, 0), rdB(b, 1), rdA(b, 1, A1)
    A0 = rdA(b, 0, a0) if load_a0 else []
    if first:
        for f in A0 + B0: f()
        rest = B1 + Aa
        pw = None
    else:
        seq = A0 + B0 + B1
        g1 = {k: [seq[k]] for k in range(12)}
        for k, fs in (x1 or {}).items(): g1[k] = fs + g1[k]
        rest = seq[12:] + Aa
        g_block(b, 1, A1, g1, prewait=({0: 0} if defer else None))
        if mid: mid()
        ny = 12 - len(A0) - 6
        pw = {0: ny} if not load_a0 else {0: ny + 3, 6: 6 + ny}
    g0 = {k: [f] for k, f in enumerate(rest)}
    for k, fs in (x0 or {}).items(): g0.setdefault(k, []).extend(fs)
    k = len(rest)
    for f in nxt_ops:
        g0.setdefault(min(k, 10), []).append(f); k += 1
    def tail():
        if not defer: b.wait_lgkm(0)
        endfn(); b.barrier()
    g0.setdefault(10, []).append(tail)
    g_block(b, 0, a0, g0, zero=(first if zero is None else zero), prewait=pw)
def q_ops(b):
    def cv(qb, nt):
        a = acc(nt, qb)
        return [lambda z=z: b.v('v_mul_f32', a+z, 's56', a+z) for z in range(4)] + \
               [lambda: b.v('v_cvt_pk_bf16_f32', a, a, a+1), lambda: b.v('v_cvt_pk_bf16_f32', a+1, a+2, a+3),
                lambda: b.dsw('ds_write_b64', VQW, a, 2, qb*16*QROW + nt*32)]
    return sum([cv(qb, nt) for qb in range(6) for nt in range(2)], [])
def g_tail(b, ops):
    gaps = {}
    for k in range(5, 12): gaps[k] = [ops.pop(0), ops.pop(0)]
    g_block(b, 1, A1, gaps)
    for f in ops: f()
    b.wait_lgkm(0)
def g_fused(b, ops, full):
    for f in gemm_addr_ops(b, g_base(0, full)): f()
    x1 = {k: [ops.pop(0)] for k in range(6, 12)}
    def mid():
        for f in ops: f()
    g_interval(b, RES, full, False, gemm_addr_ops(b, g_base(1, full)), lambda: None, zero=True, x1=x1, mid=mid)
    b.s('s_branch L_gem_F1' if full else 's_branch L_gem_R1')
def g_main(b, cfg, full, M):
    for f in gemm_addr_ops(b, g_base(0, full)): f()
    for c in range(16):
        x0 = {7: [lambda: M.psignal(GF)]} if (c == 5 and not full) else None
        if c == 1: b.label('L_gem_F1' if full else 'L_gem_R1')
        g_interval(b, RES + 8*c, full, c == 0, gemm_addr_ops(b, g_base(c+1, full)) if c < 15 else [], (lambda c=c: M.need({('g', c+1)}) if c != 4 else b.vm(0)), x0=x0)
GF = 248

O_ = 0; Q_ = 96; KF = 144; VF = 176; S_ = 208; P_ = 224; NM = 232; L_ = 244
VKA = 247; VVA = 248; VKB = 249; VVB = 250; T0 = 251; VVH = 253
LB = S_ + 8
def Oreg(c, dt): return O_ + 32*c + 4*dt
def att_setup(b):
    lane = LANE; t0 = T0
    b.s('s_mul_i32 s39, s55, 8448')
    b.v('v_and_b32', t0, '7', lane); b.v('v_mul_u32_u24', VKB, '1056', t0)
    b.v('v_bfe_u32', t0, lane, '3', '1'); b.v('v_lshlrev_b32', t0, '8', t0); b.v('v_add_u32', VKB, VKB, t0)
    b.v('v_lshrrev_b32', t0, '4', lane); b.v('v_lshlrev_b32', t0, '4', t0); b.v('v_add3_u32', VKB, VKB, t0, 's39')
    b.v('v_bfe_u32', t0, lane, '2', '3'); b.v('v_mul_u32_u24', VVB, '1056', t0)
    b.v('v_lshrrev_b32', t0, '5', lane); b.v('v_lshlrev_b32', t0, '8', t0); b.v('v_add_u32', VVB, VVB, t0)
    b.s('s_lshl_b32 s50, s55, 7'); b.s('s_add_u32 s39, s39, s50')
    b.v('v_and_b32', t0, '3', lane); b.v('v_lshlrev_b32', t0, '3', t0); b.v('v_add3_u32', VVB, VVB, t0, 's39')
    b.s('s_lshl_b32 s77, s55, 8'); b.s('s_sub_u32 s77, 128, s77')
def q_addr(b, t0, t1):
    b.s('s_and_b32 s39, s34, 1'); b.s(f's_mul_i32 s39, s39, {48*QROW}'); b.s(f's_add_u32 s39, s39, {XB}')
    b.v('v_and_b32', t0, '15', LANE); b.v('v_mul_u32_u24', t0, str(QROW), t0)
    b.v('v_lshrrev_b32', t1, '4', LANE); b.v('v_lshlrev_b32', t1, '4', t1); b.v('v_add3_u32', t0, t0, t1, 's39')
def q_reads(b, t0):
    for c in range(3):
        for m in range(4): b.dsr('ds_read_b128', Q_+16*c+4*m, 4, t0, c*16*QROW + m*64)
def crossred(b, t, u, op='v_max_f32'):
    b.v('v_mov_b32', u, t); b.swap32(t, u); b.v(op, t, t, u)
    b.v('v_mov_b32', u, t); b.swap16(t, u); b.v(op, t, t, u)

class Att:
    def __init__(self, b, cfg):
        self.b, self.cfg, self.rare = b, cfg, []
        self.order = [(m, t) for t in range(2) for m in range(4)] if cfg.chain else [(m, t) for m in range(4) for t in range(2)]
    def qk_list(self, task):
        b = self.b; i, c = divmod(task, 3); buf = task & 1; out = []
        for m, t in self.order:
            if True:
                d = S_ + 8*buf + 4*t
                cc = d if m else (None if i == 0 else NM + 4*c)
                out.append(lambda d=d, t=t, m=m, cc=cc: b.mfma16(d, KF+16*t+4*m, Q_+16*c+4*m, cc))
        return out
    def pv_list(self, task):
        b = self.b; i, c = divmod(task, 3); buf = task & 1
        return [lambda dt=dt: b.mfma16(Oreg(c, dt), VF+4*dt, P_+4*buf, None if i == 0 else Oreg(c, dt)) for dt in range(8)]
    def kread(self, k):
        m, t = self.order[k]
        return lambda: self.b.dsr('ds_read_b128', KF+16*t+4*m, 4, VKA, t*512+m*64)
    def vread(self, k):
        dt, t = divmod(k, 2)
        return lambda: self.b.dsr('ds_read_b64_tr_b16', VF+4*dt+2*t, 2, VVA if dt < 4 else VVH, t*512+(dt % 4)*32)
    def pre(self, task):
        b = self.b; i, c = divmod(task, 3); S = S_ + 8*(task & 1); t, u = T0, T0+1
        o = [(4, lambda: b.v('v_max3_f32', t, S, S+1, S+2)), (4, lambda: b.v('v_max3_f32', u, S+3, S+4, S+5)),
             (4, lambda: b.v('v_max3_f32', t, S+6, S+7, t)), (4, lambda: b.v('v_max_f32', t, t, u))]
        if i > 0: o.append((4, lambda: b.emit(f'v_cmp_lt_f32 vcc, 4.0, {vr(t)}', 'valu', (), {t})))
        return o
    def main(self, task):
        b = self.b; i, c = divmod(task, 3); buf = task & 1
        S = S_ + 8*buf; P = P_ + 4*buf; t, u = T0, T0+1
        o = []
        if i == 0:
            o += [(4, lambda: b.v('v_mov_b32', u, t)), (8, lambda: b.swap32(t, u)), (4, lambda: b.v('v_max_f32', t, t, u)),
                  (4, lambda: b.v('v_mov_b32', u, t)), (8, lambda: b.swap16(t, u)), (4, lambda: b.v('v_max_f32', t, t, u))]
            for k in range(8): o.append((4, lambda k=k: b.v('v_sub_f32', S+k, S+k, t)))
            for k in range(4): o.append((4, lambda k=k: b.v('v_sub_f32', NM+4*c+k, '0', t)))
        else:
            def br():
                b.s(f's_cbranch_vccnz L_rare{task}'); b.label(f'L_back{task}'); self.rare.append(task)
            o.append((6, br))
        for k in range(8):
            o.append((8, lambda k=k: b.exp(S+k, S+k)))
            if k >= 1:
                kk = k - 1
                if i == 0 and kk == 0: o.append((4, lambda: b.v('v_mov_b32', L_+c, S)))
                elif 'a' not in self.cfg.cut: o.append((4, lambda kk=kk: b.v('v_add_f32', L_+c, L_+c, S+kk)))
            if k >= 2 and k % 2 == 0:
                h = k//2 - 1
                o.append((4, lambda h=h: b.v('v_cvt_pk_bf16_f32', P+h, S+2*h, S+2*h+1)))
        o.append((4, lambda: b.v('v_add_f32', L_+c, L_+c, S+7)))
        o.append((4, lambda: b.v('v_cvt_pk_bf16_f32', P+3, S+6, S+7)))
        return o
    def addr_k(self, j): self.b.v('v_add_u32', VKA, str(t_base(KPOS[j])), VKB)
    def addr_v(self, j): self.b.v('v_add_u32', VVA, str(t_base(VPOS[j])), VVB); self.b.v('v_add_u32', VVH, 's77', VVA)
    def step(self, s, endfn=None):
        b = self.b; mf = []; prew = {}
        i, c = divmod(s, 3)
        if s + 1 <= 23: mf += self.qk_list(s + 1)
        if s - 1 >= 0: mf += self.pv_list(s - 1)
        n = len(mf)
        post = [[] for _ in range(n)]
        hasK = i + 1 <= 7
        if c == 0:
            off = 8 if s else 0
            for k in range(8): post[off + k].append(self.vread(k))
        elif c == 1:
            for k in range(8): post[k].append(self.vread(8 + k))
            if hasK:
                for k in range(8): post[8 + k].append(self.kread(k))
            prew[8] = 8; prew[12] = 4 if hasK else 0
        elif hasK:
            prew[0] = 4; prew[4] = 0
        sm = self.main(s) + (self.pre(s + 1) if s + 1 <= 23 else [])
        if B.skel: sm = []
        ecost = 20
        tot = sum(x for x, _ in sm) + 4*sum(len(p) for p in post) + 4*len(prew) + (ecost if endfn else 0)
        acc_ = 0; k = 0
        for j in range(n):
            if j in prew: b.wait_lgkm(prew[j]); acc_ += 4
            mf[j]()
            for f in post[j]: f(); acc_ += 4
            if endfn and j == n - 4:
                endfn(); acc_ += ecost
                continue
            tgt = tot * (j + 1) / n
            while k < len(sm) and (acc_ + sm[k][0]/2 <= tgt or j == n - 1):
                sm[k][1](); acc_ += sm[k][0]; k += 1
    def start(self):
        for f in self.qk_list(0): f()
        for _, f in self.pre(0): f()
    def intervals(self, L):
        b, cfg = self.b, self.cfg
        for j in range(1, 9):
            for s in range(3*(j-1), 3*j):
                if s == 23:
                    b.wait_lgkm(0)
                    b.s('s_cmp_eq_u32 s48, 0'); b.s('s_cbranch_scc1 L_a_noq1')
                    b.s('s_cmp_ge_u32 s41, 3'); b.s('s_cbranch_scc1 L_a_noq1')
                    sv = b.save(); q_addr(b, KF, KF+1); q_reads(b, KF); b.restore(sv)
                    b.label('L_a_noq1')
                def endfn(j=j):
                    b.wait_lgkm(0)
                    if j == 8: b.raw('s_waitcnt lgkmcnt(0)')
                    else:
                        self.addr_v(j)
                        if j + 1 <= 7: self.addr_k(j + 1)
                    L.need(cons_tags('a', 'a', j + 1))
                    b.barrier()
                self.step(s, endfn if s == 3*j - 1 else None)
    XA = KF; SA = KF+1; XP = KF+2; OS = KF+4; FO = KF+10; FT = KF+13; PK = VF; UP = S_; VO = P_+2
    def pack(self, c, mp):
        b = self.b; pk = KF + 16 + 4*((2*c+mp) % 4); r = []
        for h in range(2):
            o = Oreg(c, 4 + 2*mp + h)
            r += [lambda o=o, h=h: b.v('v_cvt_pk_bf16_f32', pk+2*h, o, o+1), lambda o=o, h=h: b.v('v_cvt_pk_bf16_f32', pk+2*h+1, o+2, o+3)]
        if 'C' in self.cfg.cut: return [lambda: None]*5
        return r + [lambda: b.dsw('ds_write_b128', self.XA, pk, 4, (2*c+mp)*1024)]
    def c0(self):
        b = self.b; XA = self.XA
        b.s('s_mul_i32 s50, s34, 6144'); b.s(f's_add_u32 s50, s50, {XB}')
        fill = [lambda: b.v('v_lshl_add_u32', XA, LANE, '4', 's50')]
        fill += self.pack(0, 0) + self.pack(0, 1) + self.pack(1, 0) + self.pack(1, 1)
        pv = self.pv_list(23)
        for dt in (4, 5, 6, 7, 0, 1, 2, 3):
            pv[dt]()
            for _ in range(2): fill.pop(0)()
        for f in fill: f()
    def c1(self):
        b = self.b; SA = self.SA
        red = []
        for c in range(3):
            Lr = L_ + c; uu = S_ + c
            red.append([lambda Lr=Lr, uu=uu: b.v('v_mov_b32', uu, Lr), lambda Lr=Lr, uu=uu: b.swap32(Lr, uu), lambda Lr=Lr, uu=uu: b.v('v_add_f32', Lr, Lr, uu),
                        lambda Lr=Lr, uu=uu: b.v('v_mov_b32', uu, Lr), lambda Lr=Lr, uu=uu: b.swap16(Lr, uu), lambda Lr=Lr, uu=uu, c=c: b.v('v_add_f32', NM+4*c+1, Lr, uu)])
        o = [lambda: (b.s('s_mul_i32 s50, s34, 384'), b.s(f's_add_u32 s50, s50, {STAT}'))]
        o += self.pack(2, 0) + self.pack(2, 1)
        o += [lambda: b.v('v_and_b32', SA, '15', LANE), lambda: b.v('v_mad_u32_u24', SA, SA, '24', 's50')]
        if 'C' in self.cfg.cut: return o
        o += [red[c][k] for k in range(6) for c in range(3)]
        o += [lambda c=c: b.dsw('ds_write_b64', SA, NM+4*c, 2, 8*c) for c in range(3)]
        o += [lambda: (b.s('s_mul_i32 s51, s77, 96'), b.s('s_mul_i32 s50, s77, 6')), lambda: b.v('v_add_u32', self.XP, 's51', self.XA), lambda: b.v('v_add_u32', SA, 's50', SA)]
        return o
    def c2a(self):
        b = self.b
        if 'C' in self.cfg.cut: return []
        return [lambda c=c: b.dsr('ds_read_b64', self.OS+2*c, 2, self.SA, 8*c) for c in range(3)] + \
               [lambda k=k: b.dsr('ds_read_b128', self.PK+4*k, 4, self.XP, k*1024) for k in range(6)]
    def c2b(self):
        b = self.b; ops = []
        for c in range(3):
            nm, lo = NM+4*c, NM+4*c+1; on, ol = self.OS+2*c, self.OS+2*c+1; fo, ft = self.FO+c, self.FT+c; t = NM+4*c+2
            ops.append([lambda t=t, nm=nm, on=on: b.v('v_min_f32', t, nm, on), lambda fo=fo, t=t, nm=nm: b.v('v_sub_f32', fo, t, nm), lambda ft=ft, t=t, on=on: b.v('v_sub_f32', ft, t, on),
                        lambda fo=fo: b.exp(fo, fo), lambda ft=ft: b.exp(ft, ft), lambda t=t, fo=fo, lo=lo: b.v('v_mul_f32', t, fo, lo), lambda t=t, ft=ft, ol=ol: b.v('v_fma_f32', t, ft, ol, t),
                        lambda t=t: b.v('v_rcp_f32', t, t, kind='trans'), lambda fo=fo, t=t: b.v('v_mul_f32', fo, fo, t), lambda ft=ft, t=t: b.v('v_mul_f32', ft, ft, t)])
        return ([] if 'C' in self.cfg.cut else [ops[c][k] for k in range(10) for c in range(3)]) + [lambda: b.v('v_lshlrev_b32', self.VO, '4', LANE), lambda: b.s('s_add_u32 s51, s54, 4096')]
    def part(self, pi):
        b = self.b; o_ = []
        def V(*a, **k): o_.append(lambda: b.v(*a, **k))
        c, mp = divmod(pi, 2); fo, ft = self.FO+c, self.FT+c
        pk = self.PK + 4*pi
        for h in range(2):
            o = Oreg(c, 2*mp + h); up = self.UP + 4*h
            V('v_lshlrev_b32', up, '16', pk+2*h); V('v_and_b32', up+1, '0xffff0000', pk+2*h)
            V('v_lshlrev_b32', up+2, '16', pk+2*h+1); V('v_and_b32', up+3, '0xffff0000', pk+2*h+1)
            for z in range(4): V('v_mul_f32', o+z, o+z, fo)
            for z in range(4): V('v_fmac_f32', o+z, up+z, ft, extra_r={o+z})
            V('v_cvt_pk_bf16_f32', pk+2*h, o, o+1); V('v_cvt_pk_bf16_f32', pk+2*h+1, o+2, o+3)
        if 'P' in self.cfg.cut: o_ = o_[:4]
        if 'C' in self.cfg.cut: o_ = o_[:1]
        return o_
    def store(self, pi, L):
        def f():
            so, im = pair_off(self.b, 's54', pi, 's51')
            self.b.store(4, self.PK + 4*pi, self.VO, 20, so, im, self.cfg.opol); L.q.append(('st', 1))
        return [f]
    def rare_block(self, task):
        b = self.b; i, c = divmod(task, 3); S = S_ + 8*(task & 1); t, u = T0, T0+1
        b.reset(); b.label(f'L_rare{task}'); b.nop(2)
        crossred(b, t, u)
        b.v('v_max_f32', t, '0', t)
        b.v('v_sub_f32', u, '0', t); b.exp(u, u)
        for k in range(8): b.v('v_sub_f32', S+k, S+k, t)
        for k in range(4): b.v('v_sub_f32', NM+4*c+k, NM+4*c+k, t)
        b.v('v_mul_f32', L_+c, L_+c, u)
        for k in range(32): b.v('v_mul_f32', O_+32*c+k, O_+32*c+k, u)
        b.nop(2); b.s(f's_branch L_back{task}')

def phase_stamp(b, cfg):
    if cfg.stamps:
        b.raw('s_memrealtime s[90:91]'); b.raw('s_waitcnt lgkmcnt(0)'); b.raw('s_sub_u32 s90, s90, s88')
        b.raw('s_add_u32 s91, s40, s41'); (b.raw('s_add_u32 s91, s91, 1'), b.raw('s_min_u32 s91, s91, 8')) if cfg.early else (b.raw('s_max_u32 s91, s91, 3'), b.raw('s_sub_u32 s91, s91, 3')); b.raw('s_mov_b32 m0, s91'); b.raw('s_nop 0'); b.raw('s_movreld_b32 s91, s90')
def stamp_dump(b, cfg):
    if cfg.stamps:
        b.raw('s_memrealtime s[90:91]'); b.raw('s_waitcnt lgkmcnt(0)'); b.raw('s_sub_u32 s99, s90, s88')
        b.raw('s_cmp_lg_u32 s35, 4'); b.raw('s_cbranch_scc1 L_k1_end')
        b.raw('s_lshl_b32 s91, s2, 5'); b.raw(f's_add_u32 s80, s20, {64 << 20}'); b.raw('s_addc_u32 s81, s21, 0')
        b.raw(f'v_mov_b32 v{GT+1}, s91')
        for k in range(8):
            b.raw(f'v_mov_b32 v{GT}, s{92+k}'); b.raw(f'global_store_dword v{GT+1}, v{GT}, s[80:81] offset:{4*k}')
    if cfg.ivw is not None:
        b.raw('s_cmp_lg_u32 s35, 4'); b.raw('s_cbranch_scc1 L_k1_end')
        b.raw(f's_add_u32 s80, s20, {66 << 20}'); b.raw('s_addc_u32 s81, s21, 0'); b.raw('s_lshl_b32 s91, s2, 8')
        b.raw(f'v_lshlrev_b32 v{GT}, 2, v{LANE}'); b.raw(f'v_add_u32 v{GT}, s91, v{GT}'); b.raw(f'global_store_dword v{GT}, v247, s[80:81]')

def k1(cfg):
    verify_ring(cfg)
    b = B()
    KN = NAME + '_kernel'
    b.raw(f'.globl {KN}'); b.raw('.p2align 8'); b.raw(f'.type {KN},@function'); b.label(KN)
    b.s('s_cmp_ge_u32 s2, 256'); b.s('s_cbranch_scc1 L_k1_end')
    if cfg.stamps or cfg.hstamp or cfg.padto: b.raw('s_memrealtime s[88:89]')
    def hs(k):
        if cfg.hstamp: b.raw('s_memrealtime s[90:91]'); b.raw('s_waitcnt lgkmcnt(0)'); b.raw(f's_sub_u32 s90, s90, s88'); b.raw(f'v_mov_b32 v{10+k}, s90')
    b.s('s_and_b32 s60, s2, 7'); b.s('s_lshr_b32 s61, s2, 3'); b.s('s_lshr_b32 s62, s60, 2')
    b.s('s_mul_i32 s63, s62, 40'); b.s('s_add_u32 s64, s0, s63'); b.s('s_addc_u32 s65, s1, 0')
    b.s('s_load_dwordx4 s[68:71], s[64:65], 0'); b.s('s_load_dwordx4 s[72:75], s[64:65], 16')
    b.s('s_load_dwordx2 s[76:77], s[64:65], 32'); b.s('s_load_dwordx2 s[78:79], s[0:1], 96'); b.s('s_load_dwordx4 s[28:31], s[0:1], 80')
    if cfg.wopf == 3: b.s('s_load_dwordx2 s[92:93], s[0:1], 32'); b.s('s_load_dwordx2 s[96:97], s[0:1], 72')
    if cfg.codepf:
        b.s('s_and_b32 s39, s61, 15'); b.s('s_cmp_lg_u32 s39, 0'); b.s('s_cbranch_scc1 L_nocpf')
        b.raw('s_getpc_b64 s[82:83]')
        b.label('L_pc')
        b.v('v_lshlrev_b32', 2, '7', 0)
        b.v('v_min_u32', 2, 'L_code_end-L_pc-4', 2)
        b.v('v_mov_b32', 3, 's83')
        b.emit('v_add_co_u32 v2, vcc, s82, v2', 'valu', {2}, {2}); b.nop(2)
        b.emit('v_addc_co_u32 v3, vcc, 0, v3, vcc', 'valu', {3}, {3})
        b.emit(f'global_load_dword v{DUM}, v[2:3], off', 'vmem', {DUM}, {2, 3})
        b.label('L_nocpf')
    b.v('v_lshrrev_b32', 1, '6', 0); b.rfl(35, 1)
    lane_id(b, LANE)
    b.s('s_and_b32 s34, s35, 3'); b.s('s_lshr_b32 s55, s34, 1')
    b.s('s_and_b32 s33, s60, 3'); b.s('s_lshl_b32 s66, s33, 3'); b.s('s_and_b32 s67, s61, 7'); b.s('s_add_u32 s66, s66, s67')
    b.s('s_lshr_b32 s63, s61, 3')
    b.s('s_and_b32 s48, s63, 1' if cfg.stagger else 's_mov_b32 s48, 0')
    b.s('s_mov_b32 s40, 0'); b.s('s_mov_b32 s41, 0'); b.s('s_mov_b32 s37, 0')
    m8 = list(cfg.masks) * (8 // len(cfg.masks))
    pk4 = lambda ms: sum(m << 8*i for i, m in enumerate(ms))
    b.s(f's_mov_b32 s32, {pk4(m8[:4]):#x}'); b.s('s_bitcmp1_b32 s60, 1'); b.s(f's_cselect_b32 s32, {pk4(m8[4:]):#x}, s32')
    b.s('s_lshl_b32 s39, s63, 3'); b.s('s_lshr_b32 s32, s32, s39'); b.s('s_and_b32 s32, s32, 255')
    b.s('s_mul_i32 s44, s63, 196608'); b.s('s_lshl_b32 s45, s66, 8')
    b.s('s_lshl_b32 s46, s63, 5'); b.s('s_add_u32 s46, s46, s66'); b.s('s_lshl_b32 s46, s46, 17')
    b.s('s_lshl_b32 s80, s62, 4'); b.s('s_add_u32 s80, s80, s63')
    b.s('s_lshl_b32 s47, s80, 6')
    b.s('s_lshl_b32 s39, s66, 1'); b.s('s_add_u32 s47, s47, s39'); b.s('s_add_u32 s47, s47, s55'); b.s('s_mul_i32 s47, s47, 12288')
    b.s('s_and_b32 s39, s34, 1'); b.s('s_mul_i32 s39, s39, 6144'); b.s('s_add_u32 s47, s47, s39')
    b.s('s_mul_i32 s52, s34, 1056'); b.s('s_lshl_b32 s53, s34, 10')
    b.s(f's_mov_b32 s56, {f2u(CEXP):#x}')
    b.s('s_mul_i32 s57, s67, 24576'); b.s('s_lshl_b32 s39, s34, 13'); b.s('s_add_u32 s57, s57, s39'); b.s('s_add_u32 s57, s57, s44')
    b.s('s_cmp_eq_u32 s34, 3'); b.s(f's_cselect_b32 s57, {OOB}, s57')
    hs(0)
    b.raw('s_waitcnt lgkmcnt(0)')
    srd(b, 4, 68, 16*96*1024*2); srd(b, 8, 70, 1 << 26); srd(b, 12, 72, 1 << 26); srd(b, 16, 74, 1 << 23)
    srd(b, 20, 78, FB); srd(b, 24, 76, 1 << 23)
    b.s(f's_add_u32 s68, s78, {FB}'); b.s('s_addc_u32 s69, s79, 0'); b.s('s_mov_b32 s70, 49152'); b.s('s_mov_b32 s71, 0x20000')
    b.s('s_mov_b32 s64, s30'); b.s('s_mov_b32 s65, s31')
    b.s(f's_mov_b32 s30, {16*96*2048*2}'); b.s('s_mov_b32 s31, 0x20000')
    b.s('s_lshl_b32 s72, s80, 9'); b.s('s_lshl_b32 s50, s33, 7'); b.s('s_add_u32 s72, s72, s50'); b.s('s_lshl_b32 s50, s67, 3'); b.s('s_add_u32 s72, s72, s50')
    b.s('s_lshl_b32 s81, s80, 3'); b.s('s_add_u32 s81, s81, s67')
    b.s('s_lshl_b32 s73, s81, 7'); b.s('s_add_u32 s73, s73, 16384')
    b.s(f's_mul_i32 s78, s81, {3*PT}'); b.s('s_mul_i32 s79, s34, 6144'); b.s('s_add_u32 s78, s78, s79'); b.s(f's_add_u32 s78, s78, {PB}')
    b.s('s_lshl_b32 s74, s80, 2'); b.s('s_add_u32 s74, s74, s33'); b.s(f's_mul_i32 s74, s74, {16*12288}')
    b.s('s_mov_b32 s100, s33')
    b.s('s_and_b32 s58, s63, 1'); b.s('s_lshl_b32 s58, s58, 4'); b.s('s_lshl_b32 s59, s62, 1'); b.s('s_add_u32 s58, s58, s59'); b.s('s_lshr_b32 s59, s63, 1'); b.s('s_add_u32 s58, s58, s59')
    if cfg.tlay & 1:
        b.s('s_lshl_b32 s59, s33, 2'); b.s('s_add_u32 s59, s59, s58'); b.s('s_mul_i32 s74, s59, 196608')
        b.s('s_lshl_b32 s39, s67, 1'); b.s('s_add_u32 s39, s39, s55'); b.s('s_mul_i32 s47, s39, 12288'); b.s('s_add_u32 s47, s47, s74')
        b.s('s_and_b32 s39, s34, 1'); b.s('s_mul_i32 s39, s39, 6144'); b.s('s_add_u32 s47, s47, s39')
    if cfg.tlay & 2:
        b.s('s_lshl_b32 s58, s58, 3'); b.s('s_add_u32 s58, s58, s67'); b.s(f's_mul_i32 s78, s58, {PT}'); b.s('s_add_u32 s78, s78, s79'); b.s(f's_add_u32 s78, s78, {PB}')
    b.s('s_mov_b32 s0, 2048')
    if cfg.rot == 1: b.s('s_lshl_b32 s1, s67, 14')
    if cfg.rot == 2: b.s('s_add_u32 s1, s67, s60'); b.s('s_add_u32 s1, s1, s63'); b.s('s_and_b32 s1, s1, 7'); b.s('s_lshl_b32 s1, s1, 14')
    if cfg.rot == 3: b.s('s_mul_i32 s1, s2, 0x9e37'); b.s('s_lshr_b32 s1, s1, 5'); b.s('s_and_b32 s1, s1, 15'); b.s('s_lshl_b32 s1, s1, 13')
    if cfg.rot == 4: b.s('s_lshl_b32 s1, s60, 14')
    if cfg.ilv:
        assert cfg.tlay == 3
        b.s('s_bitcmp1_b32 s34, 0'); b.s('s_cselect_b32 s0, 30720, s0')
        b.s('s_mul_i32 s39, s34, 3'); b.s('s_and_b32 s59, s39, 1'); b.s('s_lshl_b32 s59, s59, 11'); b.s('s_lshr_b32 s39, s39, 1'); b.s('s_lshl_b32 s39, s39, 15')
        b.s('s_add_u32 s39, s39, s59'); b.s('s_lshl_b32 s59, s67, 12'); b.s('s_add_u32 s39, s39, s59')
        b.s('s_add_u32 s47, s74, s39')
        b.s('s_lshr_b32 s58, s58, 3'); b.s('s_mul_i32 s78, s58, 196608'); b.s('s_add_u32 s78, s78, s39'); b.s(f's_add_u32 s78, s78, {PB}')
    b.s('s_lshl_b32 s75, s33, 21'); b.s('s_lshl_b32 s50, s67, 8'); b.s('s_add_u32 s75, s75, s50')
    b.s('s_add_u32 s39, s33, 3'); b.s('s_and_b32 s39, s39, 3'); b.s('s_lshl_b32 s39, s39, 2'); b.s('s_add_u32 s39, s39, s63'); b.s(f's_mul_i32 s76, s39, {96*4096}')
    b.s('s_add_u32 s76, s76, s50'); b.s('s_lshl_b32 s50, s62, 11'); b.s('s_add_u32 s76, s76, s50'); b.s('s_lshl_b32 s50, s34, 6'); b.s('s_add_u32 s76, s76, s50')
    b.s('s_lshl_b32 s87, s33, 21'); b.s('s_lshl_b32 s50, s61, 16'); b.s('s_add_u32 s87, s87, s50'); b.s('s_lshl_b32 s50, s34, 13'); b.s('s_add_u32 s87, s87, s50')
    if cfg.pf0 in (1, 3):
        b.v('v_lshlrev_b32', 3, '7', LANE)
        b.s('s_lshr_b32 s39, s35, 2'); b.s('s_cmp_gt_u32 s39, s48'); b.s(f's_cselect_b32 s50, {OOB}, 0')
        b.s('s_add_u32 s39, s39, s33'); b.s('s_and_b32 s39, s39, 3'); b.s('s_mul_i32 s39, s39, 786432'); b.s('s_add_u32 s39, s39, s57'); b.s('s_or_b32 s51, s39, s50')
        b.v('v_lshrrev_b32', 2, '4', LANE); b.v('v_lshlrev_b32', 2, '13', 2); b.v('v_and_b32', 4, '15', LANE); b.v('v_lshl_add_u32', 2, 4, '7', 2)
        b.s('s_lshl_b32 s39, s35, 5'); b.s('s_add_u32 s39, s39, s61'); b.s('s_lshl_b32 s39, s39, 15'); b.s('s_lshl_b32 s50, s33, 11'); b.s('s_add_u32 s39, s39, s50')
        if cfg.pf0 == 3: b.s('s_cmp_eq_u32 s35, 0'); b.s(f's_cselect_b32 s39, {OOB}, s39')
        b.s('s_cmp_lt_u32 s35, 4'); b.s('s_cbranch_scc0 L_pfb')
        b.load1(DUM, 3, 4, 's51'); b.load1(DUM, 2, 16, 's39')
        b.s('s_branch L_pfe')
        b.label('L_pfb')
        b.load1(DUM, 2, 16, 's39'); b.load1(DUM, 3, 4, 's51')
        b.label('L_pfe')
    if cfg.pf0 == 2:
        b.s('s_cmp_eq_u32 s48, 0'); b.s('s_cbranch_scc1 L_nopf0')
        if cfg.pfx: b.s(f's_bitcmp1_b32 {cfg.pfx}, s60'); b.s('s_cbranch_scc1 L_nopf0')
        b.v('v_lshlrev_b32', 3, '7', LANE)
        b.s('s_mul_i32 s39, s33, 786432'); b.s('s_add_u32 s39, s39, s57'); b.s('s_sub_u32 s39, s39, 196608'); b.s('s_cmp_ge_u32 s35, 3'); b.s(f's_cselect_b32 s39, {OOB}, s39')
        b.load1(DUM, 3, 4, 's39')
        if cfg.wqrow:
            b.v('v_lshrrev_b32', 2, '4', LANE); b.v('v_lshlrev_b32', 2, '13', 2); b.v('v_and_b32', 4, '15', LANE); b.v('v_lshl_add_u32', 2, 4, '7', 2)
            b.s('s_lshl_b32 s39, s35, 1'); b.s('s_lshr_b32 s50, s63, 1'); b.s('s_add_u32 s39, s39, s50'); b.s('s_lshl_b32 s39, s39, 3'); b.s('s_add_u32 s39, s39, s67')
            b.s('s_lshl_b32 s39, s39, 15'); b.s('s_lshl_b32 s50, s33, 11'); b.s('s_add_u32 s39, s39, s50')
        else:
            b.v('v_lshrrev_b32', 2, '1', LANE); b.v('v_lshlrev_b32', 2, '13', 2); b.v('v_and_b32', 4, '1', LANE); b.v('v_lshlrev_b32', 4, '7', 4); b.v('v_add_u32', 2, 2, 4)
            b.s('s_lshl_b32 s39, s35, 1'); b.s('s_lshr_b32 s50, s63, 1'); b.s('s_add_u32 s39, s39, s50'); b.s('s_lshl_b32 s39, s39, 18'); b.s('s_add_u32 s39, s39, s45')
        b.load1(DUM, 2, 16, 's39')
        b.s(f's_add_u32 s39, s39, {16 << 18}')
        b.load1(DUM, 2, 16, 's39')
        b.s('s_lshr_b32 s39, s35, 2'); b.s('s_add_u32 s39, s39, s33'); b.s('s_and_b32 s39, s39, 3'); b.s('s_mul_i32 s39, s39, 786432'); b.s('s_add_u32 s39, s39, s57')
        if cfg.nox1: b.s('s_cmp_ge_u32 s35, 4'); b.s(f's_cselect_b32 s39, {OOB}, s39')
        b.load1(DUM, 3, 4, 's39')
        b.label('L_nopf0')
    if cfg.pf0 == 4:
        b.s('s_cmp_lt_u32 s63, 2'); b.s('s_cbranch_scc1 L_nopf0')
        b.v('v_lshlrev_b32', 3, '7', LANE)
        b.s('s_mul_i32 s39, s33, 786432'); b.s('s_add_u32 s39, s39, s57'); b.s('s_sub_u32 s39, s39, 393216'); b.s('s_cmp_ge_u32 s35, 3'); b.s(f's_cselect_b32 s39, {OOB}, s39')
        b.load1(DUM, 3, 4, 's39')
        b.v('v_lshrrev_b32', 2, '1', LANE); b.v('v_lshlrev_b32', 2, '13', 2); b.v('v_and_b32', 4, '1', LANE); b.v('v_lshlrev_b32', 4, '7', 4); b.v('v_add_u32', 2, 2, 4)
        b.s('s_lshl_b32 s39, s35, 1'); b.s('s_and_b32 s50, s63, 1'); b.s('s_add_u32 s39, s39, s50'); b.s('s_lshl_b32 s39, s39, 18'); b.s('s_add_u32 s39, s39, s45')
        b.load1(DUM, 2, 16, 's39')
        b.s(f's_add_u32 s39, s39, {16 << 18}')
        b.load1(DUM, 2, 16, 's39')
        b.s('s_lshr_b32 s39, s35, 2'); b.s('s_add_u32 s39, s39, s33'); b.s('s_and_b32 s39, s39, 3'); b.s('s_mul_i32 s39, s39, 786432'); b.s('s_add_u32 s39, s39, s57')
        if cfg.nox1: b.s('s_cmp_ge_u32 s35, 4'); b.s(f's_cselect_b32 s39, {OOB}, s39')
        b.load1(DUM, 3, 4, 's39')
        b.label('L_nopf0')
    if cfg.wopf == 3:
        w1 = cfg.won1 if cfg.won1 is not None else cfg.won
        n = list(cfg.w32) if cfg.w32 else (list(cfg.won) + list(w1)) * 2
        assert sum(n) <= 256
        base = [8*sum(n[:i]) for i in range(32)]
        b.s('s_mov_b32 s94, 0x800000'); b.s('s_mov_b32 s95, 0x20000'); b.s('s_mov_b32 s98, 0x800000'); b.s('s_mov_b32 s99, 0x20000')
        b.s('s_lshl_b32 s58, s63, 3'); b.s('s_add_u32 s58, s58, s60')
        b.s('s_mov_b32 s50, 0')
        for i in range(32):
            if n[i]: b.s(f's_cmp_eq_u32 s58, {i}'); b.s(f's_cselect_b32 s50, {n[i] | base[i] << 8}, s50')
        b.s('s_lshr_b32 s51, s50, 8'); b.s('s_and_b32 s50, s50, 255')
        b.s('s_mul_i32 s39, s67, s50'); b.s('s_add_u32 s51, s51, s39'); b.s('s_add_u32 s51, s51, s35'); b.s('s_lshl_b32 s51, s51, 13')
        b.v('v_lshlrev_b32', 3, '7', LANE)
        for r in range((max(n) + 7) // 8):
            b.s(f's_add_u32 s39, s35, {8*r}'); b.s('s_cmp_lt_u32 s39, s50'); b.s('s_cbranch_scc0 L_wo_done')
            b.s(f's_add_u32 s39, s51, {r << 16}')
            if cfg.half is not None:
                b.s('s_and_b32 s58, s39, 0x6000'); b.s('s_andn2_b32 s39, s39, 0x7fff'); b.s('s_lshl_b32 s39, s39, 1'); b.s('s_add_u32 s39, s39, s58')
            b.load1(DUM, 3, 92, 's39')
            b.s('s_sub_u32 s39, s39, 0x800000')
            b.load1(DUM, 3, 96, 's39')
        b.label('L_wo_done')
    if cfg.wopf == 5:
        b.s('s_mov_b32 s101, 16')
        for i in range(8):
            b.s(f's_cmp_eq_u32 s60, {i}'); b.s(f's_cselect_b32 s101, {16 - cfg.won[i]}, s101')
        b.s('s_lshr_b32 s39, s63, 1'); b.s('s_lshl_b32 s39, s39, 3'); b.s('s_add_u32 s39, s39, s67'); b.s('s_lshl_b32 s39, s39, 13')
        b.s('s_lshl_b32 s87, s33, 21'); b.s('s_add_u32 s87, s87, s39')
        b.s('s_cmp_eq_u32 s48, 0'); b.s(f's_cselect_b32 s87, s87, {OOB}')
        b.v('v_lshlrev_b32', 3, '7', LANE)
        for r in (1, 0):
            b.s(f's_add_u32 s39, s35, {8*r}'); b.s('s_cmp_ge_u32 s39, s101'); b.s(f's_cbranch_scc0 L_wo_done')
            b.s('s_lshl_b32 s39, s39, 17'); b.s('s_add_u32 s39, s39, s87')
            b.load1(DUM, 3, 24, 's39')
        b.label('L_wo_done')
    b.s('s_mov_b32 s66, 256'); b.s('s_mov_b32 s67, 0x20000')
    for r, v in ((42, 256), (3, 128), (43, 32*2048), (60, 64*8192), (61, 32*8192), (62, 8*8192), (63, 786432)): b.s(f's_mov_b32 s{r}, {v}')
    hs(1)
    b.s('s_cmp_ge_u32 s35, 4'); b.s('s_cbranch_scc1 L_gem')
    b.s('s_mov_b32 s48, 0')
    A = Att(b, cfg)
    L = Loader(b, cfg, LB, T0)
    VP = KF + 20
    b.fence()
    loader_offsets(b, True, LB, 2048, 8192, False, T0)
    L.begin(0, False)
    hs(2)
    for i in range(3): L.g(i, True, ('g', i))
    hs(3)
    att_setup(b)
    L.need({('g', 0)}); hs(4); b.barrier(); hs(5)
    if cfg.hstamp:
        b.raw('v_mov_b32 v16, s88'); b.raw('v_mov_b32 v17, 0')
        b.raw('s_cmp_lg_u32 s35, 0'); b.raw('s_cbranch_scc1 L_nohs')
        b.raw('s_lshl_b32 s91, s2, 5'); b.raw(f's_add_u32 s92, s20, {64 << 20}'); b.raw('s_addc_u32 s93, s21, 0')
        b.raw('v_mov_b32 v9, s91'); b.raw('global_store_dwordx4 v9, v[10:13], s[92:93]'); b.raw('global_store_dwordx4 v9, v[14:17], s[92:93] offset:16')
        b.label('L_nohs')
    b.fence()
    def f_loader(t0, t1, extra={}, fills={}, dr=None):
        for t in range(t0, t1):
            if t == dr: b.vm(0); L.q = []
            L.setfill(fills.get(t, []), 7)
            L.g(t + 3, True, ('g', t+3))
            L.flush(); b.wait_lgkm(0)
            for f in extra.get(t, []): f()
            L.need({('g', t+1)} | ({'p', 'n'} if t == 12 else set())); b.barrier()
    def r_loader(t0, t1, extra={}, fills={}, over={}, dr=None):
        for t in range(t0, t1):
            own = over[t] if t in over else R_OWN.get(t, [])
            if t == dr: b.vm(0); L.q = []
            L.setfill(fills.get(t, []), 5*len(own))
            for i in own: L.g(i, False, ('g', i))
            L.flush(); b.wait_lgkm(0)
            for f in extra.get(t, []): f()
            L.need({('g', t+1)}); b.barrier()
    def tail(t0, table, kind, pre={}, t1=16):
        for t in range(t0, t1):
            for f in pre.get(t, []): f()
            if t == 15 and t0 != 13:
                assert all(x[0] != ('g', 15) for x in L.q)
                L.psignal(VP)
            for i in table.get(t, []):
                if kind == 'a': L.t(i, ('n', i))
                elif kind == 'p': pdma(i)
                else: L.g(i, kind == 'f', ('n', i))
            L.need({('g', t+1)} if t < 15 else ({('n', 0)} if kind != 'p' else {('n', 2)})); b.barrier()
        if t1 < 16: return
        b.s('s_add_u32 s40, s40, 1')
        L.q = [((('a' if kind == 'a' else 'g'), t[1]) if isinstance(t, tuple) else t, n) for t, n in L.q]
    FJ = 9
    b.label('L_att_F')
    qF = list(L.q)
    f_loader(0, FJ)
    qFj = list(L.q)
    b.label('L_att_Fj')
    f_loader(FJ, 13, {10: [lambda: L.nonce_load(VP), lambda: L.poll(VP, 1)]})
    L.nonce_get(VP)
    q13 = list(L.q)
    b.s('s_bitcmp1_b32 s32, s40'); b.s('s_cbranch_scc0 L_att_FR')
    L.set_a(); tail(13, F_TO_A, 'a')
    qa = list(L.q)
    b.s('s_branch L_att_a')
    b.label('L_att_FR'); L.q = list(q13)
    L.begin(1, False); L.check(VP, 1)
    tail(13, F_TO_R, 'r')
    b.fence()
    b.label('L_att_R')
    qR = list(L.q)
    pollx = lambda: L.poll(VP, 1)
    def kvtouch(plus):
        if not cfg.kvr: return
        L.ub('s39', 's41'); b.s('s_lshl_b32 s39, s39, 24'); b.s('s_add_u32 s39, s39, s46')
        b.s('s_lshl_b32 s58, s34, 13'); b.s('s_add_u32 s39, s39, s58')
        b.s(f's_add_u32 s58, s40, {plus}'); b.s('s_bitcmp1_b32 s32, s58'); b.s(f's_cselect_b32 s39, s39, {OOB}')
        b.s(f's_cmp_lt_u32 s41, {cfg.kvrmin}'); b.s(f's_cselect_b32 s39, {OOB}, s39')
        b.v('v_lshlrev_b32', T0, '7', LANE)
        for k in range(cfg.kvr): b.load1(DUM, T0, 8 if k % 2 == 0 else 12, 's39')
        L.other(cfg.kvr)
    L.g(4, False, ('g', 4)); L.need({('g', 1)}); b.barrier()
    q1 = list(L.q)
    if not cfg.pdirect: b.s('s_cmp_ge_u32 s40, 4'); b.s('s_cbranch_scc1 L_att_RO')
    def rq():
        if cfg.pdirect: b.s('s_cmp_lt_u32 s40, 4'); b.s('s_cbranch_scc0 L_att_norq')
        b.s('s_mov_b32 s48, 1')
        sv = b.save(); q_addr(b, T0, T0+1); q_reads(b, T0); b.wait_lgkm(0); b.restore(sv)
        b.label('L_att_norq')
    r_loader(1, 11, {1: [rq], 2: [lambda: kvtouch(0)], 9: [pollx]}, {}, R_OWNP)
    qj = list(L.q); nj = L.items()
    b.fence()
    if not cfg.pdirect:
        b.s('s_branch L_att_Rj')
        b.label('L_att_RO'); L.q = list(q1)
        L.ub('s39', 's40', 3); b.s(f's_mul_i32 s54, s39, {32*3*PT}'); b.s('s_add_u32 s54, s54, s78')
        b.s('s_lshl_b32 s83, s39, 12'); b.s('s_add_u32 s83, s83, s73')
        b.s('s_sub_u32 s39, s40, 5'); b.s(f's_mul_i32 s51, s39, {PT}'); b.s('s_add_u32 s54, s54, s51'); b.s('s_add_u32 s51, s54, 4096')
        b.s('s_lshl_b32 s39, s39, 3'); b.s('s_add_u32 s83, s83, s39')
        b.s('s_cmp_eq_u32 s35, 0'); b.s('s_cselect_b32 s37, 1, 0')
        b.s(f's_add_u32 s50, s79, {XB}')
        b.v('v_lshlrev_b32', A.VO, '4', LANE); b.v('v_add_u32', A.XP, 's50', A.VO)
        fi = {1: A.c2a()[3:]}
        for k in range(3): fi[2+k] = A.store(2*k, L) + A.store(2*k+1, L)
        r_loader(1, 11, {7: [lambda: L.need({'st'})], 8: [lambda: L.psignal(VP)], 9: [pollx]}, fi, R_OWNP)
        assert L.q == qj, (L.q, qj)
        b.fence()
    b.label('L_att_Rj')
    L.g(15, False, ('g', 15))
    qj = list(L.q)
    b.s('s_bitcmp1_b32 s32, s40'); b.s('s_cbranch_scc0 L_att_RG')
    L.set_a(); tail(11, R_TO_A, 'a')
    assert L.q == qa, (L.q, qa)
    b.fence()
    b.label('L_att_a')
    A.addr_k(0)
    for k in range(8): A.kread(k)()
    b.s('s_cmp_eq_u32 s48, 0'); b.s('s_cbranch_scc1 L_a_c0a')
    sv = b.save()
    A.start(); b.fence()
    b.label('L_a_c0a'); b.restore(sv)
    for p in A0_OWN: L.t(p, ('a', p))
    q_addr(b, P_+4, P_+5)
    b.raw('s_waitcnt lgkmcnt(0)'); b.lds = []
    A.addr_v(0); A.addr_k(1)
    L.need(cons_tags('a', 'a', 1)); b.barrier()
    b.s('s_cmp_eq_u32 s48, 0'); b.s('s_cbranch_scc0 L_a_i1')
    q_reads(b, P_+4)
    A.start()
    b.fence()
    b.label('L_a_i1')
    A.intervals(L)
    b.s('s_add_u32 s41, s41, 1')
    A.c0()
    kvo = lambda: loader_offset_ops(b, True, LB, 2048, 8192, False, T0)[:5]
    usesAF = any(m >> 3 & 1 for m in cfg.masks)
    if usesAF:
        b.s('s_cmp_eq_u32 s40, 4'); b.s('s_cbranch_scc1 L_att_AF')
    sv = b.save()
    b.barrier()
    for f in A.c1(): f()
    b.wait_lgkm(0)
    if not cfg.allfast:
        b.s('s_add_u32 s39, s41, 2'); b.s('s_cmp_eq_u32 s39, s40'); b.s('s_cbranch_scc1 L_att_AU')
        sv3 = b.save()
        b.barrier()
        L.q = []
        for f in A.c2a(): f()
        L.begin(0, True); L.set_ost()
        L.ub('s83', 's41', 3); b.s('s_lshl_b32 s83, s83, 11'); b.s('s_add_u32 s83, s83, s72')
        b.s('s_cmp_eq_u32 s35, 0'); b.s('s_cselect_b32 s37, 1, 0')
        b.barrier()
        fi = {3: A.c2b() + kvo()}
        if cfg.burst:
            for pi in range(6): fi[4+pi] = A.part(pi)
            fi[10] = [lambda: None]*30 + sum([A.store(k, L) for k in range(6)], [])
        else:
            for pi in range(6): fi[4+pi] = A.part(pi) + (A.store(pi-1, L) if pi else [])
            fi[10] = A.store(5, L)
        r_loader(3, 11, {9: [pollx]}, fi, R_OWNS)
        assert L.items() == nj, (L.q, qj)
        b.fence()
        b.s('s_branch L_att_Rj')
        b.label('L_att_AU'); b.restore(sv3)
    if cfg.lastv:
        b.s('s_cmp_eq_u32 s41, 4'); b.s('s_cbranch_scc0 L_att_AN')
        sv4 = b.save()
        b.barrier()
        L.q = []
        for f in A.c2a(): f()
        L.begin(0, True); L.set_ost()
        b.barrier()
        sched = {1: [[0], [1, 2], [3], [4], [5]], 2: [[0], [1, 2], [3, 4], [5]], 3: [[], [0, 1], [2, 3], [4, 5]]}[cfg.lastv]
        fi = {}
        for k, ps in enumerate(sched): fi[3+k] = (A.c2b() if k == 0 else []) + sum([A.part(p) + A.store(p, L) for p in ps], [])
        ex = {10: [pollx]}; ex.setdefault(cfg.lsig-1, []).insert(0, lambda: L.need({'st'})); ex.setdefault(cfg.lsig, []).insert(0, lambda: L.signal(VP))
        ex2 = {9: [pollx]}
        r_loader(3, 11, {**{k: v for k, v in ex.items() if k != 10}, 9: ex.get(9, []) + [pollx], 10: [f for f in ex[10] if f is not pollx]}, fi, R_OWNS)
        got = L.items(); assert got == nj[len(nj)-len(got):], (L.q, qj)
        b.fence()
        b.s('s_branch L_att_Rj')
        b.label('L_att_AN'); b.restore(sv4)
    L.begin(0, True); L.set_ost()
    b.barrier()
    L.q = []
    fi = {2: A.c2a() + kvo(), 3: A.c2b()}
    if cfg.burst:
        for k in range(3): fi[4+k] = A.part(2*k) + A.part(2*k+1)
        fi[6] = fi[6] + sum([A.store(k, L) for k in range(6)], [])
    else:
        for k in range(3): fi[4+k] = A.part(2*k) + A.store(2*k, L) + A.part(2*k+1) + A.store(2*k+1, L)
    ex = {9: [pollx]}; ex.setdefault(cfg.sigat-1, []).append(lambda: L.need({'st'})); ex.setdefault(cfg.sigat, []).append(lambda: L.signal(VP))
    r_loader(2, 11, ex, fi, dr=(cfg.sigat-1 if cfg.drain0 else None))
    got = L.items(); assert got == nj[len(nj)-len(got):], (L.q, qj)
    b.fence()
    b.s('s_branch L_att_Rj')
    if usesAF:
        b.label('L_att_AF'); b.restore(sv)
        L.begin(0, True); L.set_ost()
        b.barrier()
        L.q = []
        if cfg.afself: L.setfill(A.c1(), 7)
        else: L.setfill(A.c1(), 14); L.g(3, True, ('g', 3))
        L.g(4, True, ('g', 4)); L.flush()
        b.wait_lgkm(0); b.barrier()
        fi = {2: A.c2a() + kvo() + A.c2b()}
        if cfg.burst:
            for k in range(3): fi[3+k] = A.part(2*k) + A.part(2*k+1)
            fi[5] = fi[5] + sum([A.store(k, L) for k in range(6)], [])
        else:
            for k in range(3): fi[3+k] = A.part(2*k) + A.store(2*k, L) + A.part(2*k+1) + A.store(2*k+1, L)
        f_loader(2, FJ, {FJ-2: [lambda: L.need({'st'})], FJ-1: [lambda: L.signal(VP)]}, fi, dr=(FJ-2 if cfg.drain0 else None))
        assert L.items() == [n for _, n in qFj]
        b.fence()
        b.s('s_branch L_att_Fj')
    b.label('L_att_RG'); b.reset()
    b.s('s_cmp_eq_u32 s40, 7'); b.s('s_cbranch_scc1 L_att_RP')
    b.s('s_cmp_eq_u32 s40, 3'); b.s('s_cbranch_scc1 L_att_RF')
    L.q = list(qj)
    tail(11, {}, 'r', {11: [lambda: L.begin(1, False)]}, 12)
    L.need({'p'})
    q12 = list(L.q)
    b.s('s_cmp_lt_u32 s40, 3'); b.s('s_cbranch_scc1 L_att_RRe')
    b.emit(f'v_cmp_ne_u64 vcc, s[84:85], {vr(VP,2)}', 'valu', (), R(VP, 2))
    b.s('s_cbranch_vccnz L_att_RRl')
    b.label('L_att_RRe')
    tail(12, r_to_r(12), 'r')
    assert L.q == qR, (L.q, qR)
    b.s('s_branch L_att_R')
    b.label('L_att_RRl'); L.q = list(q12)
    tail(12, r_to_r(cfg.lat), 'r', {12: [pollx], cfg.lat: [lambda: (L.need({'p'}), L.check(VP, None))]})
    assert L.q == qR, (L.q, qR)
    b.s('s_branch L_att_R')
    b.label('L_att_RF'); L.q = list(qj)
    tail(11, R_TO_F, 'f', {11: [lambda: kvtouch(1), lambda: L.begin(1, False)], 12: [lambda: (L.need({'p'}), L.check(VP, None))]})
    assert L.q == qF, (L.q, qF)
    b.s('s_branch L_att_F')
    b.label('L_att_RP'); L.q = list(qj)
    def pdma(i):
        if cfg.tlay & 2:
            b.s(f's_add_u32 s58, s33, {3 - i}'); b.s('s_and_b32 s58, s58, 3'); b.s('s_mul_i32 s58, s58, 786432'); b.s('s_add_u32 s58, s58, s78')
        b.s(f's_add_u32 s59, s58, {i*(6291456 if cfg.tlay & 2 else PT)}')
        for k in range(6):
            if k % 2 == 0: b.s(f's_add_u32 m0, s79, {PLDS[i] + k*1024}')
            so, im = pair_off(b, 's59', k, 's39')
            b.dma(A.VO, 20, so, im, ' sc1')
        L.q.append((('n', i), 6))
    def p11():
        b.v('v_lshlrev_b32', A.VO, '4', LANE)
        L.ub('s58', 's40'); b.s(f's_mul_i32 s58, s58, {32*3*PT}'); b.s('s_add_u32 s58, s58, s78')
    if cfg.p11: tail(11, {11: [0], 12: [1], 13: [2]}, 'p', {11: [p11, lambda: (L.need({'p'}), L.check(VP, None))]})
    else: tail(11, R_TO_P, 'p', {11: [p11], 12: [lambda: (L.need({'p'}), L.check(VP, None))]})
    if cfg.otr: b.s(f's_mov_b32 s49, {QROW}'); b.s('s_branch L_out')
    else: b.s('s_endpgm')
    b.reset()
    b.label('L_gem')
    if cfg.prio & 1: b.s('s_setprio 2')
    if cfg.ivw is not None:
        b.s(f's_mov_b32 s86, {(-cfg.ivw) & 0xffffffff}'); b.v('v_mov_b32', 247, '0')
        ob = b.barrier; cnt = [0]
        def nb():
            ob(); cnt[0] += 1
            b.raw('s_cmp_lt_u32 s86, 64'); b.raw(f's_cbranch_scc0 L_iv{cnt[0]}')
            b.raw('s_memtime s[90:91]'); b.raw('s_mov_b32 m0, s86'); b.raw('s_waitcnt lgkmcnt(0)'); b.raw('v_writelane_b32 v247, s90, m0')
            b.raw(f'L_iv{cnt[0]}:'); b.raw('s_add_u32 s86, s86, 1')
        b.barrier = nb
    M = Loader(b, cfg, GB, GT)
    b.s('s_mov_b32 s77, 0')
    gemm_setup(b)
    loader_offsets(b, 2, GB, 2048, 8192, False, GT)
    b.v('v_and_b32', GT, '15', LANE); b.v('v_mul_u32_u24', VQW, str(QROW), GT)
    b.v('v_lshrrev_b32', GT, '4', LANE); b.v('v_lshlrev_b32', GT, '3', GT)
    b.s('s_lshl_b32 s39, s34, 6'); b.s(f's_add_u32 s39, s39, {XB}'); b.v('v_add3_u32', VQW, VQW, GT, 's39')
    b.s('s_add_u32 s39, s2, s34'); b.s('s_cmp_lg_u32 s39, 0'); b.s('s_cbranch_scc1 L_nononce')
    b.raw('s_memrealtime s[50:51]'); b.raw('s_waitcnt lgkmcnt(0)'); b.s('s_or_b32 s50, s50, 1')
    b.v('v_mov_b32', GF, 's50'); b.v('v_mov_b32', GF+1, 's51')
    b.s('s_mov_b64 exec, 1')
    b.emit(f'buffer_store_dwordx2 {vr(GF,2)}, off, s[64:67], 0 sc1', 'vmem', (), R(GF, 2))
    b.s('s_mov_b64 exec, -1')
    b.label('L_nononce')
    if cfg.tlb0:
        M.set_a(); b.s('s_mov_b64 exec, 1')
        b.load1(DUM, GB+3, 8, 's38'); b.load1(DUM, GB+3, 12, 's38')
        b.s('s_mov_b64 exec, -1')
    b.barrier()
    b.fence()
    b.label('L_gem_F')
    nwo = (2 // cfg.wn) if cfg.wopf == 6 else (1 if cfg.half is not None else 0)
    xq = [(None, cfg.kvpf + nwo)] if cfg.kvpf else []
    qf = [(('g', i), 7) for i in (1, 2)] + xq; qg = [(('g', i), 5) for i in range(1, 5)] + xq
    M.q = list(qf) + ([(('g', 3), 7)] if cfg.afself else [])
    g_main(b, cfg, True, M)
    b.s('s_branch L_gem_done')
    b.fence()
    b.label('L_gem_R')
    M.q = list(qg)
    g_main(b, cfg, False, M)
    b.label('L_gem_done')
    phase_stamp(b, cfg)
    sv = b.save()
    b.s('s_cmp_lg_u32 s40, 3'); b.s('s_cbranch_scc1 L_gem_nsw')
    for h in range(2): b.v('v_lshlrev_b32', VXB+h, '4', LANE)
    b.v('v_add_u32', VXB+1, '1024', VXB+1)
    b.label('L_gem_nsw'); b.restore(sv)
    b.s('s_cmp_ge_u32 s40, 4'); b.s('s_cbranch_scc1 L_gem_ot')
    b.s('s_bitcmp1_b32 s32, s40'); b.s('s_cbranch_scc0 L_gem_qg')
    b.s('s_add_u32 s40, s40, 1')
    g_tail(b, q_ops(b)); b.fence()
    b.s('s_branch L_gem_a')
    b.label('L_gem_qg'); b.restore(sv)
    b.s('s_add_u32 s40, s40, 1'); b.s('s_cmp_eq_u32 s40, 4'); b.s('s_cbranch_scc1 L_gem_qf')
    g_fused(b, q_ops(b), False)
    b.label('L_gem_qf'); b.restore(sv)
    g_fused(b, q_ops(b), True)
    b.label('L_gem_ot'); b.restore(sv)
    b.s('s_cmp_eq_u32 s40, 7'); b.s('s_cbranch_scc1 L_gem_fin')
    def pk_ops(qb, base):
        pk = base(qb); o = []
        for nt in range(2):
            a = acc(nt, qb)
            o += [lambda a=a, nt=nt: b.v('v_cvt_pk_bf16_f32', pk+2*nt, a, a+1), lambda a=a, nt=nt: b.v('v_cvt_pk_bf16_f32', pk+2*nt+1, a+2, a+3)]
        return o
    inpl = lambda qb: acc(0, qb)
    def pstore(qb):
        if 'S' in cfg.cut: b.s(f's_mov_b32 s50, {OOB}'); b.s(f's_mov_b32 s51, {OOB}')
        so, im = pair_off(b, 's50', qb, 's51')
        b.store(4, inpl(qb), VXB, 20, so, im, cfg.ppol)
    def paddr():
        M.ub('s39', 's40')
        b.s('s_mul_i32 s50, s33, 786432' if cfg.tlay & 2 else f's_mul_i32 s50, s39, {32*3*PT}'); b.s('s_add_u32 s50, s50, s78')
        b.s('s_lshl_b32 s83, s39, 12'); b.s('s_add_u32 s83, s83, s73')
        b.s('s_and_b32 s39, s40, 3'); b.s(f's_mul_i32 s51, s39, {6291456 if cfg.tlay & 2 else PT}'); b.s('s_add_u32 s50, s50, s51'); b.s('s_add_u32 s51, s50, 4096')
        b.s('s_lshl_b32 s39, s39, 3'); b.s('s_add_u32 s83, s83, s39')
    paddr()
    b.s('s_bitcmp1_b32 s32, s40'); b.s('s_cbranch_scc1 L_gem_pa')
    if cfg.pdirect:
        b.s('s_cmp_eq_u32 s35, 4'); b.s('s_cselect_b32 s37, 1, 0'); b.s('s_add_u32 s40, s40, 1')
        for f in gemm_addr_ops(b, g_base(0, False)): f()
        po = [pk_ops(qb, inpl) + [lambda qb=qb: pstore(qb)] for qb in range(6)]
        x1 = {7+k: [po[0][k]] for k in range(5)}
        x0 = {}
        for qb in range(2, 6):
            x0[2*(qb-2)] = po[qb][:2]; x0[2*(qb-2)+1] = po[qb][2:]
        def mid():
            for f in po[1]: f()
        g_interval(b, RES, False, False, gemm_addr_ops(b, g_base(1, False)), lambda: None, zero=True, x1=x1, x0=x0, mid=mid)
        b.s('s_branch L_gem_R1')
    else:
        b.s('s_add_u32 s40, s40, 1'); b.s(f's_add_u32 s39, s79, {XB}')
        b.v('v_add_u32', GT, 's39', VXB)
        g_fused(b, sum([pk_ops(qb, inpl) + [lambda qb=qb: b.dsw('ds_write_b128', GT, inpl(qb), 4, qb*1024)] for qb in range(6)], []), False)
    b.label('L_gem_pa'); b.restore(sv)
    g_tail(b, sum([pk_ops(qb, inpl) for qb in range(6)], []))
    b.s('s_mov_b32 s77, 1'); b.s('s_add_u32 s40, s40, 1')
    b.fence()
    b.label('L_gem_a'); b.reset()
    M.q = []
    M.set_a()
    b.barrier()
    def a_loader(t0, t1, nxt):
        for t in range(t0, t1):
            if t == 1: M.nonce_load(GF)
            if t == 3: M.poll(GF, 0)
            for p in A_OWN.get(t, []): M.t(p, ('a', p))
            if t == 1 and cfg.pf:
                M.ub('s39', 's40'); b.s('s_mul_i32 s39, s39, 786432'); b.s('s_add_u32 s39, s39, s57')
                b.s('s_cmp_ge_u32 s40, 4'); b.s(f's_cselect_b32 s39, {OOB}, s39')
                b.load1(DUM, GB+3, 4, 's39'); M.other(1)
            if t in (1, 2, 3, 4) and cfg.wopf == 5 and not cfg.w8:
                b.s(f's_add_u32 s58, s34, {4*(t-1)}'); b.s('s_lshl_b32 s39, s58, 17'); b.s('s_add_u32 s39, s39, s87')
                b.s('s_cmp_lt_u32 s58, s101'); b.s(f's_cselect_b32 s39, s39, {OOB}')
                b.s(f's_cmp_eq_u32 s41, {cfg.wat}'); b.s(f's_cselect_b32 s39, s39, {OOB}')
                b.load1(DUM, GB+3, 24, 's39'); M.other(1)
            if t == 2 and cfg.wl2 is not None:
                b.s('s_add_u32 s39, s41, s48'); b.s(f's_cmp_eq_u32 s39, {cfg.wl2}'); b.s(f's_cselect_b32 s39, s87, {OOB}')
                b.load1(DUM, GB+3, 24, 's39'); b.s('s_add_u32 s39, s39, 32768'); b.load1(DUM, GB+3, 24, 's39'); M.other(2)
            if t == 4: M.nonce_get(GF)
            if t == 5: M.begin(0, False)
            if t == cfg.pst and nxt == 'R':
                b.s('s_cmp_eq_u32 s77, 0'); b.s('s_cbranch_scc1 L_gem_nops')
                for qb in range(6): pstore(qb)
                b.s('s_mov_b32 s77, 0'); b.s('s_cmp_eq_u32 s35, 4'); b.s('s_cselect_b32 s37, 1, 0')
                b.label('L_gem_nops')
            if t == 6: M.check(GF, 0)
            if nxt:
                for i in (A_TO_R if nxt == 'R' else A_TO_F).get(t, []): M.g(i, nxt == 'F', ('g', i))
            if t == 8 and cfg.wopf == 5 and cfg.w8:
                lw = M.lab('w8')
                b.s(f's_cmp_lg_u32 s41, {cfg.wat}'); b.s(f's_cbranch_scc1 {lw}'); b.s('s_cmp_lg_u32 s48, 0'); b.s(f's_cbranch_scc1 {lw}')
                for z in range(4):
                    b.s(f's_add_u32 s58, s34, {4*z}'); b.s('s_lshl_b32 s39, s58, 17'); b.s('s_add_u32 s39, s39, s87')
                    b.s('s_cmp_lt_u32 s58, s101'); b.s(f's_cselect_b32 s39, s39, {OOB}')
                    b.load1(DUM, GB+3, 24, 's39')
                b.label(lw)
            if t == 7 and cfg.cpf2 and nxt:
                lc, lp = M.lab('cp'), M.lab('pc')
                b.s('s_bfe_u32 s39, s2, 0x30003'); b.s('s_cmp_lg_u32 s39, 0'); b.s(f's_cbranch_scc1 {lc}')
                sv5 = b.save()
                b.raw('s_getpc_b64 s[58:59]'); b.label(lp)
                b.s(f's_sub_u32 s58, s58, {lp}-L_pc'); b.s('s_subb_u32 s59, s59, 0')
                for z in range(2):
                    b.s(f's_lshl_b32 s39, s34, 13'); b.s(f's_add_u32 s39, s39, {z*32768}')
                    b.v('v_add_u32', GT, 's39', GB+3); b.v('v_min_u32', GT, 'L_code_end-L_pc-4', GT)
                    b.v('v_mov_b32', GT+1, 's59')
                    b.emit(f'v_add_co_u32 v{GT}, vcc, s58, v{GT}', 'valu', {GT}, {GT}); b.nop(2)
                    b.emit(f'v_addc_co_u32 v{GT+1}, vcc, 0, v{GT+1}, vcc', 'valu', {GT+1}, {GT+1})
                    b.emit(f'global_load_dword v{DUM}, v[{GT}:{GT+1}], off', 'vmem', {DUM}, {GT, GT+1})
                b.restore(sv5)
                b.label(lc)
            if t == cfg.helpat and cfg.help and nxt:
                lh = M.lab('hp')
                b.s('s_cmp_lg_u32 s41, 3'); b.s(f's_cbranch_scc1 {lh}'); b.s('s_cmp_lg_u32 s48, 0'); b.s(f's_cbranch_scc1 {lh}')
                b.s('s_lshl_b32 s58, s34, 13'); b.s('s_add_u32 s39, s38, s58'); b.s(f's_add_u32 s39, s39, {(4 << 20) + cfg.helpo}')
                for k in range(cfg.help):
                    if k and k % 2 == 0: b.s('s_add_u32 s39, s39, 32768')
                    b.load1(DUM, GB+3, 8 if k % 2 == 0 else 12, 's39')
                b.label(lh)
            if t == 8 and cfg.kvpf:
                M.ub('s39', 's41', 1); b.s('s_lshl_b32 s39, s39, 24'); b.s('s_add_u32 s39, s39, s46')
                b.s('s_lshl_b32 s58, s34, 13'); b.s('s_add_u32 s39, s39, s58')
                b.s('s_cmp_ge_u32 s41, 3'); b.s(f's_cselect_b32 s39, {OOB}, s39')
                if not cfg.kvpfall: b.s('s_bitcmp1_b32 s32, s40'); b.s(f's_cselect_b32 s39, s39, {OOB}')
                if cfg.wopf == 6:
                    if not cfg.both: b.s(f's_cmp_lt_u32 s41, {cfg.wn}'); b.s(f's_cselect_b32 s39, {OOB}, s39')
                    for z in range(2 // cfg.wn if cfg.wn < 3 else 1):
                        b.s(f's_sub_u32 s58, s41, {cfg.w0}'); b.s(f's_cmp_lt_u32 s58, {cfg.wn}')
                        b.s(f's_cselect_b32 s59, s87, {OOB}'); b.s('s_and_b32 s58, s58, 1'); b.s(f's_add_u32 s58, s58, {z}'); b.s('s_lshl_b32 s58, s58, 15'); b.s('s_add_u32 s58, s58, s59')
                        b.load1(DUM, GB+3, 24, 's58')
                if cfg.half is not None:
                    b.s(f's_cmp_eq_u32 s41, {cfg.half}'); b.s(f's_cselect_b32 s39, {OOB}, s39')
                    b.s(f's_cselect_b32 s58, s87, {OOB}'); b.s('s_add_u32 s58, s58, 32768')
                    b.load1(DUM, GB+3, 24, 's58')
                if cfg.kvsplit:
                    lv, le = M.lab('kv'), M.lab('ke')
                    if cfg.kvmask: b.s(f's_mov_b64 exec, {cfg.kvmask}')
                    b.s(f's_cmp_ge_u32 s34, {cfg.kvsplit}'); b.s(f's_cbranch_scc1 {lv}')
                    b.load1(DUM, GB+3, 8, 's39'); b.s(f's_branch {le}')
                    b.label(lv); b.s(f's_sub_u32 s39, s39, {cfg.kvsplit*8192}'); b.load1(DUM, GB+3, 12, 's39')
                    b.label(le)
                    if cfg.kvmask: b.s('s_mov_b64 exec, -1')
                for k in range(0 if cfg.kvsplit else cfg.kvpf):
                    if k == 2: b.s('s_add_u32 s39, s39, 32768')
                    b.load1(DUM, GB+3, 8 if k % 2 == 0 else 12, 's39', cfg.kvpfpol)
                M.other(cfg.kvpf + nwo)
            M.need(cons_tags('a', 'a', t+1) if t < 8 else {('g', 0)})
            b.barrier()
    a_loader(1, 6, None)
    q5 = list(M.q)
    if usesAF: b.s('s_cmp_eq_u32 s40, 4'); b.s('s_cbranch_scc1 L_gem_AF')
    a_loader(6, 9, 'R')
    assert M.q == qg, (M.q, qg)
    phase_stamp(b, cfg)
    b.s('s_add_u32 s41, s41, 1')
    b.s('s_branch L_gem_R')
    if usesAF:
        b.label('L_gem_AF'); M.q = list(q5)
        a_loader(6, 9, 'F')
        assert M.q == qf, (M.q, qf)
        phase_stamp(b, cfg)
        b.s('s_add_u32 s41, s41, 1')
        if cfg.afself: M.g(3, True, ('g', 3))
        b.s('s_branch L_gem_F')
    b.label('L_gem_fin'); b.restore(sv)
    ID = RES; PF_ = RES + 8; t = GT
    b.s(f's_mov_b32 s49, {QROW}')
    b.v('v_add_u32', VX, 's79', VXB); b.v('v_add_u32', VX+1, str(XB), VX)
    rd = [lambda p=p, qb=qb: b.dsr('ds_read_b128', PF_ + 12*qb + 4*p, 4, VX+1 if p == 0 else VX, (PLDS[p] if p else 0) + qb*1024) for qb in range(6) for p in range(3)]
    u = RES + 84
    idops = [lambda: b.v('v_bfe_u32', u, LANE, '2', '2'), lambda: b.v('v_lshrrev_b32', u+1, '4', LANE),
             lambda: b.emit(f'v_cmp_eq_u32 vcc, {vr(u)}, {vr(u+1)}', 'valu', (), {u, u+1}),
             lambda: b.v('v_and_b32', u, '1', LANE), lambda: b.v('v_lshlrev_b32', u, '4', u), lambda: b.v('v_mov_b32', u+1, '0x3f80'), lambda: b.v('v_lshlrev_b32', u, u, u+1),
             lambda: b.emit(f'v_cndmask_b32 {vr(u)}, 0, {vr(u)}, vcc', 'valu', {u}, {u}),
             lambda: b.v('v_and_b32', u+1, '2', LANE),
             lambda: b.emit(f'v_cmp_eq_u32 vcc, 0, {vr(u+1)}', 'valu', (), {u+1})]
    idops += [lambda k=k: b.v('v_mov_b32', ID+k, '0') for k in (0, 1, 4, 5)]
    idops += [lambda: b.emit(f'v_cndmask_b32 {vr(ID+2)}, 0, {vr(u)}, vcc', 'valu', {ID+2}, {u}), lambda: b.v('v_sub_u32', ID+3, u, ID+2)]
    g_block(b, 1, A1, {k: [rd.pop(0), idops.pop(0)] for k in range(12)})
    for f in idops: f()
    fill = rd + [lambda: b.v('v_and_b32', t, '15', LANE), lambda: b.v('v_lshlrev_b32', t, '12', t),
                 lambda: b.v('v_bfe_u32', t+1, LANE, '4', '1'), lambda: b.v('v_lshl_add_u32', t, t+1, '5', t),
                 lambda: b.v('v_lshrrev_b32', t+1, '5', LANE), lambda: b.v('v_lshl_add_u32', t, t+1, '4', t)]
    OT = 2*PT + 4096
    def epi(qb):
        pk = BF[0] + 4*qb
        if cfg.otr:
            return pk_ops(qb, lambda qb: BF[0] + 4*qb) + [lambda nt=nt: b.dsw('ds_write_b64', t+2, pk+2*nt, 2, qb*16*QROW + nt*32) for nt in range(2)]
        return pk_ops(qb, lambda qb: BF[0] + 4*qb) + [lambda: b.swap16(pk, pk+2), lambda: b.swap16(pk+1, pk+3),
                lambda: (b.store(4, pk, t, 28, 's76', 0, cfg.outpol), b.s(f's_add_u32 s76, s76, {16*4096}'))]
    if cfg.otr: fill = rd + [lambda: b.v('v_add_u32', t+2, str((OT - XB) & 0xffffffff), VQW)]
    for qb in range(6):
        if qb >= 2: fill += epi(qb-2)
        for p in range(1 if 'F' in cfg.cut else 3):
            for nt in range(2):
                b.mfma16(acc(nt, qb), ID + (2 if nt == 0 else 0), PF_ + 12*qb + 4*p, acc(nt, qb))
                if fill: fill.pop(0)()
    for f in fill + epi(4) + epi(5): f()
    if cfg.otr:
        b.fence()
        b.label('L_out')
        b.v('v_lshrrev_b32', 0, '4', LANE); b.s('s_mul_i32 s39, s35, 12'); b.v('v_add_u32', 0, 's39', 0)
        b.v('v_and_b32', 1, '15', LANE); b.v('v_lshlrev_b32', 1, '4', 1)
        b.v('v_mad_u32_u24', 2, 0, 's49', 1); b.v('v_lshl_add_u32', 3, 0, '12', 1)
        b.s('s_lshl_b32 s39, s34, 6'); b.s('s_sub_u32 s76, s76, s39')
        b.s('s_barrier')
        for k in range(3): b.dsr('ds_read_b128', 4+4*k, 4, 2, OT + k*4*QROW)
        for k in range(3):
            b.store(4, 4+4*k, 3, 28, 's76', 0, cfg.outpol); b.s(f's_add_u32 s76, s76, {4*4096}')
    if cfg.padto:
        b.raw('L_pad:'); b.raw('s_memrealtime s[90:91]'); b.raw('s_waitcnt lgkmcnt(0)'); b.raw('s_sub_u32 s90, s90, s88')
        b.raw(f's_cmp_lt_u32 s90, {cfg.padto*100}'); b.raw('s_cbranch_scc1 L_pad')
    stamp_dump(b, cfg)
    b.label('L_k1_end')
    b.s('s_endpgm')
    b.label('L_code_end')
    for task in A.rare: A.rare_block(task)
    return b

def desc(name, nv):
    return f'''.p2align 6
.amdhsa_kernel {name}
  .amdhsa_next_free_vgpr {nv}
  .amdhsa_next_free_sgpr 102
  .amdhsa_accum_offset {nv}
  .amdhsa_group_segment_fixed_size 0
  .amdhsa_kernarg_size 104
  .amdhsa_user_sgpr_count 2
  .amdhsa_user_sgpr_kernarg_segment_ptr 1
  .amdhsa_system_sgpr_workgroup_id_x 1
.end_amdhsa_kernel
'''
def build(path, cfg, which=None):
    B.nodma = cfg.nodma; B.skel = cfg.skel; G['cfg'] = cfg; B.guard = False
    a = k1(cfg)
    s = '; @launch grid=(256,1,1) block=(512,1,1) lds=163840\n.amdgcn_target "amdgcn-amd-amdhsa--gfx950"\n.text\n' + a.text()
    s += '.section .rodata,"a"\n' + desc(NAME + '_kernel', 256)
    open(path, 'w').write(s)
    return a, a
def mk(path, which=('k1', 'k2'), **kw):
    cfg = Cfg()
    for k, v in kw.items():
        assert hasattr(cfg, k), k
        setattr(cfg, k, v)
    return build(path, cfg, which)

if __name__ == '__main__':
    a, c = mk('v10.s')
    print('k1 lines', len(a.lines), 'nops', a.nnop, 'k2 lines', len(c.lines), 'nops', c.nnop)

def M(*n): return sum(1 << (x - 1) for x in n)
```

```python
import gen10
C = [dict(), dict(drain0=False), dict(burst=False), dict(drain0=False, burst=False), dict(drain0=False, burst=False, allfast=False), dict(drain0=False, burst=False, sigat=10),
     dict(burst=False, sigat=10), dict(drain0=False, burst=False, pf=True), dict(drain0=False, burst=False, look=7), dict(drain0=False, burst=False, afself=True, p11=True)]
for i, kw in enumerate(C): gen10.mk('p_%x.s' % i, stamps=True, **kw)
```
